```python
import torch

def _softmax(x, axis=-1):
    return torch.softmax(x, dim=axis)
def _gelu(x):
    return torch.nn.functional.gelu(x, approximate="tanh")
def _silu(x):
    return torch.nn.functional.silu(x)
def _sigmoid(x):
    return torch.sigmoid(x)
def _layernorm(x, axis=-1, eps=1e-5):
    m = x.mean(dim=axis, keepdim=True)
    v = x.var(dim=axis, keepdim=True, unbiased=False)
    return (x - m) / torch.sqrt(v + eps)
def _scatter_add(tgt, idx, src, axis=0):
    return tgt.clone().index_add_(axis, idx, src)
def _segment_sum(src, seg, n):
    out = torch.zeros((n,) + src.shape[1:], dtype=src.dtype)
    return out.index_add_(0, seg, src)
def _pad(x, pw):
    flat = tuple(v for pair in reversed(pw) for v in pair)
    return torch.nn.functional.pad(x, flat)

kernel_name = 'interleave_layers__sliding_block_cached__glu_gated_reglu__decode'

def setup_inputs():

    _w = (lambda a: (lambda t: t.to(torch.bfloat16) if t.is_floating_point() else t)(torch.as_tensor(a)))
    def _A_setup():
        B, Sq, D = 4, 1, 640
        Hq, Hkv, Sk, Dh = 32, 32, 4096, 128
        assert Hq % Hkv == 0, (Hq, Hkv)
        return {
            "x": _w((lambda *s: torch.randn(*s, dtype=torch.bfloat16) * 0.05)(B, Sq, D)),
            "k_cache": _w((lambda *s: torch.randn(*s, dtype=torch.bfloat16) * 0.8)(B, Hkv, Sk, Dh)),
            "v_cache": _w((lambda *s: torch.randn(*s, dtype=torch.bfloat16) * 0.8)(B, Hkv, Sk, Dh)),
            "wq": _w((lambda *s: torch.randn(*s, dtype=torch.bfloat16) * 0.8)(D, Hq * Dh) * (D ** -0.5)),
            "wo": _w((lambda *s: torch.randn(*s, dtype=torch.bfloat16) * 0.8)(Hq * Dh, D) * ((Hq * Dh) ** -0.5)),
        }
    _A_in = _A_setup()

    def _B_setup():
        B, S, D, F = 4, 1, 640, 1728
        return {
            "x": _w((lambda *s: torch.randn(*s, dtype=torch.bfloat16) * 0.05)(B, S, D)),
            "W_gate": _w((lambda *s: torch.randn(*s, dtype=torch.bfloat16) * 0.2)(D, F) * (2.0 / D) ** 0.5),
            "W_up": _w((lambda *s: torch.randn(*s, dtype=torch.bfloat16) * 0.2)(D, F) * (2.0 / D) ** 0.5),
            "W_down": _w((lambda *s: torch.randn(*s, dtype=torch.bfloat16) * 0.2)(F, D) * (1.0 / F) ** 0.5),
        }
    _B_in = _B_setup()

    return {
        "A_x": _A_in["x"],
        "A_k_cache": _A_in["k_cache"],
        "A_v_cache": _A_in["v_cache"],
        "A_wq": _A_in["wq"],
        "A_wo": _A_in["wo"],
        "B_x": _B_in["x"],
        "B_W_gate": _B_in["W_gate"],
        "B_W_up": _B_in["W_up"],
        "B_W_down": _B_in["W_down"],
    }

def reference(A_x, A_k_cache, A_v_cache, A_wq, A_wo, B_x, B_W_gate, B_W_up, B_W_down):
    def _A_ref(x, k_cache, v_cache, wq, wo):
        B, Sq, D = x.shape
        Hq, Dh = 32, 128
        Hkv, Sk = k_cache.shape[1], k_cache.shape[2]
        W = min(4096, max(256, Sk // 4))
        rep = Hq // Hkv
        q = (lambda x, *d: x.permute(*d))((x @ wq).reshape(B, Sq, Hq, Dh), 0, 2, 1, 3)
        k = (lambda x, n, axis: torch.repeat_interleave(x, n, dim=axis))(k_cache[:, :, Sk - W:, :], rep, axis=1)
        v = (lambda x, n, axis: torch.repeat_interleave(x, n, dim=axis))(v_cache[:, :, Sk - W:, :], rep, axis=1)
        scores = torch.einsum("bhqd,bhkd->bhqk", q, k) * (Dh ** -0.5)
        p = _softmax(scores, axis=-1)
        o = torch.einsum("bhqk,bhkd->bhqd", p, v)
        return (lambda x, *d: x.permute(*d))(o, 0, 2, 1, 3).reshape(B, Sq, Hq * Dh) @ wo

    def _B_ref(x, W_gate, W_up, W_down):
        gate = torch.einsum("bsd,df->bsf", x, W_gate)
        up = torch.einsum("bsd,df->bsf", x, W_up)
        gate = gate * (lambda x, dt: x.to(dt))(gate > 0, gate.dtype)
        h = gate * up
        return torch.einsum("bsf,fd->bsd", h, W_down)

    x = A_x
    x = x + _A_ref(_layernorm(x, axis=-1), A_k_cache, A_v_cache, A_wq, A_wo)
    x = x + _B_ref(_layernorm(x, axis=-1), B_W_gate, B_W_up, B_W_down)
    x = x + _A_ref(_layernorm(x, axis=-1), A_k_cache, A_v_cache, A_wq, A_wo)
    x = x + _B_ref(_layernorm(x, axis=-1), B_W_gate, B_W_up, B_W_down)
    return x
```

```python
import re

TRANS = ("v_exp_f32", "v_log_f32", "v_rcp_f32", "v_rsq_f32", "v_sqrt_f32")


def _split_ops(s):
    ops, depth, cur = [], 0, ""
    for ch in s:
        if ch == "[":
            depth += 1
        if ch == "]":
            depth -= 1
        if ch == "," and depth == 0:
            ops.append(cur.strip())
            cur = ""
        else:
            cur += ch
    if cur.strip():
        ops.append(cur.strip())
    return ops


def _regs(op):
    tok = op.split()[0] if op.split() else ""
    tok = tok.lstrip("-").strip("|")
    m = re.fullmatch(r"abs\((.*)\)", tok)
    if m:
        tok = m.group(1)
    m = re.fullmatch(r"([vs])(\d+)", tok)
    if m:
        return {m.group(1) + m.group(2)}
    m = re.fullmatch(r"([vs])\[(\d+):(\d+)\]", tok)
    if m:
        return {m.group(1) + str(i) for i in range(int(m.group(2)), int(m.group(3)) + 1)}
    if tok in ("vcc", "vcc_lo", "vcc_hi"):
        return {"vcc"}
    if tok in ("exec", "exec_lo", "exec_hi"):
        return {"exec"}
    if tok == "m0":
        return {"m0"}
    return set()


class Ins:
    def __init__(self, text):
        self.text = text
        parts = text.split(None, 1)
        self.mn = mn = parts[0]
        ops = _split_ops(parts[1]) if len(parts) > 1 else []
        R = [_regs(o) for o in ops]
        allr = lambda L: set().union(*L) if L else set()
        self.w, self.r = set(), set()
        self.kind = "other"
        self.states = 1
        self.dpp = False
        self.srcc = set()
        self.ab = set()
        self.wide_store = set()
        if mn == "s_nop":
            self.kind = "salu"
            self.states = int(ops[0], 0) + 1
        elif mn.startswith("v_mfma") or mn.startswith("v_smfmac"):
            self.kind = "mfma"
            self.w = R[0]
            self.ab = R[1] | R[2]
            self.srcc = R[3]
            if mn.startswith("v_smfmac"):
                self.ab |= R[3]
                self.srcc = R[0]
            self.r = self.ab | self.srcc
        elif mn.startswith("v_"):
            self.kind = "valu"
            self.w = set(R[0])
            self.r = allr(R[1:])
            if mn.startswith("v_permlane") and "swap" in mn:
                self.w = R[0] | R[1]
                self.r = R[0] | R[1]
            if mn.startswith(("v_fmac", "v_dot2c", "v_writelane")):
                self.r |= R[0]
            if mn.startswith(("v_add_co", "v_sub_co", "v_addc_co")):
                self.w |= R[1]
                self.r = allr(R[2:])
            if "_dpp" in mn:
                self.dpp = True
                self.r |= R[0]
        elif mn.startswith(("global_", "buffer_")):
            self.kind = "vmem"
            if "load_lds" in mn or text.rstrip().endswith(" lds"):
                self.r = allr(R) | {"m0"}
                self.kind = "vmem"
                self.ldsdma = True
            elif "load" in mn:
                self.w = R[0]
                self.r = allr(R[1:])
            elif "atomic" in mn and " sc0" in text:
                self.w = R[0]
                self.r = allr(R[1:])
            else:
                self.r = allr(R)
                if "x4" in mn or "x3" in mn:
                    self.wide_store = R[1] if mn.startswith("global_") else R[0]
        elif mn.startswith("ds_"):
            self.kind = "ds"
            if mn.startswith(("ds_read", "ds_bpermute", "ds_swizzle")):
                self.w = R[0]
                self.r = allr(R[1:])
            else:
                self.r = allr(R)
        elif mn.startswith("s_"):
            self.kind = "salu"
            if mn.startswith(("s_cmp", "s_cbranch", "s_branch", "s_waitcnt", "s_barrier", "s_endpgm",
                              "s_setprio", "s_sleep", "s_bitcmp")):
                self.r = allr(R)
            else:
                self.w = R[0] if R else set()
                self.r = allr(R[1:])
        self.trans = mn.replace("_e32", "").replace("_e64", "") in TRANS
        self.dot = mn.startswith("v_dot")
        self.ldsdma = getattr(self, "ldsdma", False)


def need(p, c):
    n = 0
    vw = {x for x in p.w if x[0] == "v" and x != "vcc"}
    sw = {x for x in p.w if x[0] == "s" or x == "vcc"}
    if p.kind == "valu":
        if c.kind == "mfma" and vw & c.r:
            n = max(n, 3 if p.dot else 2)
        if c.kind == "valu":
            if c.dpp and vw & c.r:
                n = max(n, 2)
            if c.mn.startswith("v_permlane") and vw & c.r:
                n = max(n, 2)
            if c.mn.startswith(("v_readlane", "v_readfirstlane")) and vw & c.r:
                n = max(n, 1)
            if p.trans and not c.trans and vw & c.r:
                n = max(n, 1)
            if sw & c.r:
                n = max(n, 4 if c.mn.startswith(("v_readlane", "v_writelane")) else 2)
            if c.mn.startswith("v_cndmask") and "vcc" in sw:
                n = max(n, 2)
            if p.dot and vw & (c.r | c.w):
                ops = _split_ops(c.text.split(None, 1)[1])
                chain = c.mn == p.mn and not (vw & (_regs(ops[1]) | _regs(ops[2])))
                if not chain:
                    n = max(n, 3)
        if c.kind in ("vmem", "ds") and p.dot and vw & c.r:
            n = max(n, 3)
        if c.kind == "vmem" and sw & c.r:
            n = max(n, 5)
        if c.kind == "salu" and sw & c.r and not c.mn.startswith("s_cbranch"):
            n = max(n, 1)
    if p.kind == "mfma":
        big = False
        if c.kind == "mfma":
            if vw & c.ab:
                n = max(n, 12 if big else 8)
            if vw & c.srcc and not (c.srcc == vw and c.mn == p.mn):
                n = max(n, 10 if big else 6)
            if vw & c.w and not (vw & c.srcc):
                n = max(n, 10 if big else 6)
        elif c.kind in ("valu", "vmem", "ds"):
            if vw & (c.r | c.w):
                n = max(n, 12 if big else 8)
            if c.kind == "valu" and p.srcc & c.w:
                n = max(n, 7 if big else 3)
    if p.kind == "salu" and "m0" in p.w and c.ldsdma:
        n = max(n, 1)
    if p.wide_store and p.wide_store & c.w:
        n = max(n, 2)
    return n


class Asm:
    def __init__(self):
        self.out = []
        self.hist = []
        self.nops = 0
        self.uid = 0

    def raw(self, s):
        self.out.append(s)

    def c(self, s):
        self.out.append("    ; " + s)

    def __call__(self, text):
        for line in text.strip().split("\n"):
            line = line.split(";")[0].strip()
            if not line:
                continue
            if line.endswith(":"):
                self.label(line[:-1])
                continue
            ins = Ins(line)
            dist, pad = 0, 0
            for p in reversed(self.hist):
                pad = max(pad, need(p, ins) - dist)
                dist += p.states
                if dist >= 16:
                    break
            if pad > 0:
                self.nops += pad
                nop = Ins("s_nop %d" % (pad - 1))
                self.hist.append(nop)
                self.out.append("    " + nop.text)
            self.hist.append(ins)
            self.out.append("    " + line)
            if ins.mn in ("s_branch", "s_endpgm"):
                self.hist = []

    def label(self, name):
        self.out.append(name + ":")

    def newlabel(self, base="L"):
        self.uid += 1
        return "%s_%d" % (base, self.uid)

    def align(self, n):
        self.out.append(".p2align %d" % n)

    def text(self):
        return "\n".join(self.out) + "\n"
```

```python
import math
import struct
import sys

sys.path.insert(0, "gen")
from asmlib import Asm

NAME = "interleave_layers__sliding_block_cached__glu_gated_reglu__decode"

OPT = dict(diag=0, thr=4, force_global=0)
for a_ in sys.argv[2:]:
    k_, v_ = a_.split("=")
    OPT[k_] = int(v_)
DIAG = OPT["diag"]
THR = OPT["thr"]

QB, OB, LSE, HB, XA, XF, PB2, PB1 = 0, 32768, 98304, 99328, 115712, 156672, 197632, 279552
LSTRIDE = 655360
Q1 = 2 * LSTRIDE
DIAG_OFF = 16 << 20

L_WQ, L_WG, L_WU, L_WO, L_WD = 0, 20480, 30720, 40960, 61440
L_OW, L_ML, L_Q, L_FLAG = 75776, 80128, 81152, 81408
OWS = 544
LDS_BYTES = 81920

W, G, J, LAYER, LOCAL = "s3", "s4", "s5", "s6", "s7"
pX, pK, pV, pWQ, pWO, pWG, pWU, pWD, pOUT, pDBG, pWS = 8, 10, 12, 14, 16, 20, 22, 24, 26, 28, 30
KB, VB, TB = 32, 34, 36
T0, T1, T2 = "s38", "s39", "s49"
CSC, PLO, PHI, SPIN = "s40", "s41", "s42", "s43"
MSK = 44
EX = 46
XCC = "s48"
OBM = 52
ONES, H, TILE, BB = "s54", "s55", "s56", "s57"
M4 = 58
STAMP0 = 60

def sp(n):
    return "s[%d:%d]" % (n, n + 1)

def v(n, cnt=1):
    return "v%d" % n if cnt == 1 else "v[%d:%d]" % (n, n + cnt - 1)

def f32(x):
    return "0x%08x" % struct.unpack("<I", struct.pack("<f", x))[0]

DPP = "row_mask:0xf bank_mask:0xf"
MFMA = "v_mfma_f32_16x16x32_bf16"
SPIN_MAX = 1 << 18

KREG, VREG, SREG = 128, 192, 64

a = Asm()


def stamp(i):
    if not DIAG:
        return
    l1, l2 = a.newlabel("ST"), a.newlabel("ST")
    a(f"""
    s_cmp_eq_u32 {LAYER}, 0
    s_cbranch_scc1 {l1}
    s_memrealtime {sp(STAMP0 + 20 + 2 * i)}
    s_branch {l2}
    {l1}:
    s_memrealtime {sp(STAMP0 + 2 * i)}
    {l2}:
    """)


def add64(dst, src, off):
    a(f"s_add_u32 s{dst}, s{src}, {off}\ns_addc_u32 s{dst + 1}, s{src + 1}, 0")


def store_local(ins):
    lg, le = a.newlabel("SG"), a.newlabel("SE")
    a(f"""
    s_cmp_eq_u32 {LOCAL}, 0
    s_cbranch_scc1 {lg}
    {ins}
    s_branch {le}
    {lg}:
    {ins} sc1
    {le}:
    """)


def check_ops(regs, tmp):
    ops = []
    regs = list(regs)
    if len(regs) == 1:
        ops.append(f"v_cmp_eq_u32 vcc, -1, {v(regs[0])}")
        return ops
    if len(regs) == 2:
        ops.append(f"v_max_u32 {v(tmp)}, {v(regs[0])}, {v(regs[1])}")
    else:
        ops.append(f"v_max3_u32 {v(tmp)}, {v(regs[0])}, {v(regs[1])}, {v(regs[2])}")
        rest = regs[3:]
        while len(rest) >= 2:
            ops.append(f"v_max3_u32 {v(tmp)}, {v(tmp)}, {v(rest[0])}, {v(rest[1])}")
            rest = rest[2:]
        if rest:
            ops.append(f"v_max_u32 {v(tmp)}, {v(tmp)}, {v(rest[0])}")
    ops.append(f"v_cmp_eq_u32 vcc, -1, {v(tmp)}")
    return ops


def retry(loop):
    ok = a.newlabel("OK")
    a(f"""
    s_cbranch_vccz {ok}
    s_sub_u32 {SPIN}, {SPIN}, 1
    s_cbranch_scc0 {loop}
    {ok}:
    """)


def interleave(main, fill, per):
    fill = list(fill)
    for m in main:
        a(m)
        for _ in range(per):
            if fill:
                a(fill.pop(0))
    for f in fill:
        a(f)


def thr_wait(n=None):
    n = THR if n is None else n
    if n:
        a(f"s_waitcnt vmcnt({n - 1})")


def k_loads(t, vK):
    for kq in range(4):
        for hf in range(2):
            r = KREG + ((t * 4 + kq) * 2 + hf) * 4
            a(f"global_load_dwordx4 {v(r, 4)}, {v(vK)}, {sp(KB)} offset:{kq * 2048 + hf * 128 - 4096} nt")
            thr_wait()


def v_loads(t, vV):
    for i in range(8):
        a(f"global_load_dwordx4 {v(SREG + t * 32 + i * 4, 4)}, {v(vV)}, {sp(VB)} offset:{i * 1024 - 4096} nt")


def dma(n, vaddr, lds0, step, lds_sreg=None, throttle=True):
    for i in range(n):
        if lds_sreg is None:
            a(f"s_mov_b32 m0, {lds0 + i * 1024}")
        else:
            a(f"s_add_u32 m0, {lds_sreg}, {lds0 + i * 1024}")
        a(f"global_load_lds_dwordx4 {v(vaddr)}, {sp(TB)} nt")
        add64(TB, TB, step)
        if throttle:
            thr_wait()


gA, gX, gACC = 48, 28, 12
gXA, gST, gS1, gS2, gCHK, gCS = 1, 2, 3, 4, 5, 8


def gemv_load_a(kind):
    t0, t1 = gX, gX + 1
    if kind == "q":
        a(f"""
        v_lshrrev_b32 {v(t0)}, 4, v0
        v_bfe_u32 {v(t1)}, v0, 2, 2
        v_lshl_add_u32 {v(t0)}, {v(t0)}, 3, {v(t1)}
        v_and_b32 {v(t1)}, 3, v0
        v_lshlrev_b32 {v(t1)}, 3, {v(t1)}
        v_lshl_add_u32 {v(t0)}, {v(t0)}, 5, {v(t1)}
        """)
        for s in range(20):
            a(f"ds_read_b64_tr_b16 {v(gA + 4 * s, 2)}, {v(t0)} offset:{L_WQ + s * 1024}")
            a(f"ds_read_b64_tr_b16 {v(gA + 4 * s + 2, 2)}, {v(t0)} offset:{L_WQ + s * 1024 + 128}")
    else:
        a(f"""
        v_lshrrev_b32 {v(t0)}, 4, v0
        v_bfe_u32 {v(t1)}, v0, 2, 2
        v_lshl_add_u32 {v(t0)}, {v(t0)}, 3, {v(t1)}
        v_and_b32 {v(t1)}, 1, v0
        v_lshlrev_b32 {v(t1)}, 3, {v(t1)}
        v_lshl_add_u32 {v(t0)}, {v(t0)}, 4, {v(t1)}
        v_bfe_u32 {v(t1)}, v0, 1, 1
        v_mul_u32_u24 {v(t1)}, {L_WU - L_WG}, {v(t1)}
        v_add_u32 {v(t0)}, {v(t0)}, {v(t1)}
        """)
        for s in range(20):
            a(f"ds_read_b64_tr_b16 {v(gA + 4 * s, 2)}, {v(t0)} offset:{L_WG + s * 512}")
            a(f"ds_read_b64_tr_b16 {v(gA + 4 * s + 2, 2)}, {v(t0)} offset:{L_WG + s * 512 + 64}")
    on = gACC
    for i in range(4):
        a(f"v_mov_b32 {v(on + i)}, {ONES}")
    a("s_waitcnt lgkmcnt(0)")
    for s in range(20):
        a(f"{MFMA} {v(gCS, 4)}, {v(gA + 4 * s, 4)}, {v(on, 4)}, {'0' if s == 0 else v(gCS, 4)}")


def gemv_xaddr(off):
    t = gX
    a(f"""
    v_bfe_u32 {v(gXA)}, v0, 2, 2
    v_lshlrev_b32 {v(gXA)}, 8, {v(gXA)}
    v_lshrrev_b32 {v(t)}, 5, v0
    v_lshl_add_u32 {v(gXA)}, {v(t)}, 7, {v(gXA)}
    v_and_b32 {v(t)}, 3, v0
    v_lshl_add_u32 {v(gXA)}, {v(t)}, 5, {v(gXA)}
    v_and_b32 {v(t)}, 16, v0
    v_add_u32 {v(gXA)}, {v(gXA)}, {v(t)}
    s_mul_i32 {T0}, {G}, 5120
    s_add_u32 {T0}, {T0}, {off + 2048}
    v_add_u32 {v(gXA)}, {T0}, {v(gXA)}
    """)


def gemv_main(poll, st=None):
    mf = lambda u, q: (f"{MFMA} {v(gACC + 4 * q, 4)}, {v(gA + 4 * (4 * u + q), 4)}, {v(gX + 4 * u, 4)}, "
                       f"{'0' if u == 0 else v(gACC + 4 * q, 4)}")
    if poll:
        loop = a.newlabel("PX")
        a(f"s_mov_b32 {SPIN}, {SPIN_MAX}")
        a.label(loop)
        for u in range(5):
            a(f"global_load_dwordx4 {v(gX + 4 * u, 4)}, {v(gXA)}, {sp(EX)} offset:{u * 1024 - 2048} sc1")
        a("s_waitcnt vmcnt(0)")
        interleave([mf(0, q) for q in range(4)], check_ops(range(gX, gX + 20), gCHK), 3)
        retry(loop)
        if st is not None:
            stamp(st)
    else:
        for q in range(4):
            a(mf(0, q))
    dots = []
    for i in range(20):
        dots.append(f"v_dot2_f32_bf16 {v(gS1)}, {v(gX + i)}, {ONES}, {'0' if i == 0 else v(gS1)}")
        dots.append(f"v_dot2_f32_bf16 {v(gS2)}, {v(gX + i)}, {v(gX + i)}, {'0' if i == 0 else v(gS2)}")
    interleave([mf(u, q) for u in range(1, 5) for q in range(4)], dots, 3)
    t1, t2 = 6, 7
    a(f"""
    v_add_f32_dpp {v(gS1)}, {v(gS1)}, {v(gS1)} row_ror:4 {DPP}
    v_add_f32_dpp {v(gS2)}, {v(gS2)}, {v(gS2)} row_ror:4 {DPP}
    v_add_f32_dpp {v(gS1)}, {v(gS1)}, {v(gS1)} row_ror:8 {DPP}
    v_add_f32_dpp {v(gS2)}, {v(gS2)}, {v(gS2)} row_ror:8 {DPP}
    v_mov_b32 {v(t1)}, {v(gS1)}
    v_mov_b32 {v(t2)}, {v(gS2)}
    """)
    q_red = []
    for q in range(1, 4):
        for i in range(4):
            q_red.append(f"v_add_f32_dpp {v(gACC + i)}, {v(gACC + 4 * q + i)}, {v(gACC + i)} row_shl:{4 * q} {DPP}")
    seq = [
        f"v_permlane32_swap_b32 {v(gS1)}, {v(t1)}",
        f"v_permlane32_swap_b32 {v(gS2)}, {v(t2)}",
        f"v_add_f32 {v(gS1)}, {v(gS1)}, {v(t1)}",
        f"v_add_f32 {v(gS2)}, {v(gS2)}, {v(t2)}",
        f"v_mov_b32 {v(t1)}, {v(gS1)}",
        f"v_mov_b32 {v(t2)}, {v(gS2)}",
        q_red[0], q_red[1],
        f"v_permlane16_swap_b32 {v(gS1)}, {v(t1)}",
        f"v_permlane16_swap_b32 {v(gS2)}, {v(t2)}",
        q_red[2], q_red[3],
        f"v_add_f32 {v(gS1)}, {v(gS1)}, {v(t1)}",
        f"v_add_f32 {v(gS2)}, {v(gS2)}, {v(t2)}",
        q_red[4],
        f"v_mul_f32 {v(gS1)}, {f32(1.0 / 640)}, {v(gS1)}",
        f"v_mul_f32 {v(gS2)}, {f32(1.0 / 640)}, {v(gS2)}",
        q_red[5],
        f"v_fma_f32 {v(gS2)}, -{v(gS1)}, {v(gS1)}, {v(gS2)}",
        q_red[6],
        f"v_max_f32 {v(gS2)}, 0, {v(gS2)}",
        q_red[7],
        f"v_add_f32 {v(gS2)}, {f32(1e-5)}, {v(gS2)}",
        q_red[8],
        f"v_rsq_f32 {v(gS2)}, {v(gS2)}",
        q_red[9], q_red[10], q_red[11],
    ]
    for s in seq:
        a(s)
    for i in range(4):
        a(f"v_fma_f32 {v(gACC + i)}, -{v(gS1)}, {v(gCS + i)}, {v(gACC + i)}")
    for i in range(4):
        a(f"v_mul_f32 {v(gACC + i)}, {v(gS2)}, {v(gACC + i)}")
    a(f"v_cvt_pk_bf16_f32 {v(gACC)}, {v(gACC)}, {v(gACC + 1)}")
    a(f"v_cvt_pk_bf16_f32 {v(gACC + 1)}, {v(gACC + 2)}, {v(gACC + 3)}")


def q_store_addr(off):
    t = gX
    a(f"""
    v_and_b32 {v(gST)}, 3, v0
    v_lshlrev_b32 {v(gST)}, 10, {v(gST)}
    v_lshrrev_b32 {v(t)}, 4, v0
    v_lshl_add_u32 {v(gST)}, {v(t)}, 3, {v(gST)}
    s_lshl_b32 {T0}, {G}, 12
    s_lshl_b32 {T1}, {J}, 5
    s_add_u32 {T0}, {T0}, {T1}
    s_add_u32 {T0}, {T0}, {off}
    v_add_u32 {v(gST)}, {T0}, {v(gST)}
    """)


def q_read_addr(reg, off):
    a(f"""
    s_lshl_b32 {T0}, {G}, 12
    s_lshl_b32 {T1}, {BB}, 10
    s_add_u32 {T0}, {T0}, {T1}
    s_lshr_b32 {T1}, {J}, 3
    s_lshl_b32 {T1}, {T1}, 8
    s_add_u32 {T0}, {T0}, {T1}
    s_add_u32 {T0}, {T0}, {off}
    v_lshl_add_u32 {v(reg)}, v0, 2, {T0}
    """)


def tile_tr_addr(reg, tmp, base_sreg):
    a(f"""
    v_lshrrev_b32 {v(reg)}, 4, v0
    v_bfe_u32 {v(tmp)}, v0, 2, 2
    v_lshl_add_u32 {v(reg)}, {v(reg)}, 3, {v(tmp)}
    v_and_b32 {v(tmp)}, 3, v0
    v_lshlrev_b32 {v(tmp)}, 3, {v(tmp)}
    v_lshl_add_u32 {v(reg)}, {v(reg)}, 5, {v(tmp)}
    v_add_u32 {v(reg)}, {base_sreg}, {v(reg)}
    """)


def piece_addr(reg, tmp, base_sreg):
    a(f"""
    v_and_b32 {v(reg)}, 3, v0
    v_lshlrev_b32 {v(reg)}, 6, {v(reg)}
    v_and_b32 {v(tmp)}, 48, v0
    v_add3_u32 {v(reg)}, {v(reg)}, {v(tmp)}, {base_sreg}
    """)


rX0, rX1 = 14, 15


def red(npart, src_off, dst_off, st):
    nl = npart // 4
    rL, rA, rS, rT = 64, 10, 11, 12
    a(f"""
    s_mul_i32 {T0}, {TILE}, {npart * 256}
    s_add_u32 {T0}, {T0}, {src_off + (4096 if nl > 4 else 0)}
    v_lshl_add_u32 {v(rA)}, v0, 4, {T0}
    s_mov_b32 {SPIN}, {SPIN_MAX}
    """)
    return nl, rL, rA, rS, rT


def red_poll(nl, rL, rA, rS, rT, st):
    loop = a.newlabel("PR")
    a.label(loop)
    for i in range(nl):
        a(f"global_load_dwordx4 {v(rL + 4 * i, 4)}, {v(rA)}, {sp(EX)} offset:{i * 1024 - (4096 if nl > 4 else 0)} sc1")
    a("s_waitcnt vmcnt(0)")
    for s in check_ops(range(rL, rL + 4 * nl), rT):
        a(s)
    retry(loop)
    stamp(st)
    n = nl
    while n > 1:
        for i in range(n // 2):
            d, s = rL + 4 * i, rL + 4 * (i + n // 2)
            a(f"v_pk_add_f32 {v(d, 2)}, {v(d, 2)}, {v(s, 2)}")
            a(f"v_pk_add_f32 {v(d + 2, 2)}, {v(d + 2, 2)}, {v(s + 2, 2)}")
        n //= 2
    a(f"""
    v_permlane32_swap_b32 {v(rL)}, {v(rL + 2)}
    v_permlane32_swap_b32 {v(rL + 1)}, {v(rL + 3)}
    v_pk_add_f32 {v(rL, 2)}, {v(rL, 2)}, {v(rL + 2, 2)}
    v_mov_b32 {v(rL + 2)}, {v(rL)}
    v_mov_b32 {v(rL + 3)}, {v(rL + 1)}
    v_permlane16_swap_b32 {v(rL)}, {v(rL + 2)}
    v_permlane16_swap_b32 {v(rL + 1)}, {v(rL + 3)}
    v_pk_add_f32 {v(rL, 2)}, {v(rL, 2)}, {v(rL + 2, 2)}
    v_cvt_pk_bf16_f32 {v(rL)}, {v(rL)}, {v(rL + 1)}
    v_and_b32 {v(rL + 1)}, 0xffff0000, {v(rL)}
    v_lshlrev_b32 {v(rL)}, 16, {v(rL)}
    v_pk_add_f32 {v(rL, 2)}, {v(rL, 2)}, {v(rX0, 2)}
    v_cvt_pk_bf16_f32 {v(rL)}, {v(rL)}, {v(rL + 1)}
    """)
    return rL


def red_dst_addr(reg, tmp, off):
    a(f"""
    s_mul_i32 {T0}, {G}, 5120
    s_lshl_b32 {T1}, {TILE}, 7
    s_add_u32 {T0}, {T0}, {T1}
    s_add_u32 {T0}, {T0}, {off}
    v_and_b32 {v(reg)}, 15, v0
    v_lshlrev_b32 {v(reg)}, 3, {v(reg)}
    v_lshrrev_b32 {v(tmp)}, 5, v0
    v_lshl_add_u32 {v(reg)}, {v(tmp)}, 2, {v(reg)}
    v_add_u32 {v(reg)}, {T0}, {v(reg)}
    """)


def xio_addr(reg, tmp):
    a(f"""
    v_bfe_u32 {v(reg)}, v0, 2, 2
    v_mul_u32_u24 {v(reg)}, 1280, {v(reg)}
    v_and_b32 {v(tmp)}, 3, v0
    v_lshl_add_u32 {v(reg)}, {v(tmp)}, 3, {v(reg)}
    v_lshrrev_b32 {v(tmp)}, 5, v0
    v_lshl_add_u32 {v(reg)}, {v(tmp)}, 2, {v(reg)}
    s_lshl_b32 {T0}, {TILE}, 5
    v_add_u32 {v(reg)}, {T0}, {v(reg)}
    """)


def publish_x(rL, rS):
    a(f"""
    v_and_b32 {v(rX1)}, 0xffff0000, {v(rL)}
    v_lshlrev_b32 {v(rX0)}, 16, {v(rL)}
    """)


hdr = open("cdna_kernels/%s.s.ref" % NAME).read().split("\n")
for line in hdr:
    if line.startswith("; @launch"):
        a.raw("; @launch grid=(256,1,1) block=(512,1,1) lds=%d" % LDS_BYTES)
    elif line.startswith(";"):
        a.raw(line)
    else:
        break
a.raw('.amdgcn_target "amdgcn-amd-amdhsa--gfx950"')
a.raw(".text")
a.raw(".globl %s_kernel" % NAME)
a.raw(".p2align 8")
a.raw(".type %s_kernel,@function" % NAME)
a.raw("%s_kernel:" % NAME)

vK, vV = 1, 2
a(f"""
    s_cmp_ge_u32 s2, 256
    s_cbranch_scc1 L_END
    s_load_dwordx16 s[8:23], s[0:1], 0
    s_load_dwordx8 s[24:31], s[0:1], 64
    s_mov_b32 {LAYER}, 0
""")
if DIAG:
    for i in range(20):
        a(f"s_mov_b64 {sp(STAMP0 + 2 * i)}, 0")
    a(f"s_memrealtime {sp(STAMP0 + 18)}")
a(f"""
    v_lshrrev_b32 v1, 6, v0
    v_and_b32 v0, 63, v0
    v_readfirstlane_b32 {W}, v1
    s_and_b32 {G}, s2, 7
    s_lshr_b32 {J}, s2, 3
    s_lshr_b32 {T0}, {J}, 3
    s_lshl_b32 {H}, {G}, 2
    s_add_u32 {H}, {H}, {T0}
    s_bfe_u32 {BB}, {J}, 0x20001
    s_lshl_b32 {T0}, {BB}, 25
    s_lshl_b32 {T1}, {H}, 20
    s_add_u32 {T0}, {T0}, {T1}
    s_and_b32 {T1}, {J}, 1
    s_lshl_b32 {T1}, {T1}, 17
    s_add_u32 {T0}, {T0}, {T1}
    s_lshl_b32 {T1}, {W}, 13
    s_add_u32 {T0}, {T0}, {T1}
    s_add_u32 {T2}, {T0}, {0xC0000 + 4096}
    v_bfe_u32 v3, v0, 1, 1
    v_bfe_u32 v4, v0, 2, 2
    v_lshl_add_u32 v3, v3, 2, v4
    v_lshlrev_b32 v3, 8, v3
    v_and_b32 v4, 1, v0
    v_lshl_add_u32 v3, v4, 6, v3
    v_and_b32 v4, 48, v0
    v_add_u32 {v(vK)}, v3, v4
    v_lshlrev_b32 {v(vV)}, 4, v0
    s_mov_b32 {CSC}, {f32(math.log2(math.e) / math.sqrt(128.0))}
    s_mov_b32 {PLO}, 0x05040100
    s_mov_b32 {PHI}, 0x07060302
    s_mov_b32 {ONES}, 0x3f803f80
    s_mov_b32 s{M4}, 0x000f000f
    s_mov_b32 s{M4 + 1}, 0x000f000f
    s_mov_b32 s{OBM}, 0x01010101
    s_mov_b32 s{OBM + 1}, 0x01010101
    s_cmp_eq_u32 {W}, 0
    s_cselect_b32 s{OBM}, 0x01010103, s{OBM}
    s_waitcnt lgkmcnt(0)
""")
add64(KB, pK, T2)
add64(VB, pV, T2)
a(f"s_mov_b32 s{EX}, s{pWS}\ns_mov_b32 s{EX + 1}, s{pWS + 1}")
a(f"""
    s_and_b32 {T0}, {J}, 7
    s_add_u32 {T0}, {T0}, 32
    s_cmp_eq_u32 {W}, 1
    s_cselect_b32 {TILE}, {T0}, {J}
    s_cmp_eq_u32 {W}, 6
    s_cselect_b32 {TILE}, {T0}, {TILE}
    s_cmp_eq_u32 {W}, 7
    s_cbranch_scc1 L_PRO7
""")
vR = 3
a(f"""
    v_lshrrev_b32 v4, 1, v0
    v_mul_u32_u24 {v(vR)}, 1280, v4
    v_and_b32 v5, 1, v0
    v_lshl_add_u32 {v(vR)}, v5, 4, {v(vR)}
    s_cmp_ge_u32 {W}, 5
    s_cbranch_scc1 L_PRO56
""")
a.c("waves 0..4: residual tile, wo tile, part of W_gate / W_up")
xio_addr(6, 7)
a(f"global_load_dword {v(rX0)}, v6, {sp(pX)}")
a(f"""
    s_and_b32 {T0}, {J}, 7
    s_mul_i32 {T0}, {T0}, 5
    s_add_u32 {T0}, {T0}, {W}
    s_lshl_b32 {T0}, {T0}, 5
    s_mul_i32 {T1}, {H}, {128 * 1280}
    s_add_u32 {T0}, {T0}, {T1}
""")
add64(TB, pWO, T0)
a(f"s_lshl_b32 {T2}, {W}, 12")
dma(4, vR, L_WO, 32 * 1280, lds_sreg=T2)
a(f"""
    v_mul_u32_u24 v6, 3456, v0
    s_max_u32 {T0}, {J}, 5
    s_sub_u32 {T0}, {T0}, 5
    s_lshl_b32 {T0}, {T0}, 4
    s_mul_i32 {T1}, {G}, 432
    s_add_u32 {T0}, {T0}, {T1}
    s_mul_i32 {T1}, {W}, {128 * 3456}
    s_add_u32 {T1}, {T0}, {T1}
    s_lshl_b32 {T2}, {W}, 11
""")
add64(TB, pWG, T1)
dma(2, 6, L_WG, 64 * 3456, lds_sreg=T2)
add64(TB, pWU, T1)
dma(2, 6, L_WU, 64 * 3456, lds_sreg=T2)
a(f"""
    s_waitcnt vmcnt(8)
    v_and_b32 {v(rX1)}, 0xffff0000, {v(rX0)}
    v_lshlrev_b32 {v(rX0)}, 16, {v(rX0)}
    s_branch L_PROKV
L_PRO56:
""")
a.c("waves 5,6: W_down tile")
a(f"""
    s_mul_i32 {T0}, {G}, {216 * 1280}
    s_lshl_b32 {T1}, {TILE}, 5
    s_add_u32 {T0}, {T0}, {T1}
    s_sub_u32 {T2}, {W}, 5
    s_mul_i32 {T2}, {T2}, 7168
    v_min_u32 v4, 23, v4
    v_mul_u32_u24 v6, 1280, v4
    v_lshl_add_u32 v6, v5, 4, v6
""")
add64(TB, pWD, T0)
dma(6, vR, L_WD, 32 * 1280, lds_sreg=T2)
dma(1, 6, L_WD + 6 * 1024, 0, lds_sreg=T2)
a.label("L_PROKV")
k_loads(0, vK)
add64(KB, KB, 65536)
k_loads(1, vK)
v_loads(0, vV)
a("s_branch L_LOOP")

a.label("L_PRO7")
a(f"""
    v_and_b32 v3, 3, v0
    v_mul_u32_u24 v3, 1280, v3
    v_bfe_u32 v4, v0, 2, 2
    v_lshl_add_u32 v3, v4, 6, v3
    v_and_b32 v4, 48, v0
    v_add_u32 v3, v3, v4
""")
XT = 192
for u in range(5):
    a(f"global_load_dwordx4 {v(XT + 4 * u, 4)}, v3, {sp(pX)} offset:{u * 256}")
a(f"""
    v_lshrrev_b32 v4, 1, v0
    v_lshlrev_b32 v4, 13, v4
    v_and_b32 v5, 1, v0
    v_lshl_add_u32 v4, v5, 4, v4
    s_lshl_b32 {T0}, {G}, 10
    s_lshl_b32 {T1}, {J}, 5
    s_add_u32 {T0}, {T0}, {T1}
""")
add64(TB, pWQ, T0)
dma(20, 4, L_WQ, 32 * 8192, throttle=False)
a(f"""
    s_mul_i32 {T0}, s2, 5120
    s_add_u32 {T0}, {T0}, 2048
    v_lshl_add_u32 v3, v0, 4, {T0}
    v_mov_b32 v4, -1
    v_mov_b32 v5, -1
    v_mov_b32 v6, -1
    v_mov_b32 v7, -1
""")
for u in range(5):
    a(f"global_store_dwordx4 v3, v[4:7], {sp(pWS)} offset:{u * 1024 - 2048} sc1")
a(f"v_mov_b32 {v(XT + 20)}, {v(vK)}\nv_mov_b32 {v(XT + 21)}, {v(vV)}")
q_store_addr(Q1)
a(f"s_getreg_b32 {XCC}, hwreg(HW_REG_XCC_ID, 0, 3)")
a("s_waitcnt vmcnt(0)")
gemv_load_a("q")
for i in range(20):
    a(f"v_mov_b32 {v(gX + i)}, {v(XT + i)}")
gemv_main(poll=False)
a(f"""
    s_mov_b64 exec, {sp(M4)}
    global_store_dwordx2 {v(gST)}, {v(gACC, 2)}, {sp(pWS)} sc1
    s_mov_b64 exec, -1
    v_mov_b32 {v(vK)}, {v(XT + 20)}
    v_mov_b32 {v(vV)}, {v(XT + 21)}
    s_lshl_b32 {T0}, {XCC}, 3
    s_lshl_b64 {sp(MSK)}, 1, {T0}
    v_mov_b32 v4, s{MSK}
    v_mov_b32 v5, s{MSK + 1}
    s_lshl_b32 {T1}, {G}, 3
    v_mov_b32 v3, {T1}
    s_lshl_b64 {sp(MSK)}, 32, {T0}
    s_waitcnt vmcnt(0)
    s_mov_b64 exec, 1
    global_atomic_add_x2 v3, v[4:5], {sp(pDBG)} sc1
    s_mov_b64 exec, -1
    v_and_b32 v3, 15, v0
    v_lshlrev_b32 v3, 2, v3
""")
q_read_addr(8, Q1)
k_loads(0, vK)
add64(KB, KB, 65536)
a(f"global_load_dword v4, v3, {sp(pDBG)} sc1")
k_loads(1, vK)
a(f"""
    s_mov_b32 {SPIN}, {SPIN_MAX}
    s_waitcnt vmcnt(8)
L_CNT:
    v_sad_u8 v5, v4, 0, 0
    v_add_u32_dpp v5, v5, v5 row_ror:1 {DPP}
    v_add_u32_dpp v5, v5, v5 row_ror:2 {DPP}
    v_add_u32_dpp v5, v5, v5 row_ror:4 {DPP}
    v_add_u32_dpp v5, v5, v5 row_ror:8 {DPP}
    v_readfirstlane_b32 {T0}, v5
    s_cmp_eq_u32 {T0}, 256
    s_cbranch_scc1 L_CNT_OK
    global_load_dword v4, v3, {sp(pDBG)} sc1
    s_waitcnt vmcnt(0)
    s_sub_u32 {SPIN}, {SPIN}, 1
    s_cbranch_scc0 L_CNT
L_CNT_OK:
    global_load_dword v6, v8, {sp(pWS)} sc1
    s_lshl_b32 {T2}, {G}, 1
    v_readlane_b32 {T0}, v4, {T2}
    s_add_u32 {T2}, {T2}, 1
    v_readlane_b32 {T1}, v4, {T2}
    s_cmp_eq_u64 s[38:39], {sp(MSK)}
    s_cselect_b32 {T0}, {0 if OPT['force_global'] else 1}, 0
    v_mov_b32 v7, {T0}
    v_mov_b32 v5, {L_FLAG}
    ds_write_b32 v5, v7
    v_lshlrev_b32 v5, 2, v0
    v_add_u32 v5, {L_Q}, v5
""")
v_loads(0, vV)
a(f"""
    s_waitcnt vmcnt(8)
    ds_write_b32 v5, v6
    s_waitcnt lgkmcnt(0)
""")

aQ, aACC, aP, aL, aONE = 48, 16, 56, 48, 52
aQA, aOWW, aMLW, aOWR, aMLR, aOBA, aM, aT = 3, 4, 5, 6, 7, 8, 9, 10
a.label("L_LOOP")
a.c("per-lane LDS / exchange addresses of the attention phase")
a(f"""
    v_and_b32 {v(aQA)}, 1, v0
    v_lshlrev_b32 {v(aQA)}, 6, {v(aQA)}
    v_and_b32 {v(aT)}, 48, v0
    v_add_u32 {v(aQA)}, {v(aQA)}, {v(aT)}
    v_add_u32 {v(aQA)}, {L_Q}, {v(aQA)}
    s_mul_i32 {T0}, {W}, {OWS}
    s_add_u32 {T0}, {T0}, {L_OW}
    v_lshl_add_u32 {v(aOWW)}, v0, 5, {T0}
    s_lshl_b32 {T0}, {W}, 3
    s_add_u32 {T0}, {T0}, {L_ML}
    v_lshl_add_u32 {v(aMLW)}, v0, 6, {T0}
    v_and_b32 {v(aT)}, 7, v0
    v_mul_u32_u24 {v(aOWR)}, {OWS}, {v(aT)}
    v_lshlrev_b32 {v(aMLR)}, 3, {v(aT)}
    v_add_u32 {v(aMLR)}, {L_ML}, {v(aMLR)}
    v_and_b32 {v(aT)}, 56, v0
    s_lshl_b32 {T0}, {W}, 6
    s_add_u32 {T0}, {T0}, {L_OW}
    v_add3_u32 {v(aOWR)}, {v(aOWR)}, {v(aT)}, {T0}
    s_lshl_b32 {T0}, {G}, 13
    s_lshl_b32 {T1}, {J}, 8
    s_add_u32 {T0}, {T0}, {T1}
    s_lshl_b32 {T1}, {W}, 5
    s_add_u32 {T0}, {T0}, {T1}
    s_add_u32 {T0}, {T0}, {OB}
    v_lshrrev_b32 {v(aT)}, 1, {v(aT)}
    v_add_u32 {v(aOBA)}, {T0}, {v(aT)}
    s_lshl_b32 {T0}, {G}, 7
    s_lshl_b32 {T1}, {J}, 2
    s_add_u32 {T0}, {T0}, {T1}
    s_add_u32 {T0}, {T0}, {LSE}
    v_writelane_b32 {v(aOBA)}, {T0}, 1
    v_mov_b32 {v(aT)}, {L_FLAG}
    s_barrier
""")
stamp(0)
a(f"""
    ds_read_b128 {v(aQ, 4)}, {v(aQA)}
    ds_read_b128 {v(aQ + 4, 4)}, {v(aQA)} offset:128
    ds_read_b32 {v(aT)}, {v(aT)}
    s_waitcnt vmcnt(8) lgkmcnt(1)
""")
qk = []
for o in range(8):
    qk.append(f"{MFMA} {v(aACC + 4 * o, 4)}, {v(KREG + 8 * o, 4)}, {v(aQ, 4)}, 0")
    qk.append(f"{MFMA} {v(aACC + 4 * o, 4)}, {v(KREG + 8 * o + 4, 4)}, {v(aQ + 4, 4)}, {v(aACC + 4 * o, 4)}")


def sc(o, z):
    return aACC + 4 * o + 2 * z


def dadd(o):
    return [f"v_add_f32_dpp {v(sc(o, z))}, {v(sc(o, z) + 1)}, {v(sc(o, z))} quad_perm:[1,1,3,3] {DPP}" for z in range(2)]


def mx(o):
    if o == 0:
        return [f"v_max_f32 {v(aM)}, {v(sc(0, 0))}, {v(sc(0, 1))}"]
    return [f"v_max3_f32 {v(aM)}, {v(aM)}, {v(sc(o, 0))}, {v(sc(o, 1))}"]


for i, m in enumerate(qk):
    a(m)
    if i == 0:
        a(f"s_waitcnt lgkmcnt(0)\nv_readfirstlane_b32 {LOCAL}, {v(aT)}")
    if i % 2 == 1 and i >= 7:
        o = (i - 7) // 2
        for s in dadd(o) + mx(o):
            a(s)
for o in range(5, 8):
    for s in dadd(o):
        a(s)
for o in range(5, 8):
    for s in mx(o):
        a(s)
a(f"""
    v_mov_b32 {v(aT)}, {v(aM)}
    v_mov_b32 {v(aONE)}, {ONES}
    v_mov_b32 {v(aONE + 1)}, {ONES}
    v_permlane32_swap_b32 {v(aM)}, {v(aT)}
    v_max_f32 {v(aM)}, {v(aM)}, {v(aT)}
    v_mov_b32 {v(aT)}, {v(aM)}
    v_mov_b32 {v(aONE + 2)}, {ONES}
    v_mov_b32 {v(aONE + 3)}, {ONES}
    v_permlane16_swap_b32 {v(aM)}, {v(aT)}
    v_max_f32 {v(aM)}, {v(aM)}, {v(aT)}
    v_mul_f32 {v(aM)}, {CSC}, {v(aM)}
""")
for o in range(8):
    for z in range(2):
        a(f"v_fma_f32 {v(sc(o, z))}, {v(sc(o, z))}, {CSC}, -{v(aM)}")
for o in range(8):
    for z in range(2):
        a(f"v_exp_f32 {v(sc(o, z))}, {v(sc(o, z))}")
    if o >= 1:
        a(f"v_cvt_pk_bf16_f32 {v(aP + o - 1)}, {v(sc(o - 1, 0))}, {v(sc(o - 1, 1))}")
a(f"v_cvt_pk_bf16_f32 {v(aP + 7)}, {v(sc(7, 0))}, {v(sc(7, 1))}")
stamp(1)


def transpose(t, base_wait):
    for pp in range(4):
        a(f"s_waitcnt vmcnt({base_wait + 6 - 2 * pp})")
        for j in range(8):
            s0 = SREG + t * 32 + (2 * pp) * 4 + (j >> 1)
            a(f"v_perm_b32 {v(VREG + (t * 8 + j) * 4 + pp)}, {v(s0 + 4)}, {v(s0)}, {PHI if j & 1 else PLO}")


def pv(t):
    a(f"{MFMA} {v(aL, 4)}, {v(aP + 4 * t, 4)}, {v(aONE, 4)}, {'0' if t == 0 else v(aL, 4)}")
    for j in range(8):
        a(f"{MFMA} {v(aACC + 4 * j, 4)}, {v(aP + 4 * t, 4)}, {v(VREG + (t * 8 + j) * 4, 4)}, "
          f"{'0' if t == 0 else v(aACC + 4 * j, 4)}")


a(f"s_cmp_lg_u32 {LAYER}, 0\ns_cbranch_scc1 L_PV0")
add64(VB, VB, 65536)
v_loads(1, vV)
transpose(0, 8)
a.label("L_PV0")
a("s_nop 1")
pv(0)
a(f"s_cmp_lg_u32 {LAYER}, 0\ns_cbranch_scc1 L_PV1")
transpose(1, 0)
a.label("L_PV1")
pv(1)
stamp(2)
a(f"v_mov_b32 {v(aM + 1)}, {v(aL)}")
assert aT == aM + 1
a("s_mov_b64 exec, 0xffff")
a(f"ds_write2_b32 {v(aMLW)}, {v(aM)}, {v(aM + 1)} offset0:0 offset1:1")
for jp in range(4):
    a(f"ds_write2_b32 {v(aOWW)}, {v(aACC + 8 * jp)}, {v(aACC + 8 * jp + 4)} offset0:{2 * jp} offset1:{2 * jp + 1}")
cO, cM = 16, 18
a(f"""
    s_mov_b64 exec, -1
    s_waitcnt lgkmcnt(0)
    s_barrier
    ds_read_b64 {v(cM, 2)}, {v(aMLR)}
    ds_read_b64 {v(cO, 2)}, {v(aOWR)}
    s_waitcnt lgkmcnt(1)
    v_max_f32_dpp v20, {v(cM)}, {v(cM)} quad_perm:[1,0,3,2] {DPP}
    v_max_f32_dpp v20, v20, v20 quad_perm:[2,3,0,1] {DPP}
    v_max_f32_dpp v20, v20, v20 row_half_mirror {DPP}
    v_sub_f32 v21, {v(cM)}, v20
    v_exp_f32 v21, v21
    s_waitcnt lgkmcnt(0)
    v_mul_f32 {v(cM + 1)}, v21, {v(cM + 1)}
    v_mul_f32 {v(cO)}, v21, {v(cO)}
    v_mul_f32 {v(cO + 1)}, v21, {v(cO + 1)}
""")
for pat in ("quad_perm:[1,0,3,2]", "quad_perm:[2,3,0,1]", "row_half_mirror"):
    for r in (cM + 1, cO, cO + 1):
        a(f"v_add_f32_dpp {v(r)}, {v(r)}, {v(r)} {pat} {DPP}")
a(f"""
    v_rcp_f32 v21, {v(cM + 1)}
    v_log_f32 v22, {v(cM + 1)}
    v_cmp_eq_u32 vcc, 1, v0
    v_mul_f32 {v(cO)}, v21, {v(cO)}
    v_mul_f32 {v(cO + 1)}, v21, {v(cO + 1)}
    v_add_f32 v22, v22, v20
    v_cvt_pk_bf16_f32 {v(cO)}, {v(cO)}, {v(cO + 1)}
    v_cndmask_b32 {v(cO)}, {v(cO)}, v22, vcc
    v_min_u32 {v(cO)}, -2, {v(cO)}
    s_mov_b64 exec, {sp(OBM)}
""")
store_local(f"global_store_dword {v(aOBA)}, {v(cO)}, {sp(EX)}")
a("s_mov_b64 exec, -1")
stamp(3)
a(f"""
    s_cmp_eq_u32 {W}, 7
    s_cbranch_scc1 L_UP
    s_cmp_ge_u32 {W}, 5
    s_cbranch_scc1 L_DN
""")

oA, oB, oL, oACC = 96, 16, 24, 28
oBA, oLA, oSA, oT, oT2 = 3, 4, 5, 6, 7
a.c("out projection unit: tile 5*(J&7)+W, head H")
a(f"s_lshl_b32 {T0}, {W}, 12\ns_add_u32 {T0}, {T0}, {L_WO}")
tile_tr_addr(oT, oT2, T0)
for s in range(4):
    a(f"ds_read_b64_tr_b16 {v(oA + 4 * s, 2)}, {v(oT)} offset:{s * 1024}")
    a(f"ds_read_b64_tr_b16 {v(oA + 4 * s + 2, 2)}, {v(oT)} offset:{s * 1024 + 128}")
a(f"""
    s_lshl_b32 {T0}, {G}, 13
    s_lshr_b32 {T2}, {J}, 3
    s_lshl_b32 {T1}, {T2}, 11
    s_add_u32 {T0}, {T0}, {T1}
    s_add_u32 {T0}, {T0}, {OB}
    v_and_b32 {v(oLA)}, 3, v0
    v_lshlrev_b32 {v(oBA)}, 9, {v(oLA)}
    v_bfe_u32 {v(oT2)}, v0, 2, 1
    v_lshl_add_u32 {v(oBA)}, {v(oT2)}, 8, {v(oBA)}
    v_bfe_u32 {v(oT2)}, v0, 3, 1
    v_lshl_add_u32 {v(oBA)}, {v(oT2)}, 6, {v(oBA)}
    v_and_b32 {v(oT2)}, 48, v0
    v_add3_u32 {v(oBA)}, {v(oBA)}, {v(oT2)}, {T0}
    s_lshl_b32 {T0}, {G}, 7
    s_lshl_b32 {T1}, {T2}, 5
    s_add_u32 {T0}, {T0}, {T1}
    s_add_u32 {T0}, {T0}, {LSE}
    v_lshl_add_u32 {v(oLA)}, {v(oLA)}, 3, {T0}
    s_mov_b32 {SPIN}, {SPIN_MAX}
L_POP:
    global_load_dwordx2 {v(oL, 2)}, {v(oLA)}, {sp(EX)} sc1
    global_load_dwordx4 {v(oB, 4)}, {v(oBA)}, {sp(EX)} sc1
    global_load_dwordx4 {v(oB + 4, 4)}, {v(oBA)}, {sp(EX)} offset:128 sc1
    s_and_b32 {T0}, {J}, 7
    s_mul_i32 {T0}, {T0}, 5
    s_add_u32 {T0}, {T0}, {W}
    s_lshl_b32 {T0}, {T0}, 5
    s_add_u32 {T0}, {T0}, {H}
    s_lshl_b32 {T0}, {T0}, 8
    s_add_u32 {T0}, {T0}, {PB1}
""")
piece_addr(oSA, oT2, T0)
a(f"v_and_b32 {v(oT)}, 4, v0\nv_cmp_ne_u32 {sp(MSK)}, 0, {v(oT)}")
a("s_waitcnt vmcnt(0) lgkmcnt(0)")
om = [f"{MFMA} {v(oACC + 4 * q, 4)}, {v(oA + 4 * (2 * u + q), 4)}, {v(oB + 4 * u, 4)}, "
      f"{'0' if u == 0 else v(oACC + 4 * q, 4)}" for u in range(2) for q in range(2)]
interleave(om, check_ops(range(oB, oB + 10), oT2), 2)
retry("L_POP")
stamp(4)
a(f"""
    v_sub_f32 {v(oT)}, {v(oL + 1)}, {v(oL)}
    v_cndmask_b32 {v(oT)}, {v(oT)}, -{v(oT)}, {sp(MSK)}
    v_exp_f32 {v(oT)}, {v(oT)}
    v_add_f32 {v(oT)}, 1.0, {v(oT)}
    v_rcp_f32 {v(oT)}, {v(oT)}
""")
for i in range(4):
    a(f"v_add_f32_dpp {v(oACC + i)}, {v(oACC + 4 + i)}, {v(oACC + i)} row_shl:8 {DPP}")
for i in range(4):
    a(f"v_mul_f32 {v(oACC + i)}, {v(oT)}, {v(oACC + i)}")
for i in range(4):
    a(f"v_add_f32_dpp {v(oACC + i)}, {v(oACC + i)}, {v(oACC + i)} row_shl:4 {DPP}")
for i in range(4):
    a(f"v_min_u32 {v(oACC + i)}, -2, {v(oACC + i)}")
a(f"""
    s_mov_b64 exec, {sp(M4)}
    global_store_dwordx4 {v(oSA)}, {v(oACC, 4)}, {sp(EX)} sc1
    s_mov_b64 exec, -1
""")
stamp(5)
a(f"""
    s_cmp_ge_u32 {W}, 2
    s_cbranch_scc1 L_BDN
    s_cmp_eq_u32 {W}, 0
    s_cbranch_scc1 L_RED1
    s_cmp_ge_u32 {J}, 8
    s_cbranch_scc1 L_BDN
L_RED1:
""")
ctx = red(32, PB1, XA, 6)
red_dst_addr(ctx[3], ctx[4], XA)
a("s_waitcnt vmcnt(0)")
rL = red_poll(*ctx, 6)
a(f"""
    v_min_u32 {v(rL + 1)}, -2, {v(rL)}
    s_mov_b32 exec_lo, 0xffff
    s_mov_b32 exec_hi, 0xffff
""")
store_local(f"global_store_dword {v(ctx[3])}, {v(rL + 1)}, {sp(EX)}")
a("s_mov_b64 exec, -1")
stamp(7)
publish_x(rL, None)
ctx = red(8, PB2, XF, 8)
red_dst_addr(ctx[3], ctx[4], XF)
xio_addr(13, ctx[4])
a(f"""
    s_barrier
    s_cmp_eq_u32 {LAYER}, 0
    s_cbranch_scc1 L_RED2
    s_and_b32 {T0}, {TILE}, 7
    s_cmp_lg_u32 {T0}, {G}
    s_cbranch_scc1 L_FIN
L_RED2:
""")
rL = red_poll(*ctx, 8)
a(f"""
    s_mov_b32 exec_lo, 0xffff
    s_mov_b32 exec_hi, 0xffff
    s_cmp_eq_u32 {LAYER}, 0
    s_cbranch_scc1 L_RED2P
    global_store_dword v13, {v(rL)}, {sp(pOUT)}
    s_mov_b64 exec, -1
    s_branch L_FIN
L_RED2P:
    v_min_u32 {v(rL + 1)}, -2, {v(rL)}
""")
store_local(f"global_store_dword {v(ctx[3])}, {v(rL + 1)}, {sp(EX)}")
a("s_mov_b64 exec, -1")
publish_x(rL, None)
a("s_branch L_NEXT")

dA, dB, dACC = 64, 16, 24
dHA0, dHA1, dSA, dT, dT2 = 3, 4, 5, 6, 7
a.label("L_DN")
a(f"""
    s_cmp_eq_u32 {W}, 5
    s_cbranch_scc1 L_DN1
    s_cmp_ge_u32 {J}, 8
    s_cbranch_scc1 L_BDN
L_DN1:
    s_sub_u32 {T0}, {W}, 5
    s_mul_i32 {T0}, {T0}, 7168
    s_add_u32 {T0}, {T0}, {L_WD}
""")
tile_tr_addr(dT, dT2, T0)
for s in range(7):
    a(f"ds_read_b64_tr_b16 {v(dA + 4 * s, 2)}, {v(dT)} offset:{s * 1024}")
    a(f"ds_read_b64_tr_b16 {v(dA + 4 * s + 2, 2)}, {v(dT)} offset:{s * 1024 + 128}")
a(f"""
    v_and_b32 {v(dT)}, 12, v0
    v_lshrrev_b32 {v(dT2)}, 4, v0
    v_add_u32 {v(dT)}, {v(dT)}, {v(dT2)}
    v_and_b32 {v(dT2)}, 3, v0
    s_lshl_b32 {T0}, {G}, 11
    s_add_u32 {T0}, {T0}, {HB}
    v_lshl_add_u32 {v(dT2)}, {v(dT2)}, 4, {T0}
    v_lshl_add_u32 {v(dHA0)}, {v(dT)}, 6, {v(dT2)}
    v_add_u32 {v(dT)}, 16, {v(dT)}
    v_min_u32 {v(dT)}, 26, {v(dT)}
    v_lshl_add_u32 {v(dHA1)}, {v(dT)}, 6, {v(dT2)}
    s_lshl_b32 {T0}, {TILE}, 11
    s_lshl_b32 {T1}, {G}, 8
    s_add_u32 {T0}, {T0}, {T1}
    s_add_u32 {T0}, {T0}, {PB2}
""")
piece_addr(dSA, dT2, T0)
a(f"""
    s_waitcnt lgkmcnt(0)
    s_mov_b32 exec_lo, 0
    s_mov_b32 exec_hi, 0xffff0000
    v_mov_b32 {v(dA + 24)}, 0
    v_mov_b32 {v(dA + 25)}, 0
    v_mov_b32 {v(dA + 26)}, 0
    v_mov_b32 {v(dA + 27)}, 0
    s_mov_b64 exec, -1
    s_mov_b32 {SPIN}, {SPIN_MAX}
L_PDN:
    global_load_dwordx4 {v(dB, 4)}, {v(dHA0)}, {sp(EX)} sc1
    global_load_dwordx4 {v(dB + 4, 4)}, {v(dHA1)}, {sp(EX)} sc1
    s_waitcnt vmcnt(0)
""")
dm = [f"{MFMA} {v(dACC + 4 * q, 4)}, {v(dA + 4 * q, 4)}, {v(dB, 4)}, 0" for q in (3, 0, 1, 2)]
interleave(dm[:3], check_ops(range(dB, dB + 8), dT2), 2)
retry("L_PDN")
stamp(4)
a(dm[3])
for q in range(3):
    a(f"{MFMA} {v(dACC + 4 * q, 4)}, {v(dA + 16 + 4 * q, 4)}, {v(dB + 4, 4)}, {v(dACC + 4 * q, 4)}")
for q in (3, 1, 2):
    for i in range(4):
        a(f"v_add_f32_dpp {v(dACC + i)}, {v(dACC + 4 * q + i)}, {v(dACC + i)} row_shl:{4 * q} {DPP}")
for i in range(4):
    a(f"v_min_u32 {v(dACC + i)}, -2, {v(dACC + i)}")
a(f"""
    s_mov_b64 exec, {sp(M4)}
    global_store_dwordx4 {v(dSA)}, {v(dACC, 4)}, {sp(EX)} sc1
    s_mov_b64 exec, -1
""")
stamp(5)
a(f"""
    s_waitcnt vmcnt(0)
L_BDN:
    s_barrier
    s_cmp_eq_u32 {LAYER}, 0
    s_cbranch_scc1 L_NEXT
    s_branch L_FIN
""")

a.label("L_UP")
a(f"s_cmp_lt_u32 {J}, 5\ns_cbranch_scc1 L_UPDONE")
gemv_load_a("u")
gemv_xaddr(XA)
t = gX
a(f"""
    v_and_b32 {v(gST)}, 3, v0
    v_lshlrev_b32 {v(gST)}, 4, {v(gST)}
    v_bfe_u32 {v(t)}, v0, 4, 1
    v_lshl_add_u32 {v(gST)}, {v(t)}, 3, {v(gST)}
    v_lshrrev_b32 {v(t)}, 5, v0
    v_lshl_add_u32 {v(gST)}, {v(t)}, 2, {v(gST)}
    s_lshl_b32 {T0}, {G}, 11
    s_sub_u32 {T1}, {J}, 5
    s_lshl_b32 {T1}, {T1}, 6
    s_add_u32 {T0}, {T0}, {T1}
    s_add_u32 {T0}, {T0}, {HB}
    v_add_u32 {v(gST)}, {T0}, {v(gST)}
""")
gemv_main(poll=True, st=4)
p0, p1 = gACC, gACC + 1
a(f"""
    v_permlane32_swap_b32 {v(p0)}, {v(p1)}
    v_lshlrev_b32 {v(gACC + 2)}, 16, {v(p0)}
    v_and_b32 {v(gACC + 3)}, 0xffff0000, {v(p0)}
    v_lshlrev_b32 {v(gACC + 4)}, 16, {v(p1)}
    v_and_b32 {v(gACC + 5)}, 0xffff0000, {v(p1)}
    v_max_f32 {v(gACC + 2)}, 0, {v(gACC + 2)}
    v_max_f32 {v(gACC + 3)}, 0, {v(gACC + 3)}
    v_mul_f32 {v(gACC + 2)}, {v(gACC + 2)}, {v(gACC + 4)}
    v_mul_f32 {v(gACC + 3)}, {v(gACC + 3)}, {v(gACC + 5)}
    v_cvt_pk_bf16_f32 {v(p0)}, {v(gACC + 2)}, {v(gACC + 3)}
    v_min_u32 {v(p0)}, -2, {v(p0)}
    s_mov_b64 exec, {sp(M4)}
""")
store_local(f"global_store_dword {v(gST)}, {v(p0)}, {sp(EX)}")
a("s_mov_b64 exec, -1")
stamp(5)
a(f"""
L_UPDONE:
    s_barrier
    s_cmp_lg_u32 {LAYER}, 0
    s_cbranch_scc1 L_FIN
""")
gemv_load_a("q")
gemv_xaddr(XF)
q_store_addr(LSTRIDE + QB)
gemv_main(poll=True, st=6)
a(f"""
    v_min_u32 {v(gACC)}, -2, {v(gACC)}
    v_min_u32 {v(gACC + 1)}, -2, {v(gACC + 1)}
    s_mov_b64 exec, {sp(M4)}
""")
store_local(f"global_store_dwordx2 {v(gST)}, {v(gACC, 2)}, {sp(EX)}")
a("s_mov_b64 exec, -1")
stamp(7)
q_read_addr(3, LSTRIDE + QB)
a(f"""
    v_lshlrev_b32 v5, 2, v0
    v_add_u32 v5, {L_Q}, v5
    s_mov_b32 {SPIN}, {SPIN_MAX}
L_PQ:
    global_load_dword v6, v3, {sp(EX)} sc1
    s_waitcnt vmcnt(0)
    v_cmp_eq_u32 vcc, -1, v6
""")
retry("L_PQ")
a("ds_write_b32 v5, v6")
stamp(8)
a("s_waitcnt lgkmcnt(0)")

a.label("L_NEXT")
a(f"s_mov_b32 {LAYER}, 1")
add64(EX, EX, LSTRIDE)
a("s_branch L_LOOP")

a.label("L_FIN")
if DIAG:
    stamp(9)
    a("s_waitcnt lgkmcnt(0)\nv_mov_b32 v1, 0")
    for i in range(20):
        a(f"v_writelane_b32 v1, s{STAMP0 + 2 * i}, {i}")
    a(f"""
    v_writelane_b32 v1, {LOCAL}, 20
    s_lshl_b32 {T0}, s2, 3
    s_add_u32 {T0}, {T0}, {W}
    s_lshl_b32 {T0}, {T0}, 8
    s_add_u32 {T0}, {T0}, {DIAG_OFF}
    v_lshl_add_u32 v2, v0, 2, {T0}
    global_store_dword v2, v1, {sp(pWS)}
    """)
a.label("L_END")
a("s_endpgm")

a.raw(f""".section .rodata,"a"
.p2align 6
.amdhsa_kernel {NAME}_kernel
  .amdhsa_next_free_vgpr 256
  .amdhsa_next_free_sgpr 102
  .amdhsa_accum_offset 256
  .amdhsa_group_segment_fixed_size 0
  .amdhsa_kernarg_size 96
  .amdhsa_user_sgpr_count 2
  .amdhsa_user_sgpr_kernarg_segment_ptr 1
  .amdhsa_system_sgpr_workgroup_id_x 1
  .amdhsa_float_denorm_mode_32 3
.end_amdhsa_kernel""")

open(sys.argv[1], "w").write(a.text())
print("written", sys.argv[1], "lines", len(a.out), "pad states", a.nops)
```

```python
import math
import struct
import sys

sys.path.insert(0, "gen")
from asmlib import Asm

NAME = "interleave_layers__sliding_block_cached__glu_gated_reglu__decode"

OPT = dict(diag=0, thr=4, force_global=0, wo_post=2, up_post=1, stamps=0x3ff, k0=8)
for a_ in sys.argv[2:]:
    k_, v_ = a_.split("=")
    OPT[k_] = int(v_)
DIAG = OPT["diag"]
THR = OPT["thr"]
WO_POST = OPT["wo_post"]
UP_POST = OPT["up_post"]

OB, LSE, HB, XA, XF, PB1, PB2, QB = 0, 65536, 66560, 82944, 123904, 164864, 246784, 328704
LSTRIDE = 328704
QB2 = 2 * LSTRIDE
CLEAR_BYTES = 256 * 4096
Q1 = CLEAR_BYTES
CS1 = Q1 + 262144
DIAG_OFF = 16 << 20
assert QB2 + 262144 <= CLEAR_BYTES

L_WQ = 0
L_WO, L_WD = 20480, 53248
L_WG, L_WU = 20480, 51200
L_OW, L_ML = 81920, 86272
L_QZ = 87296
L_Q = L_QZ + 768
L_P = 89088
L_FLAG = 90112
OWS = 544
LDS_BYTES = 90368

W, G, J, LAYER, LOCAL = "s3", "s4", "s5", "s6", "s7"
pX, pK, pV, pWQ, pWO, pWG, pWU, pWD, pOUT, pDBG, pWS = 8, 10, 12, 14, 16, 20, 22, 24, 26, 28, 30
KB, VB, TB = 32, 34, 36
T0, T1, T2, T3 = "s38", "s39", "s49", "s50"
CSC, PLO, PHI, SPIN = "s40", "s41", "s42", "s43"
MSK = 44
EX = 46
XCC = "s48"
OBM = 52
ONES, H, TILE, BB = "s54", "s55", "s56", "s57"
ODD = 58
WOB = 18
STAMP0 = 60


def sp(n):
    return "s[%d:%d]" % (n, n + 1)


def v(n, cnt=1):
    return "v%d" % n if cnt == 1 else "v[%d:%d]" % (n, n + cnt - 1)


def f32(x):
    return "0x%08x" % struct.unpack("<I", struct.pack("<f", x))[0]


DPP = "row_mask:0xf bank_mask:0xf"
MFMA = "v_mfma_f32_16x16x32_bf16"
SMF = "v_smfmac_f32_16x16x64_bf16"
SPIN_MAX = 1 << 18
KREG, VREG, SREG = 128, 192, 64
IDX = 1
vV = 2
aQA, aPW, aPR, aOWW, aMLW, aOWR, aMLR, aOBA = 3, 4, 5, 6, 7, 8, 9, 10
oBA, oLA, oSA = 11, 12, 13
pCS = 12
rX0, rX1 = 14, 15
vWO = 14

a = Asm()


def stamp(i):
    if not DIAG or not (OPT["stamps"] >> i) & 1:
        return
    l1, l2 = a.newlabel("ST"), a.newlabel("ST")
    a(f"""
    s_cmp_eq_u32 {LAYER}, 0
    s_cbranch_scc1 {l1}
    s_memrealtime {sp(STAMP0 + 20 + 2 * i)}
    s_branch {l2}
    {l1}:
    s_memrealtime {sp(STAMP0 + 2 * i)}
    {l2}:
    """)


def rawstamp(slot):
    if DIAG:
        a(f"s_memrealtime {sp(STAMP0 + 2 * slot)}")


def add64(dst, src, off):
    a(f"s_add_u32 s{dst}, s{src}, {off}\ns_addc_u32 s{dst + 1}, s{src + 1}, 0")


def lane_expr(reg, tmp, fields, base=None):
    first = True
    for pos, width, mul in fields:
        dst = reg if first else tmp
        if pos + width >= 6:
            src = f"v_lshrrev_b32 {v(dst)}, {pos}, v0" if pos else f"v_mov_b32 {v(dst)}, v0"
        elif pos == 0:
            src = f"v_and_b32 {v(dst)}, {(1 << width) - 1}, v0"
        else:
            src = f"v_bfe_u32 {v(dst)}, v0, {pos}, {width}"
        a(src)
        p2 = mul & (mul - 1) == 0
        if first:
            if mul != 1:
                a(f"v_lshlrev_b32 {v(reg)}, {mul.bit_length() - 1}, {v(reg)}" if p2
                  else f"v_mul_u32_u24 {v(reg)}, {mul}, {v(reg)}")
        elif p2:
            a(f"v_lshl_add_u32 {v(reg)}, {v(tmp)}, {mul.bit_length() - 1}, {v(reg)}")
        else:
            a(f"v_mul_u32_u24 {v(tmp)}, {mul}, {v(tmp)}\nv_add_u32 {v(reg)}, {v(reg)}, {v(tmp)}")
        first = False
    if base is not None:
        a(f"v_add_u32 {v(reg)}, {base}, {v(reg)}")


def s_expr(dst, terms, const=0):
    first = True
    for s, mul in terms:
        d = dst if first else T3
        if mul == 1:
            if first:
                a(f"s_mov_b32 {d}, {s}")
            else:
                d = s
        elif mul & (mul - 1) == 0:
            a(f"s_lshl_b32 {d}, {s}, {mul.bit_length() - 1}")
        else:
            a(f"s_mul_i32 {d}, {s}, {mul}")
        if not first:
            a(f"s_add_u32 {dst}, {dst}, {d}")
        first = False
    if const:
        a(f"s_add_u32 {dst}, {dst}, {const}")


def store_local(ins):
    lg, le = a.newlabel("SG"), a.newlabel("SE")
    a(f"""
    s_cmp_eq_u32 {LOCAL}, 0
    s_cbranch_scc1 {lg}
    {ins}
    s_branch {le}
    {lg}:
    {ins} sc1
    {le}:
    """)


def check_ops(regs, tmp):
    ops = []
    regs = list(regs)
    if len(regs) == 1:
        return [f"v_cmp_eq_u32 vcc, -1, {v(regs[0])}"]
    if len(regs) == 2:
        ops.append(f"v_max_u32 {v(tmp)}, {v(regs[0])}, {v(regs[1])}")
    else:
        ops.append(f"v_max3_u32 {v(tmp)}, {v(regs[0])}, {v(regs[1])}, {v(regs[2])}")
        rest = regs[3:]
        while len(rest) >= 2:
            ops.append(f"v_max3_u32 {v(tmp)}, {v(tmp)}, {v(rest[0])}, {v(rest[1])}")
            rest = rest[2:]
        if rest:
            ops.append(f"v_max_u32 {v(tmp)}, {v(tmp)}, {v(rest[0])}")
    ops.append(f"v_cmp_eq_u32 vcc, -1, {v(tmp)}")
    return ops


def retry(loop, mfma_pending=False):
    ok = a.newlabel("OK")
    a(f"s_cbranch_vccz {ok}")
    if mfma_pending:
        a.raw("    s_nop 15")
    a(f"""
    s_sub_u32 {SPIN}, {SPIN}, 1
    s_cbranch_scc0 {loop}
    {ok}:
    """)


def thr_wait():
    if THR:
        a(f"s_waitcnt vmcnt({THR - 1})")


def k_loads(t, vK, throttle=True, lo=0, hi=8):
    n = 0
    for kq in range(4):
        for hf in range(2):
            if lo <= n < hi:
                r = KREG + ((t * 4 + kq) * 2 + hf) * 4
                a(f"global_load_dwordx4 {v(r, 4)}, {v(vK)}, {sp(KB + 0)} offset:{kq * 2048 + hf * 128 - 4096} nt")
                if throttle:
                    thr_wait()
            n += 1


def v_loads(t):
    for i in range(8):
        a(f"global_load_dwordx4 {v(SREG + t * 32 + i * 4, 4)}, {v(vV)}, {sp(VB)} offset:{i * 1024 - 4096} nt")


def zero(regs):
    for r in regs:
        a(f"v_mov_b32 {v(r)}, 0")


def b_rows_addr(reg, tmp, rowbytes, extra, base):
    lane_expr(reg, tmp, [(3, 1, 32 * rowbytes), (4, 2, 4 * rowbytes), (2, 1, rowbytes)] + extra, base)


def b_reads(dst, addr, nblk, rowbytes, off0=0):
    for blk in range(nblk):
        for rho in range(4):
            off = off0 + (64 * blk + 16 * (rho >> 1) + 2 * (rho & 1)) * rowbytes
            a(f"ds_read_b64_tr_b16 {v(dst + 8 * blk + 2 * rho, 2)}, {v(addr)} offset:{off}")


def lane_sum(regs, steps, tmps):
    for st in steps:
        if st in ("s16", "s32"):
            for r, t in zip(regs, tmps):
                a(f"v_mov_b32 {v(t)}, {v(r)}")
            for r, t in zip(regs, tmps):
                a(f"v_permlane{st[1:]}_swap_b32 {v(r)}, {v(t)}")
            for r, t in zip(regs, tmps):
                a(f"v_add_f32 {v(r)}, {v(r)}, {v(t)}")
        else:
            pat = {"x1": "quad_perm:[1,0,3,2]", "x2": "quad_perm:[2,3,0,1]", "hm": "row_half_mirror",
                   "r4": "row_ror:4", "r8": "row_ror:8"}[st]
            for r in regs:
                a(f"v_add_f32_dpp {v(r)}, {v(r)}, {v(r)} {pat} {DPP}")


def ln_stats(xregs, s1, s2, steps, t1, t2):
    for n, r in enumerate(xregs):
        a(f"v_dot2_f32_bf16 {v(s1)}, {v(r)}, {ONES}, {'0' if n == 0 else v(s1)}")
        a(f"v_dot2_f32_bf16 {v(s2)}, {v(r)}, {v(r)}, {'0' if n == 0 else v(s2)}")
    lane_sum([s1, s2], steps, [t1, t2])
    a(f"""
    v_mul_f32 {v(s1)}, {f32(1.0 / 640)}, {v(s1)}
    v_mul_f32 {v(s2)}, {f32(1.0 / 640)}, {v(s2)}
    v_fma_f32 {v(s2)}, -{v(s1)}, {v(s1)}, {v(s2)}
    v_max_f32 {v(s2)}, 0, {v(s2)}
    v_add_f32 {v(s2)}, {f32(1e-5)}, {v(s2)}
    """)


def arrive():
    s_expr(T1, [(G, 32), (J, 1)])
    a(f"""
    s_getreg_b32 {XCC}, hwreg(HW_REG_XCC_ID, 0, 4)
    s_or_b32 {T0}, {XCC}, 0x80
    v_mov_b32 v60, {T0}
    v_mov_b32 v62, {T1}
    s_mov_b64 exec, 1
    global_store_byte v62, v60, {sp(pDBG)} sc1
    s_mov_b64 exec, -1
    """)


qB, qX, qACC, qXA0, qXA1, qSA, qT = 64, 88, 96, 108, 109, 110, 111


def qp_setup():
    s_expr(T0, [(W, 32)], L_WQ - 4 * 32)
    b_rows_addr(qT, qSA, 128, [(0, 2, 8)], T0)
    b_reads(qB, qT, 3, 128)


def qp_xaddr(from_input):
    a(f"s_and_b32 {T1}, {J}, 3")
    if from_input:
        s_expr(T0, [(T1, 320)])
        lane_expr(qXA0, qT, [(2, 2, 1280), (0, 1, 128), (1, 1, 64), (4, 2, 16)], T0)
        s_expr(T0, [(T1, 320)], 256)
        lane_expr(qXA1, qT, [(2, 2, 1280), (4, 2, 16)], T0)
    else:
        s_expr(T0, [(T1, 1280), (G, 5120)], XF)
        lane_expr(qXA0, qT, [(2, 2, 32), (0, 1, 512), (1, 1, 256), (5, 1, 128), (4, 1, 16)], T0)
        s_expr(T0, [(T1, 1280), (G, 5120)], XF + 1024)
        lane_expr(qXA1, qT, [(2, 2, 32), (5, 1, 128), (4, 1, 16)], T0)


def qp_saddr(off):
    a(f"s_and_b32 {T1}, {J}, 3\ns_lshr_b32 {T2}, {J}, 2")
    s_expr(T0, [(G, 32768), (T1, 8192), (T2, 256), (W, 64)], off - 4 * 64)
    lane_expr(qSA, qT, [(4, 2, 2048), (0, 4, 4)], T0)


def qp_mm():
    return [f"{SMF} {v(qACC, 4)}, {v(qX, 4)}, {v(qB, 8)}, {v(IDX)}",
            f"{SMF} {v(qACC + 4, 4)}, {v(qX, 4)}, {v(qB + 8, 8)}, {v(IDX)}",
            f"{SMF} {v(qACC + 8, 4)}, {v(qX + 4, 4)}, {v(qB + 16, 8)}, {v(IDX)}"]


def qp_sum():
    a(f"""
    v_add_f32 {v(qACC)}, {v(qACC)}, {v(qACC + 2)}
    v_add_f32 {v(qACC + 5)}, {v(qACC + 5)}, {v(qACC + 7)}
    v_add_f32 {v(qACC)}, {v(qACC)}, {v(qACC + 5)}
    v_add_f32 {v(qACC)}, {v(qACC)}, {v(qACC + 8)}
    """)


pX_, pQ, pS1, pS2, pA, pLW, pT, pT2 = 96, 104, 112, 114, 116, 117, 118, 119


def poller_stats():
    ln_stats(range(pX_, pX_ + 5), pS1, pS2, ["x1", "x2", "r4", "r8", "s16", "s32"], pT, pT2)
    a(f"v_rsq_f32 {v(pS2)}, {v(pS2)}")


def poller_qaddr(off):
    a(f"s_lshr_b32 {T1}, {J}, 3")
    s_expr(T0, [(G, 32768), (BB, 2048), (T1, 512)], off)
    a(f"v_lshl_add_u32 {v(pA)}, v0, 3, {T0}")
    lane_expr(pLW, pT, [(5, 1, 128), (3, 1, 64), (0, 1, 32), (4, 1, 16), (1, 2, 4)], L_Q)


def poller_qloads(base):
    for kq in range(4):
        if kq:
            add64(TB, TB if kq > 1 else base, 8192)
        a(f"global_load_dwordx2 {v(pQ + 2 * kq, 2)}, {v(pA)}, {sp(TB if kq else base)} sc1")


def poller_finish():
    a(f"""
    v_pk_add_f32 {v(pQ, 2)}, {v(pQ, 2)}, {v(pQ + 2, 2)}
    v_pk_add_f32 {v(pQ + 4, 2)}, {v(pQ + 4, 2)}, {v(pQ + 6, 2)}
    v_pk_add_f32 {v(pQ, 2)}, {v(pQ, 2)}, {v(pQ + 4, 2)}
    v_fma_f32 {v(pQ)}, -{v(pS1)}, {v(pCS)}, {v(pQ)}
    v_fma_f32 {v(pQ + 1)}, -{v(pS1)}, {v(pCS + 1)}, {v(pQ + 1)}
    v_mul_f32 {v(pQ)}, {v(pS2)}, {v(pQ)}
    v_mul_f32 {v(pQ + 1)}, {v(pS2)}, {v(pQ + 1)}
    v_cvt_pk_bf16_f32 {v(pQ)}, {v(pQ)}, {v(pQ + 1)}
    ds_write_b32 {v(pLW)}, {v(pQ)}
    """)


aQV, aQK, aACC, aP, aS, aM, aL, aT = 16, 48, 16, 56, 60, 62, 63, 61


def att_addr():
    t = aT
    lane_expr(aQA, t, [(4, 2, 64), (0, 2, 16)], L_Q)
    a(f"v_bfe_u32 {v(t)}, v0, 2, 2\nv_lshlrev_b32 {v(t)}, 8, {v(t)}\nv_sub_u32 {v(aQA)}, {v(aQA)}, {v(t)}")
    s_expr(T0, [(W, 128)], L_P)
    lane_expr(aPW, t, [(0, 1, 64), (2, 1, 32), (4, 1, 16), (1, 1, 8), (5, 1, 4), (3, 1, 2)], T0)
    lane_expr(aPR, t, [(4, 2, 32), (1, 1, 16)], T0)
    s_expr(T0, [(W, OWS)], L_OW)
    a(f"v_lshl_add_u32 {v(aOWW)}, v0, 5, {T0}")
    s_expr(T0, [(W, 8)], L_ML)
    a(f"v_lshl_add_u32 {v(aMLW)}, v0, 6, {T0}")
    s_expr(T0, [(W, 64)], L_OW)
    lane_expr(aOWR, t, [(0, 3, OWS), (3, 3, 8)], T0)
    lane_expr(aMLR, t, [(0, 3, 8)], L_ML)
    s_expr(T0, [(G, 8192), (J, 256), (W, 32)], OB)
    lane_expr(aOBA, t, [(3, 3, 4)], T0)
    a(f"s_lshr_b32 {T1}, {J}, 3\ns_and_b32 {T2}, {J}, 1")
    s_expr(T0, [(G, 128), (BB, 32), (T1, 8), (T2, 4)], LSE)
    a(f"v_writelane_b32 {v(aOBA)}, {T0}, 1")


def att_zero():
    zero(range(32, 56))


def wo_dma(lo, hi):
    for i in range(lo, hi):
        a(f"s_lshl_b32 {T0}, {W}, 12\ns_add_u32 m0, {T0}, {L_WO + i * 1024}")
        a(f"global_load_lds_dwordx4 {v(vDMA)}, {sp(WOB)} nt")
        add64(WOB, WOB, 16 * 1280)


def up_dma():
    done = a.newlabel("UD")
    a(f"""
    s_cmp_ge_u32 {W}, 6
    s_cbranch_scc1 {done}
    s_cmp_ge_u32 {W}, 3
    s_cselect_b32 s{TB}, s{pWU}, s{pWG}
    s_cselect_b32 s{TB + 1}, s{pWU + 1}, s{pWG + 1}
    s_mov_b32 {T2}, {L_WG}
    s_cselect_b32 {T2}, {L_WU - 3 * 1024}, {T2}
    s_cselect_b32 {T1}, 3, 0
    s_sub_u32 {T1}, {W}, {T1}
    v_lshl_add_u32 v60, {T1}, 6, v0
    v_mul_u32_u24 v61, 21846, v60
    v_lshrrev_b32 v61, 16, v61
    v_mul_u32_u24 v62, 3, v61
    v_sub_u32 v60, v60, v62
    v_mul_u32_u24 v61, 3456, v61
    v_lshl_add_u32 v60, v60, 4, v61
    s_lshl_b32 {T0}, {W}, 10
    s_add_u32 {T2}, {T2}, {T0}
    s_sub_u32 {T1}, {J}, 20
    """)
    s_expr(T0, [(G, 432), (T1, 48)])
    add64(TB, TB, T0)
    a(f"""
    s_mul_i32 {T1}, {T1}, 43
    s_lshr_b32 {T0}, {T1}, 7
    s_mul_i32 {T0}, {T0}, 3
    s_sub_u32 {T1}, {J}, 20
    s_sub_u32 {T1}, {T1}, {T0}
    s_mul_i32 {T1}, {T1}, 3
    """)
    for i in range(10):
        a(f"""
        s_mul_i32 {T0}, {T1}, 3072
        s_add_u32 m0, {T0}, {T2}
        s_mul_i32 {T0}, {T1}, {64 * 3456}
        v_add_u32 v61, {T0}, v60
        s_add_u32 {T1}, {T1}, 1
        s_cmp_eq_u32 {T1}, 10
        s_cselect_b32 {T1}, 0, {T1}
        global_load_lds_dwordx4 v61, {sp(TB)} nt
        """)
    a.label(done)


hdr = open("cdna_kernels/%s.s.ref" % NAME).read().split("\n")
for line in hdr:
    if line.startswith("; @launch"):
        a.raw("; @launch grid=(256,1,1) block=(512,1,1) lds=%d" % LDS_BYTES)
    elif line.startswith(";"):
        a.raw(line)
    else:
        break
a.raw('.amdgcn_target "amdgcn-amd-amdhsa--gfx950"')
a.raw(".text")
a.raw(".globl %s_kernel" % NAME)
a.raw(".p2align 8")
a.raw(".type %s_kernel,@function" % NAME)
a.raw("%s_kernel:" % NAME)

vK, vDMA = 58, 59
aP = 44
a(f"""
    s_cmp_ge_u32 s2, 256
    s_cbranch_scc1 L_END
    s_load_dwordx16 s[8:23], s[0:1], 0
    s_load_dwordx8 s[24:31], s[0:1], 64
    s_mov_b32 {LAYER}, 0
""")
if DIAG:
    for i in range(20):
        a(f"s_mov_b64 {sp(STAMP0 + 2 * i)}, 0")
    a(f"s_memrealtime {sp(STAMP0 + 18)}")
    a("s_memtime s[100:101]")
a(f"""
    v_lshrrev_b32 v1, 6, v0
    v_and_b32 v0, 63, v0
    v_readfirstlane_b32 {W}, v1
    s_and_b32 {G}, s2, 7
    s_lshr_b32 {J}, s2, 3
    s_lshr_b32 {T0}, {J}, 3
    s_lshl_b32 {H}, {G}, 2
    s_add_u32 {H}, {H}, {T0}
    s_bfe_u32 {BB}, {J}, 0x20001
    s_and_b32 {T1}, {J}, 1
""")
s_expr(T2, [(BB, 1 << 25), (H, 1 << 20), (T1, 1 << 17), (W, 1 << 13)], 0xC0000 + 4096)
lane_expr(vK, 60, [(1, 3, 256), (0, 1, 64), (4, 2, 16)])
a(f"""
    v_lshlrev_b32 {v(vV)}, 4, v0
    s_waitcnt lgkmcnt(0)
""")
add64(KB, pK, T2)
add64(VB, pV, T2)
a(f"s_cmp_lg_u32 {W}, 2\ns_cbranch_scc1 L_PRO_0")
a.c("wave 2: sentinel fill of this workgroup's share of the exchange area and of its own layer-1 q slots")
a(f"""
    s_lshl_b32 {T0}, s2, 12
    v_lshl_add_u32 v60, v0, 4, {T0}
    v_mov_b32 v64, -1
    v_mov_b32 v65, -1
    v_mov_b32 v66, -1
    v_mov_b32 v67, -1
""")
for u in range(4):
    a(f"global_store_dwordx4 v60, v[64:67], {sp(pWS)} offset:{u * 1024} sc1")
a(f"s_and_b32 {T1}, {J}, 3\ns_lshr_b32 {T2}, {J}, 2")
s_expr(T0, [(G, 32768), (T1, 8192), (T2, 256)], Q1)
lane_expr(60, 61, [(4, 2, 2048), (0, 4, 16)], T0)
a(f"global_store_dwordx4 v60, v[64:67], {sp(pWS)} sc1")
s_expr(T0, [(G, 8192), (T1, 2048), (T2, 256)], CS1)
a(f"v_lshl_add_u32 v60, v0, 2, {T0}")
a(f"global_store_dword v60, v64, {sp(pWS)} sc1")
a.label("L_PRO_0")
a(f"s_cmp_lt_u32 {W}, 4\ns_cbranch_scc1 L_PRO_A")
lane_expr(60, 61, [(3, 3, 8192), (0, 3, 16)])
a(f"s_and_b32 {T1}, {J}, 3\ns_lshr_b32 {T2}, {J}, 2")
s_expr(T0, [(T1, 160 * 8192), (W, 40 * 8192), (G, 1024), (T2, 128)], (1 << 32) - 160 * 8192)
add64(TB, pWQ, T0)
s_expr(T1, [(W, 5120)], (1 << 32) + L_WQ - 4 * 5120)
for i in range(5):
    a(f"s_add_u32 m0, {T1}, {i * 1024}")
    a(f"global_load_lds_dwordx4 v60, {sp(TB)} nt")
    if i < 4:
        add64(TB, TB, 8 * 8192)
qp_xaddr(True)
a(f"global_load_dwordx4 {v(qX, 4)}, {v(qXA0)}, {sp(pX)}")
a(f"global_load_dwordx4 {v(qX + 4, 4)}, {v(qXA1)}, {sp(pX)}")
a.label("L_PRO_A")
k_loads(0, vK, throttle=False, lo=0, hi=4)
a(f"""
    s_mov_b32 {CSC}, {f32(math.log2(math.e) / math.sqrt(128.0))}
    s_mov_b32 {PLO}, 0x05040100
    s_mov_b32 {PHI}, 0x07060302
    s_mov_b32 {ONES}, 0x3f803f80
    s_mov_b32 s{ODD}, 0xaaaaaaaa
    s_mov_b32 s{ODD + 1}, 0xaaaaaaaa
    s_mov_b32 s{OBM}, 0x01010101
    s_mov_b32 s{OBM + 1}, 0x01010101
    s_cmp_eq_u32 {W}, 0
    s_cselect_b32 s{OBM}, 0x01010103, s{OBM}
    s_mov_b32 s{EX}, s{pWS}
    s_mov_b32 s{EX + 1}, s{pWS + 1}
    v_bfe_u32 {v(IDX)}, v0, 1, 1
    v_mul_u32_u24 {v(IDX)}, 0xaaaa, {v(IDX)}
    v_add_u32 {v(IDX)}, 0x4444, {v(IDX)}
    s_lshl_b32 {TILE}, {J}, 1
    s_add_u32 {TILE}, {TILE}, {W}
""")
att_addr()
att_zero()
zero([11, 12, 13, 14, 15, 116, 120])
lane_expr(vDMA, 60, [(2, 4, 1280), (0, 2, 16)])
s_expr(T0, [(G, 512 * 1280), (W, 64 * 1280), (J, 64)])
add64(WOB, pWO, T0)
a(f"""
    s_cmp_ge_u32 {W}, 4
    s_cbranch_scc1 L_PRO_Q
    s_cmp_eq_u32 {W}, 3
    s_cbranch_scc1 L_PRO_P
    s_cmp_eq_u32 {W}, 2
    s_cbranch_scc1 L_PRO_C
""")
a.c("waves 0,1: residual tile and out-projection addresses (harmless on non-OP workgroups)")
a(f"s_min_u32 {T1}, {TILE}, 39")
s_expr(T0, [(T1, 32)])
lane_expr(60, 61, [(2, 2, 1280), (0, 2, 8), (5, 1, 4)], T0)
a(f"global_load_dword {v(rX0)}, v60, {sp(pX)}")
s_expr(T0, [(G, 8192)], OB + 4096)
lane_expr(oBA, 61, [(2, 2, 512), (0, 1, 256), (1, 1, 64), (4, 2, 16)], T0)
s_expr(T0, [(G, 128)], LSE)
lane_expr(oLA, 61, [(4, 2, 32), (0, 2, 8)], T0)
s_expr(T0, [(TILE, 2048), (G, 256)], PB1)
a(f"v_lshl_add_u32 {v(oSA)}, v0, 2, {T0}")
k_loads(0, vK, throttle=False, lo=4, hi=8)
a(f"""
    s_barrier
    s_waitcnt vmcnt(4)
    v_and_b32 {v(rX1)}, 0xffff0000, {v(rX0)}
    v_lshlrev_b32 {v(rX0)}, 16, {v(rX0)}
    s_branch L_PRO_KV2
L_PRO_C:
""")
a.c("wave 2: LDS zero areas, arrival")
a(f"""
    v_lshlrev_b32 v61, 4, v0
    v_add_u32 v62, {L_QZ}, v61
    ds_write_b128 v62, v[32:35]
    ds_write_b128 v62, v[32:35] offset:768
    v_add_u32 v62, {L_WD + 216 * 64}, v61
    s_cmp_ge_u32 {J}, 20
    s_cbranch_scc1 L_PRO_C2
    ds_write_b128 v62, v[32:35]
    ds_write_b128 v62, v[32:35] offset:1024
    ds_write_b128 v62, v[32:35] offset:1536
L_PRO_C2:
    s_waitcnt vmcnt(4) lgkmcnt(0)
""")
arrive()
k_loads(0, vK, throttle=False, lo=4, hi=8)
a("s_barrier\ns_branch L_PRO_KV2")

a.label("L_PRO_Q")
a.c("waves 4..7: partial q projection of layer 1 and partial column sums")
qp_saddr(Q1)
a(f"s_and_b32 {T1}, {J}, 3\ns_lshr_b32 {T2}, {J}, 2")
s_expr(T0, [(G, 8192), (T1, 2048), (T2, 256), (W, 64)], CS1 - 4 * 64)
a(f"v_lshl_add_u32 v112, v0, 2, {T0}")
a(f"v_mov_b32 v113, {v(qSA)}")
zero(range(qACC, qACC + 12))
zero(range(116, 124))
for i in range(4):
    a(f"v_mov_b32 {v(124 + i)}, {ONES}")
a("s_waitcnt vmcnt(4)\ns_barrier")
rawstamp(16)
qp_setup()
a("s_waitcnt lgkmcnt(0)")
for m in qp_mm():
    a(m)
a(f"""
    {SMF} v[116:119], v[124:127], {v(qB, 8)}, {v(IDX)}
    {SMF} v[116:119], v[124:127], {v(qB + 8, 8)}, {v(IDX)}
    {SMF} v[120:123], v[124:127], {v(qB + 16, 8)}, {v(IDX)}
""")
qp_sum()
a(f"""
    v_min_u32 {v(qACC)}, -2, {v(qACC)}
    global_store_dword v113, {v(qACC)}, {sp(pWS)} sc1
    v_add_f32 v116, v116, v118
    v_add_f32 v116, v116, v120
    v_min_u32 v116, -2, v116
    s_mov_b64 exec, 0xffff
    global_store_dword v112, v116, {sp(pWS)} sc1
    s_mov_b64 exec, -1
""")
rawstamp(17)
a("s_branch L_PRO_KV")

a.label("L_PRO_P")
a.c("wave 3: LayerNorm statistics of its row, arrival counter, q of layer 1")
s_expr(T0, [(BB, 1280)])
a(f"v_lshl_add_u32 v60, v0, 2, {T0}")
for u in range(5):
    a(f"global_load_dword {v(pX_ + u)}, v60, {sp(pX)} offset:{u * 256}")
poller_qaddr(Q1)
a(f"s_lshr_b32 {T1}, {J}, 3")
s_expr(T0, [(G, 8192), (T1, 512)], CS1 + 4096)
a(f"""
    v_lshl_add_u32 v120, v0, 3, {T0}
    v_lshlrev_b32 v121, 2, v0
""")
k_loads(0, vK, throttle=False, lo=4, hi=8)
a("s_barrier\ns_waitcnt vmcnt(4)")
poller_stats()
add64(KB, KB, 65536)
k_loads(1, vK, lo=0, hi=4)
a(f"global_load_dword v122, v121, {sp(pDBG)} sc1")
k_loads(1, vK, lo=4, hi=8)
a(f"""
    s_getreg_b32 {XCC}, hwreg(HW_REG_XCC_ID, 0, 4)
    s_or_b32 {T2}, {XCC}, 0x80
    s_mul_i32 {T2}, {T2}, 0x01010101
    s_mov_b32 {SPIN}, {SPIN_MAX}
    s_mov_b32 {T1}, 0x80808080
    s_waitcnt vmcnt(4)
L_CNT:
    v_and_b32 v123, {T1}, v122
    v_cmp_ne_u32 vcc, {T1}, v123
    s_cbranch_vccz L_CNT_OK
    s_sleep 8
    global_load_dword v122, v121, {sp(pDBG)} sc1
    s_waitcnt vmcnt(0)
    s_sub_u32 {SPIN}, {SPIN}, 1
    s_cbranch_scc0 L_CNT
L_CNT_OK:
""")
rawstamp(17)


def q1_loads():
    poller_qloads(pWS)
    for kq in range(4):
        a(f"global_load_dwordx2 {v(pX_ + 2 * kq, 2)}, v120, {sp(pWS)} offset:{kq * 2048 - 4096} sc1")


q1_loads()
a(f"""
    v_cmp_ne_u32 vcc, {T2}, v122
    s_lshl_b32 {T0}, {G}, 3
    s_lshr_b64 {sp(MSK)}, vcc, {T0}
    s_and_b32 {T0}, s{MSK}, 0xff
    s_cselect_b32 {T0}, 0, {0 if OPT['force_global'] else 1}
    v_mov_b32 v123, {T0}
    v_mov_b32 v121, {L_FLAG}
    ds_write_b32 v121, v123
    s_branch L_PRO_W
""")

a.label("L_PRO_KV")
k_loads(0, vK, lo=4, hi=8)
a.label("L_PRO_KV2")
add64(KB, KB, 65536)
k_loads(1, vK)
a.label("L_PRO_W")
a.c("role weights that are staged ahead of V")
a(f"s_cmp_ge_u32 {J}, 20\ns_cbranch_scc1 L_PRO_W2")
wo_dma(0, 4 - WO_POST)
s_expr(T0, [(G, 216 * 1280), (W, 16 * 1280), (J, 64)])
add64(TB, pWD, T0)
a(f"""
    s_lshl_b32 {T0}, {W}, 10
    s_add_u32 m0, {T0}, {L_WD}
    s_cmp_ge_u32 {W}, 6
    global_load_lds_dwordx4 {v(vDMA)}, {sp(TB)} nt
    s_cbranch_scc1 L_PRO_V
    s_add_u32 m0, {T0}, {L_WD + 8192}
""")
add64(TB, TB, 128 * 1280)
a(f"""
    s_cmp_eq_u32 {W}, 5
    s_cselect_b32 exec_hi, 0, -1
    global_load_lds_dwordx4 {v(vDMA)}, {sp(TB)} nt
    s_mov_b64 exec, -1
    s_branch L_PRO_V
L_PRO_W2:
""")
if not UP_POST:
    a(f"s_cmp_ge_u32 {J}, 29\ns_cbranch_scc1 L_PRO_V")
    up_dma()
a.label("L_PRO_V")
v_loads(0)
rawstamp(18)
a(f"s_cmp_lg_u32 {W}, 3\ns_cbranch_scc1 L_BAR")
a(f"s_mov_b32 {SPIN}, {SPIN_MAX}\ns_waitcnt vmcnt(8)")
a.label("L_Q1")
for s_ in check_ops(range(pX_, pX_ + 16), pT):
    a(s_)
a("s_cbranch_vccz L_Q1_OK")
q1_loads()
a(f"""
    s_waitcnt vmcnt(0)
    s_sub_u32 {SPIN}, {SPIN}, 1
    s_cbranch_scc0 L_Q1
L_Q1_OK:
    v_pk_add_f32 {v(pX_, 2)}, {v(pX_, 2)}, {v(pX_ + 2, 2)}
    v_pk_add_f32 {v(pX_ + 4, 2)}, {v(pX_ + 4, 2)}, {v(pX_ + 6, 2)}
    v_pk_add_f32 {v(pCS, 2)}, {v(pX_, 2)}, {v(pX_ + 4, 2)}
""")
poller_finish()
a("s_waitcnt lgkmcnt(0)")

aP = 52
a.label("L_BAR")
a(f"v_mov_b32 {v(aT)}, {L_FLAG}\ns_barrier")
stamp(0)
for o in range(4):
    a(f"ds_read_b128 {v(aQV + 4 * o, 4)}, {v(aQA)} offset:{o * 256}")
a(f"ds_read_b32 {v(aT)}, {v(aT)}")
a("s_waitcnt vmcnt(8)")
for o in range(4):
    a(f"s_waitcnt lgkmcnt({4 - o})")
    for t in range(2):
        a(f"{SMF} {v(aQK + 4 * t, 4)}, {v(aQV + 4 * o, 4)}, {v(KREG + (t * 4 + o) * 8, 8)}, {v(IDX)}")
a(f"s_waitcnt lgkmcnt(0)\nv_readfirstlane_b32 {LOCAL}, {v(aT)}")
zero(range(16, 27))
a(f"""
    v_pk_add_f32 {v(aQK, 2)}, {v(aQK, 2)}, {v(aQK + 2, 2)}
    v_pk_add_f32 {v(aQK + 4, 2)}, {v(aQK + 4, 2)}, {v(aQK + 6, 2)}
    v_cndmask_b32 {v(aT)}, {v(aQK + 4)}, {v(aQK + 1)}, {sp(ODD)}
    v_cndmask_b32 {v(aS)}, {v(aQK)}, {v(aQK + 5)}, {sp(ODD)}
    v_mov_b32 v27, 0
    v_add_f32_dpp {v(aS)}, {v(aT)}, {v(aS)} quad_perm:[1,0,3,2] {DPP}
    v_mov_b32 v28, 0
    v_mov_b32 v29, 0
    v_max_f32_dpp {v(aM)}, {v(aS)}, {v(aS)} quad_perm:[1,0,3,2] {DPP}
    v_mov_b32 v30, 0
    v_mov_b32 v31, 0
    v_max_f32_dpp {v(aM)}, {v(aM)}, {v(aM)} quad_perm:[2,3,0,1] {DPP}
    v_max_f32_dpp {v(aM)}, {v(aM)}, {v(aM)} row_ror:4 {DPP}
    v_max_f32_dpp {v(aM)}, {v(aM)}, {v(aM)} row_ror:8 {DPP}
    v_mov_b32 {v(aT)}, {v(aM)}
    v_permlane32_swap_b32 {v(aM)}, {v(aT)}
    v_max_f32 {v(aM)}, {v(aM)}, {v(aT)}
    v_mov_b32 {v(aT)}, {v(aM)}
    v_permlane16_swap_b32 {v(aM)}, {v(aT)}
    v_max_f32 {v(aM)}, {v(aM)}, {v(aT)}
    v_mul_f32 {v(aM)}, {CSC}, {v(aM)}
    v_fma_f32 {v(aS)}, {v(aS)}, {CSC}, -{v(aM)}
    v_exp_f32 {v(aL)}, {v(aS)}
    v_cvt_pk_bf16_f32 {v(aS)}, {v(aL)}, {v(aL)}
    ds_write_b16 {v(aPW)}, {v(aS)}
    ds_read_b128 {v(aP, 4)}, {v(aPR)}
""")
lane_sum([aL], ["x1", "x2", "r4", "r8", "s16", "s32"], [aT])
stamp(1)


def transpose(t, base_wait):
    for pp in range(4):
        n = base_wait + 6 - 2 * pp
        if WO_POST:
            l = a.newlabel("TW")
            a(f"""
            s_waitcnt vmcnt({n + WO_POST})
            s_cbranch_scc1 {l}
            s_waitcnt vmcnt({n})
            {l}:
            """)
        else:
            a(f"s_waitcnt vmcnt({n})")
        for j in range(8):
            s0 = SREG + t * 32 + (2 * pp) * 4 + (j >> 1)
            a(f"v_perm_b32 {v(VREG + j * 8 + t * 4 + pp)}, {v(s0 + 4)}, {v(s0)}, {PHI if j & 1 else PLO}")


a(f"s_cmp_lg_u32 {LAYER}, 0\ns_cbranch_scc1 L_PV")
add64(VB, VB, 65536)
v_loads(1)
if WO_POST:
    a(f"s_cmp_ge_u32 {J}, 20\ns_cbranch_scc1 L_NOWO")
    wo_dma(4 - WO_POST, 4)
    a.label("L_NOWO")
    a(f"s_cmp_lt_u32 {J}, 20")
transpose(0, 8)
transpose(1, 0)
a.label("L_PV")
a("s_waitcnt lgkmcnt(0)")
for j in range(8):
    a(f"{SMF} {v(aACC + 4 * j, 4)}, {v(aP, 4)}, {v(VREG + j * 8, 8)}, {v(IDX)}")
stamp(2)
a("s_mov_b64 exec, 0xffff")
a(f"ds_write_b64 {v(aMLW)}, {v(aM, 2)}")
for jp in range(4):
    for j in (2 * jp, 2 * jp + 1):
        a(f"v_add_f32 {v(aACC + 4 * j)}, {v(aACC + 4 * j)}, {v(aACC + 4 * j + 2)}")
    a(f"ds_write2_b32 {v(aOWW)}, {v(aACC + 8 * jp)}, {v(aACC + 8 * jp + 4)} offset0:{2 * jp} offset1:{2 * jp + 1}")
cO, cM = 16, 18
a(f"""
    s_mov_b64 exec, -1
    s_waitcnt lgkmcnt(0)
    s_barrier
    ds_read_b64 {v(cM, 2)}, {v(aMLR)}
    ds_read_b64 {v(cO, 2)}, {v(aOWR)}
    v_cmp_eq_u32 vcc, 1, v0
    s_waitcnt lgkmcnt(1)
    v_max_f32_dpp v20, {v(cM)}, {v(cM)} quad_perm:[1,0,3,2] {DPP}
    v_max_f32_dpp v20, v20, v20 quad_perm:[2,3,0,1] {DPP}
    v_max_f32_dpp v20, v20, v20 row_half_mirror {DPP}
    v_sub_f32 v21, {v(cM)}, v20
    v_exp_f32 v21, v21
    s_waitcnt lgkmcnt(0)
    v_mul_f32 {v(cM + 1)}, v21, {v(cM + 1)}
    v_mul_f32 {v(cO)}, v21, {v(cO)}
    v_mul_f32 {v(cO + 1)}, v21, {v(cO + 1)}
""")
lane_sum([cM + 1, cO, cO + 1], ["x1", "x2", "hm"], [])
a(f"""
    v_rcp_f32 v21, {v(cM + 1)}
    v_log_f32 v22, {v(cM + 1)}
    v_mul_f32 {v(cO)}, v21, {v(cO)}
    v_mul_f32 {v(cO + 1)}, v21, {v(cO + 1)}
    v_add_f32 v22, v22, v20
    v_cvt_pk_bf16_f32 {v(cO)}, {v(cO)}, {v(cO + 1)}
    v_cndmask_b32 {v(cO)}, {v(cO)}, v22, vcc
    v_min_u32 {v(cO)}, -2, {v(cO)}
    s_mov_b64 exec, {sp(OBM)}
""")
store_local(f"global_store_dword {v(aOBA)}, {v(cO)}, {sp(EX)}")
a("s_mov_b64 exec, -1")
stamp(3)
a(f"s_cmp_lg_u32 {LAYER}, 0\ns_cbranch_scc1 L_ROLE")
a.c("layer 1 only: late weight staging, then make all staged weights visible to every wave")
if UP_POST:
    a(f"""
    s_sub_u32 {T0}, {J}, 20
    s_cmp_ge_u32 {T0}, 9
    s_cbranch_scc1 L_NOUP
    """)
    up_dma()
    a("s_waitcnt vmcnt(0)")
    a.label("L_NOUP")
a("s_waitcnt vmcnt(1)\ns_barrier")
a.label("L_ROLE")
a(f"""
    s_cmp_ge_u32 {W}, 3
    s_cbranch_scc1 L_HI
    s_cmp_ge_u32 {J}, 20
    s_cbranch_scc1 L_UP
    s_cmp_eq_u32 {W}, 2
    s_cbranch_scc1 L_IDLE
""")

oB, oA, oACC, oL, oT, oT2 = 64, 16, 48, 4, 6, 7


def op_load_b():
    s_expr(T0, [(W, 32)], L_WO)
    b_rows_addr(oT, oT2, 64, [(0, 2, 8)], T0)
    b_reads(oB, oT, 8, 64)


def op_loads():
    a(f"global_load_dwordx2 {v(oL, 2)}, {v(oLA)}, {sp(EX)} sc1")
    for hh in range(4):
        for u in range(2):
            a(f"global_load_dwordx4 {v(oA + 8 * hh + 4 * u, 4)}, {v(oBA)}, {sp(EX)} offset:{hh * 2048 + u * 128 - 4096} sc1")


a(f"s_mov_b32 {SPIN}, {SPIN_MAX}\ns_cmp_lg_u32 {LAYER}, 0\ns_cbranch_scc1 L_POP")
op_load_b()
a.label("L_POP")
op_loads()
zero(range(oACC, oACC + 16))
chk = check_ops([oL, oL + 1] + list(range(oA, oA + 32)), oT2)
a("s_waitcnt vmcnt(8) lgkmcnt(0)")
a(f"""
    v_sub_f32 {v(oT)}, {v(oL + 1)}, {v(oL)}
    v_exp_f32 {v(oT)}, {v(oT)}
    v_add_f32 {v(oT)}, 1.0, {v(oT)}
    v_rcp_f32 v8, {v(oT)}
    v_sub_f32 v9, 1.0, v8
""")
for n in range(8):
    hh, u = n >> 1, n & 1
    a(f"s_waitcnt vmcnt({7 - n})")
    a(f"{SMF} {v(oACC + 4 * hh, 4)}, {v(oA + 4 * n, 4)}, {v(oB + 8 * n, 8)}, {v(IDX)}")
    for _ in range(2):
        a(chk.pop(0))
for s in chk:
    a(s)
retry("L_POP", True)
stamp(4)
for hh in range(4):
    r = oACC + 4 * hh
    qp_ = f"quad_perm:[{hh},{hh},{hh},{hh}] {DPP}"
    a(f"v_pk_add_f32 {v(r, 2)}, {v(r, 2)}, {v(r + 2, 2)}")
    if hh == 0:
        a(f"v_mul_f32_dpp {v(oT)}, v8, {v(r)} {qp_}")
        a(f"v_mul_f32_dpp {v(oT2)}, v9, {v(r + 1)} {qp_}")
    else:
        a(f"v_fmac_f32_dpp {v(oT)}, v8, {v(r)} {qp_}")
        a(f"v_fmac_f32_dpp {v(oT2)}, v9, {v(r + 1)} {qp_}")
a(f"""
    v_add_f32 {v(oT)}, {v(oT)}, {v(oT2)}
    v_min_u32 {v(oT)}, -2, {v(oT)}
    global_store_dword {v(oSA)}, {v(oT)}, {sp(EX)} sc1
""")
stamp(5)

rL, rA, rS, rT, rSC = 16, 3, 4, 5, 8


def red_addr(src, dst):
    s_expr(T0, [(TILE, 2048)], src)
    a(f"v_lshl_add_u32 {v(rA)}, v0, 4, {T0}")
    s_expr(T0, [(G, 5120), (TILE, 128)], dst)
    lane_expr(rS, rT, [(0, 4, 8), (5, 1, 4)], T0)
    a(f"s_mov_b32 {SPIN}, {SPIN_MAX}")


def red_poll(st, scale):
    loop = a.newlabel("PR")
    a.label(loop)
    for i in range(2):
        a(f"global_load_dwordx4 {v(rL + 4 * i, 4)}, {v(rA)}, {sp(EX)} offset:{i * 1024} sc1")
    a("s_waitcnt vmcnt(0)")
    for s in check_ops(range(rL, rL + 8), rT):
        a(s)
    retry(loop)
    stamp(st)
    a(f"""
    v_pk_add_f32 {v(rL, 2)}, {v(rL, 2)}, {v(rL + 4, 2)}
    v_pk_add_f32 {v(rL + 2, 2)}, {v(rL + 2, 2)}, {v(rL + 6, 2)}
    v_permlane32_swap_b32 {v(rL)}, {v(rL + 2)}
    v_permlane32_swap_b32 {v(rL + 1)}, {v(rL + 3)}
    v_pk_add_f32 {v(rL, 2)}, {v(rL, 2)}, {v(rL + 2, 2)}
    v_mov_b32 {v(rL + 2)}, {v(rL)}
    v_mov_b32 {v(rL + 3)}, {v(rL + 1)}
    v_permlane16_swap_b32 {v(rL)}, {v(rL + 2)}
    v_permlane16_swap_b32 {v(rL + 1)}, {v(rL + 3)}
    v_pk_add_f32 {v(rL, 2)}, {v(rL, 2)}, {v(rL + 2, 2)}
    """)
    if scale:
        a(f"v_pk_mul_f32 {v(rL, 2)}, {v(rL, 2)}, {v(rSC, 2)} op_sel_hi:[1,0]")
    a(f"""
    v_cvt_pk_bf16_f32 {v(rL)}, {v(rL)}, {v(rL + 1)}
    v_and_b32 {v(rL + 1)}, 0xffff0000, {v(rL)}
    v_lshlrev_b32 {v(rL)}, 16, {v(rL)}
    v_pk_add_f32 {v(rL, 2)}, {v(rL, 2)}, {v(rX0, 2)}
    v_cvt_pk_bf16_f32 {v(rL)}, {v(rL)}, {v(rL + 1)}
    s_mov_b32 exec_lo, 0xffff
    s_mov_b32 exec_hi, 0xffff
    """)


def red_publish():
    a(f"v_min_u32 {v(rL + 1)}, -2, {v(rL)}")
    store_local(f"global_store_dword {v(rS)}, {v(rL + 1)}, {sp(EX)}")
    a(f"""
    s_mov_b64 exec, -1
    v_and_b32 {v(rX1)}, 0xffff0000, {v(rL)}
    v_lshlrev_b32 {v(rX0)}, 16, {v(rL)}
    """)


red_addr(PB1, XA)
a("s_waitcnt vmcnt(0)")
red_poll(6, False)
red_publish()
stamp(7)
dB, dA, dACC, dHA0, dHA1, dSA, dT, dT2, dX = 64, 16, 24, 3, 4, 5, 6, 7, 96
s_expr(T0, [(W, 32)], L_WD)
b_rows_addr(dT, dT2, 64, [(0, 2, 8)], T0)
b_reads(dB, dT, 4, 64)
s_expr(T0, [(G, 5120)], XA + 2048)
lane_expr(dHA0, dT2, [(4, 2, 256), (1, 1, 128), (2, 2, 32), (0, 1, 16)], T0)
a(f"s_mov_b32 {SPIN}, {SPIN_MAX}")
a.label("L_PXS")
for u in range(5):
    a(f"global_load_dwordx4 {v(dX + 4 * u, 4)}, {v(dHA0)}, {sp(EX)} offset:{u * 1024 - 2048} sc1")
a("s_waitcnt vmcnt(0)")
for s in check_ops(range(dX, dX + 20), dT2):
    a(s)
retry("L_PXS")
ln_stats(range(dX, dX + 20), 9, rSC, ["x1", "x2", "s16", "s32"], dT, dT2)
a(f"v_rcp_f32 {v(rSC)}, {v(rSC)}")
s_expr(T0, [(G, 2048)], HB)
lane_expr(dT, dT2, [(0, 1, 8), (1, 1, 4), (4, 2, 1)])
lane_expr(dHA1, dT2, [(2, 2, 16)], T0)
a(f"""
    v_lshl_add_u32 {v(dHA0)}, {v(dT)}, 6, {v(dHA1)}
    v_add_u32 {v(dT)}, 16, {v(dT)}
    v_min_u32 {v(dT)}, 26, {v(dT)}
    v_lshl_add_u32 {v(dHA1)}, {v(dT)}, 6, {v(dHA1)}
    v_add_u32 {v(dSA)}, {PB2 - PB1}, {v(oSA)}
    s_mov_b32 {SPIN}, {SPIN_MAX}
    s_waitcnt lgkmcnt(0)
L_PDN:
    global_load_dwordx4 {v(dA, 4)}, {v(dHA0)}, {sp(EX)} sc1
    global_load_dwordx4 {v(dA + 4, 4)}, {v(dHA1)}, {sp(EX)} sc1
""")
zero(range(dACC, dACC + 8))
chk = check_ops(range(dA, dA + 8), dT2)
a("s_waitcnt vmcnt(0)")
for n in range(4):
    u, q = n >> 1, n & 1
    a(f"{SMF} {v(dACC + 4 * q, 4)}, {v(dA + 4 * u, 4)}, {v(dB + 8 * n, 8)}, {v(IDX)}")
    for _ in range(2):
        if chk:
            a(chk.pop(0))
retry("L_PDN", True)
rawstamp(19) if False else None
a(f"""
    v_add_f32 {v(dACC)}, {v(dACC)}, {v(dACC + 2)}
    v_add_f32 {v(dACC + 5)}, {v(dACC + 5)}, {v(dACC + 7)}
    v_add_f32 {v(dACC)}, {v(dACC)}, {v(dACC + 5)}
    v_min_u32 {v(dACC)}, -2, {v(dACC)}
    global_store_dword {v(dSA)}, {v(dACC)}, {sp(EX)} sc1
""")
stamp(1)
a(f"""
    s_cmp_eq_u32 {LAYER}, 0
    s_cbranch_scc1 L_RED2
    s_and_b32 {T0}, {TILE}, 7
    s_cmp_lg_u32 {T0}, {G}
    s_cbranch_scc1 L_FIN
L_RED2:
""")
red_addr(PB2, XF)
s_expr(T0, [(TILE, 32)])
lane_expr(6, 7, [(2, 2, 1280), (0, 2, 8), (5, 1, 4)], T0)
a("s_waitcnt vmcnt(0)")
red_poll(8, True)
a(f"""
    s_cmp_eq_u32 {LAYER}, 0
    s_cbranch_scc1 L_RED2P
    global_store_dword v6, {v(rL)}, {sp(pOUT)}
    s_mov_b64 exec, -1
    s_branch L_FIN
L_RED2P:
""")
red_publish()
op_load_b()
a("s_branch L_NEXT")

uB, uX, uACC, uS1, uONE, uXA, uSA, uCS, uT = 48, 28, 20, 16, 12, 3, 4, 5, 6
a.label("L_UP")
a(f"s_cmp_ge_u32 {J}, 29\ns_cbranch_scc1 L_IDLE")
s_expr(T0, [(W, 16)], L_WG)
b_rows_addr(uT, uXA, 48, [(0, 1, 8), (1, 1, L_WU - L_WG)], T0)
b_reads(uB, uT, 10, 48)
for i in range(4):
    a(f"v_mov_b32 {v(uONE + i)}, {ONES}")
zero(range(uS1, uS1 + 4))
s_expr(T0, [(G, 5120)], XA + 2048)
lane_expr(uXA, uT, [(2, 2, 32), (0, 1, 512), (1, 1, 256), (5, 1, 128), (4, 1, 16)], T0)
a(f"s_sub_u32 {T1}, {J}, 20")
s_expr(T0, [(G, 2048), (T1, 192), (W, 64)], HB)
lane_expr(uSA, uT, [(4, 2, 16), (1, 2, 4)], T0)
a("s_waitcnt lgkmcnt(0)")
for n in range(10):
    a(f"{SMF} {v(uS1, 4)}, {v(uONE, 4)}, {v(uB + 8 * n, 8)}, {v(IDX)}")
a(f"""
    v_add_f32 {v(uCS)}, {v(uS1)}, {v(uS1 + 2)}
    v_mul_f32 {v(uCS)}, {f32(1.0 / 640)}, {v(uCS)}
    s_mov_b32 {SPIN}, {SPIN_MAX}
""")
stamp(7)
a.label("L_PUP")
for u in range(5):
    a(f"global_load_dwordx4 {v(uX + 4 * u, 4)}, {v(uXA)}, {sp(EX)} offset:{u * 1024 - 2048} sc1")
zero(range(uACC, uACC + 8))
chk = check_ops(range(uX, uX + 20), uT)
for u in range(5):
    a(f"s_waitcnt vmcnt({4 - u})")
    a(f"{MFMA} {v(uS1, 4)}, {v(uX + 4 * u, 4)}, {v(uONE, 4)}, {'0' if u == 0 else v(uS1, 4)}")
    for _ in range(2):
        if u > 0 or _ == 0:
            a(chk.pop(0))
for s in chk:
    a(s)
retry("L_PUP", True)
stamp(4)
for n in range(10):
    u, q = n >> 1, n & 1
    a(f"{SMF} {v(uACC + 4 * q, 4)}, {v(uX + 4 * u, 4)}, {v(uB + 8 * n, 8)}, {v(IDX)}")
    if n == 6:
        a(f"v_pk_add_f32 {v(uS1, 2)}, {v(uS1, 2)}, {v(uS1 + 2, 2)}")
    if n == 7:
        a(f"v_add_f32 {v(uS1)}, {v(uS1)}, {v(uS1 + 1)}")
a(f"""
    v_add_f32 {v(uACC)}, {v(uACC)}, {v(uACC + 2)}
    v_fma_f32 {v(uACC)}, -{v(uS1)}, {v(uCS)}, {v(uACC)}
    v_add_f32 {v(uACC + 5)}, {v(uACC + 5)}, {v(uACC + 7)}
    v_add_f32 {v(uACC)}, {v(uACC)}, {v(uACC + 5)}
    v_cvt_pk_bf16_f32 {v(uACC)}, {v(uACC)}, {v(uACC)}
    v_and_b32 {v(uACC)}, 0xffff0000, {v(uACC)}
    v_max_f32 {v(uACC + 1)}, 0, {v(uACC)}
    v_mul_f32_dpp {v(uACC + 1)}, {v(uACC)}, {v(uACC + 1)} row_ror:8 {DPP}
    s_mov_b32 s{MSK}, 0x00550055
    s_mov_b32 s{MSK + 1}, 0x00550055
    v_mov_b32_dpp {v(uACC)}, {v(uACC + 1)} quad_perm:[1,1,3,3] {DPP}
    v_cvt_pk_bf16_f32 {v(uACC)}, {v(uACC + 1)}, {v(uACC)}
    v_min_u32 {v(uACC)}, -2, {v(uACC)}
    s_mov_b64 exec, {sp(MSK)}
""")
store_local(f"global_store_dword {v(uSA)}, {v(uACC)}, {sp(EX)}")
a("s_mov_b64 exec, -1")
stamp(5)
a.label("L_IDLE")
a(f"s_cmp_lg_u32 {LAYER}, 0\ns_cbranch_scc1 L_FIN")
a.label("L_NEXT")
att_addr()
att_zero()
a("s_waitcnt lgkmcnt(0)")
a.label("L_NEXT2")
a(f"s_mov_b32 {LAYER}, 1")
add64(EX, EX, LSTRIDE)
a("s_branch L_BAR")

a.label("L_HI")
a(f"s_cmp_lg_u32 {LAYER}, 0\ns_cbranch_scc1 L_FIN")
att_zero()
a(f"s_mov_b32 {SPIN}, {SPIN_MAX}\ns_cmp_eq_u32 {W}, 3\ns_cbranch_scc1 L_POLLER")
qp_setup()
qp_xaddr(False)
qp_saddr(QB2)
a("s_waitcnt lgkmcnt(0)")
a.label("L_PQP")
a(f"global_load_dwordx4 {v(qX, 4)}, {v(qXA0)}, {sp(EX)} sc1")
a(f"global_load_dwordx4 {v(qX + 4, 4)}, {v(qXA1)}, {sp(EX)} sc1")
zero(range(qACC, qACC + 12))
chk = check_ops(range(qX, qX + 8), qT)
a("s_waitcnt vmcnt(0)")
for m in qp_mm():
    a(m)
    for _ in range(2):
        if chk:
            a(chk.pop(0))
retry("L_PQP", True)
stamp(4)
qp_sum()
a(f"v_min_u32 {v(qACC)}, -2, {v(qACC)}")
store_local(f"global_store_dword {v(qSA)}, {v(qACC)}, {sp(pWS)}")
stamp(5)
a("s_branch L_NEXT2")

a.label("L_POLLER")
poller_qaddr(QB2)
s_expr(T0, [(G, 5120), (BB, 32)], XF + 2048)
lane_expr(120, pT, [(3, 3, 128), (0, 3, 4)], T0)
a.label("L_PXP")
for u in range(5):
    a(f"global_load_dword {v(pX_ + u)}, v120, {sp(EX)} offset:{u * 1024 - 2048} sc1")
a("s_waitcnt vmcnt(0)")
for s in check_ops(range(pX_, pX_ + 5), pT):
    a(s)
retry("L_PXP")
stamp(4)
poller_stats()
a(f"s_mov_b32 {SPIN}, {SPIN_MAX}")
stamp(5)
a.label("L_PQ")
poller_qloads(pWS)
a("s_waitcnt vmcnt(0)")
for s in check_ops(range(pQ, pQ + 8), pT):
    a(s)
retry("L_PQ")
stamp(6)
poller_finish()
a("s_waitcnt lgkmcnt(0)\ns_branch L_NEXT2")

a.label("L_FIN")
if DIAG:
    stamp(9)
    a("s_memtime s[50:51]\ns_waitcnt lgkmcnt(0)\nv_mov_b32 v1, 0\ns_sub_u32 s50, s50, s100\nv_writelane_b32 v1, s50, 21")
    for i in range(20):
        a(f"v_writelane_b32 v1, s{STAMP0 + 2 * i}, {i}")
    a(f"""
    v_writelane_b32 v1, {LOCAL}, 20
    s_lshl_b32 {T0}, s2, 3
    s_add_u32 {T0}, {T0}, {W}
    s_lshl_b32 {T0}, {T0}, 8
    s_add_u32 {T0}, {T0}, {DIAG_OFF}
    v_lshl_add_u32 v2, v0, 2, {T0}
    global_store_dword v2, v1, {sp(pWS)}
    """)
a.label("L_END")
a("s_endpgm")

a.raw(f""".section .rodata,"a"
.p2align 6
.amdhsa_kernel {NAME}_kernel
  .amdhsa_next_free_vgpr 256
  .amdhsa_next_free_sgpr 102
  .amdhsa_accum_offset 256
  .amdhsa_group_segment_fixed_size 0
  .amdhsa_kernarg_size 96
  .amdhsa_user_sgpr_count 2
  .amdhsa_user_sgpr_kernarg_segment_ptr 1
  .amdhsa_system_sgpr_workgroup_id_x 1
  .amdhsa_float_denorm_mode_32 3
.end_amdhsa_kernel""")

open(sys.argv[1], "w").write(a.text())
print("written", sys.argv[1], "lines", len(a.out), "pad states", a.nops)
```

```python
import math
import struct
import sys

sys.path.insert(0, "gen")
from asmlib import Asm

NAME = "interleave_layers__sliding_block_cached__glu_gated_reglu__decode"

OPT = dict(diag=0, thr=4, force_global=0, wo_post=2, up_post=1, stamps=0x3ff, k0=8, padto=0)
for a_ in sys.argv[2:]:
    k_, v_ = a_.split("=")
    OPT[k_] = int(v_)
DIAG = OPT["diag"]
THR = OPT["thr"]
WO_POST = OPT["wo_post"]
UP_POST = OPT["up_post"]

OB, LSE, HB, XA, XF, PB1, PB2, QB = 0, 65536, 66560, 82944, 123904, 164864, 246784, 328704
LSTRIDE = 328704
QB2 = 2 * LSTRIDE
CLEAR_BYTES = 256 * 4096
Q1 = CLEAR_BYTES
CS1 = Q1 + 262144
DIAG_OFF = 16 << 20
assert QB2 + 262144 <= CLEAR_BYTES

L_WQ = 0
L_WO, L_WD = 20480, 53248
L_WG, L_WU = 20480, 51200
L_OW, L_ML = 81920, 86272
L_QZ = 87296
L_Q = L_QZ + 768
L_P = 89088
L_FLAG = 90112
OWS = 544
LDS_BYTES = 90368

W, G, J, LAYER, LOCAL = "s3", "s4", "s5", "s6", "s7"
pX, pK, pV, pWQ, pWO, pWG, pWU, pWD, pOUT, pDBG, pWS = 8, 10, 12, 14, 16, 20, 22, 24, 26, 28, 30
KB, VB, TB = 32, 34, 36
T0, T1, T2, T3 = "s38", "s39", "s49", "s50"
CSC, PLO, PHI, SPIN = "s40", "s41", "s42", "s43"
MSK = 44
EX = 46
XCC = "s48"
OBM = 52
ONES, H, TILE, BB = "s54", "s55", "s56", "s57"
ODD = 58
WOB = 18
STAMP0 = 60


def sp(n):
    return "s[%d:%d]" % (n, n + 1)


def v(n, cnt=1):
    return "v%d" % n if cnt == 1 else "v[%d:%d]" % (n, n + cnt - 1)


def f32(x):
    return "0x%08x" % struct.unpack("<I", struct.pack("<f", x))[0]


DPP = "row_mask:0xf bank_mask:0xf"
MFMA = "v_mfma_f32_16x16x32_bf16"
SMF = "v_smfmac_f32_16x16x64_bf16"
SPIN_MAX = 1 << 18
KREG, VREG, SREG = 128, 192, 64
IDX = 1
vV = 2
aQA, aPW, aPR, aOWW, aMLW, aOWR, aMLR, aOBA = 3, 4, 5, 6, 7, 8, 9, 10
oBA, oLA, oSA = 11, 12, 13
pCS = 12
rX0, rX1 = 14, 15
vWO = 14

a = Asm()


def stamp(i):
    if not DIAG or not (OPT["stamps"] >> i) & 1:
        return
    l1, l2 = a.newlabel("ST"), a.newlabel("ST")
    a(f"""
    s_cmp_eq_u32 {LAYER}, 0
    s_cbranch_scc1 {l1}
    s_memrealtime {sp(STAMP0 + 20 + 2 * i)}
    s_branch {l2}
    {l1}:
    s_memrealtime {sp(STAMP0 + 2 * i)}
    {l2}:
    """)


def rawstamp(slot):
    if DIAG:
        a(f"s_memrealtime {sp(STAMP0 + 2 * slot)}")


def add64(dst, src, off):
    a(f"s_add_u32 s{dst}, s{src}, {off}\ns_addc_u32 s{dst + 1}, s{src + 1}, 0")


def lane_expr(reg, tmp, fields, base=None):
    first = True
    for pos, width, mul in fields:
        dst = reg if first else tmp
        if pos + width >= 6:
            src = f"v_lshrrev_b32 {v(dst)}, {pos}, v0" if pos else f"v_mov_b32 {v(dst)}, v0"
        elif pos == 0:
            src = f"v_and_b32 {v(dst)}, {(1 << width) - 1}, v0"
        else:
            src = f"v_bfe_u32 {v(dst)}, v0, {pos}, {width}"
        a(src)
        p2 = mul & (mul - 1) == 0
        if first:
            if mul != 1:
                a(f"v_lshlrev_b32 {v(reg)}, {mul.bit_length() - 1}, {v(reg)}" if p2
                  else f"v_mul_u32_u24 {v(reg)}, {mul}, {v(reg)}")
        elif p2:
            a(f"v_lshl_add_u32 {v(reg)}, {v(tmp)}, {mul.bit_length() - 1}, {v(reg)}")
        else:
            a(f"v_mul_u32_u24 {v(tmp)}, {mul}, {v(tmp)}\nv_add_u32 {v(reg)}, {v(reg)}, {v(tmp)}")
        first = False
    if base is not None:
        a(f"v_add_u32 {v(reg)}, {base}, {v(reg)}")


def s_expr(dst, terms, const=0):
    first = True
    for s, mul in terms:
        d = dst if first else T3
        if mul == 1:
            if first:
                a(f"s_mov_b32 {d}, {s}")
            else:
                d = s
        elif mul & (mul - 1) == 0:
            a(f"s_lshl_b32 {d}, {s}, {mul.bit_length() - 1}")
        else:
            a(f"s_mul_i32 {d}, {s}, {mul}")
        if not first:
            a(f"s_add_u32 {dst}, {dst}, {d}")
        first = False
    if const:
        a(f"s_add_u32 {dst}, {dst}, {const}")


def store_local(ins):
    lg, le = a.newlabel("SG"), a.newlabel("SE")
    a(f"""
    s_cmp_eq_u32 {LOCAL}, 0
    s_cbranch_scc1 {lg}
    {ins}
    s_branch {le}
    {lg}:
    {ins} sc1
    {le}:
    """)


def check_ops(regs, tmp):
    ops = []
    regs = list(regs)
    if len(regs) == 1:
        return [f"v_cmp_eq_u32 vcc, -1, {v(regs[0])}"]
    if len(regs) == 2:
        ops.append(f"v_max_u32 {v(tmp)}, {v(regs[0])}, {v(regs[1])}")
    else:
        ops.append(f"v_max3_u32 {v(tmp)}, {v(regs[0])}, {v(regs[1])}, {v(regs[2])}")
        rest = regs[3:]
        while len(rest) >= 2:
            ops.append(f"v_max3_u32 {v(tmp)}, {v(tmp)}, {v(rest[0])}, {v(rest[1])}")
            rest = rest[2:]
        if rest:
            ops.append(f"v_max_u32 {v(tmp)}, {v(tmp)}, {v(rest[0])}")
    ops.append(f"v_cmp_eq_u32 vcc, -1, {v(tmp)}")
    return ops


def retry(loop, mfma_pending=False):
    ok = a.newlabel("OK")
    a(f"s_cbranch_vccz {ok}")
    if mfma_pending:
        a.raw("    s_nop 15")
    a(f"""
    s_sub_u32 {SPIN}, {SPIN}, 1
    s_cbranch_scc0 {loop}
    {ok}:
    """)


def thr_wait():
    if THR:
        a(f"s_waitcnt vmcnt({THR - 1})")


def k_loads(t, vK, throttle=True, lo=0, hi=8):
    n = 0
    for kq in range(4):
        for hf in range(2):
            if lo <= n < hi:
                r = KREG + ((t * 4 + kq) * 2 + hf) * 4
                a(f"global_load_dwordx4 {v(r, 4)}, {v(vK)}, {sp(KB + 0)} offset:{kq * 2048 + hf * 128 - 4096} nt")
                if throttle:
                    thr_wait()
            n += 1


def v_loads(t):
    for i in range(8):
        a(f"global_load_dwordx4 {v(SREG + t * 32 + i * 4, 4)}, {v(vV)}, {sp(VB)} offset:{i * 1024 - 4096} nt")


def zero(regs):
    for r in regs:
        a(f"v_mov_b32 {v(r)}, 0")


def b_rows_addr(reg, tmp, rowbytes, extra, base):
    lane_expr(reg, tmp, [(3, 1, 32 * rowbytes), (4, 2, 4 * rowbytes), (2, 1, rowbytes)] + extra, base)


def b_reads(dst, addr, nblk, rowbytes, off0=0):
    for blk in range(nblk):
        for rho in range(4):
            off = off0 + (64 * blk + 16 * (rho >> 1) + 2 * (rho & 1)) * rowbytes
            a(f"ds_read_b64_tr_b16 {v(dst + 8 * blk + 2 * rho, 2)}, {v(addr)} offset:{off}")


def lane_sum(regs, steps, tmps):
    for st in steps:
        if st in ("s16", "s32"):
            for r, t in zip(regs, tmps):
                a(f"v_mov_b32 {v(t)}, {v(r)}")
            for r, t in zip(regs, tmps):
                a(f"v_permlane{st[1:]}_swap_b32 {v(r)}, {v(t)}")
            for r, t in zip(regs, tmps):
                a(f"v_add_f32 {v(r)}, {v(r)}, {v(t)}")
        else:
            pat = {"x1": "quad_perm:[1,0,3,2]", "x2": "quad_perm:[2,3,0,1]", "hm": "row_half_mirror",
                   "r4": "row_ror:4", "r8": "row_ror:8"}[st]
            for r in regs:
                a(f"v_add_f32_dpp {v(r)}, {v(r)}, {v(r)} {pat} {DPP}")


def ln_stats(xregs, s1, s2, steps, t1, t2):
    for n, r in enumerate(xregs):
        a(f"v_dot2_f32_bf16 {v(s1)}, {v(r)}, {ONES}, {'0' if n == 0 else v(s1)}")
        a(f"v_dot2_f32_bf16 {v(s2)}, {v(r)}, {v(r)}, {'0' if n == 0 else v(s2)}")
    lane_sum([s1, s2], steps, [t1, t2])
    a(f"""
    v_mul_f32 {v(s1)}, {f32(1.0 / 640)}, {v(s1)}
    v_mul_f32 {v(s2)}, {f32(1.0 / 640)}, {v(s2)}
    v_fma_f32 {v(s2)}, -{v(s1)}, {v(s1)}, {v(s2)}
    v_max_f32 {v(s2)}, 0, {v(s2)}
    v_add_f32 {v(s2)}, {f32(1e-5)}, {v(s2)}
    """)


def arrive():
    s_expr(T1, [(G, 32), (J, 1)])
    a(f"""
    s_getreg_b32 {XCC}, hwreg(HW_REG_XCC_ID, 0, 4)
    s_or_b32 {T0}, {XCC}, 0x80
    v_mov_b32 v60, {T0}
    v_mov_b32 v62, {T1}
    s_mov_b64 exec, 1
    global_store_byte v62, v60, {sp(pDBG)} sc1
    s_mov_b64 exec, -1
    """)


qB, qX, qACC, qXA0, qXA1, qSA, qT = 64, 88, 96, 108, 109, 110, 111


def qp_setup():
    s_expr(T0, [(W, 32)], L_WQ - 4 * 32)
    b_rows_addr(qT, qSA, 128, [(0, 2, 8)], T0)
    b_reads(qB, qT, 3, 128)


def qp_xaddr(from_input):
    a(f"s_and_b32 {T1}, {J}, 3")
    if from_input:
        s_expr(T0, [(T1, 320)])
        lane_expr(qXA0, qT, [(2, 2, 1280), (0, 1, 128), (1, 1, 64), (4, 2, 16)], T0)
        s_expr(T0, [(T1, 320)], 256)
        lane_expr(qXA1, qT, [(2, 2, 1280), (4, 2, 16)], T0)
    else:
        s_expr(T0, [(T1, 1280), (G, 5120)], XF)
        lane_expr(qXA0, qT, [(2, 2, 32), (0, 1, 512), (1, 1, 256), (5, 1, 128), (4, 1, 16)], T0)
        s_expr(T0, [(T1, 1280), (G, 5120)], XF + 1024)
        lane_expr(qXA1, qT, [(2, 2, 32), (5, 1, 128), (4, 1, 16)], T0)


def qp_saddr(off):
    a(f"s_and_b32 {T1}, {J}, 3\ns_lshr_b32 {T2}, {J}, 2")
    s_expr(T0, [(G, 32768), (T1, 8192), (T2, 256), (W, 64)], off - 4 * 64)
    lane_expr(qSA, qT, [(4, 2, 2048), (0, 4, 4)], T0)


def qp_mm():
    return [f"{SMF} {v(qACC, 4)}, {v(qX, 4)}, {v(qB, 8)}, {v(IDX)}",
            f"{SMF} {v(qACC + 4, 4)}, {v(qX, 4)}, {v(qB + 8, 8)}, {v(IDX)}",
            f"{SMF} {v(qACC + 8, 4)}, {v(qX + 4, 4)}, {v(qB + 16, 8)}, {v(IDX)}"]


def qp_sum():
    a(f"""
    v_add_f32 {v(qACC)}, {v(qACC)}, {v(qACC + 2)}
    v_add_f32 {v(qACC + 5)}, {v(qACC + 5)}, {v(qACC + 7)}
    v_add_f32 {v(qACC)}, {v(qACC)}, {v(qACC + 5)}
    v_add_f32 {v(qACC)}, {v(qACC)}, {v(qACC + 8)}
    """)


pX_, pQ, pS1, pS2, pA, pLW, pT, pT2 = 96, 104, 112, 114, 116, 117, 118, 119


def poller_stats():
    ln_stats(range(pX_, pX_ + 5), pS1, pS2, ["x1", "x2", "r4", "r8", "s16", "s32"], pT, pT2)
    a(f"v_rsq_f32 {v(pS2)}, {v(pS2)}")


def poller_qaddr(off):
    a(f"s_lshr_b32 {T1}, {J}, 3")
    s_expr(T0, [(G, 32768), (BB, 2048), (T1, 512)], off)
    a(f"v_lshl_add_u32 {v(pA)}, v0, 3, {T0}")
    lane_expr(pLW, pT, [(5, 1, 128), (3, 1, 64), (0, 1, 32), (4, 1, 16), (1, 2, 4)], L_Q)


def poller_qloads(base):
    for kq in range(4):
        if kq:
            add64(TB, TB if kq > 1 else base, 8192)
        a(f"global_load_dwordx2 {v(pQ + 2 * kq, 2)}, {v(pA)}, {sp(TB if kq else base)} sc1")


def poller_finish():
    a(f"""
    v_pk_add_f32 {v(pQ, 2)}, {v(pQ, 2)}, {v(pQ + 2, 2)}
    v_pk_add_f32 {v(pQ + 4, 2)}, {v(pQ + 4, 2)}, {v(pQ + 6, 2)}
    v_pk_add_f32 {v(pQ, 2)}, {v(pQ, 2)}, {v(pQ + 4, 2)}
    v_fma_f32 {v(pQ)}, -{v(pS1)}, {v(pCS)}, {v(pQ)}
    v_fma_f32 {v(pQ + 1)}, -{v(pS1)}, {v(pCS + 1)}, {v(pQ + 1)}
    v_mul_f32 {v(pQ)}, {v(pS2)}, {v(pQ)}
    v_mul_f32 {v(pQ + 1)}, {v(pS2)}, {v(pQ + 1)}
    v_cvt_pk_bf16_f32 {v(pQ)}, {v(pQ)}, {v(pQ + 1)}
    ds_write_b32 {v(pLW)}, {v(pQ)}
    """)


aQV, aQK, aACC, aP, aS, aM, aL, aT = 16, 48, 16, 56, 60, 62, 63, 61


def att_addr():
    t = aT
    lane_expr(aQA, t, [(4, 2, 64), (0, 2, 16)], L_Q)
    a(f"v_bfe_u32 {v(t)}, v0, 2, 2\nv_lshlrev_b32 {v(t)}, 8, {v(t)}\nv_sub_u32 {v(aQA)}, {v(aQA)}, {v(t)}")
    s_expr(T0, [(W, 128)], L_P)
    lane_expr(aPW, t, [(0, 1, 64), (2, 1, 32), (4, 1, 16), (1, 1, 8), (5, 1, 4), (3, 1, 2)], T0)
    lane_expr(aPR, t, [(4, 2, 32), (1, 1, 16)], T0)
    s_expr(T0, [(W, OWS)], L_OW)
    a(f"v_lshl_add_u32 {v(aOWW)}, v0, 5, {T0}")
    s_expr(T0, [(W, 8)], L_ML)
    a(f"v_lshl_add_u32 {v(aMLW)}, v0, 6, {T0}")
    s_expr(T0, [(W, 64)], L_OW)
    lane_expr(aOWR, t, [(0, 3, OWS), (3, 3, 8)], T0)
    lane_expr(aMLR, t, [(0, 3, 8)], L_ML)
    s_expr(T0, [(G, 8192), (J, 256), (W, 32)], OB)
    lane_expr(aOBA, t, [(3, 3, 4)], T0)
    a(f"s_lshr_b32 {T1}, {J}, 3\ns_and_b32 {T2}, {J}, 1")
    s_expr(T0, [(G, 128), (BB, 32), (T1, 8), (T2, 4)], LSE)
    a(f"v_writelane_b32 {v(aOBA)}, {T0}, 1")


def att_zero():
    zero(range(32, 56))


def wo_dma(lo, hi):
    for i in range(lo, hi):
        a(f"s_lshl_b32 {T0}, {W}, 12\ns_add_u32 m0, {T0}, {L_WO + i * 1024}")
        a(f"global_load_lds_dwordx4 {v(vDMA)}, {sp(WOB)} nt")
        add64(WOB, WOB, 16 * 1280)


def up_dma():
    done = a.newlabel("UD")
    a(f"""
    s_cmp_ge_u32 {W}, 6
    s_cbranch_scc1 {done}
    s_cmp_ge_u32 {W}, 3
    s_cselect_b32 s{TB}, s{pWU}, s{pWG}
    s_cselect_b32 s{TB + 1}, s{pWU + 1}, s{pWG + 1}
    s_mov_b32 {T2}, {L_WG}
    s_cselect_b32 {T2}, {L_WU - 3 * 1024}, {T2}
    s_cselect_b32 {T1}, 3, 0
    s_sub_u32 {T1}, {W}, {T1}
    v_lshl_add_u32 v60, {T1}, 6, v0
    v_mul_u32_u24 v61, 21846, v60
    v_lshrrev_b32 v61, 16, v61
    v_mul_u32_u24 v62, 3, v61
    v_sub_u32 v60, v60, v62
    v_mul_u32_u24 v61, 3456, v61
    v_lshl_add_u32 v60, v60, 4, v61
    s_lshl_b32 {T0}, {W}, 10
    s_add_u32 {T2}, {T2}, {T0}
    s_sub_u32 {T1}, {J}, 20
    """)
    s_expr(T0, [(G, 432), (T1, 48)])
    add64(TB, TB, T0)
    a(f"""
    s_mul_i32 {T1}, {T1}, 43
    s_lshr_b32 {T0}, {T1}, 7
    s_mul_i32 {T0}, {T0}, 3
    s_sub_u32 {T1}, {J}, 20
    s_sub_u32 {T1}, {T1}, {T0}
    s_mul_i32 {T1}, {T1}, 3
    """)
    for i in range(10):
        a(f"""
        s_mul_i32 {T0}, {T1}, 3072
        s_add_u32 m0, {T0}, {T2}
        s_mul_i32 {T0}, {T1}, {64 * 3456}
        v_add_u32 v61, {T0}, v60
        s_add_u32 {T1}, {T1}, 1
        s_cmp_eq_u32 {T1}, 10
        s_cselect_b32 {T1}, 0, {T1}
        global_load_lds_dwordx4 v61, {sp(TB)} nt
        """)
    a.label(done)


hdr = open("cdna_kernels/%s.s.ref" % NAME).read().split("\n")
for line in hdr:
    if line.startswith("; @launch"):
        a.raw("; @launch grid=(256,1,1) block=(512,1,1) lds=%d" % LDS_BYTES)
    elif line.startswith(";"):
        a.raw(line)
    else:
        break
a.raw('.amdgcn_target "amdgcn-amd-amdhsa--gfx950"')
a.raw(".text")
a.raw(".globl %s_kernel" % NAME)
a.raw(".p2align 8")
a.raw(".type %s_kernel,@function" % NAME)
a.raw("%s_kernel:" % NAME)

vK, vDMA = 58, 59
aP = 44
a(f"""
    s_cmp_ge_u32 s2, 256
    s_cbranch_scc1 L_END
    s_load_dwordx16 s[8:23], s[0:1], 0
    s_load_dwordx8 s[24:31], s[0:1], 64
    s_mov_b32 {LAYER}, 0
""")
if OPT["padto"]:
    a("s_memrealtime s[96:97]")
if DIAG:
    for i in range(20):
        a(f"s_mov_b64 {sp(STAMP0 + 2 * i)}, 0")
    a(f"s_memrealtime {sp(STAMP0 + 18)}")
    a("s_memtime s[100:101]")
a(f"""
    v_lshrrev_b32 v1, 6, v0
    v_and_b32 v0, 63, v0
    v_readfirstlane_b32 {W}, v1
    s_and_b32 {G}, s2, 7
    s_lshr_b32 {J}, s2, 3
    s_lshr_b32 {T0}, {J}, 3
    s_lshl_b32 {H}, {G}, 2
    s_add_u32 {H}, {H}, {T0}
    s_bfe_u32 {BB}, {J}, 0x20001
    s_and_b32 {T1}, {J}, 1
""")
s_expr(T2, [(BB, 1 << 25), (H, 1 << 20), (T1, 1 << 17), (W, 1 << 13)], 0xC0000 + 4096)
lane_expr(vK, 60, [(1, 3, 256), (0, 1, 64), (4, 2, 16)])
a(f"""
    v_lshlrev_b32 {v(vV)}, 4, v0
    s_waitcnt lgkmcnt(0)
""")
add64(KB, pK, T2)
add64(VB, pV, T2)
a(f"s_cmp_lg_u32 {W}, 2\ns_cbranch_scc1 L_PRO_0")
a.c("wave 2: sentinel fill of this workgroup's share of the exchange area and of its own layer-1 q slots")
a(f"""
    s_lshl_b32 {T0}, s2, 12
    v_lshl_add_u32 v60, v0, 4, {T0}
    v_mov_b32 v64, -1
    v_mov_b32 v65, -1
    v_mov_b32 v66, -1
    v_mov_b32 v67, -1
""")
for u in range(4):
    a(f"global_store_dwordx4 v60, v[64:67], {sp(pWS)} offset:{u * 1024} sc1")
a(f"s_and_b32 {T1}, {J}, 3\ns_lshr_b32 {T2}, {J}, 2")
s_expr(T0, [(G, 32768), (T1, 8192), (T2, 256)], Q1)
lane_expr(60, 61, [(4, 2, 2048), (0, 4, 16)], T0)
a(f"global_store_dwordx4 v60, v[64:67], {sp(pWS)} sc1")
s_expr(T0, [(G, 8192), (T1, 2048), (T2, 256)], CS1)
a(f"v_lshl_add_u32 v60, v0, 2, {T0}")
a(f"global_store_dword v60, v64, {sp(pWS)} sc1")
a.label("L_PRO_0")
a(f"s_cmp_lt_u32 {W}, 4\ns_cbranch_scc1 L_PRO_A")
lane_expr(60, 61, [(3, 3, 8192), (0, 3, 16)])
a(f"s_and_b32 {T1}, {J}, 3\ns_lshr_b32 {T2}, {J}, 2")
s_expr(T0, [(T1, 160 * 8192), (W, 40 * 8192), (G, 1024), (T2, 128)], (1 << 32) - 160 * 8192)
add64(TB, pWQ, T0)
s_expr(T1, [(W, 5120)], (1 << 32) + L_WQ - 4 * 5120)
for i in range(5):
    a(f"s_add_u32 m0, {T1}, {i * 1024}")
    a(f"global_load_lds_dwordx4 v60, {sp(TB)} nt")
    if i < 4:
        add64(TB, TB, 8 * 8192)
qp_xaddr(True)
a(f"global_load_dwordx4 {v(qX, 4)}, {v(qXA0)}, {sp(pX)}")
a(f"global_load_dwordx4 {v(qX + 4, 4)}, {v(qXA1)}, {sp(pX)}")
a.label("L_PRO_A")
k_loads(0, vK, throttle=False, lo=0, hi=4)
a(f"""
    s_mov_b32 {CSC}, {f32(math.log2(math.e) / math.sqrt(128.0))}
    s_mov_b32 {PLO}, 0x05040100
    s_mov_b32 {PHI}, 0x07060302
    s_mov_b32 {ONES}, 0x3f803f80
    s_mov_b32 s{ODD}, 0xaaaaaaaa
    s_mov_b32 s{ODD + 1}, 0xaaaaaaaa
    s_mov_b32 s{OBM}, 0x01010101
    s_mov_b32 s{OBM + 1}, 0x01010101
    s_cmp_eq_u32 {W}, 0
    s_cselect_b32 s{OBM}, 0x01010103, s{OBM}
    s_mov_b32 s{EX}, s{pWS}
    s_mov_b32 s{EX + 1}, s{pWS + 1}
    v_bfe_u32 {v(IDX)}, v0, 1, 1
    v_mul_u32_u24 {v(IDX)}, 0xaaaa, {v(IDX)}
    v_add_u32 {v(IDX)}, 0x4444, {v(IDX)}
    s_lshl_b32 {TILE}, {J}, 1
    s_add_u32 {TILE}, {TILE}, {W}
""")
att_addr()
att_zero()
zero([11, 12, 13, 14, 15, 116, 120])
lane_expr(vDMA, 60, [(2, 4, 1280), (0, 2, 16)])
s_expr(T0, [(G, 512 * 1280), (W, 64 * 1280), (J, 64)])
add64(WOB, pWO, T0)
a(f"""
    s_cmp_ge_u32 {W}, 4
    s_cbranch_scc1 L_PRO_Q
    s_cmp_eq_u32 {W}, 3
    s_cbranch_scc1 L_PRO_P
    s_cmp_eq_u32 {W}, 2
    s_cbranch_scc1 L_PRO_C
""")
a.c("waves 0,1: residual tile and out-projection addresses (harmless on non-OP workgroups)")
a(f"s_min_u32 {T1}, {TILE}, 39")
s_expr(T0, [(T1, 32)])
lane_expr(60, 61, [(2, 2, 1280), (0, 2, 8), (5, 1, 4)], T0)
a(f"global_load_dword {v(rX0)}, v60, {sp(pX)}")
s_expr(T0, [(G, 8192)], OB + 4096)
lane_expr(oBA, 61, [(2, 2, 512), (0, 1, 256), (1, 1, 64), (4, 2, 16)], T0)
s_expr(T0, [(G, 128)], LSE)
lane_expr(oLA, 61, [(4, 2, 32), (0, 2, 8)], T0)
s_expr(T0, [(TILE, 2048), (G, 256)], PB1)
a(f"v_lshl_add_u32 {v(oSA)}, v0, 2, {T0}")
k_loads(0, vK, throttle=False, lo=4, hi=8)
a(f"""
    s_barrier
    s_waitcnt vmcnt(4)
    v_and_b32 {v(rX1)}, 0xffff0000, {v(rX0)}
    v_lshlrev_b32 {v(rX0)}, 16, {v(rX0)}
    s_branch L_PRO_KV2
L_PRO_C:
""")
a.c("wave 2: LDS zero areas, arrival")
a(f"""
    v_lshlrev_b32 v61, 4, v0
    v_add_u32 v62, {L_QZ}, v61
    ds_write_b128 v62, v[32:35]
    ds_write_b128 v62, v[32:35] offset:768
    v_add_u32 v62, {L_WD + 216 * 64}, v61
    s_cmp_ge_u32 {J}, 20
    s_cbranch_scc1 L_PRO_C2
    ds_write_b128 v62, v[32:35]
    ds_write_b128 v62, v[32:35] offset:1024
    ds_write_b128 v62, v[32:35] offset:1536
L_PRO_C2:
    s_waitcnt vmcnt(4) lgkmcnt(0)
""")
arrive()
k_loads(0, vK, throttle=False, lo=4, hi=8)
a("s_barrier\ns_branch L_PRO_KV2")

a.label("L_PRO_Q")
a.c("waves 4..7: partial q projection of layer 1 and partial column sums")
qp_saddr(Q1)
a(f"s_and_b32 {T1}, {J}, 3\ns_lshr_b32 {T2}, {J}, 2")
s_expr(T0, [(G, 8192), (T1, 2048), (T2, 256), (W, 64)], CS1 - 4 * 64)
a(f"v_lshl_add_u32 v112, v0, 2, {T0}")
a(f"v_mov_b32 v113, {v(qSA)}")
zero(range(qACC, qACC + 12))
zero(range(116, 124))
for i in range(4):
    a(f"v_mov_b32 {v(124 + i)}, {ONES}")
a("s_waitcnt vmcnt(4)\ns_barrier")
rawstamp(16)
qp_setup()
a("s_waitcnt lgkmcnt(0)")
for m in qp_mm():
    a(m)
a(f"""
    {SMF} v[116:119], v[124:127], {v(qB, 8)}, {v(IDX)}
    {SMF} v[116:119], v[124:127], {v(qB + 8, 8)}, {v(IDX)}
    {SMF} v[120:123], v[124:127], {v(qB + 16, 8)}, {v(IDX)}
""")
qp_sum()
a(f"""
    v_min_u32 {v(qACC)}, -2, {v(qACC)}
    global_store_dword v113, {v(qACC)}, {sp(pWS)} sc1
    v_add_f32 v116, v116, v118
    v_add_f32 v116, v116, v120
    v_min_u32 v116, -2, v116
    s_mov_b64 exec, 0xffff
    global_store_dword v112, v116, {sp(pWS)} sc1
    s_mov_b64 exec, -1
""")
rawstamp(17)
a("s_branch L_PRO_KV")

a.label("L_PRO_P")
a.c("wave 3: LayerNorm statistics of its row, arrival counter, q of layer 1")
s_expr(T0, [(BB, 1280)])
a(f"v_lshl_add_u32 v60, v0, 2, {T0}")
for u in range(5):
    a(f"global_load_dword {v(pX_ + u)}, v60, {sp(pX)} offset:{u * 256}")
poller_qaddr(Q1)
a(f"s_lshr_b32 {T1}, {J}, 3")
s_expr(T0, [(G, 8192), (T1, 512)], CS1 + 4096)
a(f"""
    v_lshl_add_u32 v120, v0, 3, {T0}
    v_lshlrev_b32 v121, 2, v0
""")
k_loads(0, vK, throttle=False, lo=4, hi=8)
a("s_barrier\ns_waitcnt vmcnt(4)")
poller_stats()
add64(KB, KB, 65536)
k_loads(1, vK, lo=0, hi=4)
a(f"global_load_dword v122, v121, {sp(pDBG)} sc1")
k_loads(1, vK, lo=4, hi=8)
a(f"""
    s_getreg_b32 {XCC}, hwreg(HW_REG_XCC_ID, 0, 4)
    s_or_b32 {T2}, {XCC}, 0x80
    s_mul_i32 {T2}, {T2}, 0x01010101
    s_mov_b32 {SPIN}, {SPIN_MAX}
    s_mov_b32 {T1}, 0x80808080
    s_waitcnt vmcnt(4)
L_CNT:
    v_and_b32 v123, {T1}, v122
    v_cmp_ne_u32 vcc, {T1}, v123
    s_cbranch_vccz L_CNT_OK
    s_sleep 8
    global_load_dword v122, v121, {sp(pDBG)} sc1
    s_waitcnt vmcnt(0)
    s_sub_u32 {SPIN}, {SPIN}, 1
    s_cbranch_scc0 L_CNT
L_CNT_OK:
""")
rawstamp(17)


def q1_loads():
    poller_qloads(pWS)
    for kq in range(4):
        a(f"global_load_dwordx2 {v(pX_ + 2 * kq, 2)}, v120, {sp(pWS)} offset:{kq * 2048 - 4096} sc1")


q1_loads()
a(f"""
    v_cmp_ne_u32 vcc, {T2}, v122
    s_lshl_b32 {T0}, {G}, 3
    s_lshr_b64 {sp(MSK)}, vcc, {T0}
    s_and_b32 {T0}, s{MSK}, 0xff
    s_cselect_b32 {T0}, 0, {0 if OPT['force_global'] else 1}
    v_mov_b32 v123, {T0}
    v_mov_b32 v121, {L_FLAG}
    ds_write_b32 v121, v123
    s_branch L_PRO_W
""")

a.label("L_PRO_KV")
k_loads(0, vK, lo=4, hi=8)
a.label("L_PRO_KV2")
add64(KB, KB, 65536)
k_loads(1, vK)
a.label("L_PRO_W")
a.c("role weights that are staged ahead of V")
a(f"s_cmp_ge_u32 {J}, 20\ns_cbranch_scc1 L_PRO_W2")
wo_dma(0, 4 - WO_POST)
s_expr(T0, [(G, 216 * 1280), (W, 16 * 1280), (J, 64)])
add64(TB, pWD, T0)
a(f"""
    s_lshl_b32 {T0}, {W}, 10
    s_add_u32 m0, {T0}, {L_WD}
    s_cmp_ge_u32 {W}, 6
    global_load_lds_dwordx4 {v(vDMA)}, {sp(TB)} nt
    s_cbranch_scc1 L_PRO_V
    s_add_u32 m0, {T0}, {L_WD + 8192}
""")
add64(TB, TB, 128 * 1280)
a(f"""
    s_cmp_eq_u32 {W}, 5
    s_cselect_b32 exec_hi, 0, -1
    global_load_lds_dwordx4 {v(vDMA)}, {sp(TB)} nt
    s_mov_b64 exec, -1
    s_branch L_PRO_V
L_PRO_W2:
""")
if not UP_POST:
    a(f"s_cmp_ge_u32 {J}, 29\ns_cbranch_scc1 L_PRO_V")
    up_dma()
a.label("L_PRO_V")
v_loads(0)
rawstamp(18)
a(f"s_cmp_lg_u32 {W}, 3\ns_cbranch_scc1 L_BAR")
a(f"s_mov_b32 {SPIN}, {SPIN_MAX}\ns_waitcnt vmcnt(8)")
a.label("L_Q1")
for s_ in check_ops(range(pX_, pX_ + 16), pT):
    a(s_)
a("s_cbranch_vccz L_Q1_OK")
q1_loads()
a(f"""
    s_waitcnt vmcnt(0)
    s_sub_u32 {SPIN}, {SPIN}, 1
    s_cbranch_scc0 L_Q1
L_Q1_OK:
    v_pk_add_f32 {v(pX_, 2)}, {v(pX_, 2)}, {v(pX_ + 2, 2)}
    v_pk_add_f32 {v(pX_ + 4, 2)}, {v(pX_ + 4, 2)}, {v(pX_ + 6, 2)}
    v_pk_add_f32 {v(pCS, 2)}, {v(pX_, 2)}, {v(pX_ + 4, 2)}
""")
poller_finish()
a("s_waitcnt lgkmcnt(0)")

aP = 52
a.label("L_BAR")
a(f"v_mov_b32 {v(aT)}, {L_FLAG}\ns_barrier")
stamp(0)
for o in range(4):
    a(f"ds_read_b128 {v(aQV + 4 * o, 4)}, {v(aQA)} offset:{o * 256}")
a(f"ds_read_b32 {v(aT)}, {v(aT)}")
a("s_waitcnt vmcnt(8)")
for o in range(4):
    a(f"s_waitcnt lgkmcnt({4 - o})")
    for t in range(2):
        a(f"{SMF} {v(aQK + 4 * t, 4)}, {v(aQV + 4 * o, 4)}, {v(KREG + (t * 4 + o) * 8, 8)}, {v(IDX)}")
a(f"s_waitcnt lgkmcnt(0)\nv_readfirstlane_b32 {LOCAL}, {v(aT)}")
zero(range(16, 27))
a(f"""
    v_pk_add_f32 {v(aQK, 2)}, {v(aQK, 2)}, {v(aQK + 2, 2)}
    v_pk_add_f32 {v(aQK + 4, 2)}, {v(aQK + 4, 2)}, {v(aQK + 6, 2)}
    v_cndmask_b32 {v(aT)}, {v(aQK + 4)}, {v(aQK + 1)}, {sp(ODD)}
    v_cndmask_b32 {v(aS)}, {v(aQK)}, {v(aQK + 5)}, {sp(ODD)}
    v_mov_b32 v27, 0
    v_add_f32_dpp {v(aS)}, {v(aT)}, {v(aS)} quad_perm:[1,0,3,2] {DPP}
    v_mov_b32 v28, 0
    v_mov_b32 v29, 0
    v_max_f32_dpp {v(aM)}, {v(aS)}, {v(aS)} quad_perm:[1,0,3,2] {DPP}
    v_mov_b32 v30, 0
    v_mov_b32 v31, 0
    v_max_f32_dpp {v(aM)}, {v(aM)}, {v(aM)} quad_perm:[2,3,0,1] {DPP}
    v_max_f32_dpp {v(aM)}, {v(aM)}, {v(aM)} row_ror:4 {DPP}
    v_max_f32_dpp {v(aM)}, {v(aM)}, {v(aM)} row_ror:8 {DPP}
    v_mov_b32 {v(aT)}, {v(aM)}
    v_permlane32_swap_b32 {v(aM)}, {v(aT)}
    v_max_f32 {v(aM)}, {v(aM)}, {v(aT)}
    v_mov_b32 {v(aT)}, {v(aM)}
    v_permlane16_swap_b32 {v(aM)}, {v(aT)}
    v_max_f32 {v(aM)}, {v(aM)}, {v(aT)}
    v_mul_f32 {v(aM)}, {CSC}, {v(aM)}
    v_fma_f32 {v(aS)}, {v(aS)}, {CSC}, -{v(aM)}
    v_exp_f32 {v(aL)}, {v(aS)}
    v_cvt_pk_bf16_f32 {v(aS)}, {v(aL)}, {v(aL)}
    ds_write_b16 {v(aPW)}, {v(aS)}
    ds_read_b128 {v(aP, 4)}, {v(aPR)}
""")
lane_sum([aL], ["x1", "x2", "r4", "r8", "s16", "s32"], [aT])
stamp(1)


def transpose(t, base_wait):
    for pp in range(4):
        n = base_wait + 6 - 2 * pp
        if WO_POST:
            l = a.newlabel("TW")
            a(f"""
            s_waitcnt vmcnt({n + WO_POST})
            s_cbranch_scc1 {l}
            s_waitcnt vmcnt({n})
            {l}:
            """)
        else:
            a(f"s_waitcnt vmcnt({n})")
        for j in range(8):
            s0 = SREG + t * 32 + (2 * pp) * 4 + (j >> 1)
            a(f"v_perm_b32 {v(VREG + j * 8 + t * 4 + pp)}, {v(s0 + 4)}, {v(s0)}, {PHI if j & 1 else PLO}")


a(f"s_cmp_lg_u32 {LAYER}, 0\ns_cbranch_scc1 L_PV")
add64(VB, VB, 65536)
v_loads(1)
if WO_POST:
    a(f"s_cmp_ge_u32 {J}, 20\ns_cbranch_scc1 L_NOWO")
    wo_dma(4 - WO_POST, 4)
    a.label("L_NOWO")
    a(f"s_cmp_lt_u32 {J}, 20")
transpose(0, 8)
transpose(1, 0)
a.label("L_PV")
a("s_waitcnt lgkmcnt(0)")
for j in range(8):
    a(f"{SMF} {v(aACC + 4 * j, 4)}, {v(aP, 4)}, {v(VREG + j * 8, 8)}, {v(IDX)}")
stamp(2)
a("s_mov_b64 exec, 0xffff")
a(f"ds_write_b64 {v(aMLW)}, {v(aM, 2)}")
for jp in range(4):
    for j in (2 * jp, 2 * jp + 1):
        a(f"v_add_f32 {v(aACC + 4 * j)}, {v(aACC + 4 * j)}, {v(aACC + 4 * j + 2)}")
    a(f"ds_write2_b32 {v(aOWW)}, {v(aACC + 8 * jp)}, {v(aACC + 8 * jp + 4)} offset0:{2 * jp} offset1:{2 * jp + 1}")
cO, cM = 16, 18
a(f"""
    s_mov_b64 exec, -1
    s_waitcnt lgkmcnt(0)
    s_barrier
    ds_read_b64 {v(cM, 2)}, {v(aMLR)}
    ds_read_b64 {v(cO, 2)}, {v(aOWR)}
    v_cmp_eq_u32 vcc, 1, v0
    s_waitcnt lgkmcnt(1)
    v_max_f32_dpp v20, {v(cM)}, {v(cM)} quad_perm:[1,0,3,2] {DPP}
    v_max_f32_dpp v20, v20, v20 quad_perm:[2,3,0,1] {DPP}
    v_max_f32_dpp v20, v20, v20 row_half_mirror {DPP}
    v_sub_f32 v21, {v(cM)}, v20
    v_exp_f32 v21, v21
    s_waitcnt lgkmcnt(0)
    v_mul_f32 {v(cM + 1)}, v21, {v(cM + 1)}
    v_mul_f32 {v(cO)}, v21, {v(cO)}
    v_mul_f32 {v(cO + 1)}, v21, {v(cO + 1)}
""")
lane_sum([cM + 1, cO, cO + 1], ["x1", "x2", "hm"], [])
a(f"""
    v_rcp_f32 v21, {v(cM + 1)}
    v_log_f32 v22, {v(cM + 1)}
    v_mul_f32 {v(cO)}, v21, {v(cO)}
    v_mul_f32 {v(cO + 1)}, v21, {v(cO + 1)}
    v_add_f32 v22, v22, v20
    v_cvt_pk_bf16_f32 {v(cO)}, {v(cO)}, {v(cO + 1)}
    v_cndmask_b32 {v(cO)}, {v(cO)}, v22, vcc
    v_min_u32 {v(cO)}, -2, {v(cO)}
    s_mov_b64 exec, {sp(OBM)}
""")
store_local(f"global_store_dword {v(aOBA)}, {v(cO)}, {sp(EX)}")
a("s_mov_b64 exec, -1")
stamp(3)
a(f"s_cmp_lg_u32 {LAYER}, 0\ns_cbranch_scc1 L_ROLE")
a.c("layer 1 only: late weight staging, then make all staged weights visible to every wave")
if UP_POST:
    a(f"""
    s_sub_u32 {T0}, {J}, 20
    s_cmp_ge_u32 {T0}, 9
    s_cbranch_scc1 L_NOUP
    """)
    up_dma()
    a("s_waitcnt vmcnt(0)")
    a.label("L_NOUP")
a("s_waitcnt vmcnt(1)\ns_barrier")
a.label("L_ROLE")
a(f"""
    s_cmp_ge_u32 {W}, 3
    s_cbranch_scc1 L_HI
    s_cmp_ge_u32 {J}, 20
    s_cbranch_scc1 L_UP
    s_cmp_eq_u32 {W}, 2
    s_cbranch_scc1 L_IDLE
""")

oB, oA, oACC, oL, oT, oT2 = 64, 16, 48, 4, 6, 7


def op_load_b():
    s_expr(T0, [(W, 32)], L_WO)
    b_rows_addr(oT, oT2, 64, [(0, 2, 8)], T0)
    b_reads(oB, oT, 8, 64)


def op_loads():
    a(f"global_load_dwordx2 {v(oL, 2)}, {v(oLA)}, {sp(EX)} sc1")
    for hh in range(4):
        for u in range(2):
            a(f"global_load_dwordx4 {v(oA + 8 * hh + 4 * u, 4)}, {v(oBA)}, {sp(EX)} offset:{hh * 2048 + u * 128 - 4096} sc1")


a(f"s_mov_b32 {SPIN}, {SPIN_MAX}\ns_cmp_lg_u32 {LAYER}, 0\ns_cbranch_scc1 L_POP")
op_load_b()
a.label("L_POP")
op_loads()
zero(range(oACC, oACC + 16))
chk = check_ops([oL, oL + 1] + list(range(oA, oA + 32)), oT2)
a("s_waitcnt vmcnt(8) lgkmcnt(0)")
a(f"""
    v_sub_f32 {v(oT)}, {v(oL + 1)}, {v(oL)}
    v_exp_f32 {v(oT)}, {v(oT)}
    v_add_f32 {v(oT)}, 1.0, {v(oT)}
    v_rcp_f32 v8, {v(oT)}
    v_sub_f32 v9, 1.0, v8
""")
for n in range(8):
    hh, u = n >> 1, n & 1
    a(f"s_waitcnt vmcnt({7 - n})")
    a(f"{SMF} {v(oACC + 4 * hh, 4)}, {v(oA + 4 * n, 4)}, {v(oB + 8 * n, 8)}, {v(IDX)}")
    for _ in range(2):
        a(chk.pop(0))
for s in chk:
    a(s)
retry("L_POP", True)
stamp(4)
for hh in range(4):
    r = oACC + 4 * hh
    qp_ = f"quad_perm:[{hh},{hh},{hh},{hh}] {DPP}"
    a(f"v_pk_add_f32 {v(r, 2)}, {v(r, 2)}, {v(r + 2, 2)}")
    if hh == 0:
        a(f"v_mul_f32_dpp {v(oT)}, v8, {v(r)} {qp_}")
        a(f"v_mul_f32_dpp {v(oT2)}, v9, {v(r + 1)} {qp_}")
    else:
        a(f"v_fmac_f32_dpp {v(oT)}, v8, {v(r)} {qp_}")
        a(f"v_fmac_f32_dpp {v(oT2)}, v9, {v(r + 1)} {qp_}")
a(f"""
    v_add_f32 {v(oT)}, {v(oT)}, {v(oT2)}
    v_min_u32 {v(oT)}, -2, {v(oT)}
    global_store_dword {v(oSA)}, {v(oT)}, {sp(EX)} sc1
""")
stamp(5)

rL, rA, rS, rT, rSC = 16, 3, 4, 5, 8


def red_addr(src, dst):
    s_expr(T0, [(TILE, 2048)], src)
    a(f"v_lshl_add_u32 {v(rA)}, v0, 4, {T0}")
    s_expr(T0, [(G, 5120), (TILE, 128)], dst)
    lane_expr(rS, rT, [(0, 4, 8), (5, 1, 4)], T0)
    a(f"s_mov_b32 {SPIN}, {SPIN_MAX}")


def red_poll(st, scale):
    loop = a.newlabel("PR")
    a.label(loop)
    for i in range(2):
        a(f"global_load_dwordx4 {v(rL + 4 * i, 4)}, {v(rA)}, {sp(EX)} offset:{i * 1024} sc1")
    a("s_waitcnt vmcnt(0)")
    for s in check_ops(range(rL, rL + 8), rT):
        a(s)
    retry(loop)
    stamp(st)
    a(f"""
    v_pk_add_f32 {v(rL, 2)}, {v(rL, 2)}, {v(rL + 4, 2)}
    v_pk_add_f32 {v(rL + 2, 2)}, {v(rL + 2, 2)}, {v(rL + 6, 2)}
    v_permlane32_swap_b32 {v(rL)}, {v(rL + 2)}
    v_permlane32_swap_b32 {v(rL + 1)}, {v(rL + 3)}
    v_pk_add_f32 {v(rL, 2)}, {v(rL, 2)}, {v(rL + 2, 2)}
    v_mov_b32 {v(rL + 2)}, {v(rL)}
    v_mov_b32 {v(rL + 3)}, {v(rL + 1)}
    v_permlane16_swap_b32 {v(rL)}, {v(rL + 2)}
    v_permlane16_swap_b32 {v(rL + 1)}, {v(rL + 3)}
    v_pk_add_f32 {v(rL, 2)}, {v(rL, 2)}, {v(rL + 2, 2)}
    """)
    if scale:
        a(f"v_pk_mul_f32 {v(rL, 2)}, {v(rL, 2)}, {v(rSC, 2)} op_sel_hi:[1,0]")
    a(f"""
    v_cvt_pk_bf16_f32 {v(rL)}, {v(rL)}, {v(rL + 1)}
    v_and_b32 {v(rL + 1)}, 0xffff0000, {v(rL)}
    v_lshlrev_b32 {v(rL)}, 16, {v(rL)}
    v_pk_add_f32 {v(rL, 2)}, {v(rL, 2)}, {v(rX0, 2)}
    v_cvt_pk_bf16_f32 {v(rL)}, {v(rL)}, {v(rL + 1)}
    s_mov_b32 exec_lo, 0xffff
    s_mov_b32 exec_hi, 0xffff
    """)


def red_publish():
    a(f"v_min_u32 {v(rL + 1)}, -2, {v(rL)}")
    store_local(f"global_store_dword {v(rS)}, {v(rL + 1)}, {sp(EX)}")
    a(f"""
    s_mov_b64 exec, -1
    v_and_b32 {v(rX1)}, 0xffff0000, {v(rL)}
    v_lshlrev_b32 {v(rX0)}, 16, {v(rL)}
    """)


red_addr(PB1, XA)
a("s_waitcnt vmcnt(0)")
red_poll(6, False)
red_publish()
stamp(7)
dB, dA, dACC, dHA0, dHA1, dSA, dT, dT2, dX = 64, 16, 24, 3, 4, 5, 6, 7, 96
s_expr(T0, [(W, 32)], L_WD)
b_rows_addr(dT, dT2, 64, [(0, 2, 8)], T0)
b_reads(dB, dT, 4, 64)
s_expr(T0, [(G, 5120)], XA + 2048)
lane_expr(dHA0, dT2, [(4, 2, 256), (1, 1, 128), (2, 2, 32), (0, 1, 16)], T0)
a(f"s_mov_b32 {SPIN}, {SPIN_MAX}")
a.label("L_PXS")
for u in range(5):
    a(f"global_load_dwordx4 {v(dX + 4 * u, 4)}, {v(dHA0)}, {sp(EX)} offset:{u * 1024 - 2048} sc1")
a("s_waitcnt vmcnt(0)")
for s in check_ops(range(dX, dX + 20), dT2):
    a(s)
retry("L_PXS")
ln_stats(range(dX, dX + 20), 9, rSC, ["x1", "x2", "s16", "s32"], dT, dT2)
a(f"v_rcp_f32 {v(rSC)}, {v(rSC)}")
s_expr(T0, [(G, 2048)], HB)
lane_expr(dT, dT2, [(0, 1, 8), (1, 1, 4), (4, 2, 1)])
lane_expr(dHA1, dT2, [(2, 2, 16)], T0)
a(f"""
    v_lshl_add_u32 {v(dHA0)}, {v(dT)}, 6, {v(dHA1)}
    v_add_u32 {v(dT)}, 16, {v(dT)}
    v_min_u32 {v(dT)}, 26, {v(dT)}
    v_lshl_add_u32 {v(dHA1)}, {v(dT)}, 6, {v(dHA1)}
    v_add_u32 {v(dSA)}, {PB2 - PB1}, {v(oSA)}
    s_mov_b32 {SPIN}, {SPIN_MAX}
    s_waitcnt lgkmcnt(0)
L_PDN:
    global_load_dwordx4 {v(dA, 4)}, {v(dHA0)}, {sp(EX)} sc1
    global_load_dwordx4 {v(dA + 4, 4)}, {v(dHA1)}, {sp(EX)} sc1
""")
zero(range(dACC, dACC + 8))
chk = check_ops(range(dA, dA + 8), dT2)
a("s_waitcnt vmcnt(0)")
for n in range(4):
    u, q = n >> 1, n & 1
    a(f"{SMF} {v(dACC + 4 * q, 4)}, {v(dA + 4 * u, 4)}, {v(dB + 8 * n, 8)}, {v(IDX)}")
    for _ in range(2):
        if chk:
            a(chk.pop(0))
retry("L_PDN", True)
rawstamp(19) if False else None
a(f"""
    v_add_f32 {v(dACC)}, {v(dACC)}, {v(dACC + 2)}
    v_add_f32 {v(dACC + 5)}, {v(dACC + 5)}, {v(dACC + 7)}
    v_add_f32 {v(dACC)}, {v(dACC)}, {v(dACC + 5)}
    v_min_u32 {v(dACC)}, -2, {v(dACC)}
    global_store_dword {v(dSA)}, {v(dACC)}, {sp(EX)} sc1
""")
stamp(1)
a(f"""
    s_cmp_eq_u32 {LAYER}, 0
    s_cbranch_scc1 L_RED2
    s_and_b32 {T0}, {TILE}, 7
    s_cmp_lg_u32 {T0}, {G}
    s_cbranch_scc1 L_FIN
L_RED2:
""")
red_addr(PB2, XF)
s_expr(T0, [(TILE, 32)])
lane_expr(6, 7, [(2, 2, 1280), (0, 2, 8), (5, 1, 4)], T0)
a("s_waitcnt vmcnt(0)")
red_poll(8, True)
a(f"""
    s_cmp_eq_u32 {LAYER}, 0
    s_cbranch_scc1 L_RED2P
    global_store_dword v6, {v(rL)}, {sp(pOUT)}
    s_mov_b64 exec, -1
    s_branch L_FIN
L_RED2P:
""")
red_publish()
op_load_b()
a("s_branch L_NEXT")

uB, uX, uACC, uS1, uONE, uXA, uSA, uCS, uT = 48, 28, 20, 16, 12, 3, 4, 5, 6
a.label("L_UP")
a(f"s_cmp_ge_u32 {J}, 29\ns_cbranch_scc1 L_IDLE")
s_expr(T0, [(W, 16)], L_WG)
b_rows_addr(uT, uXA, 48, [(0, 1, 8), (1, 1, L_WU - L_WG)], T0)
b_reads(uB, uT, 10, 48)
for i in range(4):
    a(f"v_mov_b32 {v(uONE + i)}, {ONES}")
zero(range(uS1, uS1 + 4))
s_expr(T0, [(G, 5120)], XA + 2048)
lane_expr(uXA, uT, [(2, 2, 32), (0, 1, 512), (1, 1, 256), (5, 1, 128), (4, 1, 16)], T0)
a(f"s_sub_u32 {T1}, {J}, 20")
s_expr(T0, [(G, 2048), (T1, 192), (W, 64)], HB)
lane_expr(uSA, uT, [(4, 2, 16), (1, 2, 4)], T0)
a("s_waitcnt lgkmcnt(0)")
for n in range(10):
    a(f"{SMF} {v(uS1, 4)}, {v(uONE, 4)}, {v(uB + 8 * n, 8)}, {v(IDX)}")
a(f"""
    v_add_f32 {v(uCS)}, {v(uS1)}, {v(uS1 + 2)}
    v_mul_f32 {v(uCS)}, {f32(1.0 / 640)}, {v(uCS)}
    s_mov_b32 {SPIN}, {SPIN_MAX}
""")
stamp(7)
a.label("L_PUP")
for u in range(5):
    a(f"global_load_dwordx4 {v(uX + 4 * u, 4)}, {v(uXA)}, {sp(EX)} offset:{u * 1024 - 2048} sc1")
zero(range(uACC, uACC + 8))
chk = check_ops(range(uX, uX + 20), uT)
for u in range(5):
    a(f"s_waitcnt vmcnt({4 - u})")
    a(f"{MFMA} {v(uS1, 4)}, {v(uX + 4 * u, 4)}, {v(uONE, 4)}, {'0' if u == 0 else v(uS1, 4)}")
    for _ in range(2):
        if u > 0 or _ == 0:
            a(chk.pop(0))
for s in chk:
    a(s)
retry("L_PUP", True)
stamp(4)
for n in range(10):
    u, q = n >> 1, n & 1
    a(f"{SMF} {v(uACC + 4 * q, 4)}, {v(uX + 4 * u, 4)}, {v(uB + 8 * n, 8)}, {v(IDX)}")
    if n == 6:
        a(f"v_pk_add_f32 {v(uS1, 2)}, {v(uS1, 2)}, {v(uS1 + 2, 2)}")
    if n == 7:
        a(f"v_add_f32 {v(uS1)}, {v(uS1)}, {v(uS1 + 1)}")
a(f"""
    v_add_f32 {v(uACC)}, {v(uACC)}, {v(uACC + 2)}
    v_fma_f32 {v(uACC)}, -{v(uS1)}, {v(uCS)}, {v(uACC)}
    v_add_f32 {v(uACC + 5)}, {v(uACC + 5)}, {v(uACC + 7)}
    v_add_f32 {v(uACC)}, {v(uACC)}, {v(uACC + 5)}
    v_cvt_pk_bf16_f32 {v(uACC)}, {v(uACC)}, {v(uACC)}
    v_and_b32 {v(uACC)}, 0xffff0000, {v(uACC)}
    v_max_f32 {v(uACC + 1)}, 0, {v(uACC)}
    v_mul_f32_dpp {v(uACC + 1)}, {v(uACC)}, {v(uACC + 1)} row_ror:8 {DPP}
    s_mov_b32 s{MSK}, 0x00550055
    s_mov_b32 s{MSK + 1}, 0x00550055
    v_mov_b32_dpp {v(uACC)}, {v(uACC + 1)} quad_perm:[1,1,3,3] {DPP}
    v_cvt_pk_bf16_f32 {v(uACC)}, {v(uACC + 1)}, {v(uACC)}
    v_min_u32 {v(uACC)}, -2, {v(uACC)}
    s_mov_b64 exec, {sp(MSK)}
""")
store_local(f"global_store_dword {v(uSA)}, {v(uACC)}, {sp(EX)}")
a("s_mov_b64 exec, -1")
stamp(5)
a.label("L_IDLE")
a(f"s_cmp_lg_u32 {LAYER}, 0\ns_cbranch_scc1 L_FIN")
a.label("L_NEXT")
att_addr()
att_zero()
a("s_waitcnt lgkmcnt(0)")
a.label("L_NEXT2")
a(f"s_mov_b32 {LAYER}, 1")
add64(EX, EX, LSTRIDE)
a("s_branch L_BAR")

a.label("L_HI")
a(f"s_cmp_lg_u32 {LAYER}, 0\ns_cbranch_scc1 L_FIN")
att_zero()
a(f"s_mov_b32 {SPIN}, {SPIN_MAX}\ns_cmp_eq_u32 {W}, 3\ns_cbranch_scc1 L_POLLER")
qp_setup()
qp_xaddr(False)
qp_saddr(QB2)
a("s_waitcnt lgkmcnt(0)")
a.label("L_PQP")
a(f"global_load_dwordx4 {v(qX, 4)}, {v(qXA0)}, {sp(EX)} sc1")
a(f"global_load_dwordx4 {v(qX + 4, 4)}, {v(qXA1)}, {sp(EX)} sc1")
zero(range(qACC, qACC + 12))
chk = check_ops(range(qX, qX + 8), qT)
a("s_waitcnt vmcnt(0)")
for m in qp_mm():
    a(m)
    for _ in range(2):
        if chk:
            a(chk.pop(0))
retry("L_PQP", True)
stamp(4)
qp_sum()
a(f"v_min_u32 {v(qACC)}, -2, {v(qACC)}")
store_local(f"global_store_dword {v(qSA)}, {v(qACC)}, {sp(pWS)}")
stamp(5)
a("s_branch L_NEXT2")

a.label("L_POLLER")
poller_qaddr(QB2)
s_expr(T0, [(G, 5120), (BB, 32)], XF + 2048)
lane_expr(120, pT, [(3, 3, 128), (0, 3, 4)], T0)
a.label("L_PXP")
for u in range(5):
    a(f"global_load_dword {v(pX_ + u)}, v120, {sp(EX)} offset:{u * 1024 - 2048} sc1")
a("s_waitcnt vmcnt(0)")
for s in check_ops(range(pX_, pX_ + 5), pT):
    a(s)
retry("L_PXP")
stamp(4)
poller_stats()
a(f"s_mov_b32 {SPIN}, {SPIN_MAX}")
stamp(5)
a.label("L_PQ")
poller_qloads(pWS)
a("s_waitcnt vmcnt(0)")
for s in check_ops(range(pQ, pQ + 8), pT):
    a(s)
retry("L_PQ")
stamp(6)
poller_finish()
a("s_waitcnt lgkmcnt(0)\ns_branch L_NEXT2")

a.label("L_FIN")
if OPT["padto"]:
    a(f"""
L_PAD:
    s_sleep 4
    s_memrealtime s[98:99]
    s_waitcnt lgkmcnt(0)
    s_sub_u32 s98, s98, s96
    s_cmp_lt_u32 s98, {OPT["padto"] * 100}
    s_cbranch_scc1 L_PAD
    """)
if DIAG:
    stamp(9)
    a("s_memtime s[50:51]\ns_waitcnt lgkmcnt(0)\nv_mov_b32 v1, 0\ns_sub_u32 s50, s50, s100\nv_writelane_b32 v1, s50, 21")
    for i in range(20):
        a(f"v_writelane_b32 v1, s{STAMP0 + 2 * i}, {i}")
    a(f"""
    v_writelane_b32 v1, {LOCAL}, 20
    s_lshl_b32 {T0}, s2, 3
    s_add_u32 {T0}, {T0}, {W}
    s_lshl_b32 {T0}, {T0}, 8
    s_add_u32 {T0}, {T0}, {DIAG_OFF}
    v_lshl_add_u32 v2, v0, 2, {T0}
    global_store_dword v2, v1, {sp(pWS)}
    """)
a.label("L_END")
a("s_endpgm")

a.raw(f""".section .rodata,"a"
.p2align 6
.amdhsa_kernel {NAME}_kernel
  .amdhsa_next_free_vgpr 256
  .amdhsa_next_free_sgpr 102
  .amdhsa_accum_offset 256
  .amdhsa_group_segment_fixed_size 0
  .amdhsa_kernarg_size 96
  .amdhsa_user_sgpr_count 2
  .amdhsa_user_sgpr_kernarg_segment_ptr 1
  .amdhsa_system_sgpr_workgroup_id_x 1
  .amdhsa_float_denorm_mode_32 3
.end_amdhsa_kernel""")

open(sys.argv[1], "w").write(a.text())
print("written", sys.argv[1], "lines", len(a.out), "pad states", a.nops)
```

```python
import math
import struct
import sys

sys.path.insert(0, "gen")
from asmlib import Asm

NAME = "interleave_layers__sliding_block_cached__glu_gated_reglu__decode"

OPT = dict(diag=0, thr=4, force_global=0, stamps=0x3ff, padto=0, vthr=4, pro=0, pf_at=1, slp=2, gfl=0, b0=1, tlb=1, pfl=1, kvfl=1)
for a_ in sys.argv[2:]:
    k_, v_ = a_.split("=")
    OPT[k_] = int(v_)
DIAG = OPT["diag"]
THR = OPT["thr"]
PF_AT = OPT["pf_at"]
SLP = OPT["slp"]
KVFL = ["", " nt", " sc1"][OPT["kvfl"]]
PFL = ["", " nt", " sc1"][OPT["pfl"]]
GFL = ["", " nt", " sc1"][OPT["gfl"]]

OB, LSE, HB, XA, XF, PB1, PB2, QB = 0, 65536, 66560, 82944, 123904, 164864, 246784, 328704
LSTRIDE = 328704
QB2 = 2 * LSTRIDE
CLEAR_BYTES = 256 * 4096
Q1 = CLEAR_BYTES
CS1 = Q1 + 262144
DIAG_OFF = 16 << 20
assert QB2 + 262144 <= CLEAR_BYTES

L_WQ = 0
R32 = 2176
D32 = 1088
L_WO, L_WD = 20480, 55296
L_WG, L_WU = 20480, 64000
assert (L_WU - L_WG) % 256 == 0 and L_WU - L_WG >= 20 * R32 and L_WD >= L_WO + 16 * R32
L_OW = L_WU + 20 * R32
L_ML = L_OW + 4352
L_QZ = L_ML + 1024
L_Q = L_QZ + 768
L_P = L_QZ + 1792
L_FLAG = L_P + 1024
OWS = 544
LDS_BYTES = L_FLAG + 256

W, G, J, LAYER, LOCAL = "s3", "s4", "s5", "s6", "s7"
pX, pK, pV, pWQ, pWO, pWG, pWU, pWD, pOUT, pDBG, pWS = 8, 10, 12, 14, 16, 20, 22, 24, 26, 28, 30
KB, VB, TB = 32, 34, 36
T0, T1, T2, T3 = "s38", "s39", "s49", "s50"
CSC, PLO, PHI, SPIN = "s40", "s41", "s42", "s43"
MSK = 44
EX = 46
XCC = "s48"
OBM = 52
ONES, H, TILE, BB = "s54", "s55", "s56", "s57"
ODD = 58
WOB = 0
ROT, NU, FB0, ROLE = "s51", "s92", "s93", "s94"
STAMP0 = 60
PM = 8


def sp(n):
    return "s[%d:%d]" % (n, n + 1)


def v(n, cnt=1):
    return "v%d" % n if cnt == 1 else "v[%d:%d]" % (n, n + cnt - 1)


def f32(x):
    return "0x%08x" % struct.unpack("<I", struct.pack("<f", x))[0]


DPP = "row_mask:0xf bank_mask:0xf"
MFMA = "v_mfma_f32_16x16x32_bf16"
SMF = "v_smfmac_f32_16x16x64_bf16"
SPIN_MAX = 1 << 18
KREG, VREG, SREG = 128, 192, 64
IDX = 1
vV = 2
aQA, aPW, aPR, aOWW, aMLW, aOWR, aMLR, aOBA = 3, 4, 5, 6, 7, 8, 9, 10
oBA, oLA, oSA = 11, 12, 13
pCS = 12
rX0, rX1 = 14, 15
vWO = 14

a = Asm()


def stamp(i):
    if not DIAG or not (OPT["stamps"] >> i) & 1:
        return
    l1, l2 = a.newlabel("ST"), a.newlabel("ST")
    a(f"""
    s_cmp_eq_u32 {LAYER}, 0
    s_cbranch_scc1 {l1}
    s_memrealtime {sp(STAMP0 + 16 + 2 * i)}
    s_branch {l2}
    {l1}:
    s_memrealtime {sp(STAMP0 + 2 * i)}
    {l2}:
    """)


def prostamp(slot, lvl=1):
    if DIAG and OPT["pro"] == lvl:
        a(f"s_memrealtime {sp(STAMP0 + 2 * slot)}")


def rawstamp(slot):
    if DIAG and not OPT["pro"]:
        a(f"s_memrealtime {sp(STAMP0 + 2 * slot)}")


def add64(dst, src, off):
    a(f"s_add_u32 s{dst}, s{src}, {off}\ns_addc_u32 s{dst + 1}, s{src + 1}, 0")


def lane_expr(reg, tmp, fields, base=None):
    first = True
    for pos, width, mul in fields:
        dst = reg if first else tmp
        if pos + width >= 6:
            src = f"v_lshrrev_b32 {v(dst)}, {pos}, v0" if pos else f"v_mov_b32 {v(dst)}, v0"
        elif pos == 0:
            src = f"v_and_b32 {v(dst)}, {(1 << width) - 1}, v0"
        else:
            src = f"v_bfe_u32 {v(dst)}, v0, {pos}, {width}"
        a(src)
        p2 = mul & (mul - 1) == 0
        if first:
            if mul != 1:
                a(f"v_lshlrev_b32 {v(reg)}, {mul.bit_length() - 1}, {v(reg)}" if p2
                  else f"v_mul_u32_u24 {v(reg)}, {mul}, {v(reg)}")
        elif p2:
            a(f"v_lshl_add_u32 {v(reg)}, {v(tmp)}, {mul.bit_length() - 1}, {v(reg)}")
        else:
            a(f"v_mul_u32_u24 {v(tmp)}, {mul}, {v(tmp)}\nv_add_u32 {v(reg)}, {v(reg)}, {v(tmp)}")
        first = False
    if base is not None:
        a(f"v_add_u32 {v(reg)}, {base}, {v(reg)}")


def s_expr(dst, terms, const=0):
    first = True
    for s, mul in terms:
        d = dst if first else T3
        if mul == 1:
            if first:
                a(f"s_mov_b32 {d}, {s}")
            else:
                d = s
        elif mul & (mul - 1) == 0:
            a(f"s_lshl_b32 {d}, {s}, {mul.bit_length() - 1}")
        else:
            a(f"s_mul_i32 {d}, {s}, {mul}")
        if not first:
            a(f"s_add_u32 {dst}, {dst}, {d}")
        first = False
    if const:
        a(f"s_add_u32 {dst}, {dst}, {const}")


def store_local(ins):
    lg, le = a.newlabel("SG"), a.newlabel("SE")
    a(f"""
    s_cmp_eq_u32 {LOCAL}, 0
    s_cbranch_scc1 {lg}
    {ins}
    s_branch {le}
    {lg}:
    {ins} sc1
    {le}:
    """)


def check_ops(regs, tmp):
    ops = []
    regs = list(regs)
    if len(regs) == 1:
        return [f"v_cmp_eq_u32 vcc, -1, {v(regs[0])}"]
    if len(regs) == 2:
        ops.append(f"v_max_u32 {v(tmp)}, {v(regs[0])}, {v(regs[1])}")
    else:
        ops.append(f"v_max3_u32 {v(tmp)}, {v(regs[0])}, {v(regs[1])}, {v(regs[2])}")
        rest = regs[3:]
        while len(rest) >= 2:
            ops.append(f"v_max3_u32 {v(tmp)}, {v(tmp)}, {v(rest[0])}, {v(rest[1])}")
            rest = rest[2:]
        if rest:
            ops.append(f"v_max_u32 {v(tmp)}, {v(tmp)}, {v(rest[0])}")
    ops.append(f"v_cmp_eq_u32 vcc, -1, {v(tmp)}")
    return ops


def retry(loop, mfma_pending=False):
    ok = a.newlabel("OK")
    a(f"s_cbranch_vccz {ok}")
    if mfma_pending:
        a.raw("    s_nop 15")
    a(f"""
    s_sub_u32 {SPIN}, {SPIN}, 1
    s_cbranch_scc0 {loop}
    {ok}:
    """)


def thr_wait():
    if THR:
        a(f"s_waitcnt vmcnt({THR - 1})")


def k_loads(t, vK, throttle=True, lo=0, hi=8):
    n = 0
    for kq in range(4):
        for hf in range(2):
            if lo <= n < hi:
                r = KREG + ((t * 4 + kq) * 2 + hf) * 4
                a(f"global_load_dwordx4 {v(r, 4)}, {v(vK)}, {sp(KB + 0)} offset:{kq * 2048 + hf * 128 - 4096}{KVFL}")
                if throttle:
                    thr_wait()
            n += 1


def v_loads(t):
    for i in range(8):
        a(f"global_load_dwordx4 {v(SREG + t * 32 + i * 4, 4)}, {v(vV)}, {sp(VB)} offset:{i * 1024 - 4096}{KVFL}")
        if OPT["vthr"]:
            a(f"s_waitcnt vmcnt({OPT['vthr'] - 1})")


def zero(regs):
    for r in regs:
        a(f"v_mov_b32 {v(r)}, 0")


def b_rows_addr(reg, tmp, rowbytes, extra, base, r32=None):
    r32 = r32 or 32 * rowbytes
    lane_expr(reg, tmp, [(3, 1, r32), (4, 2, 4 * rowbytes), (2, 1, rowbytes)] + extra, base)


def b_reads(dst, addr, nblk, rowbytes, r32=None):
    r32 = r32 or 32 * rowbytes
    for blk in range(nblk):
        for rho in range(4):
            off = 2 * r32 * blk + (16 * (rho >> 1) + 2 * (rho & 1)) * rowbytes
            a(f"ds_read_b64_tr_b16 {v(dst + 8 * blk + 2 * rho, 2)}, {v(addr)} offset:{off}")


def poll(loads, tmp, light=True, pre=None):
    a(f"s_mov_b32 {SPIN}, {SPIN_MAX}")
    if light:
        l1, ok = a.newlabel("PL"), a.newlabel("PK")
        ins, r0, n = loads[-1]
        a("s_mov_b64 exec, 1")
        a.label(l1)
        a(f"""
        {ins}
        s_waitcnt vmcnt(0)
        v_cmp_eq_u32 vcc, -1, {v(r0)}
        s_cbranch_vccz {ok}
        s_sleep {SLP}
        s_sub_u32 {SPIN}, {SPIN}, 1
        s_cbranch_scc0 {l1}
        {ok}:
        s_mov_b64 exec, -1
        """)
    l2, chk, done = a.newlabel("PM"), a.newlabel("PC"), a.newlabel("PD")
    for ins, r0, n in loads:
        a(ins)
    if pre:
        pre()
    a(f"s_branch {chk}")
    a.label(l2)
    for u, (ins, r0, n) in enumerate(loads):
        a(f"s_mov_b64 exec, {sp(PM + 2 * u)}")
        a(ins)
    a("s_mov_b64 exec, -1")
    a.label(chk)
    nl = len(loads)
    for u, (ins, r0, n) in enumerate(loads):
        a(f"s_waitcnt vmcnt({nl - 1 - u})")
        ops = check_ops(range(r0, r0 + n), tmp)
        ops[-1] = ops[-1].replace("vcc", sp(PM + 2 * u))
        for o in ops:
            a(o)
        if u == 1:
            pend = f"s_or_b64 {sp(MSK)}, {sp(PM)}, {sp(PM + 2)}"
        elif u > 1:
            a(pend)
            pend = f"s_or_b64 {sp(MSK)}, {sp(MSK)}, {sp(PM + 2 * u)}"
    a(pend)
    a(f"""
    s_cbranch_scc0 {done}
    s_sub_u32 {SPIN}, {SPIN}, 1
    s_cbranch_scc0 {l2}
    {done}:
    """)


def lane_sum(regs, steps, tmps):
    for st in steps:
        if st in ("s16", "s32"):
            for r, t in zip(regs, tmps):
                a(f"v_mov_b32 {v(t)}, {v(r)}")
            for r, t in zip(regs, tmps):
                a(f"v_permlane{st[1:]}_swap_b32 {v(r)}, {v(t)}")
            for r, t in zip(regs, tmps):
                a(f"v_add_f32 {v(r)}, {v(r)}, {v(t)}")
        else:
            pat = {"x1": "quad_perm:[1,0,3,2]", "x2": "quad_perm:[2,3,0,1]", "hm": "row_half_mirror",
                   "r4": "row_ror:4", "r8": "row_ror:8"}[st]
            for r in regs:
                a(f"v_add_f32_dpp {v(r)}, {v(r)}, {v(r)} {pat} {DPP}")


def ln_stats(xregs, s1, s2, steps, t1, t2):
    for n, r in enumerate(xregs):
        a(f"v_dot2_f32_bf16 {v(s1)}, {v(r)}, {ONES}, {'0' if n == 0 else v(s1)}")
        a(f"v_dot2_f32_bf16 {v(s2)}, {v(r)}, {v(r)}, {'0' if n == 0 else v(s2)}")
    lane_sum([s1, s2], steps, [t1, t2])
    a(f"""
    v_mul_f32 {v(s1)}, {f32(1.0 / 640)}, {v(s1)}
    v_mul_f32 {v(s2)}, {f32(1.0 / 640)}, {v(s2)}
    v_fma_f32 {v(s2)}, -{v(s1)}, {v(s1)}, {v(s2)}
    v_max_f32 {v(s2)}, 0, {v(s2)}
    v_add_f32 {v(s2)}, {f32(1e-5)}, {v(s2)}
    """)


def arrive():
    s_expr(T1, [(G, 32), (J, 1)])
    a(f"""
    s_getreg_b32 {XCC}, hwreg(HW_REG_XCC_ID, 0, 4)
    s_or_b32 {T0}, {XCC}, 0x80
    v_mov_b32 v60, {T0}
    v_mov_b32 v62, {T1}
    s_mov_b64 exec, 1
    global_store_byte v62, v60, {sp(pDBG)} sc1
    s_mov_b64 exec, -1
    """)


qB, qX, qACC, qXA0, qXA1, qSA, qT = 64, 88, 96, 108, 109, 110, 111


def qp_setup():
    s_expr(T0, [(W, 32)], L_WQ - 4 * 32)
    b_rows_addr(qT, qSA, 128, [(0, 2, 8)], T0)
    b_reads(qB, qT, 3, 128)


def qp_xaddr(from_input):
    a(f"s_and_b32 {T1}, {J}, 3")
    if from_input:
        s_expr(T0, [(T1, 320)])
        lane_expr(qXA0, qT, [(2, 2, 1280), (0, 1, 128), (1, 1, 64), (4, 2, 16)], T0)
        s_expr(T0, [(T1, 320)], 256)
        lane_expr(qXA1, qT, [(2, 2, 1280), (4, 2, 16)], T0)
    else:
        s_expr(T0, [(T1, 1280), (G, 5120)], XF)
        a(f"v_lshl_add_u32 {v(qXA0)}, v0, 4, {T0}")
        s_expr(T0, [(T1, 1280), (G, 5120)], XF + 1024)
        lane_expr(qXA1, qT, [(2, 4, 16)], T0)


def qp_saddr(off):
    a(f"s_and_b32 {T1}, {J}, 3\ns_lshr_b32 {T2}, {J}, 2")
    s_expr(T0, [(G, 32768), (T1, 8192), (T2, 256), (W, 64)], off - 4 * 64)
    lane_expr(qSA, qT, [(4, 2, 2048), (0, 4, 4)], T0)


def qp_mm():
    return [f"{SMF} {v(qACC, 4)}, {v(qX, 4)}, {v(qB, 8)}, {v(IDX)}",
            f"{SMF} {v(qACC + 4, 4)}, {v(qX, 4)}, {v(qB + 8, 8)}, {v(IDX)}",
            f"{SMF} {v(qACC + 8, 4)}, {v(qX + 4, 4)}, {v(qB + 16, 8)}, {v(IDX)}"]


def qp_sum():
    a(f"""
    v_add_f32 {v(qACC)}, {v(qACC)}, {v(qACC + 2)}
    v_add_f32 {v(qACC + 5)}, {v(qACC + 5)}, {v(qACC + 7)}
    v_add_f32 {v(qACC)}, {v(qACC)}, {v(qACC + 5)}
    v_add_f32 {v(qACC)}, {v(qACC)}, {v(qACC + 8)}
    """)


pX_, pQ, pS1, pS2, pA, pLW, pT, pT2 = 96, 104, 112, 114, 116, 117, 118, 119


def poller_stats():
    ln_stats(range(pX_, pX_ + 5), pS1, pS2, ["x1", "x2", "r4", "r8", "s16", "s32"], pT, pT2)
    a(f"v_rsq_f32 {v(pS2)}, {v(pS2)}")


def poller_qaddr(off):
    a(f"s_lshr_b32 {T1}, {J}, 3")
    s_expr(T0, [(G, 32768), (BB, 2048), (T1, 512)], off)
    a(f"v_lshl_add_u32 {v(pA)}, v0, 3, {T0}")
    lane_expr(pLW, pT, [(5, 1, 128), (3, 1, 64), (0, 1, 32), (4, 1, 16), (1, 2, 4)], L_Q)


def poller_qloads(base):
    for kq in range(4):
        if kq:
            add64(TB, TB if kq > 1 else base, 8192)
        a(f"global_load_dwordx2 {v(pQ + 2 * kq, 2)}, {v(pA)}, {sp(TB if kq else base)} sc1")


def poller_finish():
    a(f"""
    v_pk_add_f32 {v(pQ, 2)}, {v(pQ, 2)}, {v(pQ + 2, 2)}
    v_pk_add_f32 {v(pQ + 4, 2)}, {v(pQ + 4, 2)}, {v(pQ + 6, 2)}
    v_pk_add_f32 {v(pQ, 2)}, {v(pQ, 2)}, {v(pQ + 4, 2)}
    v_fma_f32 {v(pQ)}, -{v(pS1)}, {v(pCS)}, {v(pQ)}
    v_fma_f32 {v(pQ + 1)}, -{v(pS1)}, {v(pCS + 1)}, {v(pQ + 1)}
    v_mul_f32 {v(pQ)}, {v(pS2)}, {v(pQ)}
    v_mul_f32 {v(pQ + 1)}, {v(pS2)}, {v(pQ + 1)}
    v_cvt_pk_bf16_f32 {v(pQ)}, {v(pQ)}, {v(pQ + 1)}
    ds_write_b32 {v(pLW)}, {v(pQ)}
    """)


aQV, aQK, aACC, aP, aS, aM, aL, aT = 16, 48, 16, 56, 60, 62, 63, 61


def att_addr():
    t = aT
    lane_expr(aQA, t, [(4, 2, 64), (0, 2, 16)], L_Q)
    a(f"v_bfe_u32 {v(t)}, v0, 2, 2\nv_lshlrev_b32 {v(t)}, 8, {v(t)}\nv_sub_u32 {v(aQA)}, {v(aQA)}, {v(t)}")
    s_expr(T0, [(W, 128)], L_P)
    lane_expr(aPW, t, [(0, 1, 64), (2, 1, 32), (4, 1, 16), (1, 1, 8), (5, 1, 4), (3, 1, 2)], T0)
    lane_expr(aPR, t, [(4, 2, 32), (1, 1, 16)], T0)
    s_expr(T0, [(W, OWS)], L_OW)
    a(f"v_lshl_add_u32 {v(aOWW)}, v0, 5, {T0}")
    s_expr(T0, [(W, 8)], L_ML)
    a(f"v_lshl_add_u32 {v(aMLW)}, v0, 6, {T0}")
    s_expr(T0, [(W, 64)], L_OW)
    lane_expr(aOWR, t, [(0, 3, OWS), (3, 3, 8)], T0)
    lane_expr(aMLR, t, [(0, 3, 8)], L_ML)
    a(f"s_lshr_b32 {T1}, {W}, 2\ns_and_b32 {T2}, {W}, 1")
    s_expr(T0, [(G, 8192), (T1, 1024), (T2, 512), (BB, 64)], OB)
    a(f"s_and_b32 {T1}, {W}, 2\ns_lshl_b32 {T1}, {T1}, 4\ns_add_u32 {T0}, {T0}, {T1}")
    a(f"s_lshr_b32 {T1}, {J}, 3\ns_and_b32 {T2}, {J}, 1")
    s_expr(T0, [(T0, 1), (T1, 2048), (T2, 16)])
    lane_expr(aOBA, t, [(5, 1, 256), (3, 2, 4)], T0)
    s_expr(T0, [(G, 128), (BB, 32), (T1, 8), (T2, 4)], LSE)
    a(f"v_writelane_b32 {v(aOBA)}, {T0}, 1")


def att_zero():
    zero(range(32, 56))


def role_gather():
    prostamp(0, 2)
    a(f"s_cmp_lg_u32 {ROLE}, 0\ns_cbranch_scc1 L_RG_U")
    if OPT["pro"] == 2:
        a("s_waitcnt vmcnt(0)")
    prostamp(2, 2)
    for i in range(4):
        a(f"s_add_u32 m0, {T2L}, {i * 4 * R32}")
        a(f"global_load_lds_dwordx4 {v(vDMA)}, {sp(WOB)}{GFL}")
        if i < 3:
            add64(WOB, WOB, 128 * 1280)
    a("s_branch L_RG_E")
    a.label("L_RG_U")
    a.c("other workgroups: one dword per 128-byte line of the W_gate / W_up columns of this group")
    s_expr(T1, [(J, 8), (W, 1)], -160)
    a(f"""
    s_cmp_ge_u32 {T1}, 80
    s_cbranch_scc1 L_RG_G
    s_cmp_ge_u32 {T1}, 40
    s_cselect_b32 s{TB}, s{pWU}, s{pWG}
    s_cselect_b32 s{TB + 1}, s{pWU + 1}, s{pWG + 1}
    s_cselect_b32 {T0}, 40, 0
    s_sub_u32 {T1}, {T1}, {T0}
    s_lshr_b32 {T2}, {FB0}, 1
    s_min_u32 {T2}, {T2}, 23
    """)
    s_expr(T0, [(T1, 16 * 3456), (T2, 128)])
    lane_expr(57, 58, [(2, 4, 3456), (0, 2, 128)], T0)
    a(f"global_load_dword v56, v57, {sp(TB)}{PFL}")
    a.label("L_RG_G")
    prostamp(1, 2)
    a(f"s_cmp_lg_u32 {ROLE}, 1\ns_cbranch_scc1 L_RG_E")
    a("s_waitcnt vmcnt(0)")
    prostamp(2, 2)
    for i in range(10):
        a(f"s_add_u32 m0, {T2L}, {i * 2 * R32}")
        a(f"global_load_lds_dwordx4 {v(vDMA)}, {sp(WOB)}{GFL}")
        if i < 9:
            add64(WOB, WOB, 64 * 3456)
    a.label("L_RG_E")


def wo_prefetch():
    s_expr(T0, [(G, 512 * 1280), (J, 8 * 2560), (W, 2560)])
    a(f"""
    v_min_u32 v57, 19, v0
    v_lshl_add_u32 v57, v57, 7, {T0}
    global_load_dword v56, v57, {sp(pWO)}{PFL}
    """)


WDP = 100


def wd_prefetch(va, vt):
    s_expr(T0, [(TILE, 8)])
    a(f"""
    s_mul_i32 {T0}, {T0}, {NU}
    s_lshl_b32 {T1}, {NU}, 3
    s_sub_u32 {T1}, {T1}, 1
    v_min_u32 {v(va)}, {T1}, v0
    v_add_u32 {v(va)}, {T0}, {v(va)}
    v_lshlrev_b32 {v(va)}, 7, {v(va)}
    global_load_dword {v(vt)}, {v(va)}, {sp(WOB)}{PFL}
    """)


def wd_dma(va, vt):
    s_expr(T0, [(TILE, 32)])
    lane_expr(va, vt, [(1, 5, 1280), (0, 1, 16)], T0)
    s_expr(T2, [(W, 8 * D32)], L_WD)
    for i in range(7):
        if i == 6:
            a(f"s_cmp_eq_u32 {NU}, 6\ns_cbranch_scc1 L_WD6")
        a(f"s_add_u32 m0, {T2}, {i * D32}")
        a(f"global_load_lds_dwordx4 {v(va)}, {sp(WOB)}{GFL}")
        if i < 6:
            add64(WOB, WOB, 32 * 1280)
    a.label("L_WD6")


T2L = "s95"


hdr = open("cdna_kernels/%s.s.ref" % NAME).read().split("\n")
for line in hdr:
    if line.startswith("; @launch"):
        a.raw("; @launch grid=(256,1,1) block=(512,1,1) lds=%d" % LDS_BYTES)
    elif line.startswith(";"):
        a.raw(line)
    else:
        break
a.raw('.amdgcn_target "amdgcn-amd-amdhsa--gfx950"')
a.raw(".text")
a.raw(".globl %s_kernel" % NAME)
a.raw(".p2align 8")
a.raw(".type %s_kernel,@function" % NAME)
a.raw("%s_kernel:" % NAME)

vK, vDMA = 58, 59
aP = 44
a(f"""
    s_cmp_ge_u32 s2, 256
    s_cbranch_scc1 L_END
    s_load_dwordx16 s[8:23], s[0:1], 0
    s_load_dwordx8 s[24:31], s[0:1], 64
    s_mov_b32 {LAYER}, 0
""")
if OPT["padto"]:
    a("s_memrealtime s[96:97]")
if DIAG:
    for i in range(16):
        a(f"s_mov_b64 {sp(STAMP0 + 2 * i)}, 0")
    a(f"s_memrealtime s[96:97]")
    a("s_memtime s[100:101]")
a(f"""
    v_lshrrev_b32 v1, 6, v0
    v_and_b32 v0, 63, v0
    v_readfirstlane_b32 {W}, v1
    s_and_b32 {G}, s2, 7
    s_lshr_b32 {J}, s2, 3
    s_lshr_b32 {T0}, {J}, 3
    s_lshl_b32 {H}, {G}, 2
    s_add_u32 {H}, {H}, {T0}
    s_bfe_u32 {BB}, {J}, 0x20001
    s_and_b32 {T1}, {J}, 1
""")
s_expr(T2, [(BB, 1 << 25), (H, 1 << 20), (T1, 1 << 17), (W, 1 << 13)], 0xC0000 + 4096)
lane_expr(vK, 60, [(1, 3, 256), (0, 1, 64), (4, 2, 16)])
a(f"""
    v_lshlrev_b32 {v(vV)}, 4, v0
    s_waitcnt lgkmcnt(0)
""")
add64(KB, pK, T2)
add64(VB, pV, T2)
a(f"s_cmp_ge_u32 {W}, 4\ns_cbranch_scc1 L_PRO_X")
a.c("waves 0..3: stage the wq slice (160 rows x 128 B) first")
lane_expr(60, 61, [(3, 3, 8192), (0, 3, 16)])
a(f"s_and_b32 {T1}, {J}, 3\ns_lshr_b32 {T2}, {J}, 2")
s_expr(T0, [(T1, 160 * 8192), (W, 8 * 8192), (G, 1024), (T2, 128)])
add64(TB, pWQ, T0)
a(f"s_lshl_b32 {T1}, {W}, 10")
for i in range(5):
    a(f"s_add_u32 m0, {T1}, {L_WQ + i * 4096}")
    a(f"global_load_lds_dwordx4 v60, {sp(TB)} nt")
    if i < 4:
        add64(TB, TB, 32 * 8192)
zero([112, 113])
a(f"s_lshl_b32 {TILE}, {J}, 1\ns_add_u32 {TILE}, {TILE}, {W}")
a(f"s_cmp_eq_u32 {W}, 3\ns_cbranch_scc1 L_PRO_X3")
a(f"s_min_u32 {T1}, {TILE}, 39")
s_expr(T0, [(T1, 32)])
lane_expr(60, 61, [(2, 2, 1280), (0, 2, 8), (5, 1, 4)], T0)
a(f"global_load_dword {v(rX0)}, v60, {sp(pX)}")
a("s_branch L_PRO_A")
a.label("L_PRO_X3")
s_expr(T0, [(BB, 1280)])
a(f"v_lshl_add_u32 v60, v0, 2, {T0}")
for u in range(5):
    a(f"global_load_dword {v(pX_ + u)}, v60, {sp(pX)} offset:{u * 256}")
a("s_branch L_PRO_A")
a.label("L_PRO_X")
a.c("waves 4..7: sentinel fill of a share of the exchange area and of their own layer-1 q slots, then x")
s_expr(T0, [("s2", 4096), (W, 1024)], -4096)
a(f"""
    v_lshl_add_u32 v60, v0, 4, {T0}
    v_mov_b32 v124, -1
    v_mov_b32 v125, -1
    v_mov_b32 v126, -1
    v_mov_b32 v127, -1
    global_store_dwordx4 v60, v[124:127], {sp(pWS)} sc1
""")
qp_saddr(Q1)
a(f"global_store_dword {v(qSA)}, v124, {sp(pWS)} sc1")
s_expr(T0, [(G, 8192), (T1, 2048), (T2, 256), (W, 64)], CS1 - 4 * 64)
a(f"""
    v_lshl_add_u32 v112, v0, 2, {T0}
    v_mov_b32 v113, {v(qSA)}
    s_mov_b64 exec, 0xffff
    global_store_dword v112, v124, {sp(pWS)} sc1
    s_mov_b64 exec, -1
""")
qp_xaddr(True)
a(f"global_load_dwordx4 {v(qX, 4)}, {v(qXA0)}, {sp(pX)}")
a(f"global_load_dwordx4 {v(qX + 4, 4)}, {v(qXA1)}, {sp(pX)}")
a.label("L_PRO_A")
prostamp(0)
if OPT["b0"]:
    a("s_barrier")
k_loads(0, vK, throttle=False)
prostamp(1)
a(f"""
    s_mov_b32 {CSC}, {f32(math.log2(math.e) / math.sqrt(128.0))}
    s_mov_b32 {PLO}, 0x05040100
    s_mov_b32 {PHI}, 0x07060302
    s_mov_b32 {ONES}, 0x3f803f80
    s_mov_b32 s{ODD}, 0xaaaaaaaa
    s_mov_b32 s{ODD + 1}, 0xaaaaaaaa
    s_mov_b32 s{OBM}, 0x01010101
    s_mov_b32 s{OBM + 1}, 0x01010101
    s_cmp_eq_u32 {W}, 0
    s_cselect_b32 s{OBM}, 0x01010103, s{OBM}
    s_mov_b32 s{EX}, s{pWS}
    s_mov_b32 s{EX + 1}, s{pWS + 1}
    v_bfe_u32 {v(IDX)}, v0, 1, 1
    v_mul_u32_u24 {v(IDX)}, 0xaaaa, {v(IDX)}
    v_add_u32 {v(IDX)}, 0x4444, {v(IDX)}
    s_cmp_lt_u32 {G}, 6
    s_cselect_b32 {NU}, 7, 6
    s_mul_i32 {FB0}, {G}, 7
    s_min_u32 {FB0}, {FB0}, 48
    s_sub_u32 {T0}, {J}, 20
    s_cmp_lt_u32 {T0}, {NU}
    s_cselect_b32 {ROLE}, 1, 2
    s_cmp_lt_u32 {J}, 20
    s_cselect_b32 {ROLE}, 0, {ROLE}
    s_cbranch_scc0 L_PRO_RU
""")
a.c("role weight staging: source pointer, per-lane offset, LDS base, rotated first block")
lane_expr(vDMA, 60, [(2, 4, 1280), (0, 2, 16)])
a(f"v_and_b32 v60, 16, v0\nv_lshlrev_b32 v60, 1, v60\nv_xor_b32 {v(vDMA)}, {v(vDMA)}, v60")
s_expr(T0, [(G, 512 * 1280), (W, 16 * 1280), (J, 64)])
add64(WOB, pWO, T0)
a(f"s_lshr_b32 {T1}, {W}, 1")
s_expr(T2L, [(W, 1024), (T1, 128)], L_WO)
a("s_branch L_PRO_R")
a.label("L_PRO_RU")
lane_expr(vDMA, 60, [(2, 4, 3456), (0, 2, 16)])
a(f"""
    v_and_b32 v60, 16, v0
    v_lshlrev_b32 v60, 1, v60
    v_xor_b32 {v(vDMA)}, {v(vDMA)}, v60
    s_and_b32 {T0}, {W}, 4
    s_lshl_b32 {T0}, {T0}, 2
    v_xor_b32 {v(vDMA)}, {T0}, {v(vDMA)}
    s_add_u32 {T1}, {FB0}, {J}
    s_sub_u32 {T1}, {T1}, 20
    s_and_b32 {T2}, {W}, 3
    s_cmp_ge_u32 {W}, 4
    s_cselect_b32 s{WOB}, s{pWU}, s{pWG}
    s_cselect_b32 s{WOB + 1}, s{pWU + 1}, s{pWG + 1}
    s_mov_b32 {T2L}, {L_WG}
    s_cselect_b32 {T2L}, {L_WU}, {T2L}
    s_lshl_b32 {T0}, {T2}, 10
    s_add_u32 {T2L}, {T2L}, {T0}
    s_lshr_b32 {T0}, {T2}, 1
    s_lshl_b32 {T0}, {T0}, 7
    s_add_u32 {T2L}, {T2L}, {T0}
""")
s_expr(T0, [(T1, 64), (T2, 16 * 3456)])
add64(WOB, WOB, T0)
a.label("L_PRO_R")
att_addr()
att_zero()
zero([11, 12, 13, 116, 120])
a(f"""
    s_cmp_ge_u32 {W}, 4
    s_cbranch_scc1 L_PRO_Q
    s_cmp_eq_u32 {W}, 3
    s_cbranch_scc1 L_PRO_P
    s_cmp_eq_u32 {W}, 2
    s_cbranch_scc1 L_PRO_C
""")
a.c("waves 0,1: residual tile and out-projection addresses (harmless on other workgroups)")
s_expr(T0, [(G, 8192)], OB + 4096)
a(f"v_lshl_add_u32 {v(oBA)}, v0, 4, {T0}")
s_expr(T0, [(G, 128)], LSE)
lane_expr(oLA, 61, [(4, 2, 32), (0, 2, 8)], T0)
s_expr(T0, [(TILE, 2048), (G, 256)], PB1)
a(f"v_lshl_add_u32 {v(oSA)}, v0, 2, {T0}")
prostamp(2)
a("s_waitcnt vmcnt(8)")
prostamp(3)
a(f"""
    s_barrier
    v_and_b32 {v(rX1)}, 0xffff0000, {v(rX0)}
    v_lshlrev_b32 {v(rX0)}, 16, {v(rX0)}
    s_branch L_PRO_KV
L_PRO_C:
""")
a.c("wave 2: LDS zero areas, arrival")
a(f"""
    v_lshlrev_b32 v61, 4, v0
    v_add_u32 v62, {L_QZ}, v61
    ds_write_b128 v62, v[32:35]
    ds_write_b128 v62, v[32:35] offset:768
    v_add_u32 v62, {L_WD + 6 * D32}, v61
    s_cmp_lg_u32 {ROLE}, 0
    s_cbranch_scc1 L_PRO_C2
    ds_write_b128 v62, v[32:35]
    ds_write_b128 v62, v[32:35] offset:{D32}
    ds_write_b128 v62, v[32:35] offset:{8 * D32}
    ds_write_b128 v62, v[32:35] offset:{9 * D32}
L_PRO_C2:
""")
prostamp(2)
a("s_waitcnt vmcnt(8) lgkmcnt(0)")
prostamp(3)
a("s_barrier")
arrive()
if OPT["tlb"]:
    a.c("touch the pages of the weights that are staged late")
    a(f"""
    v_lshlrev_b32 v60, 16, v0
    v_min_u32 v61, {640 * 3456 - 4}, v60
    global_load_dword v56, v61, {sp(pWG)} nt
    global_load_dword v56, v61, {sp(pWU)} nt
    global_load_dword v56, v61, {sp(pWD)} nt
    s_mul_i32 {T0}, {G}, {512 * 1280}
    v_min_u32 v61, {512 * 1280 - 4}, v60
    v_add_u32 v61, {T0}, v61
    global_load_dword v56, v61, {sp(pWO)} nt
    """)
a("s_branch L_PRO_KV")

a.label("L_PRO_Q")
a.c("waves 4..7: partial q projection of layer 1 and partial column sums")
zero(range(qACC, qACC + 12))
zero(range(116, 124))
for i in range(4):
    a(f"v_mov_b32 {v(124 + i)}, {ONES}")
prostamp(2)
a("s_waitcnt vmcnt(8)")
prostamp(3)
a("s_barrier")
rawstamp(13)
qp_setup()
a("s_waitcnt lgkmcnt(0)")
for m in qp_mm():
    a(m)
a(f"""
    {SMF} v[116:119], v[124:127], {v(qB, 8)}, {v(IDX)}
    {SMF} v[116:119], v[124:127], {v(qB + 8, 8)}, {v(IDX)}
    {SMF} v[120:123], v[124:127], {v(qB + 16, 8)}, {v(IDX)}
""")
qp_sum()
a(f"""
    v_min_u32 {v(qACC)}, -2, {v(qACC)}
    global_store_dword v113, {v(qACC)}, {sp(pWS)} sc1
    v_add_f32 v116, v116, v118
    v_add_f32 v116, v116, v120
    v_min_u32 v116, -2, v116
    s_mov_b64 exec, 0xffff
    global_store_dword v112, v116, {sp(pWS)} sc1
    s_mov_b64 exec, -1
""")
a("s_branch L_PRO_KV")

a.label("L_PRO_P")
a.c("wave 3: LayerNorm statistics of its row, arrival check, q of layer 1")
poller_qaddr(Q1)
a(f"s_lshr_b32 {T1}, {J}, 3")
s_expr(T0, [(G, 8192), (T1, 512)], CS1 + 4096)
a(f"""
    v_lshl_add_u32 v120, v0, 3, {T0}
    v_lshlrev_b32 v121, 2, v0
    s_waitcnt vmcnt(8)
    s_barrier
""")
poller_stats()
add64(KB, KB, 65536)
k_loads(1, vK, lo=0, hi=4)
a(f"global_load_dword v122, v121, {sp(pDBG)} sc1")
k_loads(1, vK, lo=4, hi=8)
a(f"""
    s_getreg_b32 {XCC}, hwreg(HW_REG_XCC_ID, 0, 4)
    s_or_b32 {T2}, {XCC}, 0x80
    s_mul_i32 {T2}, {T2}, 0x01010101
    s_mov_b32 {SPIN}, {SPIN_MAX}
    s_mov_b32 {T1}, 0x80808080
    s_waitcnt vmcnt(4)
L_CNT:
    v_and_b32 v123, {T1}, v122
    v_cmp_ne_u32 vcc, {T1}, v123
    s_cbranch_vccz L_CNT_OK
    s_sleep 8
    global_load_dword v122, v121, {sp(pDBG)} sc1
    s_waitcnt vmcnt(0)
    s_sub_u32 {SPIN}, {SPIN}, 1
    s_cbranch_scc0 L_CNT
L_CNT_OK:
""")
rawstamp(13)


def q1_loads():
    poller_qloads(pWS)
    for kq in range(4):
        a(f"global_load_dwordx2 {v(pX_ + 2 * kq, 2)}, v120, {sp(pWS)} offset:{kq * 2048 - 4096} sc1")


q1_loads()
a(f"""
    v_cmp_ne_u32 vcc, {T2}, v122
    s_lshl_b32 {T0}, {G}, 3
    s_lshr_b64 {sp(MSK)}, vcc, {T0}
    s_and_b32 {T0}, s{MSK}, 0xff
    s_cselect_b32 {T0}, 0, {0 if OPT['force_global'] else 1}
    v_mov_b32 v123, {T0}
    v_mov_b32 v121, {L_FLAG}
    ds_write_b32 v121, v123
    s_branch L_PRO_W
""")

a.label("L_PRO_KV")
prostamp(4)
add64(KB, KB, 65536)
k_loads(1, vK)
a.label("L_PRO_W")
prostamp(5)
a.label("L_PRO_V")
v_loads(0)
a(f"s_cmp_lg_u32 {W}, 3\ns_cbranch_scc1 L_PRO_V1")
a(f"s_mov_b32 {SPIN}, {SPIN_MAX}\ns_waitcnt vmcnt(8)")
a.label("L_Q1")
for s_ in check_ops(range(pX_, pX_ + 16), pT):
    a(s_)
a("s_cbranch_vccz L_Q1_OK")
q1_loads()
a(f"""
    s_waitcnt vmcnt(0)
    s_sub_u32 {SPIN}, {SPIN}, 1
    s_cbranch_scc0 L_Q1
L_Q1_OK:
    v_pk_add_f32 {v(pX_, 2)}, {v(pX_, 2)}, {v(pX_ + 2, 2)}
    v_pk_add_f32 {v(pX_ + 4, 2)}, {v(pX_ + 4, 2)}, {v(pX_ + 6, 2)}
    v_pk_add_f32 {v(pCS, 2)}, {v(pX_, 2)}, {v(pX_ + 4, 2)}
""")
poller_finish()
a("s_waitcnt lgkmcnt(0)")
a.label("L_PRO_V1")
prostamp(6)


def vwait(n):
    a(f"s_waitcnt vmcnt({n + (1 if PF_AT == 1 else 0)})")


def transpose(t, base_wait):
    for pp in range(4):
        vwait(base_wait + 6 - 2 * pp)
        for j in range(8):
            s0 = SREG + t * 32 + (2 * pp) * 4 + (j >> 1)
            a(f"v_perm_b32 {v(VREG + j * 8 + t * 4 + pp)}, {v(s0 + 4)}, {v(s0)}, {PHI if j & 1 else PLO}")


add64(VB, VB, 65536)
if PF_AT == 0:
    wo_prefetch()
v_loads(1)
if PF_AT == 1:
    wo_prefetch()
rawstamp(14)
prostamp(7)
transpose(0, 8)

aP = 52
a.label("L_BAR")
a(f"v_mov_b32 {v(aT)}, {L_FLAG}\ns_barrier")
stamp(0)
for o in range(4):
    a(f"ds_read_b128 {v(aQV + 4 * o, 4)}, {v(aQA)} offset:{o * 256}")
a(f"ds_read_b32 {v(aT)}, {v(aT)}")
for o in range(4):
    a(f"s_waitcnt lgkmcnt({4 - o})")
    for t in range(2):
        a(f"{SMF} {v(aQK + 4 * t, 4)}, {v(aQV + 4 * o, 4)}, {v(KREG + (t * 4 + o) * 8, 8)}, {v(IDX)}")
a(f"s_waitcnt lgkmcnt(0)\nv_readfirstlane_b32 {LOCAL}, {v(aT)}")
zero(range(16, 27))
a(f"""
    v_pk_add_f32 {v(aQK, 2)}, {v(aQK, 2)}, {v(aQK + 2, 2)}
    v_pk_add_f32 {v(aQK + 4, 2)}, {v(aQK + 4, 2)}, {v(aQK + 6, 2)}
    v_cndmask_b32 {v(aT)}, {v(aQK + 4)}, {v(aQK + 1)}, {sp(ODD)}
    v_cndmask_b32 {v(aS)}, {v(aQK)}, {v(aQK + 5)}, {sp(ODD)}
    v_mov_b32 v27, 0
    v_add_f32_dpp {v(aS)}, {v(aT)}, {v(aS)} quad_perm:[1,0,3,2] {DPP}
    v_mov_b32 v28, 0
    v_mov_b32 v29, 0
    v_max_f32_dpp {v(aM)}, {v(aS)}, {v(aS)} quad_perm:[1,0,3,2] {DPP}
    v_mov_b32 v30, 0
    v_mov_b32 v31, 0
    v_max_f32_dpp {v(aM)}, {v(aM)}, {v(aM)} quad_perm:[2,3,0,1] {DPP}
    v_max_f32_dpp {v(aM)}, {v(aM)}, {v(aM)} row_ror:4 {DPP}
    v_max_f32_dpp {v(aM)}, {v(aM)}, {v(aM)} row_ror:8 {DPP}
    v_mov_b32 {v(aT)}, {v(aM)}
    v_permlane32_swap_b32 {v(aM)}, {v(aT)}
    v_max_f32 {v(aM)}, {v(aM)}, {v(aT)}
    v_mov_b32 {v(aT)}, {v(aM)}
    v_permlane16_swap_b32 {v(aM)}, {v(aT)}
    v_max_f32 {v(aM)}, {v(aM)}, {v(aT)}
    v_mul_f32 {v(aM)}, {CSC}, {v(aM)}
    v_fma_f32 {v(aS)}, {v(aS)}, {CSC}, -{v(aM)}
    v_exp_f32 {v(aL)}, {v(aS)}
    v_cvt_pk_bf16_f32 {v(aS)}, {v(aL)}, {v(aL)}
    ds_write_b16 {v(aPW)}, {v(aS)}
    ds_read_b128 {v(aP, 4)}, {v(aPR)}
""")
lane_sum([aL], ["x1", "x2", "r4", "r8", "s16", "s32"], [aT])
stamp(1)


a(f"s_cmp_lg_u32 {LAYER}, 0\ns_cbranch_scc1 L_PV")
transpose(1, 0)
a.label("L_PV")
a("s_waitcnt lgkmcnt(0)")
for j in range(8):
    a(f"{SMF} {v(aACC + 4 * j, 4)}, {v(aP, 4)}, {v(VREG + j * 8, 8)}, {v(IDX)}")
stamp(2)
a("s_mov_b64 exec, 0xffff")
a(f"ds_write_b64 {v(aMLW)}, {v(aM, 2)}")
for jp in range(4):
    for j in (2 * jp, 2 * jp + 1):
        a(f"v_add_f32 {v(aACC + 4 * j)}, {v(aACC + 4 * j)}, {v(aACC + 4 * j + 2)}")
    a(f"ds_write2_b32 {v(aOWW)}, {v(aACC + 8 * jp)}, {v(aACC + 8 * jp + 4)} offset0:{2 * jp} offset1:{2 * jp + 1}")
cO, cM = 16, 18
a(f"""
    s_mov_b64 exec, -1
    s_waitcnt lgkmcnt(0)
    s_barrier
    ds_read_b64 {v(cM, 2)}, {v(aMLR)}
    ds_read_b64 {v(cO, 2)}, {v(aOWR)}
    v_cmp_eq_u32 vcc, 1, v0
    s_waitcnt lgkmcnt(1)
    v_max_f32_dpp v20, {v(cM)}, {v(cM)} quad_perm:[1,0,3,2] {DPP}
    v_max_f32_dpp v20, v20, v20 quad_perm:[2,3,0,1] {DPP}
    v_max_f32_dpp v20, v20, v20 row_half_mirror {DPP}
    v_sub_f32 v21, {v(cM)}, v20
    v_exp_f32 v21, v21
    s_waitcnt lgkmcnt(0)
    v_mul_f32 {v(cM + 1)}, v21, {v(cM + 1)}
    v_mul_f32 {v(cO)}, v21, {v(cO)}
    v_mul_f32 {v(cO + 1)}, v21, {v(cO + 1)}
""")
lane_sum([cM + 1, cO, cO + 1], ["x1", "x2", "hm"], [])
a(f"""
    v_rcp_f32 v21, {v(cM + 1)}
    v_log_f32 v22, {v(cM + 1)}
    v_mul_f32 {v(cO)}, v21, {v(cO)}
    v_mul_f32 {v(cO + 1)}, v21, {v(cO + 1)}
    v_add_f32 v22, v22, v20
    v_cvt_pk_bf16_f32 {v(cO)}, {v(cO)}, {v(cO + 1)}
    v_cndmask_b32 {v(cO)}, {v(cO)}, v22, vcc
    v_min_u32 {v(cO)}, -2, {v(cO)}
    s_mov_b64 exec, {sp(OBM)}
""")
store_local(f"global_store_dword {v(aOBA)}, {v(cO)}, {sp(EX)}")
a("s_mov_b64 exec, -1")
stamp(3)
a(f"s_cmp_lg_u32 {LAYER}, 0\ns_cbranch_scc1 L_ROLE")
a.c("layer 1 only: late weight staging, then make all staged weights visible to every wave")
role_gather()
s_expr(T0, [(FB0, 32 * 1280)])
add64(WOB, pWD, T0)
prostamp(3, 2)
a("s_waitcnt vmcnt(0)")
prostamp(4, 2)
a("s_barrier")
prostamp(5, 2)
a.label("L_ROLE")
a(f"""
    s_cmp_ge_u32 {W}, 4
    s_cbranch_scc1 L_HI
    s_cmp_eq_u32 {ROLE}, 1
    s_cbranch_scc1 L_UP
    s_cmp_eq_u32 {W}, 3
    s_cbranch_scc1 L_HI
    s_cmp_lg_u32 {ROLE}, 0
    s_cbranch_scc1 L_IDLE
    s_cmp_eq_u32 {W}, 2
    s_cbranch_scc1 L_IDLE
""")

oB, oA, oACC, oL, oT, oT2 = 64, 16, 48, 4, 6, 7


def op_load_b():
    lane_expr(oT2, oT, [(4, 1, 32)])
    a(f"s_lshl_b32 {T0}, {W}, 5\nv_xor_b32 v9, {T0}, {v(oT2)}")
    b_rows_addr(oT, oT2, 64, [(0, 2, 8)], L_WO, R32)
    a(f"v_add_u32 {v(oT)}, {v(oT)}, v9")
    b_reads(oB, oT, 8, 64, R32)


a(f"s_cmp_lg_u32 {LAYER}, 0\ns_cbranch_scc1 L_POP")
op_load_b()
a.label("L_POP")
ld = [(f"global_load_dwordx4 {v(oA + 8 * hh + 4 * u, 4)}, {v(oBA)}, {sp(EX)} offset:{hh * 2048 + u * 1024 - 4096} sc1",
       oA + 8 * hh + 4 * u, 4) for hh in range(4) for u in range(2)]
ld.append((f"global_load_dwordx2 {v(oL, 2)}, {v(oLA)}, {sp(EX)} sc1", oL, 2))
poll(ld, oT2, light=True, pre=lambda: zero(range(oACC, oACC + 16)))
a("s_waitcnt lgkmcnt(0)")
wops = [f"v_sub_f32 {v(oT)}, {v(oL + 1)}, {v(oL)}", f"v_exp_f32 {v(oT)}, {v(oT)}", f"v_add_f32 {v(oT)}, 1.0, {v(oT)}",
        f"v_rcp_f32 v8, {v(oT)}", "v_sub_f32 v9, 1.0, v8"]
for n in range(8):
    hh, u = n >> 1, n & 1
    a(f"{SMF} {v(oACC + 4 * hh, 4)}, {v(oA + 4 * n, 4)}, {v(oB + 8 * n, 8)}, {v(IDX)}")
    if wops:
        a(wops.pop(0))
stamp(4)
for hh in range(4):
    r = oACC + 4 * hh
    qp_ = f"quad_perm:[{hh},{hh},{hh},{hh}] {DPP}"
    a(f"v_pk_add_f32 {v(r, 2)}, {v(r, 2)}, {v(r + 2, 2)}")
    if hh == 0:
        a(f"v_mul_f32_dpp {v(oT)}, v8, {v(r)} {qp_}")
        a(f"v_mul_f32_dpp {v(oT2)}, v9, {v(r + 1)} {qp_}")
    else:
        a(f"v_fmac_f32_dpp {v(oT)}, v8, {v(r)} {qp_}")
        a(f"v_fmac_f32_dpp {v(oT2)}, v9, {v(r + 1)} {qp_}")
a(f"""
    v_add_f32 {v(oT)}, {v(oT)}, {v(oT2)}
    v_min_u32 {v(oT)}, -2, {v(oT)}
    global_store_dword {v(oSA)}, {v(oT)}, {sp(EX)} sc1
""")
stamp(5)

rL, rA, rS, rT, rSC = 16, 3, 4, 5, 8


def red_addr(src, dst):
    s_expr(T0, [(TILE, 2048)], src)
    a(f"v_lshl_add_u32 {v(rA)}, v0, 4, {T0}")
    if dst == XA:
        a(f"s_lshr_b32 {T1}, {TILE}, 3\ns_and_b32 {T2}, {TILE}, 7\ns_lshl_b32 {T1}, {T1}, 10")
    else:
        a(f"""
        s_mul_i32 {T1}, {TILE}, 26
        s_lshr_b32 {T1}, {T1}, 8
        s_mul_i32 {T2}, {T1}, 10
        s_sub_u32 {T2}, {TILE}, {T2}
        s_mul_i32 {T1}, {T1}, 1280
        """)
    s_expr(T0, [(G, 5120), (T1, 1)], dst)
    a(f"""
    s_and_b32 {T1}, {T2}, 1
    s_lshl_b32 {T1}, {T1}, 9
    s_and_b32 {T3}, {T2}, 2
    s_lshl_b32 {T3}, {T3}, 4
    s_add_u32 {T1}, {T1}, {T3}
    s_and_b32 {T3}, {T2}, 4
    s_lshl_b32 {T3}, {T3}, 2
    s_add_u32 {T1}, {T1}, {T3}
    s_lshl_b32 {T3}, {T2}, 7
    s_cmp_ge_u32 {T2}, 8
    s_cselect_b32 {T1}, {T3}, {T1}
    s_cselect_b32 {T2}, 4, 6
    s_add_u32 {T0}, {T0}, {T1}
    """)
    lane_expr(rS, rT, [(1, 1, 4), (2, 2, 1)])
    a(f"v_lshlrev_b32 {v(rS)}, {T2}, {v(rS)}")
    a(f"v_and_b32 {v(rT)}, 1, v0\nv_lshl_add_u32 {v(rS)}, {v(rT)}, 3, {v(rS)}")
    a(f"v_lshrrev_b32 {v(rT)}, 5, v0\nv_lshl_add_u32 {v(rS)}, {v(rT)}, 2, {v(rS)}")
    a(f"v_add_u32 {v(rS)}, {T0}, {v(rS)}")


def red_stats():
    ln_stats(range(96, 116), 9, rSC, ["x1", "x2", "s16", "s32"], 10, 7)
    a(f"v_rcp_f32 {v(rSC)}, {v(rSC)}")


def red_poll(st, scale):
    poll([(f"global_load_dwordx4 {v(rL + 4 * i, 4)}, {v(rA)}, {sp(EX)} offset:{i * 1024} sc1", rL + 4 * i, 4)
          for i in range(2)], rT, light=False, pre=red_stats if scale else None)
    stamp(st)
    a(f"""
    v_pk_add_f32 {v(rL, 2)}, {v(rL, 2)}, {v(rL + 4, 2)}
    v_pk_add_f32 {v(rL + 2, 2)}, {v(rL + 2, 2)}, {v(rL + 6, 2)}
    v_permlane32_swap_b32 {v(rL)}, {v(rL + 2)}
    v_permlane32_swap_b32 {v(rL + 1)}, {v(rL + 3)}
    v_pk_add_f32 {v(rL, 2)}, {v(rL, 2)}, {v(rL + 2, 2)}
    v_mov_b32 {v(rL + 2)}, {v(rL)}
    v_mov_b32 {v(rL + 3)}, {v(rL + 1)}
    v_permlane16_swap_b32 {v(rL)}, {v(rL + 2)}
    v_permlane16_swap_b32 {v(rL + 1)}, {v(rL + 3)}
    v_pk_add_f32 {v(rL, 2)}, {v(rL, 2)}, {v(rL + 2, 2)}
    """)
    if scale:
        a(f"v_pk_mul_f32 {v(rL, 2)}, {v(rL, 2)}, {v(rSC, 2)} op_sel_hi:[1,0]")
    a(f"""
    v_cvt_pk_bf16_f32 {v(rL)}, {v(rL)}, {v(rL + 1)}
    v_and_b32 {v(rL + 1)}, 0xffff0000, {v(rL)}
    v_lshlrev_b32 {v(rL)}, 16, {v(rL)}
    v_pk_add_f32 {v(rL, 2)}, {v(rL, 2)}, {v(rX0, 2)}
    v_cvt_pk_bf16_f32 {v(rL)}, {v(rL)}, {v(rL + 1)}
    s_mov_b32 exec_lo, 0xffff
    s_mov_b32 exec_hi, 0xffff
    """)


def red_publish():
    a(f"v_min_u32 {v(rL + 1)}, -2, {v(rL)}")
    store_local(f"global_store_dword {v(rS)}, {v(rL + 1)}, {sp(EX)}")
    a(f"""
    s_mov_b64 exec, -1
    v_and_b32 {v(rX1)}, 0xffff0000, {v(rL)}
    v_lshlrev_b32 {v(rX0)}, 16, {v(rL)}
    """)


a(f"s_cmp_lg_u32 {LAYER}, 0\ns_cbranch_scc1 L_NOWD")
wd_prefetch(3, 7)
red_addr(PB1, XA)
a("s_waitcnt vmcnt(1)\ns_branch L_NOWD2")
a.label("L_NOWD")
red_addr(PB1, XA)
a("s_waitcnt vmcnt(0)")
a.label("L_NOWD2")
red_poll(6, False)
red_publish()
stamp(7)
dB, dA, dACC, dHA0, dHA1, dSA, dT, dT2, dX = 64, 16, 24, 3, 4, 5, 6, 7, 96
a(f"s_cmp_lg_u32 {LAYER}, 0\ns_cbranch_scc1 L_NOWD3")
wd_dma(dT, dT2)
a.label("L_NOWD3")
s_expr(T0, [(G, 2048)], HB)
a(f"""
    v_lshl_add_u32 {v(dHA0)}, v0, 4, {T0}
    s_cmp_eq_u32 {NU}, 6
    s_cselect_b32 {T1}, 2, 0
    v_or_b32 {v(dT)}, {T1}, v0
    v_lshrrev_b32 {v(dT2)}, 1, {v(dT)}
    v_and_b32 {v(dT)}, {v(dT)}, {v(dT2)}
    v_and_b32 {v(dT)}, 1, {v(dT)}
    v_lshlrev_b32 {v(dT)}, 4, {v(dT)}
    v_sub_u32 {v(dHA1)}, {v(dHA0)}, {v(dT)}
    v_add_u32 {v(dSA)}, {PB2 - PB1}, {v(oSA)}
""")
s_expr(T0, [(G, 5120)], XA + 2048)
a(f"v_lshl_add_u32 v10, v0, 4, {T0}")
s_expr(T0, [(W, 8 * D32)], L_WD)
b_rows_addr(dT, dT2, 32, [(0, 2, 8)], T0, D32)
a("s_waitcnt vmcnt(0)")
b_reads(dB, dT, 4, 32, D32)
zero(range(dACC, dACC + 8))
poll([(f"global_load_dwordx4 {v(dA, 4)}, {v(dHA0)}, {sp(EX)} sc1", dA, 4),
      (f"global_load_dwordx4 {v(dA + 4, 4)}, {v(dHA1)}, {sp(EX)} offset:1024 sc1", dA + 4, 4)], dT2, light=True)
a("s_waitcnt lgkmcnt(0)")
for n in range(4):
    u, q = n >> 1, n & 1
    a(f"{SMF} {v(dACC + 4 * q, 4)}, {v(dA + 4 * u, 4)}, {v(dB + 8 * n, 8)}, {v(IDX)}")


def dn_tail():
    a(f"""
    v_add_f32 {v(dACC)}, {v(dACC)}, {v(dACC + 2)}
    v_add_f32 {v(dACC + 5)}, {v(dACC + 5)}, {v(dACC + 7)}
    v_add_f32 {v(dACC)}, {v(dACC)}, {v(dACC + 5)}
    v_min_u32 {v(dACC)}, -2, {v(dACC)}
    global_store_dword {v(dSA)}, {v(dACC)}, {sp(EX)} sc1
    """)
    stamp(1)
    a(f"""
    s_cmp_eq_u32 {LAYER}, 0
    s_cbranch_scc1 L_RED2
    s_and_b32 {T0}, {TILE}, 7
    s_cmp_lg_u32 {T0}, {G}
    s_cbranch_scc1 L_FIN
L_RED2:
    """)
    red_addr(PB2, XF)
    s_expr(T0, [(TILE, 32)])
    lane_expr(6, 7, [(2, 2, 1280), (0, 2, 8), (5, 1, 4)], T0)


poll([(f"global_load_dwordx4 {v(dX + 4 * u, 4)}, v10, {sp(EX)} offset:{u * 1024 - 2048} sc1", dX + 4 * u, 4)
      for u in range(5)], 7, light=False, pre=dn_tail)
red_poll(2, True)
a(f"""
    s_cmp_eq_u32 {LAYER}, 0
    s_cbranch_scc1 L_RED2P
    global_store_dword v6, {v(rL)}, {sp(pOUT)}
    s_mov_b64 exec, -1
    s_branch L_FIN
L_RED2P:
""")
red_publish()
op_load_b()
a("s_branch L_NEXT")

uB, uX, uACC, uS1, uONE, uXA, uSA, uCS, uT = 48, 28, 20, 16, 8, 3, 4, 5, 6
a.label("L_UP")
lane_expr(uSA, uXA, [(4, 1, 32), (1, 1, 16)])
a(f"s_lshl_b32 {T0}, {W}, 4\nv_xor_b32 {v(uSA)}, {T0}, {v(uSA)}")
b_rows_addr(uT, uXA, 64, [(0, 1, 8), (1, 1, L_WU - L_WG)], L_WG, R32)
a(f"v_add_u32 {v(uT)}, {v(uT)}, {v(uSA)}")
b_reads(uB, uT, 10, 64, R32)
for i in range(4):
    a(f"v_mov_b32 {v(uONE + i)}, {ONES}")
zero(range(uS1, uS1 + 4))
s_expr(T0, [(G, 5120)], XA + 2048)
a(f"v_lshl_add_u32 {v(uXA)}, v0, 4, {T0}")
a(f"""
    s_sub_u32 {T1}, {J}, 20
    s_lshr_b32 {T0}, {T1}, 2
    s_lshl_b32 {T0}, {T0}, 10
    s_and_b32 {T2}, {T1}, 2
    s_and_b32 {T1}, {T1}, 1
""")
s_expr(T0, [(T0, 1), (G, 2048), (T2, 8), (T1, 32), (W, 256)], HB)
lane_expr(uSA, uT, [(4, 2, 64), (1, 2, 4)], T0)
a("s_waitcnt lgkmcnt(0)")
for n in range(10):
    a(f"{SMF} {v(uS1, 4)}, {v(uONE, 4)}, {v(uB + 8 * n, 8)}, {v(IDX)}")
a(f"""
    v_add_f32 {v(uCS)}, {v(uS1)}, {v(uS1 + 2)}
    v_mul_f32 {v(uCS)}, {f32(1.0 / 640)}, {v(uCS)}
    s_mov_b32 {SPIN}, {SPIN_MAX}
""")
stamp(7)
zero(range(uACC, uACC + 8))
poll([(f"global_load_dwordx4 {v(uX + 4 * u, 4)}, {v(uXA)}, {sp(EX)} offset:{u * 1024 - 2048} sc1", uX + 4 * u, 4)
      for u in range(5)], uT, light=True)
stamp(4)
for u in range(5):
    a(f"{MFMA} {v(uS1, 4)}, {v(uX + 4 * u, 4)}, {v(uONE, 4)}, {'0' if u == 0 else v(uS1, 4)}")
for n in range(10):
    u, q = n >> 1, n & 1
    a(f"{SMF} {v(uACC + 4 * q, 4)}, {v(uX + 4 * u, 4)}, {v(uB + 8 * n, 8)}, {v(IDX)}")
    if n == 6:
        a(f"v_pk_add_f32 {v(uS1, 2)}, {v(uS1, 2)}, {v(uS1 + 2, 2)}")
    if n == 7:
        a(f"v_add_f32 {v(uS1)}, {v(uS1)}, {v(uS1 + 1)}")
a(f"""
    v_add_f32 {v(uACC)}, {v(uACC)}, {v(uACC + 2)}
    v_fma_f32 {v(uACC)}, -{v(uS1)}, {v(uCS)}, {v(uACC)}
    v_add_f32 {v(uACC + 5)}, {v(uACC + 5)}, {v(uACC + 7)}
    v_add_f32 {v(uACC)}, {v(uACC)}, {v(uACC + 5)}
    v_cvt_pk_bf16_f32 {v(uACC)}, {v(uACC)}, {v(uACC)}
    v_and_b32 {v(uACC)}, 0xffff0000, {v(uACC)}
    v_max_f32 {v(uACC + 1)}, 0, {v(uACC)}
    v_mul_f32_dpp {v(uACC + 1)}, {v(uACC)}, {v(uACC + 1)} row_ror:8 {DPP}
    s_mov_b32 s{MSK}, 0x00550055
    s_mov_b32 s{MSK + 1}, 0x00550055
    v_mov_b32_dpp {v(uACC)}, {v(uACC + 1)} quad_perm:[1,1,3,3] {DPP}
    v_cvt_pk_bf16_f32 {v(uACC)}, {v(uACC + 1)}, {v(uACC)}
    v_min_u32 {v(uACC)}, -2, {v(uACC)}
    s_mov_b64 exec, {sp(MSK)}
""")
store_local(f"global_store_dword {v(uSA)}, {v(uACC)}, {sp(EX)}")
a("s_mov_b64 exec, -1")
stamp(5)
a.label("L_IDLE")
a(f"s_cmp_lg_u32 {LAYER}, 0\ns_cbranch_scc1 L_FIN")
a.label("L_NEXT")
att_addr()
a(f"s_cmp_eq_u32 {W}, 3\ns_cbranch_scc1 L_HI")
att_zero()
a("s_waitcnt lgkmcnt(0)")
a.label("L_NEXT2")
a(f"s_mov_b32 {LAYER}, 1")
add64(EX, EX, LSTRIDE)
a("s_branch L_BAR")

a.label("L_HI")
a(f"s_cmp_lg_u32 {LAYER}, 0\ns_cbranch_scc1 L_FIN")
att_zero()
a(f"s_mov_b32 {SPIN}, {SPIN_MAX}\ns_cmp_eq_u32 {W}, 3\ns_cbranch_scc1 L_POLLER")
qp_setup()
qp_xaddr(False)
qp_saddr(QB2)
a("s_waitcnt lgkmcnt(0)")
zero(range(qACC, qACC + 12))
poll([(f"global_load_dwordx4 {v(qX, 4)}, {v(qXA0)}, {sp(EX)} sc1", qX, 4),
      (f"global_load_dwordx4 {v(qX + 4, 4)}, {v(qXA1)}, {sp(EX)} sc1", qX + 4, 4)], qT, light=True)
for m in qp_mm():
    a(m)
stamp(4)
qp_sum()
a(f"v_min_u32 {v(qACC)}, -2, {v(qACC)}")
store_local(f"global_store_dword {v(qSA)}, {v(qACC)}, {sp(pWS)}")
stamp(5)
a("s_branch L_NEXT2")

a.label("L_POLLER")
poller_qaddr(QB2)
s_expr(T0, [(G, 5120), (BB, 64)], XF)
lane_expr(120, pT, [(4, 2, 1280), (2, 2, 256), (0, 2, 16)], T0)
s_expr(T0, [(G, 5120), (BB, 16)], XF + 1024)
lane_expr(121, pT, [(4, 2, 1280), (2, 2, 64), (0, 2, 4)], T0)
poll([(f"global_load_dwordx4 {v(pX_, 4)}, v120, {sp(EX)} sc1", pX_, 4),
      (f"global_load_dword {v(pX_ + 4)}, v121, {sp(EX)} sc1", pX_ + 4, 1)], pT, light=True)
stamp(4)
poller_stats()
for kq in range(1, 4):
    a(f"v_add_u32 {v(120 + kq)}, {kq * 8192}, {v(pA)}")
stamp(5)
poll([(f"global_load_dwordx2 {v(pQ + 2 * kq, 2)}, {v(120 + kq if kq else pA)}, {sp(pWS)} sc1", pQ + 2 * kq, 2)
      for kq in range(4)], pT, light=False)
stamp(6)
poller_finish()
a("s_waitcnt lgkmcnt(0)\ns_branch L_NEXT2")

a.label("L_FIN")
if OPT["padto"]:
    a(f"""
L_PAD:
    s_sleep 4
    s_memrealtime s[98:99]
    s_waitcnt lgkmcnt(0)
    s_sub_u32 s98, s98, s96
    s_cmp_lt_u32 s98, {OPT["padto"] * 100}
    s_cbranch_scc1 L_PAD
    """)
if DIAG:
    a("s_memrealtime s[98:99]")
    a("s_memtime s[50:51]\ns_waitcnt lgkmcnt(0)\nv_mov_b32 v1, 0\ns_sub_u32 s50, s50, s100\nv_writelane_b32 v1, s50, 21")
    for i in range(16):
        a(f"v_writelane_b32 v1, s{STAMP0 + 2 * i}, {(i // 8) * 10 + i % 8}")
    a("v_writelane_b32 v1, s96, 9\nv_writelane_b32 v1, s98, 19")
    a(f"""
    v_writelane_b32 v1, {LOCAL}, 20
    s_lshl_b32 {T0}, s2, 3
    s_add_u32 {T0}, {T0}, {W}
    s_lshl_b32 {T0}, {T0}, 8
    s_add_u32 {T0}, {T0}, {DIAG_OFF}
    v_lshl_add_u32 v2, v0, 2, {T0}
    global_store_dword v2, v1, {sp(pWS)}
    """)
a.label("L_END")
a("s_endpgm")

a.raw(f""".section .rodata,"a"
.p2align 6
.amdhsa_kernel {NAME}_kernel
  .amdhsa_next_free_vgpr 256
  .amdhsa_next_free_sgpr 102
  .amdhsa_accum_offset 256
  .amdhsa_group_segment_fixed_size 0
  .amdhsa_kernarg_size 96
  .amdhsa_user_sgpr_count 2
  .amdhsa_user_sgpr_kernarg_segment_ptr 1
  .amdhsa_system_sgpr_workgroup_id_x 1
  .amdhsa_float_denorm_mode_32 3
.end_amdhsa_kernel""")

open(sys.argv[1], "w").write(a.text())
print("written", sys.argv[1], "lines", len(a.out), "pad states", a.nops)
```

```python
import math
import struct
import sys

sys.path.insert(0, "gen")
from asmlib import Asm

NAME = "interleave_layers__sliding_block_cached__glu_gated_reglu__decode"

OPT = dict(diag=0, stamps=0xff, pro=0, padto=0, cut=0, force_global=0,
           thr=5, k0=4, wq1=4, wq2=4, wq3=4, bq=6, hc=12, bp=26, late=0, lay=1, free=6, clrn=3, clrrep=1,
           slp=2, p_op=2, p_up=1, p_dn=1, p_qp=1, p_px=1)
for a_ in sys.argv[2:]:
    k_, v_ = a_.split("=")
    assert k_ in OPT, k_
    OPT[k_] = int(v_, 0)
DIAG, THR, CUT = OPT["diag"], OPT["thr"], OPT["cut"]

OB, LSE, XA, PB1, HB, PB2 = 0, 65536, 66560, 107520, 196608, 212992
LSTRIDE = 294912
XF = 2 * LSTRIDE
QB2 = XF + 40960
EARLY = 196608
LATE_END = EARLY + 2048 * 384
assert QB2 + 262144 <= LATE_END
Q1 = LATE_END
CS1 = Q1 + 262144
MK = CS1 + 131072
MSTR = 16
DIAG_OFF = 16 << 20

L_WQ = 0
R32 = 2176
D32 = 1088
L_WO, L_WD = 20480, 55296
L_WG, L_WU = 20480, 64000
assert (L_WU - L_WG) % 256 == 0 and L_WU - L_WG >= 20 * R32 and L_WD >= L_WO + 16 * R32
L_OW = L_WU + 20 * R32
L_ML = L_OW + 4352
L_QZ = L_ML + 1024
L_Q = L_QZ + 768
L_P = L_QZ + 1792
L_FLAG = L_P + 1024
OWS = 544
LDS_BYTES = L_FLAG + 256

W, G, J, LAYER, LOCAL = "s3", "s4", "s5", "s6", "s7"
pX, pK, pV, pWQ, pWO, pWG, pWU, pWD, pOUT, pDBG, pWS = 8, 10, 12, 14, 16, 20, 22, 24, 26, 28, 30
PM = 8
WOB = 0
KB, VB, TB, MSK, EX, OBM, ODD = 32, 34, 36, 44, 46, 52, 58
T0, T1, T2, T3 = "s38", "s39", "s49", "s50"
CSC, PLO, PHI, SPIN, XCC, PATH = "s40", "s41", "s42", "s43", "s48", "s51"
ONES, H, TILE, BB = "s54", "s55", "s56", "s57"
NU, FB0, ROLE, T2L = "s92", "s93", "s94", "s95"
STAMP0 = 60

KREG, VREG, SREG = 128, 192, 64
IDX, vV = 1, 2
aQA, aPW, aPR, aOWW, aMLW, aOWR, aMLR, aOBA = 3, 4, 5, 6, 7, 8, 9, 10
oBA, oLA, oSA = 11, 12, 13
pCS = 12
rX0, rX1 = 14, 15
vDUM, vPF, vK, vDMA = 56, 57, 58, 59
vWQ = 16

DPP = "row_mask:0xf bank_mask:0xf"
MFMA = "v_mfma_f32_16x16x32_bf16"
SMF = "v_smfmac_f32_16x16x64_bf16"
SPIN_MAX = 1 << 18

a = Asm()


def sp(n):
    return "s[%d:%d]" % (n, n + 1)


def v(n, cnt=1):
    return "v%d" % n if cnt == 1 else "v[%d:%d]" % (n, n + cnt - 1)


def f32(x):
    return "0x%08x" % struct.unpack("<I", struct.pack("<f", x))[0]


def stamp(i):
    if not DIAG or not (OPT["stamps"] >> i) & 1:
        return
    l1, l2 = a.newlabel("ST"), a.newlabel("ST")
    a(f"""
    s_cmp_eq_u32 {LAYER}, 0
    s_cbranch_scc1 {l1}
    s_memrealtime {sp(STAMP0 + 16 + 2 * i)}
    s_branch {l2}
    {l1}:
    s_memrealtime {sp(STAMP0 + 2 * i)}
    {l2}:
    """)


def prostamp(slot, lvl=1):
    if DIAG and OPT["pro"] == lvl:
        a(f"s_memrealtime {sp(STAMP0 + 2 * slot)}")


def add64(dst, src, off):
    a(f"s_add_u32 s{dst}, s{src}, {off}\ns_addc_u32 s{dst + 1}, s{src + 1}, 0")


def lane_expr(reg, tmp, fields, base=None):
    first = True
    for pos, width, mul in fields:
        dst = reg if first else tmp
        if pos + width >= 6:
            a(f"v_lshrrev_b32 {v(dst)}, {pos}, v0" if pos else f"v_mov_b32 {v(dst)}, v0")
        elif pos == 0:
            a(f"v_and_b32 {v(dst)}, {(1 << width) - 1}, v0")
        else:
            a(f"v_bfe_u32 {v(dst)}, v0, {pos}, {width}")
        p2 = mul & (mul - 1) == 0
        if first:
            if mul != 1:
                a(f"v_lshlrev_b32 {v(reg)}, {mul.bit_length() - 1}, {v(reg)}" if p2
                  else f"v_mul_u32_u24 {v(reg)}, {mul}, {v(reg)}")
        elif p2:
            a(f"v_lshl_add_u32 {v(reg)}, {v(tmp)}, {mul.bit_length() - 1}, {v(reg)}")
        else:
            a(f"v_mul_u32_u24 {v(tmp)}, {mul}, {v(tmp)}\nv_add_u32 {v(reg)}, {v(reg)}, {v(tmp)}")
        first = False
    if base is not None:
        a(f"v_add_u32 {v(reg)}, {base}, {v(reg)}")


def s_expr(dst, terms, const=0):
    first = True
    for s, mul in terms:
        d = dst if first else T3
        if mul == 1:
            if first:
                if s != d:
                    a(f"s_mov_b32 {d}, {s}")
            else:
                d = s
        elif mul & (mul - 1) == 0:
            a(f"s_lshl_b32 {d}, {s}, {mul.bit_length() - 1}")
        else:
            a(f"s_mul_i32 {d}, {s}, {mul}")
        if not first:
            a(f"s_add_u32 {dst}, {dst}, {d}")
        first = False
    if const:
        a(f"s_add_u32 {dst}, {dst}, {const}")


def lin(reg, shift, terms, const):
    s_expr(T0, terms, const)
    a(f"v_lshl_add_u32 {v(reg)}, v0, {shift}, {T0}")


def store_local(ins):
    lg, le = a.newlabel("SG"), a.newlabel("SE")
    a(f"""
    s_cbranch_scc1 {lg}
    {ins}
    s_branch {le}
    {lg}:
    {ins} sc1
    {le}:
    """)


def local_test():
    a(f"s_cmp_eq_u32 {LOCAL}, 0")


def check_ops(regs, tmp, dst="vcc"):
    ops, regs = [], list(regs)
    if len(regs) == 1:
        return [f"v_cmp_eq_u32 {dst}, -1, {v(regs[0])}"]
    if len(regs) == 2:
        ops.append(f"v_max_u32 {v(tmp)}, {v(regs[0])}, {v(regs[1])}")
    else:
        ops.append(f"v_max3_u32 {v(tmp)}, {v(regs[0])}, {v(regs[1])}, {v(regs[2])}")
        rest = regs[3:]
        while len(rest) >= 2:
            ops.append(f"v_max3_u32 {v(tmp)}, {v(tmp)}, {v(rest[0])}, {v(rest[1])}")
            rest = rest[2:]
        if rest:
            ops.append(f"v_max_u32 {v(tmp)}, {v(tmp)}, {v(rest[0])}")
    ops.append(f"v_cmp_eq_u32 {dst}, -1, {v(tmp)}")
    return ops


def light(ins, r0, slp):
    l1, ok = a.newlabel("PL"), a.newlabel("PK")
    a(f"s_mov_b32 {SPIN}, {SPIN_MAX}\ns_mov_b64 exec, 1")
    a.label(l1)
    a(f"{ins}\ns_waitcnt vmcnt(0)\nv_cmp_eq_u32 vcc, -1, {v(r0)}\ns_cbranch_vccz {ok}")
    if slp:
        a(f"s_sleep {slp}")
    a(f"s_sub_u32 {SPIN}, {SPIN}, 1\ns_cbranch_scc0 {l1}\n{ok}:\ns_mov_b64 exec, -1")


def poll(loads, tmp, mode=0, pre=None):
    if mode == 1:
        light(loads[-1][0], loads[-1][1], OPT["slp"])
    if mode == 2:
        a("s_waitcnt vmcnt(0)")
    l2, chk, done = a.newlabel("PM"), a.newlabel("PC"), a.newlabel("PD")
    for ins, r0, n in loads:
        a(ins)
    a(f"s_mov_b32 {SPIN}, {SPIN_MAX}")
    if pre:
        pre()
    a(f"s_branch {chk}")
    a.label(l2)
    for u, (ins, r0, n) in enumerate(loads):
        a(f"s_mov_b64 exec, {sp(PM + 2 * u)}")
        a(ins)
    a("s_mov_b64 exec, -1")
    a.label(chk)
    nl = len(loads)
    for u, (ins, r0, n) in enumerate(loads):
        a(f"s_waitcnt vmcnt({nl - 1 - u})")
        for o in check_ops(range(r0, r0 + n), tmp, sp(PM + 2 * u)):
            a(o)
        if u == 1:
            pend = f"s_or_b64 {sp(MSK)}, {sp(PM)}, {sp(PM + 2)}"
        elif u > 1:
            a(pend)
            pend = f"s_or_b64 {sp(MSK)}, {sp(MSK)}, {sp(PM + 2 * u)}"
    a(pend)
    a(f"""
    s_cbranch_scc0 {done}
    s_sub_u32 {SPIN}, {SPIN}, 1
    s_cbranch_scc0 {l2}
    {done}:
    """)


def zero(regs):
    for r in regs:
        a(f"v_mov_b32 {v(r)}, 0")


def b_addr(reg, tmp, rowbytes, extra, base, r32=None):
    lane_expr(reg, tmp, [(3, 1, r32 or 32 * rowbytes), (4, 2, 4 * rowbytes), (2, 1, rowbytes)] + extra, base)


def b_reads(dst, addr, nblk, rowbytes, r32=None):
    r32 = r32 or 32 * rowbytes
    for blk in range(nblk):
        for rho in range(4):
            off = 2 * r32 * blk + (16 * (rho >> 1) + 2 * (rho & 1)) * rowbytes
            a(f"ds_read_b64_tr_b16 {v(dst + 8 * blk + 2 * rho, 2)}, {v(addr)} offset:{off}")


def lane_sum(regs, steps, tmps):
    for st in steps:
        if st in ("s16", "s32"):
            for r, t in zip(regs, tmps):
                a(f"v_mov_b32 {v(t)}, {v(r)}")
            for r, t in zip(regs, tmps):
                a(f"v_permlane{st[1:]}_swap_b32 {v(r)}, {v(t)}")
            for r, t in zip(regs, tmps):
                a(f"v_add_f32 {v(r)}, {v(r)}, {v(t)}")
        else:
            pat = {"x1": "quad_perm:[1,0,3,2]", "x2": "quad_perm:[2,3,0,1]", "hm": "row_half_mirror",
                   "r4": "row_ror:4", "r8": "row_ror:8"}[st]
            for r in regs:
                a(f"v_add_f32_dpp {v(r)}, {v(r)}, {v(r)} {pat} {DPP}")


def ln_stats(xregs, s1, s2, steps, t1, t2):
    for n, r in enumerate(xregs):
        a(f"v_dot2_f32_bf16 {v(s1)}, {v(r)}, {ONES}, {'0' if n == 0 else v(s1)}")
        a(f"v_dot2_f32_bf16 {v(s2)}, {v(r)}, {v(r)}, {'0' if n == 0 else v(s2)}")
    lane_sum([s1, s2], steps, [t1, t2])
    a(f"""
    v_mul_f32 {v(s1)}, {f32(1.0 / 640)}, {v(s1)}
    v_mul_f32 {v(s2)}, {f32(1.0 / 640)}, {v(s2)}
    v_fma_f32 {v(s2)}, -{v(s1)}, {v(s1)}, {v(s2)}
    v_max_f32 {v(s2)}, 0, {v(s2)}
    v_add_f32 {v(s2)}, {f32(1e-5)}, {v(s2)}
    """)


qB, qX, qACC, qXA0, qXA1, qSA, qT = 64, 88, 96, 108, 109, 110, 111


def qp_setup():
    s_expr(T0, [(W, 32)], L_WQ - 4 * 32)
    b_addr(qT, qSA, 128, [(0, 2, 8)], T0)
    b_reads(qB, qT, 3, 128)


def qp_saddr(off):
    a(f"s_and_b32 {T1}, {J}, 3\ns_lshr_b32 {T2}, {J}, 2")
    lin(qSA, 2, [(G, 32768), (T1, 8192), (T2, 1024), (W, 256)], off - 4 * 256)


def qp_mm():
    a(f"""
    {SMF} {v(qACC, 4)}, {v(qX, 4)}, {v(qB, 8)}, {v(IDX)}
    {SMF} {v(qACC + 4, 4)}, {v(qX, 4)}, {v(qB + 8, 8)}, {v(IDX)}
    {SMF} {v(qACC + 8, 4)}, {v(qX + 4, 4)}, {v(qB + 16, 8)}, {v(IDX)}
    """)


def qp_sum():
    a(f"""
    v_add_f32 {v(qACC)}, {v(qACC)}, {v(qACC + 2)}
    v_add_f32 {v(qACC + 5)}, {v(qACC + 5)}, {v(qACC + 7)}
    v_add_f32 {v(qACC)}, {v(qACC)}, {v(qACC + 5)}
    v_add_f32 {v(qACC)}, {v(qACC)}, {v(qACC + 8)}
    v_min_u32 {v(qACC)}, -2, {v(qACC)}
    """)


pX_, pQ, pS1, pS2, pA, pLW, pT, pT2 = 96, 104, 112, 114, 116, 120, 121, 122


def poller_stats():
    ln_stats(range(pX_, pX_ + 5), pS1, pS2, ["x1", "x2", "r4", "r8", "s16", "s32"], pT, pT2)
    a(f"v_rsq_f32 {v(pS2)}, {v(pS2)}")


def poller_qaddr(off):
    a(f"s_lshr_b32 {T1}, {J}, 3")
    s_expr(T0, [(G, 32768), (BB, 64), (T1, 2048)], off)
    lane_expr(pA, pT, [(3, 3, 256), (0, 3, 8)], T0)
    for kq in range(1, 4):
        a(f"v_add_u32 {v(pA + kq)}, {kq * 8192}, {v(pA)}")
    lane_expr(pLW, pT, [(5, 1, 128), (3, 1, 64), (0, 1, 32), (4, 1, 16), (1, 2, 4)], L_Q)


def poller_qloads():
    return [(f"global_load_dwordx2 {v(pQ + 2 * kq, 2)}, {v(pA + kq)}, {sp(pWS)} sc1", pQ + 2 * kq, 2) for kq in range(4)]


def poller_finish():
    a(f"""
    v_pk_add_f32 {v(pQ, 2)}, {v(pQ, 2)}, {v(pQ + 2, 2)}
    v_pk_add_f32 {v(pQ + 4, 2)}, {v(pQ + 4, 2)}, {v(pQ + 6, 2)}
    v_pk_add_f32 {v(pQ, 2)}, {v(pQ, 2)}, {v(pQ + 4, 2)}
    v_fma_f32 {v(pQ)}, -{v(pS1)}, {v(pCS)}, {v(pQ)}
    v_fma_f32 {v(pQ + 1)}, -{v(pS1)}, {v(pCS + 1)}, {v(pQ + 1)}
    v_mul_f32 {v(pQ)}, {v(pS2)}, {v(pQ)}
    v_mul_f32 {v(pQ + 1)}, {v(pS2)}, {v(pQ + 1)}
    v_cvt_pk_bf16_f32 {v(pQ)}, {v(pQ)}, {v(pQ + 1)}
    ds_write_b32 {v(pLW)}, {v(pQ)}
    """)


aQV, aQK, aACC, aP, aS, aT, aM, aL = 16, 48, 16, 52, 60, 61, 62, 63


def att_addr():
    t = aT
    lane_expr(aQA, t, [(4, 2, 64), (0, 2, 16)], L_Q)
    a(f"v_bfe_u32 {v(t)}, v0, 2, 2\nv_lshlrev_b32 {v(t)}, 8, {v(t)}\nv_sub_u32 {v(aQA)}, {v(aQA)}, {v(t)}")
    s_expr(T0, [(W, 128)], L_P)
    lane_expr(aPW, t, [(0, 1, 64), (2, 1, 32), (4, 1, 16), (1, 1, 8), (5, 1, 4), (3, 1, 2)], T0)
    lane_expr(aPR, t, [(4, 2, 32), (1, 1, 16)], T0)
    lin(aOWW, 5, [(W, OWS)], L_OW)
    lin(aMLW, 6, [(W, 8)], L_ML)
    s_expr(T0, [(W, 64)], L_OW)
    lane_expr(aOWR, t, [(0, 3, OWS), (3, 3, 8)], T0)
    lane_expr(aMLR, t, [(0, 3, 8)], L_ML)
    a(f"s_lshr_b32 {T1}, {W}, 2\ns_and_b32 {T2}, {W}, 1")
    s_expr(T0, [(G, 8192), (T1, 1024), (T2, 512), (BB, 64)], OB)
    a(f"s_and_b32 {T1}, {W}, 2\ns_lshl_b32 {T1}, {T1}, 4\ns_add_u32 {T0}, {T0}, {T1}")
    a(f"s_lshr_b32 {T1}, {J}, 3\ns_and_b32 {T2}, {J}, 1")
    s_expr(T0, [(T0, 1), (T1, 2048), (T2, 16)])
    lane_expr(aOBA, t, [(5, 1, 256), (3, 2, 4)], T0)
    s_expr(T0, [(G, 128), (BB, 32), (T1, 8), (T2, 4)], LSE)
    a(f"v_writelane_b32 {v(aOBA)}, {T0}, 1")


def att_zero():
    zero(range(32, 56))


hdr = open("cdna_kernels/%s.s.ref" % NAME).read().split("\n")
for line in hdr:
    if line.startswith("; @launch"):
        a.raw("; @launch grid=(256,1,1) block=(512,1,1) lds=%d" % LDS_BYTES)
    elif line.startswith(";"):
        a.raw(line)
    else:
        break
a.raw('.amdgcn_target "amdgcn-amd-amdhsa--gfx950"')
a.raw(".text")
a.raw(".globl %s_kernel" % NAME)
a.raw(".p2align 8")
a.raw(".type %s_kernel,@function" % NAME)
a.raw("%s_kernel:" % NAME)
a(f"""
    s_cmp_ge_u32 s2, 256
    s_cbranch_scc1 L_END
    s_load_dwordx16 s[8:23], s[0:1], 0
    s_load_dwordx8 s[24:31], s[0:1], 64
""")
a.c("pull the kernel's own code into L2: four 128-byte lines per workgroup")
a(f"""
    s_getpc_b64 {sp(TB)}
L_PC:
    s_and_b32 {T0}, s2, 0xf8
    s_lshl_b32 {T0}, {T0}, 6
    v_and_b32 v1, 3, v0
    v_lshl_add_u32 v1, v1, 7, {T0}
    v_min_u32 v1, L_END-L_PC, v1
    global_load_dword {v(vDUM)}, v1, {sp(TB)}
    s_mov_b32 {LAYER}, 0
""")
if OPT["padto"]:
    a("s_memrealtime s[96:97]")
if DIAG:
    for i in range(16):
        a(f"s_mov_b64 {sp(STAMP0 + 2 * i)}, 0")
    a("s_memrealtime s[96:97]\ns_memtime s[100:101]")
a(f"""
    v_lshrrev_b32 v1, 6, v0
    v_and_b32 v0, 63, v0
    v_readfirstlane_b32 {W}, v1
    s_and_b32 {G}, s2, 7
    s_lshr_b32 {J}, s2, 3
    s_lshr_b32 {T0}, {J}, 3
    s_add_u32 {H}, {G}, {T0}
    s_and_b32 {H}, {H}, 7
    s_and_b32 {T0}, {J}, 24
    s_add_u32 {H}, {H}, {T0}
    s_bfe_u32 {BB}, {J}, 0x20001
    s_and_b32 {T1}, {J}, 1
""")
s_expr(T2, [(BB, 1 << 25), (H, 1 << 20), (T1, 1 << 17), (W, 1 << (11 if OPT["lay"] else 13))], 0xC0000 + (0 if OPT["lay"] else 4096))
lane_expr(vK, 60, [(1, 3, 256), (0, 1, 64), (4, 2, 16)])
a(f"v_lshlrev_b32 {v(vV)}, 4, v0")
for i in range(4):
    a(f"v_mov_b32 {v(124 + i)}, -1")
a(f"s_lshl_b32 {T0}, {J}, 3\ns_add_u32 {T0}, {T0}, {W}\ns_waitcnt lgkmcnt(0)")
add64(KB, pK, T2)
add64(VB, pV, T2)
a(f"s_cmp_lg_u32 {T0}, 1\ns_cbranch_scc1 L_PRO_L")
a.c("wave 1 of the group's first workgroup: reset the group's arrival markers, then raise the group's flag")
lin(60, 4, [(G, 32 * MSTR)], MK)
a(f"""
    s_lshl_b32 {T0}, {G}, 5
    v_mov_b32 v62, {T0}
    s_mov_b32 exec_hi, 0
    global_store_dwordx4 v60, v[124:127], {sp(pWS)} sc1
    s_waitcnt vmcnt(0)
    s_mov_b64 exec, 1
    global_store_dword v62, v124, {sp(pDBG)} sc1
    s_mov_b64 exec, -1
L_PRO_L:
""")
a(f"s_cmp_lg_u32 {W}, 2\ns_cselect_b64 vcc, 0, -1\ns_cbranch_scc1 L_PRO_C")
a.c("wave 2: sentinel fill of the early slots and of this workgroup's layer-1 q slots")
if not CUT & 2:
    if OPT["late"]:
        lin(60, 4, [("s2", 768)], 0)
        a(f"s_mov_b32 exec_hi, 0xffff\nglobal_store_dwordx4 v60, v[124:127], {sp(pWS)} sc1\ns_mov_b64 exec, -1")
    else:
        lin(60, 4, [("s2", 3840)], 0)
        for rp in range(1, OPT["clrrep"]):
            a(f"v_add_u32 v61, {rp * (2 << 20)}, v60")
            for u in range(4):
                a(f"global_store_dwordx4 v61, v[124:127], {sp(pWS)} offset:{u * 1024} sc1")
        for u in range(OPT["clrn"]):
            a(f"global_store_dwordx4 v60, v[124:127], {sp(pWS)} offset:{u * 1024} sc1")
        a(f"s_mov_b32 exec_hi, 0xffff\nglobal_store_dwordx4 v60, v[124:127], {sp(pWS)} offset:3072 sc1\ns_mov_b64 exec, -1")
    a(f"s_and_b32 {T1}, {J}, 3\ns_lshr_b32 {T2}, {J}, 2")
    lin(60, 4, [(G, 32768), (T1, 8192), (T2, 1024)], Q1)
    a(f"global_store_dwordx4 v60, v[124:127], {sp(pWS)} sc1")
    lin(60, 3, [(G, 16384), (T1, 4096), (T2, 512)], CS1)
    a(f"global_store_dwordx2 v60, v[124:125], {sp(pWS)} sc1")
a.label("L_PRO_C")
SKIP = [False]


def stream(i, thr=True):
    if OPT["lay"]:
        B_ = KB if i < 16 else VB
        if i & 15 and not i & 1:
            add64(B_, B_, 16384)
        if i < 16:
            a(f"global_load_dwordx4 {v(KREG + 4 * i, 4)}, {v(vK)}, {sp(KB)} offset:{(i & 1) * 128} nt")
        else:
            a(f"global_load_dwordx4 {v(SREG + (i - 16) * 4, 4)}, {v(vV)}, {sp(VB)} offset:{(i & 1) * 1024} nt")
    elif i < 16:
        if i == 8:
            add64(KB, KB, 65536)
        kq, hf = (i >> 1) & 3, i & 1
        a(f"global_load_dwordx4 {v(KREG + 4 * i, 4)}, {v(vK)}, {sp(KB)} offset:{kq * 2048 + hf * 128 - 4096} nt")
    else:
        if i == 24:
            add64(VB, VB, 65536)
        a(f"global_load_dwordx4 {v(SREG + (i - 16) * 4, 4)}, {v(vV)}, {sp(VB)} offset:{(i & 7) * 1024 - 4096} nt")
    if thr:
        l = a.newlabel("TS")
        if SKIP[0]:
            a(f"s_cbranch_vccnz {l}")
        a(f"s_waitcnt vmcnt({THR - 1})")
        a.label(l)


def only_wave(w, label, off=False):
    a(f"s_cmp_lg_u32 {W}, {9 if off else w}\ns_cbranch_scc1 {label}")


def h_first():
    a(f"s_cmp_ge_u32 {W}, 4\ns_cbranch_scc1 L_PRO_X")
    a(f"s_lshl_b32 {TILE}, {J}, 1\ns_add_u32 {TILE}, {TILE}, {W}")
    a(f"s_cmp_eq_u32 {W}, 3\ns_cbranch_scc1 L_PRO_X3\ns_cmp_eq_u32 {W}, 2\ns_cbranch_scc1 L_PRO_X2")
    a(f"s_min_u32 {T1}, {TILE}, 39")
    s_expr(T0, [(T1, 32)])
    lane_expr(60, 61, [(2, 2, 1280), (0, 2, 8), (5, 1, 4)], T0)
    a(f"global_load_dword {v(rX0)}, v60, {sp(pX)}")
    a("s_branch L_PRO_A")
    a.label("L_PRO_X2")
    a.c("wave 2: LDS zero areas")
    zero(range(32, 36))
    a(f"""
    v_add_u32 v62, {L_QZ}, {v(vV)}
    ds_write_b128 v62, v[32:35]
    ds_write_b128 v62, v[32:35] offset:768
    v_add_u32 v62, {L_WD + 6 * D32}, {v(vV)}
    s_cmp_ge_u32 {J}, 20
    s_cbranch_scc1 L_PRO_A
    ds_write_b128 v62, v[32:35]
    ds_write_b128 v62, v[32:35] offset:{D32}
    ds_write_b128 v62, v[32:35] offset:{8 * D32}
    ds_write_b128 v62, v[32:35] offset:{9 * D32}
    s_branch L_PRO_A
    """)
    a.label("L_PRO_X3")
    lin(60, 2, [(BB, 1280)], 0)
    for u in range(5):
        a(f"global_load_dword {v(pX_ + u)}, v60, {sp(pX)} offset:{u * 256}")
    a("s_branch L_PRO_A")
    a.label("L_PRO_X")
    a(f"s_and_b32 {T1}, {J}, 3")
    s_expr(T0, [(T1, 320)])
    lane_expr(qXA0, qT, [(2, 2, 1280), (0, 1, 128), (1, 1, 64), (4, 2, 16)], T0)
    lane_expr(qXA1, qT, [(2, 2, 1280), (4, 2, 16)], T0)
    a(f"global_load_dwordx4 {v(qX, 4)}, {v(qXA0)}, {sp(pX)}")
    a(f"global_load_dwordx4 {v(qX + 4, 4)}, {v(qXA1)}, {sp(pX)} offset:256")
    a.label("L_PRO_A")
    lane_expr(vWQ, 61, [(3, 3, 8192), (0, 3, 16)])
    a(f"s_and_b32 {T1}, {J}, 3\ns_and_b32 {T2}, {J}, 4")
    s_expr(T0, [(T1, 160 * 8192), (W, 8 * 8192), (H, 256), (T2, 32)])
    add64(TB, pWQ, T0)
    prostamp(0)


def h_wq(n):
    l = a.newlabel("WQ")
    if n == 2:
        a(f"s_cmp_ge_u32 {W}, 4\ns_cbranch_scc1 {l}")
    a(f"s_lshl_b32 {T1}, {W}, 10\ns_add_u32 m0, {T1}, {L_WQ + n * 8192}")
    if not CUT & 4:
        a(f"global_load_lds_dwordx4 {v(vWQ)}, {sp(TB)} nt")
    if n < 2:
        add64(TB, TB, 64 * 8192)
    a.label(l)


def h_setup1():
    a(f"""
    s_mov_b32 {ONES}, 0x3f803f80
    v_bfe_u32 {v(IDX)}, v0, 1, 1
    v_mul_u32_u24 {v(IDX)}, 0xaaaa, {v(IDX)}
    v_add_u32 {v(IDX)}, 0x4444, {v(IDX)}
    s_mov_b32 {CSC}, {f32(math.log2(math.e) / math.sqrt(128.0))}
    s_mov_b32 {PLO}, 0x05040100
    s_mov_b32 {PHI}, 0x07060302
    s_mov_b32 s{ODD}, 0xaaaaaaaa
    s_mov_b32 s{ODD + 1}, 0xaaaaaaaa
    s_mov_b32 s{OBM}, 0x01010101
    s_mov_b32 s{OBM + 1}, 0x01010101
    s_cmp_eq_u32 {W}, 0
    s_cselect_b32 s{OBM}, 0x01010103, s{OBM}
    s_mov_b32 s{EX}, s{pWS}
    s_mov_b32 s{EX + 1}, s{pWS + 1}
    s_cmp_lt_u32 {G}, 6
    s_cselect_b32 {NU}, 7, 6
    s_mul_i32 {FB0}, {G}, 7
    s_min_u32 {FB0}, {FB0}, 48
    s_sub_u32 {T0}, {J}, 20
    s_cmp_lt_u32 {T0}, {NU}
    s_cselect_b32 {ROLE}, 1, 2
    s_cmp_lt_u32 {J}, 20
    s_cselect_b32 {ROLE}, 0, {ROLE}
    """)
    a.c("PATH: 0 out/down projection, 1 gate/up, 2 q projection or q collector, 3 nothing")
    a(f"""
    s_cmp_ge_u32 {W}, 3
    s_cselect_b32 {PATH}, 2, 3
    s_lshl_b32 {T0}, 2, {ROLE}
    s_and_b32 {T0}, {T0}, 7
    s_cmp_lt_u32 {W}, {T0}
    s_cselect_b32 {PATH}, {ROLE}, {PATH}
    s_cmp_lg_u32 {ROLE}, 0
    s_cbranch_scc1 L_PRO_RU
    """)
    a.c("role weight staging: source pointer, swizzled per-lane offset, LDS base")
    lane_expr(vDMA, 60, [(2, 4, 1280), (0, 2, 16)])
    s_expr(T0, [(W, 16 * 1280), (J, 64)])
    add64(WOB, pWO, T0)
    a(f"s_lshr_b32 {T1}, {W}, 1")
    s_expr(T2L, [(W, 1024), (T1, 128)], L_WO)
    a("s_branch L_PRO_R")
    a.label("L_PRO_RU")
    lane_expr(vDMA, 60, [(2, 4, 3456), (0, 2, 16)])
    a(f"""
    s_and_b32 {T0}, {W}, 4
    s_lshl_b32 {T0}, {T0}, 2
    v_xor_b32 {v(vDMA)}, {T0}, {v(vDMA)}
    s_add_u32 {T1}, {FB0}, {J}
    s_sub_u32 {T1}, {T1}, 20
    s_and_b32 {T2}, {W}, 3
    s_cmp_ge_u32 {W}, 4
    s_cselect_b32 s{WOB}, s{pWU}, s{pWG}
    s_cselect_b32 s{WOB + 1}, s{pWU + 1}, s{pWG + 1}
    s_mov_b32 {T2L}, {L_WG}
    s_cselect_b32 {T2L}, {L_WU}, {T2L}
    s_lshr_b32 {T0}, {T2}, 1
    """)
    s_expr(T2L, [(T2L, 1), (T2, 1024), (T0, 128)])
    s_expr(T0, [(T1, 64), (T2, 16 * 3456)])
    add64(WOB, WOB, T0)
    a.label("L_PRO_R")
    a(f"v_and_b32 v60, 16, v0\nv_lshlrev_b32 v60, 1, v60\nv_xor_b32 {v(vDMA)}, {v(vDMA)}, v60")


def h_setup3():
    att_zero()
    lin(oBA, 4, [(G, 8192)], OB + 4096)
    s_expr(T0, [(G, 128)], LSE)
    lane_expr(oLA, 61, [(4, 2, 32), (0, 2, 8)], T0)
    lin(oSA, 2, [(J, 4096), (W, 2048), (G, 256)], PB1)
    zero([115, 116, 117, 118, 119, 123])


def h_arrive(nyoung):
    a(f"""
    v_and_b32 v17, 7, v0
    v_lshlrev_b32 v17, 5, v17
    v_mov_b32 v18, 0
    v_mov_b32 v19, 0
    """)
    only_wave(2, "L_HA1", CUT & 32)
    a.c("wave 2: sentinel fill done and the group's markers reset -> publish this workgroup's XCD id")
    lin(62, 2, [(G, 32 * MSTR), (J, MSTR)], MK)
    a(f"""
    s_getreg_b32 {XCC}, hwreg(HW_REG_XCC_ID, 0, 4)
    v_mov_b32 v60, {XCC}
    s_mov_b32 {SPIN}, {SPIN_MAX}
    s_waitcnt vmcnt({nyoung})
L_ARR:
    global_load_dword v18, v17, {sp(pDBG)} sc1
    s_waitcnt vmcnt(0)
    v_readlane_b32 {T0}, v18, {G}
    s_cmp_lg_u32 {T0}, 0
    s_cbranch_scc1 L_ARR_OK
    s_sub_u32 {SPIN}, {SPIN}, 1
    s_cbranch_scc0 L_ARR
L_ARR_OK:
    s_mov_b64 exec, 0xf
    global_store_dword v62, v60, {sp(pWS)} sc1
    s_mov_b64 exec, -1
L_HA1:
    """)


def h_bq(nafter):
    a(f"s_cbranch_vccnz L_BQ0\ns_waitcnt vmcnt({nafter})\nL_BQ0:\ns_waitcnt lgkmcnt(0)")
    prostamp(3)
    a(f"""
    s_barrier
    s_cmp_ge_u32 {W}, {9 if CUT & 16 else 4}
    s_cbranch_scc1 L_PRO_Q
    s_cmp_eq_u32 {W}, 3
    s_cbranch_scc1 L_PRO_P
    v_and_b32 {v(rX1)}, 0xffff0000, {v(rX0)}
    v_lshlrev_b32 {v(rX0)}, 16, {v(rX0)}
    s_branch L_PRO_KV
    """)
    a.label("L_PRO_Q")
    a.c("waves 4..7: partial q projection of layer 1 and partial column sums")
    qp_setup()
    qp_saddr(Q1)
    lin(112, 2, [(G, 16384), (T1, 4096), (T2, 512), (W, 128)], CS1 - 4 * 128)
    zero(range(qACC, qACC + 12))
    zero(range(116, 124))
    for i in range(4):
        a(f"v_mov_b32 {v(124 + i)}, {ONES}")
    a("s_waitcnt lgkmcnt(0)")
    qp_mm()
    a(f"""
    {SMF} v[116:119], v[124:127], {v(qB, 8)}, {v(IDX)}
    {SMF} v[116:119], v[124:127], {v(qB + 8, 8)}, {v(IDX)}
    {SMF} v[120:123], v[124:127], {v(qB + 16, 8)}, {v(IDX)}
    """)
    qp_sum()
    a(f"""
    {"s_nop 0" if CUT & 64 else f"global_store_dword {v(qSA)}, {v(qACC)}, {sp(pWS)} sc1"}
    v_add_f32 v116, v116, v118
    v_add_f32 v116, v116, v120
    v_min_u32 v116, -2, v116
    s_mov_b32 exec_hi, 0
    {"s_nop 0" if CUT & 64 else f"global_store_dword v112, v116, {sp(pWS)} sc1"}
    s_mov_b64 exec, -1
    s_mov_b64 vcc, -1
    s_branch L_PRO_KV
    """)
    a.label("L_PRO_P")
    a.c("wave 3: LayerNorm statistics of its row")
    poller_qaddr(Q1)
    s_expr(T0, [(G, 16384), (T1, 1024)], CS1 + 4096)
    lane_expr(123, pT, [(3, 3, 128), (0, 3, 8)], T0)
    a("v_add_u32 v115, 8192, v123")
    poller_stats()
    a.label("L_PRO_KV")
    prostamp(4)


MK_LOADS = "\n".join(f"global_load_dword {v(20 + u)}, v19, {sp(pWS)} offset:{u * 64 * MSTR} sc1" for u in range(4))


def q1_loads():
    for ins, _, _ in poller_qloads():
        a(ins)
    for kq in range(4):
        a(f"global_load_dwordx2 {v(pX_ + 2 * kq, 2)}, {'v115' if kq >= 2 else 'v123'}, {sp(pWS)} offset:{(kq & 1) * 4096 - 4096} sc1")


def h_p0():
    only_wave(3, "L_H0", CUT & 8)
    a(f"global_load_dword v18, v17, {sp(pDBG)} sc1")
    a.label("L_H0")


def h_p1():
    only_wave(3, "L_H1", CUT & 8)
    a.c("wave 3: the group's markers have been reset -> read them")
    s_expr(T1, [(G, 32 * MSTR)], MK)
    a(f"""
    v_and_b32 v19, 31, v0
    v_lshl_add_u32 v19, v19, 4, {T1}
    s_mov_b32 {SPIN}, {SPIN_MAX}
    s_waitcnt vmcnt(4)
L_FLG:
    v_readlane_b32 {T0}, v18, {G}
    s_cmp_lg_u32 {T0}, 0
    s_cbranch_scc1 L_FLG_OK
    global_load_dword v18, v17, {sp(pDBG)} sc1
    s_waitcnt vmcnt(0)
    s_sub_u32 {SPIN}, {SPIN}, 1
    s_cbranch_scc0 L_FLG
L_FLG_OK:
    global_load_dword v20, v19, {sp(pWS)} sc1
L_H1:
    """)
    prostamp(2)


def h_p2():
    only_wave(3, "L_H2", CUT & 8)
    a.c("wave 3: the whole group has arrived -> fetch q partials; decide whether the group shares one L2")
    a(f"""
    s_getreg_b32 {XCC}, hwreg(HW_REG_XCC_ID, 0, 4)
    s_mov_b32 {SPIN}, {SPIN_MAX}
    s_waitcnt vmcnt(4)
L_CNT:
    v_cmp_eq_u32 vcc, -1, v20
    s_cbranch_vccz L_CNT_OK
    global_load_dword v20, v19, {sp(pWS)} sc1
    s_waitcnt vmcnt(0)
    s_sub_u32 {SPIN}, {SPIN}, 1
    s_cbranch_scc0 L_CNT
L_CNT_OK:
    global_load_dword v18, v17, {sp(pDBG)} sc1
    """)
    q1_loads()
    a(f"""
    v_cmp_ne_u32 vcc, {XCC}, v20
    v_mov_b32 v21, {L_FLAG}
    s_cmp_lg_u64 vcc, 0
    s_cselect_b32 {T0}, 0, {0 if OPT['force_global'] else 1}
    v_mov_b32 v20, {T0}
    ds_write_b32 v21, v20
    s_mov_b64 vcc, 0
L_H2:
    """)
    prostamp(5)


def h_p4():
    only_wave(3, "L_H4", CUT & 8)
    a.c("wave 3: every workgroup of every group must have arrived before this workgroup publishes or polls anything else")
    a(f"""
    s_mov_b32 {SPIN}, {SPIN_MAX}
    s_waitcnt vmcnt(4)
L_ALL:
    v_max3_u32 v17, v20, v21, v22
    v_max_u32 v17, v17, v23
    v_cmp_eq_u32 vcc, -1, v17
    s_cbranch_vccz L_H4
    s_sleep 4
    {MK_LOADS}
    s_waitcnt vmcnt(0)
    s_sub_u32 {SPIN}, {SPIN}, 1
    s_cbranch_scc0 L_ALL
L_H4:
    """)


def h_p3():
    only_wave(3, "L_H3", CUT & 8)
    a(f"s_mov_b32 {SPIN}, {SPIN_MAX}\ns_waitcnt vmcnt(4)")
    a.label("L_Q1")
    for s_ in check_ops(range(pX_, pX_ + 16), pT):
        a(s_)
    a("s_cbranch_vccz L_Q1_OK")
    q1_loads()
    a(f"""
    s_waitcnt vmcnt(0)
    s_sub_u32 {SPIN}, {SPIN}, 1
    s_cbranch_scc0 L_Q1
L_Q1_OK:
    v_pk_add_f32 {v(pX_, 2)}, {v(pX_, 2)}, {v(pX_ + 2, 2)}
    v_pk_add_f32 {v(pX_ + 4, 2)}, {v(pX_ + 4, 2)}, {v(pX_ + 6, 2)}
    v_pk_add_f32 {v(pCS, 2)}, {v(pX_, 2)}, {v(pX_ + 4, 2)}
    """)
    poller_finish()
    a.c("all eight groups have reset their markers -> read all markers")
    a(f"""
    v_lshlrev_b32 v19, 4, v0
    v_add_u32 v19, {MK}, v19
    s_mov_b32 {SPIN}, {SPIN_MAX}
L_FL2:
    v_cmp_eq_u32 vcc, 0, v18
    s_cbranch_vccz L_FL2_OK
    global_load_dword v18, v17, {sp(pDBG)} sc1
    s_waitcnt vmcnt(0)
    s_sub_u32 {SPIN}, {SPIN}, 1
    s_cbranch_scc0 L_FL2
L_FL2_OK:
    s_waitcnt lgkmcnt(0)
    {MK_LOADS}
    """)
    a.label("L_H3")
    prostamp(6)


K0, BQ, HC, BP = OPT["k0"], OPT["bq"], OPT["hc"], OPT["bp"]
hooks = {}
assert OPT["wq3"] == K0
for pos, fn in [(K0, h_first), (K0, lambda: h_wq(0)), (K0, lambda: h_wq(1)), (K0, lambda: h_wq(2)),
                (K0, lambda: h_arrive(K0 + 3)), (K0 + 1, h_setup1), (K0 + 2, h_setup3),
                (BQ + 2, lambda: h_bq(BQ + 2 - K0)), (BQ + 3, att_addr), (HC - 4, h_p0),
                (HC, h_p1), (HC + 4, h_p2), (HC + 8, h_p3), (HC + 12, h_p4)]:
    hooks.setdefault(pos, []).append(fn)
assert K0 + 2 <= BQ + 2 <= 16 and BQ + 2 <= HC + 4 and HC + 8 <= 24 <= BP <= 28 and HC + 12 < BP
for i in range(BP):
    for fn in hooks.get(i, []):
        fn()
    SKIP[0] = i < BQ + 2 + OPT["free"]
    stream(i, thr=not (i < K0 or BQ <= i < BQ + 2 or i >= BP - 2))
SKIP[0] = False
a("s_waitcnt vmcnt(%d)" % (BP - 16))
prostamp(1)


def perms(t, pp):
    for j in range(8):
        s0 = SREG + t * 32 + (2 * pp) * 4 + (j >> 1)
        a(f"v_perm_b32 {v(VREG + j * 8 + t * 4 + pp)}, {v(s0 + 4)}, {v(s0)}, {PHI if j & 1 else PLO}")


NTAIL = 1 + OPT["late"]


def v_tail():
    done = 0
    for i in range(BP, 32):
        stream(i, thr=i < 31)
        if done < 4:
            a(f"s_waitcnt vmcnt({i - (17 + 2 * done)})")
            perms(0, done)
            done += 1
    assert done == 4
    if OPT["late"]:
        lin(vPF, 4, [("s2", 8 * 384), (W, 384)], EARLY)
        for i in range(4):
            a(f"v_mov_b32 {v(64 + i)}, -1")
        a(f"s_mov_b64 exec, 0xffffff\nglobal_store_dwordx4 {v(vPF)}, v[64:67], {sp(pWS)} sc1\ns_mov_b64 exec, -1")
    a(f"s_and_b32 {T1}, {J}, 7")
    s_expr(T0, [(H, 128 * 1280), (T1, 8 * 2560), (W, 2560)])
    a(f"""
    v_min_u32 {v(vPF)}, 19, v0
    v_lshl_add_u32 {v(vPF)}, {v(vPF)}, 7, {T0}
    global_load_dword {v(vDUM)}, {v(vPF)}, {sp(pWO)}
    """)
    prostamp(7)
    for pp in range(4):
        a(f"s_waitcnt vmcnt({6 - 2 * pp + NTAIL})")
        perms(1, pp)


a.label("L_BAR")
a(f"v_mov_b32 {v(aT)}, {L_FLAG}\ns_barrier")
stamp(0)
for o in range(4):
    a(f"ds_read_b128 {v(aQV + 4 * o, 4)}, {v(aQA)} offset:{o * 256}")
a(f"ds_read_b32 {v(aT)}, {v(aT)}")
for o in range(4):
    a(f"s_waitcnt lgkmcnt({4 - o})")
    for t in range(2):
        a(f"{SMF} {v(aQK + 4 * t, 4)}, {v(aQV + 4 * o, 4)}, {v(KREG + (t * 4 + o) * 8, 8)}, {v(IDX)}")
    if o:
        zero(range(aQV + 4 * o - 4, aQV + 4 * o))
a(f"s_waitcnt lgkmcnt(0)\nv_readfirstlane_b32 {LOCAL}, {v(aT)}")
a(f"""
    v_pk_add_f32 {v(aQK, 2)}, {v(aQK, 2)}, {v(aQK + 2, 2)}
    v_pk_add_f32 {v(aQK + 4, 2)}, {v(aQK + 4, 2)}, {v(aQK + 6, 2)}
    v_cndmask_b32 {v(aT)}, {v(aQK + 4)}, {v(aQK + 1)}, {sp(ODD)}
    v_cndmask_b32 {v(aS)}, {v(aQK)}, {v(aQK + 5)}, {sp(ODD)}
    v_mov_b32 v28, 0
    v_add_f32_dpp {v(aS)}, {v(aT)}, {v(aS)} quad_perm:[1,0,3,2] {DPP}
    v_mov_b32 v29, 0
    v_mov_b32 v30, 0
    v_max_f32_dpp {v(aM)}, {v(aS)}, {v(aS)} quad_perm:[1,0,3,2] {DPP}
    v_mov_b32 v31, 0
    v_max_f32_dpp {v(aM)}, {v(aM)}, {v(aM)} quad_perm:[2,3,0,1] {DPP}
    v_max_f32_dpp {v(aM)}, {v(aM)}, {v(aM)} row_ror:4 {DPP}
    v_max_f32_dpp {v(aM)}, {v(aM)}, {v(aM)} row_ror:8 {DPP}
    v_mov_b32 {v(aT)}, {v(aM)}
    v_permlane32_swap_b32 {v(aM)}, {v(aT)}
    v_max_f32 {v(aM)}, {v(aM)}, {v(aT)}
    v_mov_b32 {v(aT)}, {v(aM)}
    v_permlane16_swap_b32 {v(aM)}, {v(aT)}
    v_max_f32 {v(aM)}, {v(aM)}, {v(aT)}
    v_mul_f32 {v(aM)}, {CSC}, {v(aM)}
    v_fma_f32 {v(aS)}, {v(aS)}, {CSC}, -{v(aM)}
    v_exp_f32 {v(aL)}, {v(aS)}
    v_cvt_pk_bf16_f32 {v(aS)}, {v(aL)}, {v(aL)}
    ds_write_b16 {v(aPW)}, {v(aS)}
    ds_read_b128 {v(aP, 4)}, {v(aPR)}
""")
lane_sum([aL], ["x1", "x2", "r4", "r8", "s16", "s32"], [aT])
a(f"s_cmp_eq_u32 {LAYER}, 0\ns_cbranch_scc1 L_VT")
a.label("L_PV")
a("s_waitcnt lgkmcnt(0)")
for j in range(8):
    a(f"{SMF} {v(aACC + 4 * j, 4)}, {v(aP, 4)}, {v(VREG + j * 8, 8)}, {v(IDX)}")
    if j == 0:
        a(f"s_mov_b64 exec, 0xffff\nds_write_b64 {v(aMLW)}, {v(aM, 2)}")
for jp in range(4):
    for j in (2 * jp, 2 * jp + 1):
        a(f"v_add_f32 {v(aACC + 4 * j)}, {v(aACC + 4 * j)}, {v(aACC + 4 * j + 2)}")
    a(f"ds_write2_b32 {v(aOWW)}, {v(aACC + 8 * jp)}, {v(aACC + 8 * jp + 4)} offset0:{2 * jp} offset1:{2 * jp + 1}")
cO, cM = 16, 18
a(f"""
    s_mov_b64 exec, -1
    v_cmp_eq_u32 vcc, 1, v0
    s_waitcnt lgkmcnt(0)
    s_barrier
    ds_read_b64 {v(cM, 2)}, {v(aMLR)}
    ds_read_b64 {v(cO, 2)}, {v(aOWR)}
    s_waitcnt lgkmcnt(1)
    v_max_f32_dpp v20, {v(cM)}, {v(cM)} quad_perm:[1,0,3,2] {DPP}
    v_max_f32_dpp v20, v20, v20 quad_perm:[2,3,0,1] {DPP}
    v_max_f32_dpp v20, v20, v20 row_half_mirror {DPP}
    v_sub_f32 v21, {v(cM)}, v20
    v_exp_f32 v21, v21
    s_waitcnt vmcnt(1) lgkmcnt(0)
    v_mul_f32 {v(cM + 1)}, v21, {v(cM + 1)}
    v_mul_f32 {v(cO)}, v21, {v(cO)}
    v_mul_f32 {v(cO + 1)}, v21, {v(cO + 1)}
""")
lane_sum([cM + 1, cO, cO + 1], ["x1", "x2", "hm"], [])
local_test()
a(f"""
    v_rcp_f32 v21, {v(cM + 1)}
    v_log_f32 v22, {v(cM + 1)}
    v_mul_f32 {v(cO)}, v21, {v(cO)}
    v_mul_f32 {v(cO + 1)}, v21, {v(cO + 1)}
    v_add_f32 v22, v22, v20
    v_cvt_pk_bf16_f32 {v(cO)}, {v(cO)}, {v(cO + 1)}
    v_cndmask_b32 {v(cO)}, {v(cO)}, v22, vcc
    v_min_u32 {v(cO)}, -2, {v(cO)}
    s_mov_b64 exec, {sp(OBM)}
""")
store_local(f"global_store_dword {v(aOBA)}, {v(cO)}, {sp(EX)}")
a("s_mov_b64 exec, -1")
stamp(3)
if CUT & 1:
    a("s_branch L_FIN")
a(f"s_cmp_eq_u32 {LAYER}, 0\ns_cbranch_scc1 L_STAGE")
a.label("L_ROLE")
a(f"s_cmp_lg_u32 {PATH}, 0\ns_cbranch_scc1 L_ROLE2")

oB, oA, oACC, oL, oT, oT2 = 64, 16, 48, 4, 6, 7


def op_load_b():
    lane_expr(oT2, oT, [(4, 1, 32)])
    a(f"s_lshl_b32 {T0}, {W}, 5\nv_xor_b32 v9, {T0}, {v(oT2)}")
    b_addr(oT, oT2, 64, [(0, 2, 8)], L_WO, R32)
    a(f"v_add_u32 {v(oT)}, {v(oT)}, v9")
    b_reads(oB, oT, 8, 64, R32)


ld = [(f"global_load_dwordx4 {v(oA + 4 * n, 4)}, {v(oBA)}, {sp(EX)} offset:{n * 1024 - 4096} sc1", oA + 4 * n, 4)
      for n in range(8)]
ld.append((f"global_load_dwordx2 {v(oL, 2)}, {v(oLA)}, {sp(EX)} sc1", oL, 2))
zero(range(oACC, oACC + 16))
poll(ld, oT2, OPT["p_op"])
a("s_waitcnt lgkmcnt(0)")
wops = [f"v_sub_f32 {v(oT)}, {v(oL + 1)}, {v(oL)}", f"v_exp_f32 {v(oT)}, {v(oT)}", f"v_add_f32 {v(oT)}, 1.0, {v(oT)}",
        f"v_rcp_f32 v8, {v(oT)}", "v_sub_f32 v9, 1.0, v8"]


def op_fold(hh):
    r = oACC + 4 * hh
    qp_ = f"quad_perm:[{hh},{hh},{hh},{hh}] {DPP}"
    op = "v_mul_f32_dpp" if hh == 0 else "v_fmac_f32_dpp"
    a(f"{op} {v(oT)}, v8, {v(r)} {qp_}\n{op} {v(oT2)}, v9, {v(r + 1)} {qp_}")


for n in range(8):
    a(f"{SMF} {v(oACC + 4 * (n >> 1), 4)}, {v(oA + 4 * n, 4)}, {v(oB + 8 * n, 8)}, {v(IDX)}")
    if wops:
        a(wops.pop(0))
stamp(4)
for hh in range(4):
    r = oACC + 4 * hh
    a(f"v_pk_add_f32 {v(r, 2)}, {v(r, 2)}, {v(r + 2, 2)}")
    if hh:
        op_fold(hh - 1)
op_fold(3)
a(f"""
    v_add_f32 {v(oT)}, {v(oT)}, {v(oT2)}
    v_min_u32 {v(oT)}, -2, {v(oT)}
    global_store_dword {v(oSA)}, {v(oT)}, {sp(EX)} sc1
""")
stamp(5)

rL, rA, rS, rT, rSC = 16, 3, 4, 5, 8


def red_addr(src, dst):
    lin(rA, 4, [(TILE, 2048)], src)
    if dst == XA:
        a(f"s_lshr_b32 {T1}, {TILE}, 3\ns_and_b32 {T2}, {TILE}, 7\ns_lshl_b32 {T1}, {T1}, 10")
    else:
        a(f"""
        s_mul_i32 {T1}, {TILE}, 26
        s_lshr_b32 {T1}, {T1}, 8
        s_mul_i32 {T2}, {T1}, 10
        s_sub_u32 {T2}, {TILE}, {T2}
        s_mul_i32 {T1}, {T1}, 1280
        """)
    s_expr(T0, [(G, 5120), (T1, 1)], dst)
    a(f"""
    s_and_b32 {T1}, {T2}, 1
    s_lshl_b32 {T1}, {T1}, 9
    s_and_b32 {T3}, {T2}, 2
    s_lshl_b32 {T3}, {T3}, 4
    s_add_u32 {T1}, {T1}, {T3}
    s_and_b32 {T3}, {T2}, 4
    s_lshl_b32 {T3}, {T3}, 2
    s_add_u32 {T1}, {T1}, {T3}
    s_lshl_b32 {T3}, {T2}, 7
    s_cmp_ge_u32 {T2}, 8
    s_cselect_b32 {T1}, {T3}, {T1}
    s_cselect_b32 {T2}, 4, 6
    s_add_u32 {T0}, {T0}, {T1}
    """)
    lane_expr(rS, rT, [(1, 1, 4), (2, 2, 1)])
    a(f"""
    v_lshlrev_b32 {v(rS)}, {T2}, {v(rS)}
    v_and_b32 {v(rT)}, 1, v0
    v_lshl_add_u32 {v(rS)}, {v(rT)}, 3, {v(rS)}
    v_lshrrev_b32 {v(rT)}, 5, v0
    v_lshl_add_u32 {v(rS)}, {v(rT)}, 2, {v(rS)}
    v_add_u32 {v(rS)}, {T0}, {v(rS)}
    """)


def red_stats():
    ln_stats(range(96, 116), 9, rSC, ["x1", "x2", "s16", "s32"], 10, 7)
    a(f"v_rcp_f32 {v(rSC)}, {v(rSC)}")


def red_poll(st, scale):
    poll([(f"global_load_dwordx4 {v(rL + 4 * i, 4)}, {v(rA)}, {sp(EX)} offset:{i * 1024} sc1", rL + 4 * i, 4)
          for i in range(2)], rT, 0, pre=red_stats if scale else None)
    stamp(st)
    a(f"""
    v_pk_add_f32 {v(rL, 2)}, {v(rL, 2)}, {v(rL + 4, 2)}
    v_pk_add_f32 {v(rL + 2, 2)}, {v(rL + 2, 2)}, {v(rL + 6, 2)}
    v_permlane32_swap_b32 {v(rL)}, {v(rL + 2)}
    v_permlane32_swap_b32 {v(rL + 1)}, {v(rL + 3)}
    v_pk_add_f32 {v(rL, 2)}, {v(rL, 2)}, {v(rL + 2, 2)}
    v_mov_b32 {v(rL + 2)}, {v(rL)}
    v_mov_b32 {v(rL + 3)}, {v(rL + 1)}
    v_permlane16_swap_b32 {v(rL)}, {v(rL + 2)}
    v_permlane16_swap_b32 {v(rL + 1)}, {v(rL + 3)}
    v_pk_add_f32 {v(rL, 2)}, {v(rL, 2)}, {v(rL + 2, 2)}
    """)
    if scale:
        a(f"v_pk_mul_f32 {v(rL, 2)}, {v(rL, 2)}, {v(rSC, 2)} op_sel_hi:[1,0]")
    a(f"""
    v_cvt_pk_bf16_f32 {v(rL)}, {v(rL)}, {v(rL + 1)}
    v_and_b32 {v(rL + 1)}, 0xffff0000, {v(rL)}
    v_lshlrev_b32 {v(rL)}, 16, {v(rL)}
    v_pk_add_f32 {v(rL, 2)}, {v(rL, 2)}, {v(rX0, 2)}
    v_cvt_pk_bf16_f32 {v(rL)}, {v(rL)}, {v(rL + 1)}
    s_mov_b32 exec_lo, 0xffff
    s_mov_b32 exec_hi, 0xffff
    """)


def red_publish():
    local_test()
    a(f"v_min_u32 {v(rL + 1)}, -2, {v(rL)}")
    store_local(f"global_store_dword {v(rS)}, {v(rL + 1)}, {sp(EX)}")
    a(f"""
    s_mov_b64 exec, -1
    v_and_b32 {v(rX1)}, 0xffff0000, {v(rL)}
    v_lshlrev_b32 {v(rX0)}, 16, {v(rL)}
    """)


red_addr(PB1, XA)
a(f"s_cmp_lg_u32 {LAYER}, 0\ns_cbranch_scc1 L_NOWD")
a.c("layer 1: pull this tile's share of W_down into L2")
s_expr(T0, [(TILE, 8)])
a(f"""
    s_mul_i32 {T0}, {T0}, {NU}
    s_lshl_b32 {T1}, {NU}, 3
    s_sub_u32 {T1}, {T1}, 1
    v_min_u32 v9, {T1}, v0
    v_add_u32 v9, {T0}, v9
    v_lshlrev_b32 v9, 7, v9
    global_load_dword v7, v9, {sp(WOB)}
    s_waitcnt vmcnt(1)
    s_branch L_NOWD2
L_NOWD:
    s_waitcnt vmcnt(0)
L_NOWD2:
""")
red_poll(6, False)
red_publish()
stamp(7)
dB, dA, dACC, dHA0, dHA1, dSA, dT, dT2, dX = 64, 16, 24, 3, 4, 5, 6, 7, 96
a(f"s_cmp_lg_u32 {LAYER}, 0\ns_cbranch_scc1 L_WD6")
s_expr(T0, [(TILE, 32)])
lane_expr(dT, dT2, [(1, 5, 1280), (0, 1, 16)], T0)
s_expr(T2, [(W, 8 * D32)], L_WD)
for i in range(7):
    if i == 6:
        a(f"s_cmp_eq_u32 {NU}, 6\ns_cbranch_scc1 L_WD6")
    a(f"s_add_u32 m0, {T2}, {i * D32}")
    a(f"global_load_lds_dwordx4 {v(dT)}, {sp(WOB)}")
    if i < 6:
        add64(WOB, WOB, 32 * 1280)
a.label("L_WD6")
lin(dHA0, 4, [(G, 2048)], HB)
a(f"""
    s_cmp_eq_u32 {NU}, 6
    s_cselect_b32 {T1}, 2, 0
    v_or_b32 {v(dT)}, {T1}, v0
    v_lshrrev_b32 {v(dT2)}, 1, {v(dT)}
    v_and_b32 {v(dT)}, {v(dT)}, {v(dT2)}
    v_and_b32 {v(dT)}, 1, {v(dT)}
    v_lshlrev_b32 {v(dT)}, 4, {v(dT)}
    v_sub_u32 {v(dHA1)}, {v(dHA0)}, {v(dT)}
    v_add_u32 {v(dSA)}, {PB2 - PB1}, {v(oSA)}
""")
lin(10, 4, [(G, 5120)], XA + 2048)
s_expr(T0, [(W, 8 * D32)], L_WD)
b_addr(dT, dT2, 32, [(0, 2, 8)], T0, D32)
a("s_waitcnt vmcnt(0)")
b_reads(dB, dT, 4, 32, D32)
zero(range(dACC, dACC + 8))
a("s_waitcnt lgkmcnt(0)")
poll([(f"global_load_dwordx4 {v(dA, 4)}, {v(dHA0)}, {sp(EX)} sc1", dA, 4),
      (f"global_load_dwordx4 {v(dA + 4, 4)}, {v(dHA1)}, {sp(EX)} offset:1024 sc1", dA + 4, 4)], dT2, OPT["p_dn"])
for n in range(4):
    u, q = n >> 1, n & 1
    a(f"{SMF} {v(dACC + 4 * q, 4)}, {v(dA + 4 * u, 4)}, {v(dB + 8 * n, 8)}, {v(IDX)}")


def dn_tail():
    a(f"""
    v_add_f32 {v(dACC)}, {v(dACC)}, {v(dACC + 2)}
    v_add_f32 {v(dACC + 5)}, {v(dACC + 5)}, {v(dACC + 7)}
    v_add_f32 {v(dACC)}, {v(dACC)}, {v(dACC + 5)}
    v_min_u32 {v(dACC)}, -2, {v(dACC)}
    global_store_dword {v(dSA)}, {v(dACC)}, {sp(EX)} sc1
    """)
    stamp(1)
    a(f"""
    s_cmp_eq_u32 {LAYER}, 0
    s_cbranch_scc1 L_RED2
    s_and_b32 {T0}, {TILE}, 7
    s_cmp_lg_u32 {T0}, {G}
    s_cbranch_scc1 L_FIN
L_RED2:
    """)
    red_addr(PB2, XF)
    s_expr(T0, [(TILE, 32)])
    lane_expr(6, 7, [(2, 2, 1280), (0, 2, 8), (5, 1, 4)], T0)


poll([(f"global_load_dwordx4 {v(dX + 4 * u, 4)}, v10, {sp(EX)} offset:{u * 1024 - 2048} sc1", dX + 4 * u, 4)
      for u in range(5)], 7, 0, pre=dn_tail)
red_poll(2, True)
a(f"""
    s_cmp_eq_u32 {LAYER}, 0
    s_cbranch_scc1 L_RED2P
    global_store_dword v6, {v(rL)}, {sp(pOUT)}
    s_mov_b64 exec, -1
    s_branch L_FIN
L_RED2P:
""")
red_publish()
op_load_b()
a("s_branch L_NEXT")

a.label("L_VT")
v_tail()
a("s_nop 1\ns_branch L_PV")

a.label("L_STAGE")
a.c("stage this workgroup's role weights (L2 hits after the prefetch), then make them visible to every wave")
prostamp(0, 2)
a(f"s_cmp_lg_u32 {ROLE}, 0\ns_cbranch_scc1 L_RG_U")
for i in range(4):
    a(f"""
    s_add_u32 {T0}, {G}, {i}
    s_and_b32 {T0}, {T0}, 7
    s_add_u32 {T0}, {T0}, {8 * i}
    s_mul_i32 {T0}, {T0}, {128 * 1280}
    s_add_u32 m0, {T2L}, {i * 4 * R32}
    """)
    add64(TB, WOB, T0)
    a(f"global_load_lds_dwordx4 {v(vDMA)}, {sp(TB)}")
s_expr(T0, [(FB0, 32 * 1280)])
add64(WOB, pWD, T0)
a("s_waitcnt vmcnt(0)\ns_barrier")
prostamp(5, 2)
a(f"s_cmp_lg_u32 {PATH}, 0\ns_cbranch_scc1 L_ROLE2")
op_load_b()
a("s_branch L_ROLE")
a.label("L_RG_U")
a.c("other workgroups: one dword per 128-byte line of the W_gate / W_up columns of this group")
s_expr(T1, [(J, 8), (W, 1)], -160)
a(f"""
    s_cmp_ge_u32 {T1}, 80
    s_cbranch_scc1 L_RG_G
    s_cmp_ge_u32 {T1}, 40
    s_cselect_b32 s{TB}, s{pWU}, s{pWG}
    s_cselect_b32 s{TB + 1}, s{pWU + 1}, s{pWG + 1}
    s_cselect_b32 {T0}, 40, 0
    s_sub_u32 {T1}, {T1}, {T0}
    s_lshr_b32 {T2}, {FB0}, 1
    s_min_u32 {T2}, {T2}, 23
""")
s_expr(T0, [(T1, 16 * 3456), (T2, 128)])
lane_expr(vPF, vK, [(2, 4, 3456), (0, 2, 128)], T0)
a(f"global_load_dword {v(vDUM)}, {v(vPF)}, {sp(TB)}")
a.label("L_RG_G")
prostamp(1, 2)
a(f"s_waitcnt vmcnt(0)\ns_cmp_lg_u32 {ROLE}, 1\ns_cbranch_scc1 L_ROLE2")
prostamp(2, 2)
for i in range(10):
    a(f"s_add_u32 m0, {T2L}, {i * 2 * R32}")
    a(f"global_load_lds_dwordx4 {v(vDMA)}, {sp(WOB)}")
    if i < 9:
        add64(WOB, WOB, 64 * 3456)
a("s_waitcnt vmcnt(0)\ns_barrier")
prostamp(5, 2)

a.label("L_ROLE2")
a(f"""
    s_cmp_eq_u32 {PATH}, 2
    s_cbranch_scc1 L_HI
    s_cmp_eq_u32 {PATH}, 3
    s_cbranch_scc1 L_IDLE
""")
uB, uX, uACC, uS1, uONE, uXA, uSA, uCS, uT = 48, 28, 20, 16, 8, 3, 4, 5, 6
lane_expr(uSA, uXA, [(4, 1, 32), (1, 1, 16)])
a(f"s_lshl_b32 {T0}, {W}, 4\nv_xor_b32 {v(uSA)}, {T0}, {v(uSA)}")
b_addr(uT, uXA, 64, [(0, 1, 8), (1, 1, L_WU - L_WG)], L_WG, R32)
a(f"v_add_u32 {v(uT)}, {v(uT)}, {v(uSA)}")
b_reads(uB, uT, 10, 64, R32)
for i in range(4):
    a(f"v_mov_b32 {v(uONE + i)}, {ONES}")
zero(range(uS1, uS1 + 4))
lin(uXA, 4, [(G, 5120)], XA + 2048)
a(f"""
    s_sub_u32 {T1}, {J}, 20
    s_lshr_b32 {T0}, {T1}, 2
    s_lshl_b32 {T0}, {T0}, 10
    s_and_b32 {T2}, {T1}, 2
    s_and_b32 {T1}, {T1}, 1
""")
s_expr(T0, [(T0, 1), (G, 2048), (T2, 8), (T1, 32), (W, 256)], HB)
lane_expr(uSA, uT, [(4, 2, 64), (1, 2, 4)], T0)
zero(range(uACC, uACC + 8))
a("s_waitcnt lgkmcnt(0)")
for n in range(10):
    a(f"{SMF} {v(uS1, 4)}, {v(uONE, 4)}, {v(uB + 8 * n, 8)}, {v(IDX)}")
a(f"""
    v_add_f32 {v(uCS)}, {v(uS1)}, {v(uS1 + 2)}
    v_mul_f32 {v(uCS)}, {f32(1.0 / 640)}, {v(uCS)}
""")
stamp(7)
poll([(f"global_load_dwordx4 {v(uX + 4 * u, 4)}, {v(uXA)}, {sp(EX)} offset:{u * 1024 - 2048} sc1", uX + 4 * u, 4)
      for u in range(5)], uT, OPT["p_up"])
stamp(4)
for u in range(5):
    a(f"{MFMA} {v(uS1, 4)}, {v(uX + 4 * u, 4)}, {v(uONE, 4)}, {'0' if u == 0 else v(uS1, 4)}")
for n in range(10):
    u, q = n >> 1, n & 1
    a(f"{SMF} {v(uACC + 4 * q, 4)}, {v(uX + 4 * u, 4)}, {v(uB + 8 * n, 8)}, {v(IDX)}")
    if n == 7:
        a(f"v_pk_add_f32 {v(uS1, 2)}, {v(uS1, 2)}, {v(uS1 + 2, 2)}")
    if n == 8:
        a(f"v_add_f32 {v(uS1)}, {v(uS1)}, {v(uS1 + 1)}")
a(f"s_mov_b32 s{MSK}, 0x00550055\ns_mov_b32 s{MSK + 1}, 0x00550055")
local_test()
a(f"""
    v_add_f32 {v(uACC)}, {v(uACC)}, {v(uACC + 2)}
    v_add_f32 {v(uACC + 5)}, {v(uACC + 5)}, {v(uACC + 7)}
    v_fma_f32 {v(uACC)}, -{v(uS1)}, {v(uCS)}, {v(uACC)}
    v_add_f32 {v(uACC)}, {v(uACC)}, {v(uACC + 5)}
    v_cvt_pk_bf16_f32 {v(uACC)}, {v(uACC)}, {v(uACC)}
    v_and_b32 {v(uACC)}, 0xffff0000, {v(uACC)}
    v_max_f32 {v(uACC + 1)}, 0, {v(uACC)}
    v_mul_f32_dpp {v(uACC + 1)}, {v(uACC)}, {v(uACC + 1)} row_ror:8 {DPP}
    v_mov_b32_dpp {v(uACC)}, {v(uACC + 1)} quad_perm:[1,1,3,3] {DPP}
    v_cvt_pk_bf16_f32 {v(uACC)}, {v(uACC + 1)}, {v(uACC)}
    v_min_u32 {v(uACC)}, -2, {v(uACC)}
    s_mov_b64 exec, {sp(MSK)}
""")
store_local(f"global_store_dword {v(uSA)}, {v(uACC)}, {sp(EX)}")
a("s_mov_b64 exec, -1")
stamp(5)
a.label("L_IDLE")
a(f"s_cmp_lg_u32 {LAYER}, 0\ns_cbranch_scc1 L_FIN")
a.label("L_NEXT")
att_addr()
a(f"s_cmp_eq_u32 {W}, 3\ns_cbranch_scc1 L_HI")
att_zero()
a("s_waitcnt lgkmcnt(0)")
a(f"s_mov_b32 {LAYER}, 1")
add64(EX, EX, LSTRIDE)
a("s_branch L_BAR")

a.label("L_HI")
a(f"s_cmp_lg_u32 {LAYER}, 0\ns_cbranch_scc1 L_FIN")
att_zero()
a.c("x after attention exists only once every workgroup has finished its late sentinel fill")
s_expr(T0, [(G, 5120)], XA)
a(f"v_mov_b32 v17, {T0}")
light(f"global_load_dword v18, v17, {sp(EX)} sc1", 18, 8)
add64(EX, EX, LSTRIDE)
a(f"s_cmp_eq_u32 {W}, 3\ns_cbranch_scc1 L_POLLER")
qp_setup()
a(f"s_and_b32 {T1}, {J}, 3")
lin(qXA0, 4, [(T1, 1280), (G, 5120)], XF)
lane_expr(qXA1, qT, [(2, 4, 16)], T0)
qp_saddr(QB2)
zero(range(qACC, qACC + 12))
a("s_waitcnt lgkmcnt(0)")
poll([(f"global_load_dwordx4 {v(qX, 4)}, {v(qXA0)}, {sp(pWS)} sc1", qX, 4),
      (f"global_load_dwordx4 {v(qX + 4, 4)}, {v(qXA1)}, {sp(pWS)} offset:1024 sc1", qX + 4, 4)], qT, OPT["p_qp"])
qp_mm()
stamp(4)
local_test()
qp_sum()
store_local(f"global_store_dword {v(qSA)}, {v(qACC)}, {sp(pWS)}")
stamp(5)
a(f"s_mov_b32 {LAYER}, 1\ns_branch L_BAR")

a.label("L_POLLER")
poller_qaddr(QB2)
s_expr(T0, [(G, 5120), (BB, 64)], XF)
lane_expr(124, pT, [(4, 2, 1280), (2, 2, 256), (0, 2, 16)], T0)
s_expr(T0, [(G, 5120), (BB, 16)], XF + 1024)
lane_expr(125, pT, [(4, 2, 1280), (2, 2, 64), (0, 2, 4)], T0)
poll([(f"global_load_dwordx4 {v(pX_, 4)}, v124, {sp(pWS)} sc1", pX_, 4),
      (f"global_load_dword {v(pX_ + 4)}, v125, {sp(pWS)} sc1", pX_ + 4, 1)], pT, OPT["p_px"])
stamp(4)
poller_stats()
stamp(5)
poll(poller_qloads(), pT, 0)
stamp(6)
poller_finish()
a(f"s_mov_b32 {LAYER}, 1\ns_waitcnt lgkmcnt(0)\ns_branch L_BAR")

a.label("L_FIN")
if OPT["padto"]:
    a(f"""
L_PAD:
    s_sleep 4
    s_memrealtime s[98:99]
    s_waitcnt lgkmcnt(0)
    s_sub_u32 s98, s98, s96
    s_cmp_lt_u32 s98, {OPT["padto"] * 100}
    s_cbranch_scc1 L_PAD
    """)
if DIAG:
    a("s_memrealtime s[98:99]\ns_memtime s[50:51]\ns_waitcnt lgkmcnt(0)\nv_mov_b32 v1, 0\ns_sub_u32 s50, s50, s100\nv_writelane_b32 v1, s50, 21")
    for i in range(16):
        a(f"v_writelane_b32 v1, s{STAMP0 + 2 * i}, {(i // 8) * 10 + i % 8}")
    a(f"""
    v_writelane_b32 v1, s96, 9
    v_writelane_b32 v1, s98, 19
    v_writelane_b32 v1, {LOCAL}, 20
    s_lshl_b32 {T0}, s2, 3
    s_add_u32 {T0}, {T0}, {W}
    s_lshl_b32 {T0}, {T0}, 8
    s_add_u32 {T0}, {T0}, {DIAG_OFF}
    v_lshl_add_u32 v2, v0, 2, {T0}
    global_store_dword v2, v1, {sp(pWS)}
    """)
a.label("L_END")
a("s_endpgm")

a.raw(f""".section .rodata,"a"
.p2align 6
.amdhsa_kernel {NAME}_kernel
  .amdhsa_next_free_vgpr 256
  .amdhsa_next_free_sgpr 102
  .amdhsa_accum_offset 256
  .amdhsa_group_segment_fixed_size 0
  .amdhsa_kernarg_size 96
  .amdhsa_user_sgpr_count 2
  .amdhsa_user_sgpr_kernarg_segment_ptr 1
  .amdhsa_system_sgpr_workgroup_id_x 1
  .amdhsa_float_denorm_mode_32 3
.end_amdhsa_kernel""")

open(sys.argv[1], "w").write(a.text())
print("written", sys.argv[1], "lines", len(a.out), "pad states", a.nops)
```

```python
import math
import struct
import sys

sys.path.insert(0, "gen")
from asmlib import Asm

NAME = "interleave_layers__sliding_block_cached__glu_gated_reglu__decode"

OPT = dict(diag=0, stamps=0xff, pro=0, padto=0, cut=0, force_global=0, cyc=0, cy2=0,
           thr=5, k0=4, wq1=4, wq2=4, wq3=4, bq=6, hf=6, hc=16, hd=4, bp=26, xc=0, wide=0, late=0, lay=1, free=6, warm=1, near=1, gap=3, nm=0,
           slp=1, p_op=2, p_up=0, p_dn=0, p_qp=0, p_px=0)
for a_ in sys.argv[2:]:
    k_, v_ = a_.split("=")
    assert k_ in OPT, k_
    OPT[k_] = int(v_, 0)
DIAG, THR, CUT = OPT["diag"], OPT["thr"], OPT["cut"]

OB, LSE, XA, HB, PB1 = 0, 65536, 66560, 107520, 131072
PB2 = PB1 + 163840
LSTRIDE = PB2 + 163840
XF = 2 * LSTRIDE
QB2 = XF + 40960
CLR = 4864
assert QB2 + 262144 <= 256 * CLR and LSTRIDE % 16384 == 0
Q1 = 256 * CLR
CS1 = Q1 + 262144
MK = CS1 + 131072
MSTR = 16
DIAG_OFF = 16 << 20

L_WQ = 0
R32 = 2176
D32 = 1088
L_WO, L_WD = 20480, 55296
L_WG, L_WU = 20480, 64000
assert (L_WU - L_WG) % 256 == 0 and L_WU - L_WG >= 20 * R32 and L_WD >= L_WO + 16 * R32
L_OW = L_WU + 20 * R32
OWS, OWJ = 1184, 68
L_ML = L_OW + 8 * OWS
L_Q = L_ML + 256
L_P = L_Q + 256
L_FLAG = L_P + 1024
LDS_BYTES = L_FLAG + 256

W, G, J, LAYER, LOCAL = "s3", "s4", "s5", "s6", "s7"
pX, pK, pV, pWQ, pWO, pWG, pWU, pWD, pOUT, pDBG, pWS = 8, 10, 12, 14, 16, 20, 22, 24, 26, 28, 30
PM = 8
WOB = 0
KB, VB, TB, MSK, EX, OBM, ODD = 32, 34, 36, 44, 46, 52, 58
T0, T1, T2, T3 = "s38", "s39", "s49", "s50"
CSC, PLO, PHI, SPIN, XCC, PATH = "s40", "s41", "s42", "s43", "s48", "s51"
ONES, H, TILE, BB = "s54", "s55", "s56", "s57"
NU, FB0, ROLE, T2L = "s92", "s93", "s94", "s95"
STAMP0 = 60

KREG, VREG, SREG = 128, 192, 64
IDX, vV = 1, 2
aQA, aPW, aPR, aOWW, aMLW, aOWR, aMLR, aOBA = 3, 4, 5, 6, 7, 8, 9, 10
oBA, oLA, oSA = 11, 12, 13
pCS = 12
rX0, rX1 = 14, 15
vDUM, vPF, vK, vDMA = 56, 57, 58, 59
vWQ = 16

DPP = "row_mask:0xf bank_mask:0xf"
MFMA = "v_mfma_f32_16x16x32_bf16"
SMF = "v_smfmac_f32_16x16x64_bf16"
SPIN_MAX = 1 << 18

a = Asm()


def sp(n):
    return "s[%d:%d]" % (n, n + 1)


def v(n, cnt=1):
    return "v%d" % n if cnt == 1 else "v[%d:%d]" % (n, n + cnt - 1)


def f32(x):
    return "0x%08x" % struct.unpack("<I", struct.pack("<f", x))[0]


def stamp(i):
    if not DIAG or not (OPT["stamps"] >> i) & 1:
        return
    l1, l2 = a.newlabel("ST"), a.newlabel("ST")
    a(f"""
    s_cmp_eq_u32 {LAYER}, 0
    s_cbranch_scc1 {l1}
    s_memrealtime {sp(STAMP0 + 16 + 2 * i)}
    s_branch {l2}
    {l1}:
    s_memrealtime {sp(STAMP0 + 2 * i)}
    {l2}:
    """)


def prostamp(slot, lvl=1):
    if DIAG and OPT["pro"] == lvl:
        a(f"s_memrealtime {sp(STAMP0 + 2 * slot)}")


def cyc(slot):
    if DIAG and (OPT["cyc"] >> slot) & 1:
        a(f"s_memtime {sp(STAMP0 + 2 * slot)}")


def cy2(slot):
    if DIAG and OPT["cy2"]:
        a(f"s_memtime {sp(STAMP0 + 2 * slot)}")


def add64(dst, src, off):
    a(f"s_add_u32 s{dst}, s{src}, {off}\ns_addc_u32 s{dst + 1}, s{src + 1}, 0")


def lane_expr(reg, tmp, fields, base=None):
    first = True
    for pos, width, mul in fields:
        dst = reg if first else tmp
        if pos + width >= 6:
            a(f"v_lshrrev_b32 {v(dst)}, {pos}, v0" if pos else f"v_mov_b32 {v(dst)}, v0")
        elif pos == 0:
            a(f"v_and_b32 {v(dst)}, {(1 << width) - 1}, v0")
        else:
            a(f"v_bfe_u32 {v(dst)}, v0, {pos}, {width}")
        p2 = mul & (mul - 1) == 0
        if first:
            if mul != 1:
                a(f"v_lshlrev_b32 {v(reg)}, {mul.bit_length() - 1}, {v(reg)}" if p2
                  else f"v_mul_u32_u24 {v(reg)}, {mul}, {v(reg)}")
        elif p2:
            a(f"v_lshl_add_u32 {v(reg)}, {v(tmp)}, {mul.bit_length() - 1}, {v(reg)}")
        else:
            a(f"v_mul_u32_u24 {v(tmp)}, {mul}, {v(tmp)}\nv_add_u32 {v(reg)}, {v(reg)}, {v(tmp)}")
        first = False
    if base is not None:
        a(f"v_add_u32 {v(reg)}, {base}, {v(reg)}")


def s_expr(dst, terms, const=0):
    first = True
    for s, mul in terms:
        d = dst if first else T3
        if mul == 1:
            if first:
                if s != d:
                    a(f"s_mov_b32 {d}, {s}")
            else:
                d = s
        elif mul & (mul - 1) == 0:
            a(f"s_lshl_b32 {d}, {s}, {mul.bit_length() - 1}")
        else:
            a(f"s_mul_i32 {d}, {s}, {mul}")
        if not first:
            a(f"s_add_u32 {dst}, {dst}, {d}")
        first = False
    if const:
        a(f"s_add_u32 {dst}, {dst}, {const}")


def lin(reg, shift, terms, const):
    s_expr(T0, terms, const)
    a(f"v_lshl_add_u32 {v(reg)}, v0, {shift}, {T0}")


def store_local(ins):
    lg, le = a.newlabel("SG"), a.newlabel("SE")
    a(f"""
    s_cbranch_scc1 {lg}
    {ins}
    s_branch {le}
    {lg}:
    {ins} sc1
    {le}:
    """)


def local_test():
    a(f"s_cmp_eq_u32 {LOCAL}, 0")


def check_ops(regs, tmp, dst="vcc"):
    ops, regs = [], list(regs)
    if len(regs) == 1:
        return [f"v_cmp_eq_u32 {dst}, -1, {v(regs[0])}"]
    if len(regs) == 2:
        ops.append(f"v_max_u32 {v(tmp)}, {v(regs[0])}, {v(regs[1])}")
    else:
        ops.append(f"v_max3_u32 {v(tmp)}, {v(regs[0])}, {v(regs[1])}, {v(regs[2])}")
        rest = regs[3:]
        while len(rest) >= 2:
            ops.append(f"v_max3_u32 {v(tmp)}, {v(tmp)}, {v(rest[0])}, {v(rest[1])}")
            rest = rest[2:]
        if rest:
            ops.append(f"v_max_u32 {v(tmp)}, {v(tmp)}, {v(rest[0])}")
    ops.append(f"v_cmp_eq_u32 {dst}, -1, {v(tmp)}")
    return ops


def light(ins, r0, slp):
    l1, ok = a.newlabel("PL"), a.newlabel("PK")
    a(f"s_mov_b32 {SPIN}, {SPIN_MAX}\ns_mov_b64 exec, 1")
    a.label(l1)
    a(f"{ins}\ns_waitcnt vmcnt(0)\nv_cmp_eq_u32 vcc, -1, {v(r0)}\ns_cbranch_vccz {ok}")
    if slp:
        a(f"s_sleep {slp}")
    a(f"s_sub_u32 {SPIN}, {SPIN}, 1\ns_cbranch_scc0 {l1}\n{ok}:\ns_mov_b64 exec, -1")


def poll(loads, tmp, mode=0, pre=None):
    if mode == 1:
        light(loads[-1][0], loads[-1][1], OPT["slp"])
    if mode == 2:
        a("s_waitcnt vmcnt(0)")
    l2, chk, done = a.newlabel("PM"), a.newlabel("PC"), a.newlabel("PD")
    for ins, r0, n in loads:
        a(ins)
    a(f"s_mov_b32 {SPIN}, {SPIN_MAX}")
    if pre:
        pre()
    a(f"s_branch {chk}")
    a.label(l2)
    for u, (ins, r0, n) in enumerate(loads):
        a(f"s_mov_b64 exec, {sp(PM + 2 * u)}")
        a(ins)
    a(f"s_mov_b64 exec, -1\ns_sub_u32 {SPIN}, {SPIN}, 1\ns_cbranch_scc1 {done}")
    a.label(chk)
    nl = len(loads)
    for u, (ins, r0, n) in enumerate(loads):
        a(f"s_waitcnt vmcnt({nl - 1 - u})")
        for o in check_ops(range(r0, r0 + n), tmp, sp(PM + 2 * u)):
            a(o)
        if u == 1:
            pend = f"s_or_b64 {sp(MSK)}, {sp(PM)}, {sp(PM + 2)}"
        elif u > 1:
            a(pend)
            pend = f"s_or_b64 {sp(MSK)}, {sp(MSK)}, {sp(PM + 2 * u)}"
    a(pend)
    a(f"s_cbranch_scc1 {l2}\n{done}:")


def quad_gather(r):
    for k in (1, 2, 3):
        a(f"v_mov_b32_dpp {v(r + k)}, {v(r)} quad_perm:[{k},{k},{k},{k}] {DPP}")
    a(f"s_mov_b32 exec_lo, 0x11111111\ns_mov_b32 exec_hi, 0x11111111")


def zero(regs):
    for r in regs:
        a(f"v_mov_b32 {v(r)}, 0")


def b_addr(reg, tmp, rowbytes, extra, base, r32=None):
    lane_expr(reg, tmp, [(3, 1, r32 or 32 * rowbytes), (4, 2, 4 * rowbytes), (2, 1, rowbytes)] + extra, base)


def b_reads(dst, addr, nblk, rowbytes, r32=None):
    r32 = r32 or 32 * rowbytes
    for blk in range(nblk):
        for rho in range(4):
            off = 2 * r32 * blk + (16 * (rho >> 1) + 2 * (rho & 1)) * rowbytes
            a(f"ds_read_b64_tr_b16 {v(dst + 8 * blk + 2 * rho, 2)}, {v(addr)} offset:{off}")


def lane_sum(regs, steps, tmps):
    for st in steps:
        if st in ("s16", "s32"):
            for r, t in zip(regs, tmps):
                a(f"v_mov_b32 {v(t)}, {v(r)}")
            for r, t in zip(regs, tmps):
                a(f"v_permlane{st[1:]}_swap_b32 {v(r)}, {v(t)}")
            for r, t in zip(regs, tmps):
                a(f"v_add_f32 {v(r)}, {v(r)}, {v(t)}")
        else:
            pat = {"x1": "quad_perm:[1,0,3,2]", "x2": "quad_perm:[2,3,0,1]", "hm": "row_half_mirror",
                   "r4": "row_ror:4", "r8": "row_ror:8"}[st]
            for r in regs:
                a(f"v_add_f32_dpp {v(r)}, {v(r)}, {v(r)} {pat} {DPP}")


def ln_stats(xregs, s1, s2, steps, t1, t2):
    for n, r in enumerate(xregs):
        a(f"v_dot2_f32_bf16 {v(s1)}, {v(r)}, {ONES}, {'0' if n == 0 else v(s1)}")
        a(f"v_dot2_f32_bf16 {v(s2)}, {v(r)}, {v(r)}, {'0' if n == 0 else v(s2)}")
    lane_sum([s1, s2], steps, [t1, t2])
    a(f"""
    v_mul_f32 {v(s1)}, {f32(1.0 / 640)}, {v(s1)}
    v_mul_f32 {v(s2)}, {f32(1.0 / 640)}, {v(s2)}
    v_fma_f32 {v(s2)}, -{v(s1)}, {v(s1)}, {v(s2)}
    v_max_f32 {v(s2)}, 0, {v(s2)}
    v_add_f32 {v(s2)}, {f32(1e-5)}, {v(s2)}
    """)


class QM:
    def __init__(self, B, X, A, XA0, XA1, SA, T):
        self.B, self.X, self.A, self.XA0, self.XA1, self.SA, self.T = B, X, A, XA0, XA1, SA, T


Q1M = QM(64, 88, [96, 100, 104], 108, 109, 110, 111)
Q2M = QM(96, 120, [36, 44, 56], 41, 42, 43, 60)


def qp_setup(q):
    s_expr(T0, [(W, 32)], L_WQ - 4 * 32)
    b_addr(q.T, q.SA, 128, [(0, 2, 8)], T0)
    b_reads(q.B, q.T, 3, 128)
    for r in q.A:
        zero(range(r, r + 4))


def qp_saddr(q, off):
    a(f"s_and_b32 {T1}, {J}, 3\ns_lshr_b32 {T2}, {J}, 2")
    lin(q.SA, 2, [(G, 32768), (T1, 8192), (T2, 1024), (W, 256)], off - 4 * 256)


def qp_mm(q):
    a(f"""
    {SMF} {v(q.A[0], 4)}, {v(q.X, 4)}, {v(q.B, 8)}, {v(IDX)}
    {SMF} {v(q.A[1], 4)}, {v(q.X, 4)}, {v(q.B + 8, 8)}, {v(IDX)}
    {SMF} {v(q.A[2], 4)}, {v(q.X + 4, 4)}, {v(q.B + 16, 8)}, {v(IDX)}
    """)


def qp_sum(q):
    A0, A1, A2 = q.A
    a(f"""
    v_add_f32 {v(A0)}, {v(A0)}, {v(A0 + 2)}
    v_add_f32 {v(A1 + 1)}, {v(A1 + 1)}, {v(A1 + 3)}
    v_add_f32 {v(A0)}, {v(A0)}, {v(A1 + 1)}
    v_add_f32 {v(A0)}, {v(A0)}, {v(A2)}
    v_min_u32 {v(A0)}, -2, {v(A0)}
    """)


pX_, pQ, pS1, pS2, pA, pLW, pT, pT2 = 96, 104, 112, 114, 116, 120, 121, 122


def poller_stats():
    ln_stats(range(pX_, pX_ + 5), pS1, pS2, ["x1", "x2", "r4", "r8", "s16", "s32"], pT, pT2)
    a(f"v_rsq_f32 {v(pS2)}, {v(pS2)}")


def poller_qaddr(off):
    a(f"s_lshr_b32 {T1}, {J}, 3")
    s_expr(T0, [(G, 32768), (BB, 64), (T1, 2048)], off)
    lane_expr(pA, pT, [(3, 3, 256), (0, 3, 8)], T0)
    for kq in range(1, 4):
        a(f"v_add_u32 {v(pA + kq)}, {kq * 8192}, {v(pA)}")
    lane_expr(pLW, pT, [(5, 1, 128), (3, 1, 64), (0, 1, 32), (4, 1, 16), (1, 2, 4)], L_Q)


def poller_qloads():
    return [(f"global_load_dwordx2 {v(pQ + 2 * kq, 2)}, {v(pA + kq)}, {sp(pWS)} sc1", pQ + 2 * kq, 2) for kq in range(4)]


def poller_finish():
    a(f"""
    v_pk_add_f32 {v(pQ, 2)}, {v(pQ, 2)}, {v(pQ + 2, 2)}
    v_pk_add_f32 {v(pQ + 4, 2)}, {v(pQ + 4, 2)}, {v(pQ + 6, 2)}
    v_pk_add_f32 {v(pQ, 2)}, {v(pQ, 2)}, {v(pQ + 4, 2)}
    v_fma_f32 {v(pQ)}, -{v(pS1)}, {v(pCS)}, {v(pQ)}
    v_fma_f32 {v(pQ + 1)}, -{v(pS1)}, {v(pCS + 1)}, {v(pQ + 1)}
    v_mul_f32 {v(pQ)}, {v(pS2)}, {v(pQ)}
    v_mul_f32 {v(pQ + 1)}, {v(pS2)}, {v(pQ + 1)}
    v_cvt_pk_bf16_f32 {v(pQ)}, {v(pQ)}, {v(pQ + 1)}
    ds_write_b32 {v(pLW)}, {v(pQ)}
    """)


aQV, aONE, aLA, IDX2, aQK, aP, aACC, aS, aT = 16, 32, 36, 40, 48, 52, 64, 60, 61


def att_addr(layer):
    t = aT
    lane_expr(aQA, t, [(4, 2, 64), (0, 2, 16)], L_Q)
    s_expr(T0, [(W, 128)], L_P)
    lane_expr(aPW, t, [(0, 1, 64), (2, 1, 32), (4, 1, 16), (1, 1, 8), (5, 1, 4), (3, 1, 2)], T0)
    lane_expr(aPR, t, [(4, 2, 32), (2, 1, 16)], T0)
    lin(aOWW, 3, [(W, OWS)], L_OW)
    s_expr(T0, [(W, 16)], L_ML + 128 * layer)
    lane_expr(aMLW, t, [(4, 1, 8)], T0)
    s_expr(T0, [(W, 32)], L_OW)
    lane_expr(aOWR, t, [(0, 2, 2 * OWS), (2, 2, 4 * OWJ), (4, 2, 8)], T0)
    lane_expr(aMLR, t, [(0, 2, 32)], L_ML + 128 * layer)
    a(f"s_lshr_b32 {T1}, {W}, 1\ns_and_b32 {T2}, {W}, 1")
    s_expr(T0, [(G, 8192), (T1, 1024), (T2, 32), (BB, 64)], OB)
    a(f"s_lshr_b32 {T1}, {J}, 3\ns_and_b32 {T2}, {J}, 1")
    s_expr(T0, [(T0, 1), (T1, 2048), (T2, 16)])
    lane_expr(aOBA, t, [(4, 2, 256), (2, 2, 4)], T0)
    s_expr(T0, [(G, 128), (BB, 32), (T1, 8), (T2, 4)], LSE)
    a(f"v_writelane_b32 {v(aOBA)}, {T0}, 1")


def att_init(lo=16, acc=True):
    zero(list(range(lo, 32)) + list(range(aQK, aQK + 8)) + (list(range(aACC, aACC + 32)) if acc else []))
    for i in range(4):
        a(f"v_mov_b32 {v(aONE + i)}, {ONES}")
    a(f"""
    v_bfe_u32 {v(IDX2)}, v0, 2, 1
    v_mul_u32_u24 {v(IDX2)}, 0xaaaa, {v(IDX2)}
    v_add_u32 {v(IDX2)}, 0x4444, {v(IDX2)}
    """)


hdr = open("cdna_kernels/%s.s.ref" % NAME).read().split("\n")
for line in hdr:
    if line.startswith("; @launch"):
        a.raw("; @launch grid=(256,1,1) block=(512,1,1) lds=%d" % LDS_BYTES)
    elif line.startswith(";"):
        a.raw(line)
    else:
        break
a.raw('.amdgcn_target "amdgcn-amd-amdhsa--gfx950"')
a.raw(".text")
a.raw(".globl %s_kernel" % NAME)
a.raw(".p2align 8")
a.raw(".type %s_kernel,@function" % NAME)
a.raw("%s_kernel:" % NAME)
a(f"""
    s_cmp_ge_u32 s2, 256
    s_cbranch_scc1 L_END
    s_load_dwordx16 s[8:23], s[0:1], 0
    s_load_dwordx8 s[24:31], s[0:1], 64
""")
a.c("pull the kernel's own code into L2: four 128-byte lines per workgroup")
a(f"""
    s_getpc_b64 {sp(TB)}
L_PC:
    s_and_b32 {T0}, s2, 0xf8
    s_lshl_b32 {T0}, {T0}, 6
    v_and_b32 v1, 3, v0
    v_lshl_add_u32 v1, v1, 7, {T0}
    v_min_u32 v1, L_END-L_PC, v1
    global_load_dword {v(vDUM)}, v1, {sp(TB)}
    s_mov_b32 {LAYER}, 0
""")
if OPT["padto"]:
    a("s_memrealtime s[96:97]")
if DIAG:
    for i in range(16):
        a(f"s_mov_b64 {sp(STAMP0 + 2 * i)}, 0")
    a("s_memrealtime s[96:97]\ns_memtime s[100:101]")
a(f"""
    v_lshrrev_b32 v1, 6, v0
    v_and_b32 v0, 63, v0
    v_readfirstlane_b32 {W}, v1
    s_and_b32 {G}, s2, 7
    s_lshr_b32 {J}, s2, 3
    s_lshr_b32 {T0}, {J}, 3
    s_add_u32 {H}, {G}, {T0}
    s_and_b32 {H}, {H}, 7
    s_and_b32 {T0}, {J}, 24
    s_add_u32 {H}, {H}, {T0}
    s_bfe_u32 {BB}, {J}, 0x20001
    s_and_b32 {T1}, {J}, 1
""")
s_expr(T2, [(BB, 1 << 25), (H, 1 << 20), (T1, 1 << 17), (W, 1 << (11 if OPT["lay"] else 13))], 0xC0000 + (0 if OPT["lay"] else 4096))
lane_expr(vK, 60, [(1, 3, 256), (0, 1, 64), (4, 2, 16)])
a(f"v_lshlrev_b32 {v(vV)}, 4, v0")
for i in range(4):
    a(f"v_mov_b32 {v(124 + i)}, -1")
a(f"s_lshl_b32 {T0}, {J}, 3\ns_add_u32 {T0}, {T0}, {W}\ns_waitcnt lgkmcnt(0)")
add64(KB, pK, T2)
add64(VB, pV, T2)
a(f"s_cmp_lg_u32 {T0}, 1\ns_cbranch_scc1 L_PRO_L")
a.c("wave 1 of the group's first workgroup: reset the group's arrival markers, then raise the group's flag")
lin(60, 4, [(G, 32 * MSTR)], MK)
a(f"""
    s_lshl_b32 {T0}, {G}, 5
    v_mov_b32 v62, {T0}
    s_mov_b32 exec_hi, 0
    global_store_dwordx4 v60, v[124:127], {sp(pWS)} sc1
    s_waitcnt vmcnt(0)
    s_mov_b64 exec, 1
    global_store_dword v62, v124, {sp(pDBG)} sc1
    s_mov_b64 exec, -1
L_PRO_L:
""")
a(f"s_cmp_lg_u32 {W}, 2\ns_cselect_b64 vcc, 0, -1\ns_cbranch_scc1 L_PRO_C")
a.c("wave 2: sentinel fill of the early slots and of this workgroup's layer-1 q slots")
if not CUT & 2:
    lin(60, 4, [("s2", CLR)], 2048)
    for u in range(4 if not OPT["xc"] & 1 else 1):
        a(f"global_store_dwordx4 v60, v[124:127], {sp(pWS)} offset:{u * 1024 - 2048} sc1")
    a(f"s_mov_b32 exec_hi, 0xffff\nglobal_store_dwordx4 v60, v[124:127], {sp(pWS)} offset:2048 sc1\ns_mov_b64 exec, -1")
    a(f"s_and_b32 {T1}, {J}, 3\ns_lshr_b32 {T2}, {J}, 2")
    lin(60, 4, [(G, 32768), (T1, 8192), (T2, 1024)], Q1)
    if not OPT["xc"] & 2:
        a(f"global_store_dwordx4 v60, v[124:127], {sp(pWS)} sc1")
        lin(60, 4, [(G, 16384), (T1, 4096), (T2, 512)], CS1)
        a(f"s_mov_b32 exec_hi, 0\nglobal_store_dwordx4 v60, v[124:127], {sp(pWS)} sc1\ns_mov_b64 exec, -1")
a.label("L_PRO_C")
SKIP = [False]


def stream(i, thr=True):
    if OPT["lay"]:
        B_ = KB if i < 16 else VB
        if i & 15 and not i & 1:
            add64(B_, B_, 16384)
        if i < 16:
            a(f"global_load_dwordx4 {v(KREG + 4 * i, 4)}, {v(vK)}, {sp(KB)} offset:{(i & 1) * 128} nt")
        else:
            a(f"global_load_dwordx4 {v(SREG + (i - 16) * 4, 4)}, {v(vV)}, {sp(VB)} offset:{(i & 1) * 1024} nt")
    elif i < 16:
        if i == 8:
            add64(KB, KB, 65536)
        kq, hf = (i >> 1) & 3, i & 1
        a(f"global_load_dwordx4 {v(KREG + 4 * i, 4)}, {v(vK)}, {sp(KB)} offset:{kq * 2048 + hf * 128 - 4096} nt")
    else:
        if i == 24:
            add64(VB, VB, 65536)
        a(f"global_load_dwordx4 {v(SREG + (i - 16) * 4, 4)}, {v(vV)}, {sp(VB)} offset:{(i & 7) * 1024 - 4096} nt")
    if thr:
        l = a.newlabel("TS")
        if SKIP[0]:
            a(f"s_cbranch_vccnz {l}")
        a(f"s_waitcnt vmcnt({THR - 1})")
        a.label(l)


def only_wave(w, label, off=False):
    a(f"s_cmp_lg_u32 {W}, {9 if off else w}\ns_cbranch_scc1 {label}")


def h_first():
    a(f"s_cmp_ge_u32 {W}, 4\ns_cbranch_scc1 L_PRO_X")
    a(f"s_lshl_b32 {TILE}, {J}, 1\ns_add_u32 {TILE}, {TILE}, {W}")
    a(f"s_cmp_eq_u32 {W}, 3\ns_cbranch_scc1 L_PRO_X3\ns_cmp_eq_u32 {W}, 2\ns_cbranch_scc1 L_PRO_X2")
    a(f"s_min_u32 {T1}, {TILE}, 39")
    s_expr(T0, [(T1, 32)])
    lane_expr(60, 61, [(2, 2, 1280), (0, 2, 8), (5, 1, 4)], T0)
    a(f"global_load_dword {v(rX0)}, v60, {sp(pX)}")
    a("s_branch L_PRO_A")
    a.label("L_PRO_X2")
    a.c("wave 2: LDS zero areas")
    zero(range(44, 48))
    a(f"""
    v_lshlrev_b32 v62, 2, v0
    v_add_u32 v62, {L_ML}, v62
    ds_write_b32 v62, v124
    v_add_u32 v62, {L_WD + 6 * D32}, {v(vV)}
    s_cmp_ge_u32 {J}, 20
    s_cbranch_scc1 L_PRO_A
    ds_write_b128 v62, v[44:47]
    ds_write_b128 v62, v[44:47] offset:{D32}
    ds_write_b128 v62, v[44:47] offset:{8 * D32}
    ds_write_b128 v62, v[44:47] offset:{9 * D32}
    s_branch L_PRO_A
    """)
    a.label("L_PRO_X3")
    lin(60, 2, [(BB, 1280)], 0)
    for u in range(5):
        a(f"global_load_dword {v(pX_ + u)}, v60, {sp(pX)} offset:{u * 256}")
    a("s_branch L_PRO_A")
    a.label("L_PRO_X")
    a(f"s_and_b32 {T1}, {J}, 3")
    s_expr(T0, [(T1, 320)])
    q = Q1M
    lane_expr(q.XA0, q.T, [(2, 2, 1280), (0, 1, 128), (1, 1, 64), (4, 2, 16)], T0)
    lane_expr(q.XA1, q.T, [(2, 2, 1280), (4, 2, 16)], T0)
    a(f"global_load_dwordx4 {v(q.X, 4)}, {v(q.XA0)}, {sp(pX)}")
    a(f"global_load_dwordx4 {v(q.X + 4, 4)}, {v(q.XA1)}, {sp(pX)} offset:256")
    a.label("L_PRO_A")
    lane_expr(vWQ, 61, [(3, 3, 8192), (0, 3, 16)])
    a(f"s_and_b32 {T1}, {J}, 3\ns_and_b32 {T2}, {J}, 4")
    s_expr(T0, [(T1, 160 * 8192), (W, 8 * 8192), (H, 256), (T2, 32)])
    add64(TB, pWQ, T0)
    prostamp(0)


def h_wq(n):
    l = a.newlabel("WQ")
    if n == 2:
        a(f"s_cmp_ge_u32 {W}, 4\ns_cbranch_scc1 {l}")
    a(f"s_lshl_b32 {T1}, {W}, 10\ns_add_u32 m0, {T1}, {L_WQ + n * 8192}")
    if not CUT & 4:
        a(f"global_load_lds_dwordx4 {v(vWQ)}, {sp(TB)} nt")
    if n < 2:
        add64(TB, TB, 64 * 8192)
    a.label(l)


def h_setup1():
    a(f"""
    s_mov_b32 {ONES}, 0x3f803f80
    v_bfe_u32 {v(IDX)}, v0, 1, 1
    v_mul_u32_u24 {v(IDX)}, 0xaaaa, {v(IDX)}
    v_add_u32 {v(IDX)}, 0x4444, {v(IDX)}
    s_mov_b32 {CSC}, {f32(math.log2(math.e) / math.sqrt(128.0))}
    s_mov_b32 {PLO}, 0x05040100
    s_mov_b32 {PHI}, 0x07060302
    s_mov_b32 s{ODD}, 0xaaaaaaaa
    s_mov_b32 s{ODD + 1}, 0xaaaaaaaa
    s_mov_b32 s{OBM}, 0x11111111
    s_mov_b32 s{OBM + 1}, 0x11111111
    s_cmp_eq_u32 {W}, 0
    s_cselect_b32 s{OBM}, 0x11111113, s{OBM}
    s_mov_b32 s{EX}, s{pWS}
    s_mov_b32 s{EX + 1}, s{pWS + 1}
    s_cmp_lt_u32 {G}, 6
    s_cselect_b32 {NU}, 7, 6
    s_mul_i32 {FB0}, {G}, 7
    s_min_u32 {FB0}, {FB0}, 48
    s_sub_u32 {T0}, {J}, 20
    s_cmp_lt_u32 {T0}, {NU}
    s_cselect_b32 {ROLE}, 1, 2
    s_cmp_lt_u32 {J}, 20
    s_cselect_b32 {ROLE}, 0, {ROLE}
    """)
    a.c("PATH: 0 out/down projection, 1 gate/up, 2 q projection or q collector, 3 nothing")
    a(f"""
    s_cmp_ge_u32 {W}, 3
    s_cselect_b32 {PATH}, 2, 3
    s_lshl_b32 {T0}, 2, {ROLE}
    s_and_b32 {T0}, {T0}, 7
    s_cmp_lt_u32 {W}, {T0}
    s_cselect_b32 {PATH}, {ROLE}, {PATH}
    s_cmp_lg_u32 {ROLE}, 0
    s_cbranch_scc1 L_PRO_RU
    """)
    a.c("role weight staging: source pointer, swizzled per-lane offset, LDS base")
    lane_expr(vDMA, 60, [(2, 4, 1280), (0, 2, 16)])
    s_expr(T0, [(W, 16 * 1280), (J, 64)])
    add64(WOB, pWO, T0)
    a(f"s_lshr_b32 {T1}, {W}, 1")
    s_expr(T2L, [(W, 1024), (T1, 128)], L_WO)
    a("s_branch L_PRO_R")
    a.label("L_PRO_RU")
    lane_expr(vDMA, 60, [(2, 4, 3456), (0, 2, 16)])
    a(f"""
    s_and_b32 {T0}, {W}, 4
    s_lshl_b32 {T0}, {T0}, 2
    v_xor_b32 {v(vDMA)}, {T0}, {v(vDMA)}
    s_add_u32 {T1}, {FB0}, {J}
    s_sub_u32 {T1}, {T1}, 20
    s_and_b32 {T2}, {W}, 3
    s_cmp_ge_u32 {W}, 4
    s_cselect_b32 s{WOB}, s{pWU}, s{pWG}
    s_cselect_b32 s{WOB + 1}, s{pWU + 1}, s{pWG + 1}
    s_mov_b32 {T2L}, {L_WG}
    s_cselect_b32 {T2L}, {L_WU}, {T2L}
    s_lshr_b32 {T0}, {T2}, 1
    """)
    s_expr(T2L, [(T2L, 1), (T2, 1024), (T0, 128)])
    s_expr(T0, [(T1, 64), (T2, 16 * 3456)])
    add64(WOB, WOB, T0)
    a.label("L_PRO_R")
    a(f"v_and_b32 v60, 16, v0\nv_lshlrev_b32 v60, 1, v60\nv_xor_b32 {v(vDMA)}, {v(vDMA)}, v60")


def h_setup3():
    att_init(24, acc=False)
    lin(oBA, 4, [(G, 8192)], OB + 4096)
    s_expr(T0, [(G, 128)], LSE)
    lane_expr(oLA, 61, [(4, 2, 32), (0, 2, 8)], T0)
    a(f"s_lshr_b32 {T1}, {J}, 1\ns_and_b32 {T2}, {J}, 1")
    lin(oSA, 2, [(T1, 16384), (T2, 4096), (W, 2048), (G, 256)], PB1)
    zero([115, 116, 117, 118, 119, 123])


def h_flag():
    a(f"""
    v_and_b32 v17, 7, v0
    v_lshlrev_b32 v17, 5, v17
    v_mov_b32 v18, 0
    v_lshlrev_b32 v19, 4, v0
    v_add_u32 v19, {MK}, v19
    """)
    only_wave(2, "L_HA0", CUT & 32)
    a(f"global_load_dword v18, v17, {sp(pDBG)} sc1")
    a.label("L_HA0")


def h_bq(nafter, nflag):
    a(f"s_waitcnt vmcnt({nafter}) lgkmcnt(0)")
    only_wave(2, "L_HA1", CUT & 32)
    a.c("wave 2: sentinel fill done and the group's markers reset -> publish this workgroup's XCD id")
    lin(62, 2, [(G, 32 * MSTR), (J, MSTR)], MK)
    a(f"""
    s_getreg_b32 {XCC}, hwreg(HW_REG_XCC_ID, 0, 4)
    v_mov_b32 v44, {XCC}
    s_mov_b32 {SPIN}, {SPIN_MAX}
    s_barrier
    s_waitcnt vmcnt({nflag})
L_ARR:
    v_readlane_b32 {T0}, v18, {G}
    s_cmp_lg_u32 {T0}, 0
    s_cbranch_scc1 L_ARR_OK
    global_load_dword v18, v17, {sp(pDBG)} sc1
    s_waitcnt vmcnt(0)
    s_sub_u32 {SPIN}, {SPIN}, 1
    s_cbranch_scc0 L_ARR
L_ARR_OK:
    s_mov_b64 exec, 1
    global_store_dwordx4 v62, v[44:47], {sp(pWS)} sc1
    s_mov_b64 exec, -1
    s_branch L_PRO_KV
L_HA1:
    """)
    prostamp(3)
    a(f"""
    s_barrier
    s_cmp_ge_u32 {W}, {9 if CUT & 16 else 4}
    s_cbranch_scc1 L_PRO_Q
    s_cmp_eq_u32 {W}, 3
    s_cbranch_scc1 L_PRO_P
    v_and_b32 {v(rX1)}, 0xffff0000, {v(rX0)}
    v_lshlrev_b32 {v(rX0)}, 16, {v(rX0)}
    s_branch L_PRO_KV
    """)
    a.label("L_PRO_Q")
    a.c("waves 4..7: partial q projection of layer 1 and partial column sums")
    qp_setup(Q1M)
    qp_saddr(Q1M, Q1)
    qB, qSA, qACC = Q1M.B, Q1M.SA, Q1M.A[0]
    lin(112, 2, [(G, 16384), (T1, 4096), (T2, 512), (W, 128)], CS1 - 4 * 128)
    zero(range(116, 124))
    for i in range(4):
        a(f"v_mov_b32 {v(124 + i)}, {ONES}")
    a("s_waitcnt lgkmcnt(0)")
    qp_mm(Q1M)
    a(f"""
    {SMF} v[116:119], v[124:127], {v(qB, 8)}, {v(IDX)}
    {SMF} v[116:119], v[124:127], {v(qB + 8, 8)}, {v(IDX)}
    {SMF} v[120:123], v[124:127], {v(qB + 16, 8)}, {v(IDX)}
    """)
    qp_sum(Q1M)
    a(f"""
    v_add_f32 v116, v116, v118
    v_add_f32 v116, v116, v120
    v_min_u32 v116, -2, v116
    """)
    if OPT["wide"] & 1:
        for k in (1, 2, 3):
            a(f"v_mov_b32_dpp {v(116 + k)}, v116 quad_perm:[{k},{k},{k},{k}] {DPP}")
        quad_gather(qACC)
        a(f"global_store_dwordx4 {v(qSA)}, {v(qACC, 4)}, {sp(pWS)} sc1\ns_mov_b32 exec_hi, 0")
        a(f"global_store_dwordx4 v112, v[116:119], {sp(pWS)} sc1")
    elif not CUT & 64:
        a(f"global_store_dword {v(qSA)}, {v(qACC)}, {sp(pWS)} sc1\ns_mov_b32 exec_hi, 0")
        a(f"global_store_dword v112, v116, {sp(pWS)} sc1")
    a(f"""
    s_mov_b64 exec, -1
    s_mov_b64 vcc, -1
    s_branch L_PRO_KV
    """)
    a.label("L_PRO_P")
    a.c("wave 3: LayerNorm statistics of its row")
    a(f"global_load_dword v18, v17, {sp(pDBG)} sc1")
    poller_qaddr(Q1)
    s_expr(T0, [(G, 16384), (T1, 1024)], CS1 + 4096)
    lane_expr(123, pT, [(3, 3, 128), (0, 3, 8)], T0)
    a("v_add_u32 v115, 8192, v123")
    poller_stats()
    a.label("L_PRO_KV")
    prostamp(4)


MK_LOADS = "\n".join(f"global_load_dword {v(20 + u)}, v19, {sp(pWS)} offset:{u * 64 * MSTR} sc1" for u in range(4))


def q1_loads():
    for ins, _, _ in poller_qloads():
        a(ins)
    for kq in range(4):
        a(f"global_load_dwordx2 {v(pX_ + 2 * kq, 2)}, {'v115' if kq >= 2 else 'v123'}, {sp(pWS)} offset:{(kq & 1) * 4096 - 4096} sc1")


def h_p1(ny):
    only_wave(3, "L_H1", CUT & 8)
    a.c("wave 3: all groups have reset their markers -> read the markers")
    a(f"""
    s_mov_b32 {SPIN}, {SPIN_MAX}
    s_waitcnt vmcnt({ny})
L_FLG:
    v_cmp_eq_u32 vcc, 0, v18
    s_cbranch_vccz L_FLG_OK
    global_load_dword v18, v17, {sp(pDBG)} sc1
    s_waitcnt vmcnt(0)
    s_sub_u32 {SPIN}, {SPIN}, 1
    s_cbranch_scc0 L_FLG
L_FLG_OK:
    {MK_LOADS}
    s_mov_b64 vcc, -1
L_H1:
    """)
    prostamp(2)


def h_p2(ny):
    only_wave(3, "L_H2", CUT & 8)
    a.c("wave 3: the whole group has arrived -> fetch q partials; decide whether the group shares one L2")
    a(f"""
    s_getreg_b32 {XCC}, hwreg(HW_REG_XCC_ID, 0, 4)
    s_mov_b32 {SPIN}, {SPIN_MAX}
    s_waitcnt vmcnt({ny})
L_CNT:
    s_bitcmp1_b32 {G}, 1
    s_cselect_b64 vcc, -1, 0
    v_cndmask_b32 v17, v20, v21, vcc
    v_cndmask_b32 v18, v22, v23, vcc
    s_bitcmp1_b32 {G}, 2
    s_cselect_b64 vcc, -1, 0
    v_cndmask_b32 v17, v17, v18, vcc
    v_cmp_eq_u32 vcc, -1, v17
    s_bitcmp1_b32 {G}, 0
    s_cselect_b32 {T0}, vcc_hi, vcc_lo
    s_cmp_eq_u32 {T0}, 0
    s_cbranch_scc1 L_CNT_OK
    {MK_LOADS}
    s_waitcnt vmcnt(0)
    s_sub_u32 {SPIN}, {SPIN}, 1
    s_cbranch_scc0 L_CNT
L_CNT_OK:
    """)
    q1_loads()
    a(f"""
    {MK_LOADS}
    v_cmp_ne_u32 vcc, {XCC}, v17
    v_mov_b32 v18, {L_FLAG}
    s_bitcmp1_b32 {G}, 0
    s_cselect_b32 {T0}, vcc_hi, vcc_lo
    s_cmp_lg_u32 {T0}, 0
    s_cselect_b32 {T0}, 0, {0 if OPT['force_global'] else 1}
    v_mov_b32 v17, {T0}
    ds_write_b32 v18, v17
    s_mov_b64 vcc, -1
L_H2:
    """)
    prostamp(5)


def h_p4():
    a.c("wave 3: every workgroup of every group must have arrived before this workgroup publishes or polls anything else")
    a(f"""
    s_mov_b32 {SPIN}, {SPIN_MAX}
L_ALL:
    v_max3_u32 v17, v20, v21, v22
    v_max_u32 v17, v17, v23
    v_cmp_eq_u32 vcc, -1, v17
    s_cbranch_vccz L_ALL_OK
    s_sleep 4
    {MK_LOADS}
    s_waitcnt vmcnt(0)
    s_sub_u32 {SPIN}, {SPIN}, 1
    s_cbranch_scc0 L_ALL
L_ALL_OK:
    """)
    if OPT["warm"]:
        a.c("bring the attention hand-off lines into L2 so that the first polls do not miss")
        a(f"s_cmp_lt_u32 {J}, 30\ns_cbranch_scc1 L_H4")
        lin(17, 7, [(G, 8192)], OB)
        s_expr(T0, [(G, 128)], LSE)
        a(f"""
        v_mov_b32 v18, {T0}
        v_add_u32 v19, {LSTRIDE}, v17
        v_add_u32 v20, {LSTRIDE}, v18
        global_load_dword {v(vDUM)}, v17, {sp(pWS)} sc1
        global_load_dword {v(vDUM)}, v18, {sp(pWS)} sc1
        global_load_dword {v(vDUM)}, v19, {sp(pWS)} sc1
        global_load_dword {v(vDUM)}, v20, {sp(pWS)} sc1
        """)
    a.label("L_H4")


def h_p3(ny):
    only_wave(3, "L_H3", CUT & 8)
    a(f"s_mov_b32 {SPIN}, {SPIN_MAX}\ns_waitcnt vmcnt({ny})")
    a.label("L_Q1")
    for s_ in check_ops(range(pX_, pX_ + 16), pT):
        a(s_)
    a("s_cbranch_vccz L_Q1_OK")
    q1_loads()
    a(f"""
    s_waitcnt vmcnt(0)
    s_sub_u32 {SPIN}, {SPIN}, 1
    s_cbranch_scc0 L_Q1
L_Q1_OK:
    v_pk_add_f32 {v(pX_, 2)}, {v(pX_, 2)}, {v(pX_ + 2, 2)}
    v_pk_add_f32 {v(pX_ + 4, 2)}, {v(pX_ + 4, 2)}, {v(pX_ + 6, 2)}
    v_pk_add_f32 {v(pCS, 2)}, {v(pX_, 2)}, {v(pX_ + 4, 2)}
    """)
    poller_finish()
    a("s_waitcnt lgkmcnt(0)")
    h_p4()
    a.label("L_H3")
    prostamp(6)


K0, BQ, HF, HC, HD, BP = OPT["k0"], OPT["bq"], OPT["hf"], OPT["hc"], OPT["hd"], OPT["bp"]
hooks = {}


def h_unfree():
    a(f"s_cmp_eq_u32 {W}, 3\ns_cselect_b64 vcc, vcc, 0")


for pos, fn in [(K0, h_first), (K0, lambda: h_wq(0)), (K0, lambda: h_wq(1)), (K0, lambda: h_wq(2)),
                (K0 + 1, h_setup1), (K0 + 2, h_setup3), (HF, h_flag),
                (BQ + 2, lambda: h_bq(BQ + 2 - K0, BQ + 2 - HF)), (BQ + 3, lambda: att_addr(0)),
                (BQ + 2 + OPT["free"], h_unfree),
                (HC, lambda: h_p1(HC - BQ - 2)), (HC + HD, lambda: h_p2(HD)), (HC + 2 * HD, lambda: h_p3(HD))]:
    hooks.setdefault(pos, []).append(fn)
assert K0 + 2 <= BQ + 2 <= 16 and K0 <= HF < BQ + 2 <= HC and HC + 2 * HD <= 24 <= BP <= 28
SKIP[0] = True
for i in range(BP):
    for fn in hooks.get(i, []):
        fn()
    stream(i, thr=not (i < K0 or BQ <= i < BQ + 2 or i >= BP - 2))
SKIP[0] = False
a("s_waitcnt vmcnt(%d)" % (BP - 16))
zero(range(16, 24))
prostamp(1)


def perms(t, pp):
    for j in range(8):
        s0 = SREG + t * 32 + (2 * pp) * 4 + (j >> 1)
        a(f"v_perm_b32 {v(VREG + j * 8 + t * 4 + pp)}, {v(s0 + 4)}, {v(s0)}, {PHI if j & 1 else PLO}")


def gu_prefetch(lo, hi):
    s_expr(T1, [(J, 8), (W, 1)], -160)
    a(f"""
    s_cmp_ge_u32 {T1}, 48
    s_cselect_b32 s{TB}, s{pWU}, s{pWG}
    s_cselect_b32 s{TB + 1}, s{pWU + 1}, s{pWG + 1}
    s_cselect_b32 {T0}, 48, 0
    s_sub_u32 {T1}, {T1}, {T0}
    s_mul_i32 {T1}, {T1}, 14
    s_add_u32 {T1}, {T1}, {lo}
    s_lshr_b32 {T2}, {FB0}, 1
    s_min_u32 {T2}, {T2}, 23
    s_lshl_b32 {T2}, {T2}, 7
    v_lshrrev_b32 {v(vPF)}, 2, v0
    v_min_u32 {v(vPF)}, {hi - lo - 1}, {v(vPF)}
    v_add_u32 {v(vPF)}, {T1}, {v(vPF)}
    v_min_u32 {v(vPF)}, 639, {v(vPF)}
    v_mul_u32_u24 {v(vPF)}, 3456, {v(vPF)}
    v_and_b32 {v(vK)}, 3, v0
    v_lshl_add_u32 {v(vPF)}, {v(vK)}, 7, {v(vPF)}
    v_add_u32 {v(vPF)}, {T2}, {v(vPF)}
    global_load_dword {v(vDUM)}, {v(vPF)}, {sp(TB)}
    """)


NTAIL = 1


def v_tail():
    done = 0
    a(f"v_mov_b32 v62, {L_FLAG}\nds_read_b32 v62, v62")
    for i in range(BP, 32):
        stream(i, thr=i < 31)
        if done < 4:
            a(f"s_waitcnt vmcnt({i - (17 + 2 * done)})")
            perms(0, done)
            done += 1
    assert done == 4
    if OPT["nm"] == 0:
        a(f"s_and_b32 {T1}, {J}, 7")
        s_expr(T0, [(H, 128 * 1280), (T1, 8 * 2560), (W, 2560)])
        a(f"""
        v_min_u32 {v(vPF)}, 19, v0
        v_lshl_add_u32 {v(vPF)}, {v(vPF)}, 7, {T0}
        global_load_dword {v(vDUM)}, {v(vPF)}, {sp(pWO)}
        """)
    else:
        a(f"s_cmp_lg_u32 {ROLE}, 0\ns_cbranch_scc1 L_PFU")
        a(f"""
        s_and_b32 {T1}, {J}, 3
        s_add_u32 {T0}, {G}, {T1}
        s_and_b32 {T0}, {T0}, 7
        s_lshr_b32 {T2}, {J}, 2
        """)
        s_expr(T0, [(T0, 128 * 1280), (T1, 1024 * 1280), (T2, 8 * 4096), (W, 4096)])
        a(f"""
        v_and_b32 {v(vPF)}, 31, v0
        v_lshl_add_u32 {v(vPF)}, {v(vPF)}, 7, {T0}
        global_load_dword {v(vDUM)}, {v(vPF)}, {sp(pWO)}
        s_branch L_PFE
        """)
        a.label("L_PFU")
        gu_prefetch(0, OPT["nm"])
        a.label("L_PFE")
    prostamp(7)
    zero(range(aACC, aACC + 32))
    a(f"s_waitcnt lgkmcnt(0)\nv_readfirstlane_b32 {LOCAL}, v62")
    for pp in range(4):
        a(f"s_waitcnt vmcnt({6 - 2 * pp + NTAIL})")
        perms(1, pp)


MXS = "s44"
a.label("L_BAR")
a(f"""
    v_mov_b32 v63, {CSC}
    s_mov_b32 exec_lo, 0x000f000f
    s_mov_b32 exec_hi, 0x000f000f
    s_barrier
""")
stamp(0)
cyc(0)
for o in range(4):
    a(f"ds_read_b128 {v(aQV + 4 * o, 4)}, {v(aQA)}")
    a("s_lshl_b64 exec, exec, 4" if o < 3 else "s_mov_b64 exec, -1")
for o in range(4):
    a(f"s_waitcnt lgkmcnt({3 - o})")
    for t in range(2):
        a(f"{SMF} {v(aQK + 4 * t, 4)}, {v(aQV + 4 * o, 4)}, {v(KREG + (t * 4 + o) * 8, 8)}, {v(IDX)}")
cyc(1)
a(f"""
    v_pk_add_f32 {v(aQK, 2)}, {v(aQK, 2)}, {v(aQK + 2, 2)}
    v_pk_add_f32 {v(aQK + 4, 2)}, {v(aQK + 4, 2)}, {v(aQK + 6, 2)}
    v_cndmask_b32 {v(aT)}, {v(aQK + 4)}, {v(aQK + 1)}, {sp(ODD)}
    v_cndmask_b32 {v(aS)}, {v(aQK)}, {v(aQK + 5)}, {sp(ODD)}
    v_add_f32_dpp {v(aS)}, {v(aT)}, {v(aS)} quad_perm:[1,0,3,2] {DPP}
    v_max_f32_dpp {v(aT)}, {v(aS)}, {v(aS)} quad_perm:[1,0,3,2] {DPP}
    v_max_f32_dpp {v(aT)}, {v(aT)}, {v(aT)} quad_perm:[2,3,0,1] {DPP}
    v_max_f32_dpp {v(aT)}, {v(aT)}, {v(aT)} row_ror:4 {DPP}
    v_max_f32_dpp {v(aT)}, {v(aT)}, {v(aT)} row_ror:8 {DPP}
    v_max_f32_dpp {v(aT)}, {v(aT)}, {v(aT)} row_bcast:15 row_mask:0xa bank_mask:0xf
    v_max_f32_dpp {v(aT)}, {v(aT)}, {v(aT)} row_bcast:31 row_mask:0xc bank_mask:0xf
    v_readlane_b32 {MXS}, {v(aT)}, 63
    v_mul_f32 {v(aT)}, {MXS}, v63
    v_fma_f32 {v(aS)}, {v(aS)}, v63, -{v(aT)}
    v_exp_f32 {v(aS)}, {v(aS)}
    v_cvt_pk_bf16_f32 {v(aS)}, {v(aS)}, {v(aS)}
    ds_write_b16 {v(aPW)}, {v(aS)}
    ds_read_b128 {v(aP, 4)}, {v(aPR)}
    v_min_u32 {v(aT)}, -2, {v(aT)}
""")
cyc(2)
a(f"s_cmp_eq_u32 {LAYER}, 0\ns_cbranch_scc1 L_VT")
a.label("L_PV")
a("s_mov_b32 exec_hi, 0\ns_waitcnt lgkmcnt(0)")
cyc(3)
pvm = [f"{SMF} {v(aACC + 4 * j, 4)}, {v(aP, 4)}, {v(VREG + j * 8, 8)}, {v(IDX2)}" for j in range(8)]
oww = [f"ds_write2_b32 {v(aOWW)}, {v(aACC + 8 * jp)}, {v(aACC + 8 * jp + 4)} offset0:{OWJ * jp} offset1:{OWJ * jp + 1}"
       for jp in range(4)]
a(f"""
    {MFMA} {v(aLA, 4)}, {v(aP, 4)}, {v(aONE, 4)}, 0
    {pvm[0]}
    s_nop 0
    {pvm[1]}
    s_mov_b32 {SPIN}, {SPIN_MAX}
    {pvm[2]}
    s_nop 0
    {pvm[3]}
    s_cmp_lt_u32 {W}, 4
    v_min_u32 {v(aLA)}, -2, {v(aLA)}
    {pvm[4]}
    ds_write2_b32 {v(aMLW)}, {v(aT)}, {v(aLA)} offset0:0 offset1:1
    {pvm[5]}
    {oww[0]}
    {pvm[6]}
    {pvm[7]}
    {oww[1]}
    {oww[2]}
    {oww[3]}
    s_mov_b64 exec, -1
""")
cyc(4)
a("s_cbranch_scc1 L_CMB")
a("s_waitcnt lgkmcnt(0)")
cyc(5)
a("s_barrier\ns_branch L_ATT_END")
a.label("L_CMB")
a.c("waves 0..3: softmax weights of the eight partial results, then (behind the barrier) the weighted sum")
cM, cO, cW = 16, 24, 44
a(f"""
L_MXC:
    ds_read_b128 {v(cM, 4)}, {v(aMLR)}
    ds_read_b128 {v(cM + 4, 4)}, {v(aMLR)} offset:16
    s_sub_u32 {SPIN}, {SPIN}, 1
    s_cbranch_scc1 L_MXD
    s_waitcnt lgkmcnt(0)
""")
for o in check_ops([cM, cM + 1, cM + 3, cM + 4, cM + 5, cM + 7], aS):
    a(o)
a(f"""
    v_max_f32 {v(aT)}, {v(cM)}, {v(cM + 4)}
    s_cbranch_vccnz L_MXC
L_MXD:
    v_add_f32 {v(cM + 1)}, {v(cM + 1)}, {v(cM + 3)}
    v_max_f32_dpp {v(aT)}, {v(aT)}, {v(aT)} quad_perm:[1,0,3,2] {DPP}
    v_add_f32 {v(cM + 5)}, {v(cM + 5)}, {v(cM + 7)}
    v_cmp_eq_u32 vcc, 1, v0
    v_max_f32_dpp {v(aT)}, {v(aT)}, {v(aT)} quad_perm:[2,3,0,1] {DPP}
    v_sub_f32 {v(cW)}, {v(cM)}, {v(aT)}
    v_sub_f32 {v(cW + 1)}, {v(cM + 4)}, {v(aT)}
    v_exp_f32 {v(cW)}, {v(cW)}
    v_exp_f32 {v(cW + 1)}, {v(cW + 1)}
    v_mul_f32 {v(aS)}, {v(cW)}, {v(cM + 1)}
    v_fmac_f32 {v(aS)}, {v(cW + 1)}, {v(cM + 5)}
    v_add_f32_dpp {v(aS)}, {v(aS)}, {v(aS)} quad_perm:[1,0,3,2] {DPP}
""")
local_test()
cyc(5)
a("s_barrier")
cyc(6)
a(f"""
    ds_read_b64 {v(cO, 2)}, {v(aOWR)}
    ds_read_b64 {v(cO + 2, 2)}, {v(aOWR)} offset:128
    ds_read_b64 {v(cO + 4, 2)}, {v(aOWR)} offset:{OWS}
    ds_read_b64 {v(cO + 6, 2)}, {v(aOWR)} offset:{OWS + 128}
    v_add_f32_dpp {v(aS)}, {v(aS)}, {v(aS)} quad_perm:[2,3,0,1] {DPP}
    v_rcp_f32 {v(cW + 2)}, {v(aS)}
    v_log_f32 {v(aS)}, {v(aS)}
    v_pk_mul_f32 {v(cW, 2)}, {v(cW, 2)}, {v(cW + 2, 2)} op_sel_hi:[1,0]
    v_add_f32 {v(aS)}, {v(aS)}, {v(aT)}
    s_waitcnt lgkmcnt(2)
    v_pk_add_f32 {v(cO, 2)}, {v(cO, 2)}, {v(cO + 2, 2)}
    v_pk_mul_f32 {v(cO, 2)}, {v(cO, 2)}, {v(cW, 2)} op_sel_hi:[1,0]
    s_waitcnt lgkmcnt(0)
    v_pk_add_f32 {v(cO + 4, 2)}, {v(cO + 4, 2)}, {v(cO + 6, 2)}
    v_pk_fma_f32 {v(cO, 2)}, {v(cO + 4, 2)}, {v(cW, 2)}, {v(cO, 2)} op_sel:[0,1,0] op_sel_hi:[1,1,1]
""")
lane_sum([cO, cO + 1], ["x1", "x2"], [])
a(f"""
    v_cvt_pk_bf16_f32 {v(cO)}, {v(cO)}, {v(cO + 1)}
    v_cndmask_b32 {v(cO)}, {v(cO)}, {v(aS)}, vcc
    s_mov_b64 exec, {sp(OBM)}
    v_min_u32 {v(cO)}, -2, {v(cO)}
""")
cyc(7)
store_local(f"global_store_dword {v(aOBA)}, {v(cO)}, {sp(EX)}")
a("s_mov_b64 exec, -1")
a.label("L_ATT_END")
stamp(3)
if CUT & 1:
    a("s_branch L_FIN")
a(f"s_cmp_eq_u32 {LAYER}, 0\ns_cbranch_scc1 L_STAGE")
a.label("L_ROLE")
a(f"s_cmp_lg_u32 {PATH}, 0\ns_cbranch_scc1 L_ROLE2")

oB, oA, oACC, oL, oT, oT2 = 64, 16, 48, 4, 6, 7
rL, rR, rA, rS, rT, rSC = 48, 16, 2, 4, 5, 8


EX2 = KB


def pb_store(addr, data):
    if OPT["wide"] & 2:
        quad_gather(data)
        a(f"global_store_dwordx4 {v(addr)}, {v(data, 4)}, {sp(EX)} sc1")
        a(f"global_store_dwordx4 {v(addr)}, {v(data, 4)}, {sp(EX2)} sc1")
        a("s_mov_b64 exec, -1")
        return
    a(f"global_store_dword {v(addr)}, {v(data)}, {sp(EX)} sc1")
    if OPT["near"]:
        a(f"global_store_dword {v(addr)}, {v(data)}, {sp(EX2)} sc1")


def op_load_b():
    lane_expr(oT2, oT, [(4, 1, 32)])
    a(f"s_lshl_b32 {T0}, {W}, 5\nv_xor_b32 v9, {T0}, {v(oT2)}")
    b_addr(oT, oT2, 64, [(0, 2, 8)], L_WO, R32)
    a(f"v_add_u32 {v(oT)}, {v(oT)}, v9")


ld = [(f"global_load_dwordx4 {v(oA + 4 * n, 4)}, {v(oBA)}, {sp(EX)} offset:{n * 1024 - 4096} sc1", oA + 4 * n, 4)
      for n in range(8)]
ld.append((f"global_load_dwordx2 {v(oL, 2)}, {v(oLA)}, {sp(EX)} sc1", oL, 2))
op_load_b()
b_reads(oB, oT, 8, 64, R32)


def op_pre():
    zero(range(oACC, oACC + 16))
    a(f"s_lshr_b32 {T1}, {TILE}, 2\ns_and_b32 {T2}, {TILE}, 3")
    lin(rA, 4, [(T1, 16384), (T2, 2048)], PB1)
    add64(EX2, EX, 8192)


poll(ld, oT2, OPT["p_op"], pre=op_pre)
a("s_waitcnt lgkmcnt(0)")
wops = [f"v_sub_f32 {v(oT)}, {v(oL + 1)}, {v(oL)}", f"v_exp_f32 {v(oT)}, {v(oT)}", f"v_add_f32 {v(oT)}, 1.0, {v(oT)}",
        f"v_rcp_f32 v8, {v(oT)}", "v_sub_f32 v9, 1.0, v8"]


def op_fold(hh):
    r = oACC + 4 * hh
    qp_ = f"quad_perm:[{hh},{hh},{hh},{hh}] {DPP}"
    op = "v_mul_f32_dpp" if hh == 0 else "v_fmac_f32_dpp"
    a(f"{op} {v(oT)}, v8, {v(r)} {qp_}\n{op} {v(oT2)}, v9, {v(r + 1)} {qp_}")


for n in range(8):
    a(f"{SMF} {v(oACC + 4 * (n >> 1), 4)}, {v(oA + 4 * n, 4)}, {v(oB + 8 * n, 8)}, {v(IDX)}")
    if wops:
        a(wops.pop(0))
stamp(4)
for hh in range(4):
    r = oACC + 4 * hh
    a(f"v_pk_add_f32 {v(r, 2)}, {v(r, 2)}, {v(r + 2, 2)}")
    if hh:
        op_fold(hh - 1)
op_fold(3)
a(f"""
    v_add_f32 {v(oT)}, {v(oT)}, {v(oT2)}
    v_min_u32 v60, -2, {v(oT)}
""")
pb_store(oSA, 60)
stamp(5)
cy2(0)

def red_dst(dst):
    if dst == XA:
        a(f"s_lshr_b32 {T1}, {TILE}, 3\ns_and_b32 {T2}, {TILE}, 7\ns_lshl_b32 {T1}, {T1}, 10")
    else:
        a(f"""
        s_mul_i32 {T1}, {TILE}, 26
        s_lshr_b32 {T1}, {T1}, 8
        s_mul_i32 {T2}, {T1}, 10
        s_sub_u32 {T2}, {TILE}, {T2}
        s_mul_i32 {T1}, {T1}, 1280
        """)
    s_expr(T0, [(G, 5120), (T1, 1)], dst)
    a(f"""
    s_and_b32 {T1}, {T2}, 1
    s_lshl_b32 {T1}, {T1}, 9
    s_and_b32 {T3}, {T2}, 2
    s_lshl_b32 {T3}, {T3}, 4
    s_add_u32 {T1}, {T1}, {T3}
    s_and_b32 {T3}, {T2}, 4
    s_lshl_b32 {T3}, {T3}, 2
    s_add_u32 {T1}, {T1}, {T3}
    s_lshl_b32 {T3}, {T2}, 7
    s_cmp_ge_u32 {T2}, 8
    s_cselect_b32 {T1}, {T3}, {T1}
    s_cselect_b32 {T2}, 4, 6
    s_add_u32 {T0}, {T0}, {T1}
    """)
    lane_expr(rS, rT, [(1, 1, 4), (2, 2, 1)])
    a(f"""
    v_lshlrev_b32 {v(rS)}, {T2}, {v(rS)}
    v_and_b32 {v(rT)}, 1, v0
    v_lshl_add_u32 {v(rS)}, {v(rT)}, 3, {v(rS)}
    v_lshrrev_b32 {v(rT)}, 5, v0
    v_lshl_add_u32 {v(rS)}, {v(rT)}, 2, {v(rS)}
    v_add_u32 {v(rS)}, {T0}, {v(rS)}
    """)


def red_collect(st, scale, mid):
    mid()
    if OPT["near"]:
        a(f"""
        s_waitcnt vmcnt(1)
        s_nop {OPT["gap"]}
        s_getreg_b32 {T0}, hwreg(HW_REG_IB_STS, 0, 4)
        s_cmp_eq_u32 {T0}, 0
        s_cselect_b32 s{TB}, s{EX2}, s{EX}
        s_cselect_b32 s{TB + 1}, s{EX2 + 1}, s{EX + 1}
        """)
    base = TB if OPT["near"] else EX
    poll([(f"global_load_dwordx4 {v(rR + 4 * i, 4)}, {v(rA)}, {sp(base)} offset:{i * 1024} sc1", rR + 4 * i, 4)
          for i in range(2)], rT, 2)
    a(f"v_pk_add_f32 {v(rL, 2)}, {v(rR, 2)}, {v(rR + 4, 2)}\nv_pk_add_f32 {v(rL + 2, 2)}, {v(rR + 2, 2)}, {v(rR + 6, 2)}")
    stamp(st)
    a(f"""
    v_permlane32_swap_b32 {v(rL)}, {v(rL + 2)}
    v_permlane32_swap_b32 {v(rL + 1)}, {v(rL + 3)}
    v_pk_add_f32 {v(rL, 2)}, {v(rL, 2)}, {v(rL + 2, 2)}
    v_mov_b32 {v(rL + 2)}, {v(rL)}
    v_mov_b32 {v(rL + 3)}, {v(rL + 1)}
    v_permlane16_swap_b32 {v(rL)}, {v(rL + 2)}
    v_permlane16_swap_b32 {v(rL + 1)}, {v(rL + 3)}
    v_pk_add_f32 {v(rL, 2)}, {v(rL, 2)}, {v(rL + 2, 2)}
    """)
    if scale:
        a(f"v_pk_mul_f32 {v(rL, 2)}, {v(rL, 2)}, {v(rSC, 2)} op_sel_hi:[1,0]")
    a(f"""
    v_cvt_pk_bf16_f32 {v(rL)}, {v(rL)}, {v(rL + 1)}
    v_and_b32 {v(rL + 1)}, 0xffff0000, {v(rL)}
    v_lshlrev_b32 {v(rL)}, 16, {v(rL)}
    v_pk_add_f32 {v(rL, 2)}, {v(rL, 2)}, {v(rX0, 2)}
    v_cvt_pk_bf16_f32 {v(rL)}, {v(rL)}, {v(rL + 1)}
    s_mov_b32 exec_lo, 0xffff
    s_mov_b32 exec_hi, 0xffff
    """)


def red_publish():
    local_test()
    a(f"v_min_u32 {v(rL + 1)}, -2, {v(rL)}")
    store_local(f"global_store_dword {v(rS)}, {v(rL + 1)}, {sp(EX)}")
    a(f"""
    s_mov_b64 exec, -1
    v_and_b32 {v(rX1)}, 0xffff0000, {v(rL)}
    v_lshlrev_b32 {v(rX0)}, 16, {v(rL)}
    """)


red_collect(6, False, lambda: red_dst(XA))
red_publish()
stamp(7)
dB, dA, dACC, dHA0, dHA1, dSA, dT, dT2, dX = 64, 48, 56, 3, 4, 5, 6, 7, 96
a(f"s_cmp_lg_u32 {LAYER}, 0\ns_cbranch_scc1 L_WD6")
s_expr(T0, [(TILE, 32)])
lane_expr(dT, dT2, [(1, 5, 1280), (0, 1, 16)], T0)
s_expr(T2, [(W, 8 * D32)], L_WD)
for i in range(7):
    if i == 6:
        a(f"s_cmp_eq_u32 {NU}, 6\ns_cbranch_scc1 L_WD6")
    a(f"s_add_u32 m0, {T2}, {i * D32}")
    a(f"global_load_lds_dwordx4 {v(dT)}, {sp(WOB)}")
    if i < 6:
        add64(WOB, WOB, 32 * 1280)
a.label("L_WD6")
lin(dHA0, 4, [(G, 2048)], HB)
a(f"""
    s_cmp_eq_u32 {NU}, 6
    s_cselect_b32 {T1}, 2, 0
    v_or_b32 {v(dT)}, {T1}, v0
    v_lshrrev_b32 {v(dT2)}, 1, {v(dT)}
    v_and_b32 {v(dT)}, {v(dT)}, {v(dT2)}
    v_and_b32 {v(dT)}, 1, {v(dT)}
    v_lshlrev_b32 {v(dT)}, 4, {v(dT)}
    v_sub_u32 {v(dHA1)}, {v(dHA0)}, {v(dT)}
    v_add_u32 {v(dSA)}, {PB2 - PB1}, {v(oSA)}
    v_add_u32 {v(rA)}, {PB2 - PB1}, {v(rA)}
""")
lin(10, 4, [(G, 5120)], XA + 2048)
s_expr(T0, [(W, 8 * D32)], L_WD)
b_addr(dT, dT2, 32, [(0, 2, 8)], T0, D32)
a("s_waitcnt vmcnt(0)")
b_reads(dB, dT, 4, 32, D32)
zero(range(dACC, dACC + 8))
a.c("variance of x: 1/(var+eps) scales the FFN output after the reduce")
poll([(f"global_load_dwordx4 {v(dX + 4 * u, 4)}, v10, {sp(EX)} offset:{u * 1024 - 2048} sc1", dX + 4 * u, 4)
      for u in range(5)], dT2, 0)
a("s_waitcnt lgkmcnt(0)")


def red_stats():
    ln_stats(range(dX, dX + 20), 9, rSC, ["x1", "x2", "s16", "s32"], 10, dT)
    a(f"v_rcp_f32 {v(rSC)}, {v(rSC)}")


poll([(f"global_load_dwordx4 {v(dA, 4)}, {v(dHA0)}, {sp(EX)} sc1", dA, 4),
      (f"global_load_dwordx4 {v(dA + 4, 4)}, {v(dHA1)}, {sp(EX)} offset:1024 sc1", dA + 4, 4)], dT2, OPT["p_dn"],
     pre=red_stats)
for n in range(4):
    u, q = n >> 1, n & 1
    a(f"{SMF} {v(dACC + 4 * q, 4)}, {v(dA + 4 * u, 4)}, {v(dB + 8 * n, 8)}, {v(IDX)}")
a(f"""
    s_and_b32 {T0}, {TILE}, 7
    s_cmp_lg_u32 {T0}, {G}
    s_cselect_b32 {T0}, {LAYER}, 0
    s_cmp_lg_u32 {T0}, 0
    v_add_f32 {v(dACC)}, {v(dACC)}, {v(dACC + 2)}
    v_add_f32 {v(dACC + 5)}, {v(dACC + 5)}, {v(dACC + 7)}
    v_add_f32 {v(dACC)}, {v(dACC)}, {v(dACC + 5)}
    v_min_u32 {v(dACC)}, -2, {v(dACC)}
""")
pb_store(dSA, dACC)
if DIAG and OPT["stamps"] & 2:
    stamp(1)
    a(f"s_cmp_lg_u32 {T0}, 0")
a("s_cbranch_scc1 L_FIN")


def red2_mid():
    red_dst(XF)
    s_expr(T0, [(TILE, 32)])
    lane_expr(6, 7, [(2, 2, 1280), (0, 2, 8), (5, 1, 4)], T0)


red_collect(2, True, red2_mid)
a(f"""
    s_cmp_eq_u32 {LAYER}, 0
    s_cbranch_scc1 L_RED2P
    global_store_dword v6, {v(rL)}, {sp(pOUT)}
    s_mov_b64 exec, -1
    s_branch L_FIN
L_RED2P:
""")
red_publish()
a("s_branch L_NEXT")

a.label("L_VT")
v_tail()
a("s_nop 1\ns_branch L_PV")

a.label("L_STAGE")
a.c("stage this workgroup's role weights (L2 hits after the prefetch), then make them visible to every wave")
prostamp(0, 2)
a(f"s_cmp_lg_u32 {ROLE}, 0\ns_cbranch_scc1 L_RG_U")
for i in range(4):
    a(f"""
    s_add_u32 {T0}, {G}, {i}
    s_and_b32 {T0}, {T0}, 7
    s_add_u32 {T0}, {T0}, {8 * i}
    s_mul_i32 {T0}, {T0}, {128 * 1280}
    s_add_u32 m0, {T2L}, {i * 4 * R32}
    """)
    add64(TB, WOB, T0)
    a(f"global_load_lds_dwordx4 {v(vDMA)}, {sp(TB)}")
s_expr(T0, [(FB0, 32 * 1280)])
add64(WOB, pWD, T0)
a("s_waitcnt vmcnt(0)\ns_barrier")
prostamp(5, 2)
a("s_branch L_ROLE")
a.label("L_RG_U")
a.c("other workgroups: one dword per 128-byte line of the W_gate / W_up columns of this group")
if OPT["nm"] < 14:
    gu_prefetch(OPT["nm"], 14)
a.c("workgroups without a role also pull W_down in")
a(f"s_cmp_lt_u32 {J}, 27\ns_cbranch_scc1 L_RG_G")
s_expr(T1, [(J, 8), (W, 1)], -27 * 8)
s_expr(T0, [(FB0, 32 * 1280)])
add64(TB, pWD, T0)
a(f"""
    s_mul_i32 {T0}, {T1}, {NU}
    s_lshl_b32 {T0}, {T0}, 3
    s_lshl_b32 {T1}, {NU}, 3
    s_sub_u32 {T1}, {T1}, 1
    v_min_u32 {v(vPF)}, {T1}, v0
    v_add_u32 {v(vPF)}, {T0}, {v(vPF)}
    v_lshlrev_b32 {v(vPF)}, 7, {v(vPF)}
    global_load_dword {v(vDUM)}, {v(vPF)}, {sp(TB)}
""")
a.label("L_RG_G")
prostamp(1, 2)
a(f"s_waitcnt vmcnt(0)\ns_cmp_lg_u32 {ROLE}, 1\ns_cbranch_scc1 L_ROLE2")
prostamp(2, 2)
for i in range(10):
    a(f"s_add_u32 m0, {T2L}, {i * 2 * R32}")
    a(f"global_load_lds_dwordx4 {v(vDMA)}, {sp(WOB)}")
    if i < 9:
        add64(WOB, WOB, 64 * 3456)
a("s_waitcnt vmcnt(0)\ns_barrier")
prostamp(5, 2)

a.label("L_ROLE2")
a(f"""
    s_cmp_eq_u32 {PATH}, 2
    s_cbranch_scc1 L_HI
    s_cmp_eq_u32 {PATH}, 3
    s_cbranch_scc1 L_IDLE
""")
uB, uX, uACC, uS1, uONE, uXA, uSA, uCS, uT = 48, 28, 20, 16, 8, 3, 4, 5, 6
lin(uXA, 4, [(G, 5120)], XA + 2048)


def up_setup():
    lane_expr(uSA, uCS, [(4, 1, 32), (1, 1, 16)])
    a(f"s_lshl_b32 {T0}, {W}, 4\nv_xor_b32 {v(uSA)}, {T0}, {v(uSA)}")
    b_addr(uT, uCS, 64, [(0, 1, 8), (1, 1, L_WU - L_WG)], L_WG, R32)
    a(f"v_add_u32 {v(uT)}, {v(uT)}, {v(uSA)}")
    b_reads(uB, uT, 10, 64, R32)
    for i in range(4):
        a(f"v_mov_b32 {v(uONE + i)}, {ONES}")
    zero(range(uS1, uS1 + 4))
    a(f"""
    s_sub_u32 {T1}, {J}, 20
    s_lshr_b32 {T0}, {T1}, 2
    s_lshl_b32 {T0}, {T0}, 10
    s_and_b32 {T2}, {T1}, 2
    s_and_b32 {T1}, {T1}, 1
    """)
    s_expr(T0, [(T0, 1), (G, 2048), (T2, 8), (T1, 32), (W, 256)], HB)
    lane_expr(uSA, uT, [(4, 2, 64), (1, 2, 4)], T0)
    zero(range(uACC, uACC + 8))
    a("s_waitcnt lgkmcnt(0)")
    for n in range(10):
        a(f"{SMF} {v(uS1, 4)}, {v(uONE, 4)}, {v(uB + 8 * n, 8)}, {v(IDX)}")
    a(f"""
    v_add_f32 {v(uCS)}, {v(uS1)}, {v(uS1 + 2)}
    v_mul_f32 {v(uCS)}, {f32(1.0 / 640)}, {v(uCS)}
    """)
    stamp(7)


poll([(f"global_load_dwordx4 {v(uX + 4 * u, 4)}, {v(uXA)}, {sp(EX)} offset:{u * 1024 - 2048} sc1", uX + 4 * u, 4)
      for u in range(5)], uT, 0, pre=up_setup)
stamp(4)
for u in range(5):
    a(f"{MFMA} {v(uS1, 4)}, {v(uX + 4 * u, 4)}, {v(uONE, 4)}, {'0' if u == 0 else v(uS1, 4)}")
for n in range(10):
    u, q = n >> 1, n & 1
    a(f"{SMF} {v(uACC + 4 * q, 4)}, {v(uX + 4 * u, 4)}, {v(uB + 8 * n, 8)}, {v(IDX)}")
    if n == 7:
        a(f"v_pk_add_f32 {v(uS1, 2)}, {v(uS1, 2)}, {v(uS1 + 2, 2)}")
    if n == 8:
        a(f"v_add_f32 {v(uS1)}, {v(uS1)}, {v(uS1 + 1)}")
a(f"s_mov_b32 s{MSK}, 0x00550055\ns_mov_b32 s{MSK + 1}, 0x00550055")
local_test()
a(f"""
    v_add_f32 {v(uACC)}, {v(uACC)}, {v(uACC + 2)}
    v_add_f32 {v(uACC + 5)}, {v(uACC + 5)}, {v(uACC + 7)}
    v_fma_f32 {v(uACC)}, -{v(uS1)}, {v(uCS)}, {v(uACC)}
    v_add_f32 {v(uACC)}, {v(uACC)}, {v(uACC + 5)}
    v_cvt_pk_bf16_f32 {v(uACC)}, {v(uACC)}, {v(uACC)}
    v_and_b32 {v(uACC)}, 0xffff0000, {v(uACC)}
    v_max_f32 {v(uACC + 1)}, 0, {v(uACC)}
    v_mul_f32_dpp {v(uACC + 1)}, {v(uACC)}, {v(uACC + 1)} row_ror:8 {DPP}
    v_mov_b32_dpp {v(uACC)}, {v(uACC + 1)} quad_perm:[1,1,3,3] {DPP}
    v_cvt_pk_bf16_f32 {v(uACC)}, {v(uACC + 1)}, {v(uACC)}
    v_min_u32 {v(uACC)}, -2, {v(uACC)}
    s_mov_b64 exec, {sp(MSK)}
""")
store_local(f"global_store_dword {v(uSA)}, {v(uACC)}, {sp(EX)}")
a("s_mov_b64 exec, -1")
stamp(5)
a.label("L_IDLE")
a(f"s_cmp_lg_u32 {LAYER}, 0\ns_cbranch_scc1 L_FIN")
a.label("L_NEXT")
a(f"s_cmp_eq_u32 {W}, 3\ns_cbranch_scc1 L_HI")
att_addr(1)
att_init()
a("s_waitcnt lgkmcnt(0)")
a(f"s_mov_b32 {LAYER}, 1")
add64(EX, EX, LSTRIDE)
a("s_branch L_BAR")

a.label("L_HI")
a(f"s_cmp_lg_u32 {LAYER}, 0\ns_cbranch_scc1 L_FIN")
a.c("stay off the L2 until the first half of the layer is done")
s_expr(T0, [(G, 5120)], XA)
a(f"v_mov_b32 v17, {T0}")
light(f"global_load_dword v18, v17, {sp(EX)} sc1", 18, 8)
att_addr(1)
att_init()
add64(EX, EX, LSTRIDE)
a(f"s_cmp_eq_u32 {W}, 3\ns_cbranch_scc1 L_POLLER")
q = Q2M
qp_setup(q)
a(f"s_and_b32 {T1}, {J}, 3")
lin(q.XA0, 4, [(T1, 1280), (G, 5120)], XF)
lane_expr(q.XA1, q.T, [(2, 4, 16)], T0)
qp_saddr(q, QB2)
a("s_waitcnt lgkmcnt(0)")
poll([(f"global_load_dwordx4 {v(q.X, 4)}, {v(q.XA0)}, {sp(pWS)} sc1", q.X, 4),
      (f"global_load_dwordx4 {v(q.X + 4, 4)}, {v(q.XA1)}, {sp(pWS)} offset:1024 sc1", q.X + 4, 4)], q.T, OPT["p_qp"])
qp_mm(q)
stamp(4)
local_test()
qp_sum(q)
store_local(f"global_store_dword {v(q.SA)}, {v(q.A[0])}, {sp(pWS)}")
stamp(5)
a(f"s_mov_b32 {LAYER}, 1\ns_branch L_BAR")

a.label("L_POLLER")
poller_qaddr(QB2)
if OPT["warm"]:
    for ins, _, _ in poller_qloads():
        a(ins)
s_expr(T0, [(G, 5120), (BB, 64)], XF)
lane_expr(124, pT, [(4, 2, 1280), (2, 2, 256), (0, 2, 16)], T0)
s_expr(T0, [(G, 5120), (BB, 16)], XF + 1024)
lane_expr(125, pT, [(4, 2, 1280), (2, 2, 64), (0, 2, 4)], T0)
poll([(f"global_load_dwordx4 {v(pX_, 4)}, v124, {sp(pWS)} sc1", pX_, 4),
      (f"global_load_dword {v(pX_ + 4)}, v125, {sp(pWS)} sc1", pX_ + 4, 1)], pT, OPT["p_px"])
stamp(4)
poller_stats()
stamp(5)
poll(poller_qloads(), pT, 0)
stamp(6)
poller_finish()
a(f"s_mov_b32 {LAYER}, 1\ns_waitcnt lgkmcnt(0)\ns_branch L_BAR")

a.label("L_FIN")
if OPT["padto"]:
    a(f"""
L_PAD:
    s_sleep 4
    s_memrealtime s[98:99]
    s_waitcnt lgkmcnt(0)
    s_sub_u32 s98, s98, s96
    s_cmp_lt_u32 s98, {OPT["padto"] * 100}
    s_cbranch_scc1 L_PAD
    """)
if DIAG:
    a("s_memrealtime s[98:99]\ns_memtime s[50:51]\ns_waitcnt lgkmcnt(0)\nv_mov_b32 v1, 0\ns_sub_u32 s50, s50, s100\nv_writelane_b32 v1, s50, 21")
    for i in range(16):
        a(f"v_writelane_b32 v1, s{STAMP0 + 2 * i}, {(i // 8) * 10 + i % 8}")
    a(f"""
    v_writelane_b32 v1, s96, 9
    v_writelane_b32 v1, s98, 19
    v_writelane_b32 v1, {LOCAL}, 20
    s_lshl_b32 {T0}, s2, 3
    s_add_u32 {T0}, {T0}, {W}
    s_lshl_b32 {T0}, {T0}, 8
    s_add_u32 {T0}, {T0}, {DIAG_OFF}
    v_lshl_add_u32 v2, v0, 2, {T0}
    global_store_dword v2, v1, {sp(pWS)}
    """)
a.label("L_END")
a("s_endpgm")

a.raw(f""".section .rodata,"a"
.p2align 6
.amdhsa_kernel {NAME}_kernel
  .amdhsa_next_free_vgpr 256
  .amdhsa_next_free_sgpr 102
  .amdhsa_accum_offset 256
  .amdhsa_group_segment_fixed_size 0
  .amdhsa_kernarg_size 96
  .amdhsa_user_sgpr_count 2
  .amdhsa_user_sgpr_kernarg_segment_ptr 1
  .amdhsa_system_sgpr_workgroup_id_x 1
  .amdhsa_float_denorm_mode_32 3
.end_amdhsa_kernel""")

open(sys.argv[1], "w").write(a.text())
print("written", sys.argv[1], "lines", len(a.out), "pad states", a.nops)
```

```python
import math
import struct
import sys

sys.path.insert(0, "gen")
from asmlib import Asm

NAME = "interleave_layers__sliding_block_cached__glu_gated_reglu__decode"

OPT = dict(diag=0, stamps=0xff, pro=0, padto=0, cut=0, force_global=0, cyc=0, cy2=0,
           thr=5, k0=4, wq1=4, wq2=4, wq3=4, bq=6, hf=6, hc=16, hd=4, bp=26, xc=0, wide=0, late=0, lay=1, free=6, warm=2, fb=0, fl=0, gate=1, gsl=0, nt=6, qsl=0, usl=0, near=1, gap=3, nm=0,
           slp=1, p_op=2, p_up=0, p_dn=0, p_qp=0, p_px=0)
for a_ in sys.argv[2:]:
    k_, v_ = a_.split("=")
    assert k_ in OPT, k_
    OPT[k_] = int(v_, 0)
DIAG, THR, CUT = OPT["diag"], OPT["thr"], OPT["cut"]

OB, XA, HB, LSE, LS = 0, 8192, 13312, 15360, 15488
XF = 2 * LS
GS = 36864
QR = 8 * GS
QRS = 2560
MK = QR + 256 * QRS
PBB, PBH = 966656, 163840
assert XF + 5120 <= GS and MK + 4096 <= PBB and PBB % 16384 == 0
MSTR = 16
DIAG_OFF = 16 << 20

L_WQ = 0
R32 = 2176
D32 = 1088
L_WO, L_WD = 20480, 55296
L_WG, L_WU = 20480, 64000
assert (L_WU - L_WG) % 256 == 0 and L_WU - L_WG >= 20 * R32 and L_WD >= L_WO + 16 * R32
L_OW = L_WU + 20 * R32
OWS, OWJ = 1184, 68
L_ML = L_OW + 8 * OWS
L_Q = L_ML + 256
L_P = L_Q + 256
L_FLAG = L_P + 1024
LDS_BYTES = L_FLAG + 256

W, G, J, LAYER, LOCAL = "s3", "s4", "s5", "s6", "s7"
pX, pK, pV, pWQ, pWO, pWG, pWU, pWD, pOUT, pDBG, pWS = 8, 10, 12, 14, 16, 20, 22, 24, 26, 28, 30
PM = 8
WOB = 0
KB, VB, TB, MSK, EX, OBM, ODD = 32, 34, 36, 44, 46, 52, 58
T0, T1, T2, T3 = "s38", "s39", "s49", "s50"
CSC, PLO, PHI, SPIN, XCC, PATH = "s40", "s41", "s42", "s43", "s48", "s51"
ONES, H, TILE, BB = "s54", "s55", "s56", "s57"
NU, FB0, ROLE, T2L = "s92", "s93", "s94", "s95"
STAMP0 = 60

KREG, VREG, SREG = 128, 192, 64
IDX, vV = 1, 2
aQA, aPW, aPR, aOWW, aMLW, aOWR, aMLR, aOBA = 3, 4, 5, 6, 7, 8, 9, 10
oBA, oLA, oSA = 11, 12, 13
pCS = 12
rX0, rX1 = 14, 15
vDUM, vPF, vK, vDMA = 56, 57, 58, 59
vWQ = 16

DPP = "row_mask:0xf bank_mask:0xf"
MFMA = "v_mfma_f32_16x16x32_bf16"
SMF = "v_smfmac_f32_16x16x64_bf16"
SPIN_MAX = 1 << 18

a = Asm()


def sp(n):
    return "s[%d:%d]" % (n, n + 1)


def v(n, cnt=1):
    return "v%d" % n if cnt == 1 else "v[%d:%d]" % (n, n + cnt - 1)


def f32(x):
    return "0x%08x" % struct.unpack("<I", struct.pack("<f", x))[0]


def stamp(i):
    if not DIAG or not (OPT["stamps"] >> i) & 1:
        return
    l1, l2 = a.newlabel("ST"), a.newlabel("ST")
    a(f"""
    s_cmp_eq_u32 {LAYER}, 0
    s_cbranch_scc1 {l1}
    s_memrealtime {sp(STAMP0 + 16 + 2 * i)}
    s_branch {l2}
    {l1}:
    s_memrealtime {sp(STAMP0 + 2 * i)}
    {l2}:
    """)


def prostamp(slot, lvl=1):
    if DIAG and OPT["pro"] == lvl:
        a(f"s_memrealtime {sp(STAMP0 + 2 * slot)}")


def cyc(slot):
    if DIAG and (OPT["cyc"] >> slot) & 1:
        a(f"s_memtime {sp(STAMP0 + 2 * slot)}")


def cy2(slot):
    if DIAG and OPT["cy2"]:
        a(f"s_memtime {sp(STAMP0 + 2 * slot)}")


def add64(dst, src, off):
    a(f"s_add_u32 s{dst}, s{src}, {off}\ns_addc_u32 s{dst + 1}, s{src + 1}, 0")


def lane_expr(reg, tmp, fields, base=None):
    first = True
    for pos, width, mul in fields:
        dst = reg if first else tmp
        if pos + width >= 6:
            a(f"v_lshrrev_b32 {v(dst)}, {pos}, v0" if pos else f"v_mov_b32 {v(dst)}, v0")
        elif pos == 0:
            a(f"v_and_b32 {v(dst)}, {(1 << width) - 1}, v0")
        else:
            a(f"v_bfe_u32 {v(dst)}, v0, {pos}, {width}")
        p2 = mul & (mul - 1) == 0
        if first:
            if mul != 1:
                a(f"v_lshlrev_b32 {v(reg)}, {mul.bit_length() - 1}, {v(reg)}" if p2
                  else f"v_mul_u32_u24 {v(reg)}, {mul}, {v(reg)}")
        elif p2:
            a(f"v_lshl_add_u32 {v(reg)}, {v(tmp)}, {mul.bit_length() - 1}, {v(reg)}")
        else:
            a(f"v_mul_u32_u24 {v(tmp)}, {mul}, {v(tmp)}\nv_add_u32 {v(reg)}, {v(reg)}, {v(tmp)}")
        first = False
    if base is not None:
        a(f"v_add_u32 {v(reg)}, {base}, {v(reg)}")


def s_expr(dst, terms, const=0):
    if not terms:
        a(f"s_mov_b32 {dst}, {const}")
        return
    first = True
    for s, mul in terms:
        d = dst if first else T3
        if mul == 1:
            if first:
                if s != d:
                    a(f"s_mov_b32 {d}, {s}")
            else:
                d = s
        elif mul & (mul - 1) == 0:
            a(f"s_lshl_b32 {d}, {s}, {mul.bit_length() - 1}")
        else:
            a(f"s_mul_i32 {d}, {s}, {mul}")
        if not first:
            a(f"s_add_u32 {dst}, {dst}, {d}")
        first = False
    if const:
        a(f"s_add_u32 {dst}, {dst}, {const}")


def lin(reg, shift, terms, const):
    s_expr(T0, terms, const)
    a(f"v_lshl_add_u32 {v(reg)}, v0, {shift}, {T0}")


def store_local(ins):
    lg, le = a.newlabel("SG"), a.newlabel("SE")
    a(f"""
    s_cbranch_scc1 {lg}
    {ins}
    s_branch {le}
    {lg}:
    {ins} sc1
    {le}:
    """)


def local_test():
    a(f"s_cmp_eq_u32 {LOCAL}, 0")


def check_ops(regs, tmp, dst="vcc"):
    ops, regs = [], list(regs)
    if len(regs) == 1:
        return [f"v_cmp_eq_u32 {dst}, -1, {v(regs[0])}"]
    if len(regs) == 2:
        ops.append(f"v_max_u32 {v(tmp)}, {v(regs[0])}, {v(regs[1])}")
    else:
        ops.append(f"v_max3_u32 {v(tmp)}, {v(regs[0])}, {v(regs[1])}, {v(regs[2])}")
        rest = regs[3:]
        while len(rest) >= 2:
            ops.append(f"v_max3_u32 {v(tmp)}, {v(tmp)}, {v(rest[0])}, {v(rest[1])}")
            rest = rest[2:]
        if rest:
            ops.append(f"v_max_u32 {v(tmp)}, {v(tmp)}, {v(rest[0])}")
    ops.append(f"v_cmp_eq_u32 {dst}, -1, {v(tmp)}")
    return ops


def light(ins, r0, slp):
    l1, ok = a.newlabel("PL"), a.newlabel("PK")
    a(f"s_mov_b32 {SPIN}, {SPIN_MAX}\ns_mov_b64 exec, 1")
    a.label(l1)
    a(f"{ins}\ns_waitcnt vmcnt(0)\nv_cmp_eq_u32 vcc, -1, {v(r0)}\ns_cbranch_vccz {ok}")
    if slp:
        a(f"s_sleep {slp}")
    a(f"s_sub_u32 {SPIN}, {SPIN}, 1\ns_cbranch_scc0 {l1}\n{ok}:\ns_mov_b64 exec, -1")


def poll(loads, tmp, mode=0, pre=None, slp=0):
    if mode == 1:
        light(loads[-1][0], loads[-1][1], OPT["slp"])
    if mode == 2:
        a("s_waitcnt vmcnt(0)")
    l2, chk, done = a.newlabel("PM"), a.newlabel("PC"), a.newlabel("PD")
    for ins, r0, n in loads:
        a(ins)
    a(f"s_mov_b32 {SPIN}, {SPIN_MAX}")
    if pre:
        pre()
    a(f"s_branch {chk}")
    a.label(l2)
    if slp:
        a(f"s_sleep {slp}")
    for u, (ins, r0, n) in enumerate(loads):
        a(f"s_mov_b64 exec, {sp(PM + 2 * u)}")
        a(ins)
    a(f"s_mov_b64 exec, -1\ns_sub_u32 {SPIN}, {SPIN}, 1\ns_cbranch_scc1 {done}")
    a.label(chk)
    nl = len(loads)
    for u, (ins, r0, n) in enumerate(loads):
        a(f"s_waitcnt vmcnt({nl - 1 - u})")
        for o in check_ops(range(r0, r0 + n), tmp, sp(PM + 2 * u)):
            a(o)
        if u == 1:
            pend = f"s_or_b64 {sp(MSK)}, {sp(PM)}, {sp(PM + 2)}"
        elif u > 1:
            a(pend)
            pend = f"s_or_b64 {sp(MSK)}, {sp(MSK)}, {sp(PM + 2 * u)}"
    a(pend)
    a(f"s_cbranch_scc1 {l2}\n{done}:")


def quad_gather(r):
    for k in (1, 2, 3):
        a(f"v_mov_b32_dpp {v(r + k)}, {v(r)} quad_perm:[{k},{k},{k},{k}] {DPP}")
    a(f"s_mov_b32 exec_lo, 0x11111111\ns_mov_b32 exec_hi, 0x11111111")


def zero(regs):
    for r in regs:
        a(f"v_mov_b32 {v(r)}, 0")


def b_addr(reg, tmp, rowbytes, extra, base, r32=None):
    lane_expr(reg, tmp, [(3, 1, r32 or 32 * rowbytes), (4, 2, 4 * rowbytes), (2, 1, rowbytes)] + extra, base)


def b_reads(dst, addr, nblk, rowbytes, r32=None):
    r32 = r32 or 32 * rowbytes
    for blk in range(nblk):
        for rho in range(4):
            off = 2 * r32 * blk + (16 * (rho >> 1) + 2 * (rho & 1)) * rowbytes
            a(f"ds_read_b64_tr_b16 {v(dst + 8 * blk + 2 * rho, 2)}, {v(addr)} offset:{off}")


def lane_sum(regs, steps, tmps):
    for st in steps:
        if st in ("s16", "s32"):
            for r, t in zip(regs, tmps):
                a(f"v_mov_b32 {v(t)}, {v(r)}")
            for r, t in zip(regs, tmps):
                a(f"v_permlane{st[1:]}_swap_b32 {v(r)}, {v(t)}")
            for r, t in zip(regs, tmps):
                a(f"v_add_f32 {v(r)}, {v(r)}, {v(t)}")
        else:
            pat = {"x1": "quad_perm:[1,0,3,2]", "x2": "quad_perm:[2,3,0,1]", "hm": "row_half_mirror",
                   "r4": "row_ror:4", "r8": "row_ror:8"}[st]
            for r in regs:
                a(f"v_add_f32_dpp {v(r)}, {v(r)}, {v(r)} {pat} {DPP}")


def ln_stats(xregs, s1, s2, steps, t1, t2):
    for n, r in enumerate(xregs):
        a(f"v_dot2_f32_bf16 {v(s1)}, {v(r)}, {ONES}, {'0' if n == 0 else v(s1)}")
        a(f"v_dot2_f32_bf16 {v(s2)}, {v(r)}, {v(r)}, {'0' if n == 0 else v(s2)}")
    lane_sum([s1, s2], steps, [t1, t2])
    a(f"""
    v_mul_f32 {v(s1)}, {f32(1.0 / 640)}, {v(s1)}
    v_mul_f32 {v(s2)}, {f32(1.0 / 640)}, {v(s2)}
    v_fma_f32 {v(s2)}, -{v(s1)}, {v(s1)}, {v(s2)}
    v_max_f32 {v(s2)}, 0, {v(s2)}
    v_add_f32 {v(s2)}, {f32(1e-5)}, {v(s2)}
    """)


class QM:
    def __init__(self, B, X, A, XA0, XA1, SA, T):
        self.B, self.X, self.A, self.XA0, self.XA1, self.SA, self.T = B, X, A, XA0, XA1, SA, T


Q1M = QM(64, 88, [96, 100, 104], 108, 109, 110, 111)
Q2M = QM(96, 120, [36, 44, 56], 41, 42, 43, 60)


def qp_setup(q):
    s_expr(T0, [(W, 32)], L_WQ - 4 * 32)
    b_addr(q.T, q.SA, 128, [(0, 2, 8)], T0)
    b_reads(q.B, q.T, 3, 128)
    for r in q.A:
        zero(range(r, r + 4))


def qp_saddr(reg, off, wmul=256):
    lin(reg, 2, [(G, 32 * QRS), (J, QRS), (W, wmul)], QR + off - 4 * wmul)


def qp_mm(q):
    a(f"""
    {SMF} {v(q.A[0], 4)}, {v(q.X, 4)}, {v(q.B, 8)}, {v(IDX)}
    {SMF} {v(q.A[1], 4)}, {v(q.X, 4)}, {v(q.B + 8, 8)}, {v(IDX)}
    {SMF} {v(q.A[2], 4)}, {v(q.X + 4, 4)}, {v(q.B + 16, 8)}, {v(IDX)}
    """)


def qp_sum(q):
    A0, A1, A2 = q.A
    a(f"""
    v_add_f32 {v(A0)}, {v(A0)}, {v(A0 + 2)}
    v_add_f32 {v(A1 + 1)}, {v(A1 + 1)}, {v(A1 + 3)}
    v_add_f32 {v(A0)}, {v(A0)}, {v(A1 + 1)}
    v_add_f32 {v(A0)}, {v(A0)}, {v(A2)}
    v_min_u32 {v(A0)}, -2, {v(A0)}
    """)


pX_, pQ, pS1, pS2, pA, pC, pLW, pT, pT2 = 104, 112, 120, 121, 122, 123, 124, 125, 126


def poller_stats():
    ln_stats(range(pX_, pX_ + 5), pS1, pS2, ["x1", "x2", "r4", "r8", "s16", "s32"], pT, pT2)
    a(f"v_rsq_f32 {v(pS2)}, {v(pS2)}")


def poller_qaddr(off):
    a(f"s_and_b32 {T1}, {J}, 24")
    s_expr(T0, [(G, 32 * QRS), (T1, QRS), (BB, 64)], QR + off + 3840)
    lane_expr(pA, pT, [(5, 1, 4 * QRS), (3, 2, 256), (0, 3, 8)], T0)
    lane_expr(pLW, pT, [(5, 1, 128), (3, 1, 64), (0, 1, 32), (4, 1, 16), (1, 2, 4)], L_Q)


def poller_qloads():
    return [(f"global_load_dwordx2 {v(pQ + 2 * kq, 2)}, {v(pA)}, {sp(pWS)} offset:{kq * QRS - 3840} sc1", pQ + 2 * kq, 2) for kq in range(4)]


def poller_finish():
    a(f"""
    v_pk_add_f32 {v(pQ, 2)}, {v(pQ, 2)}, {v(pQ + 2, 2)}
    v_pk_add_f32 {v(pQ + 4, 2)}, {v(pQ + 4, 2)}, {v(pQ + 6, 2)}
    v_pk_add_f32 {v(pQ, 2)}, {v(pQ, 2)}, {v(pQ + 4, 2)}
    v_fma_f32 {v(pQ)}, -{v(pS1)}, {v(pCS)}, {v(pQ)}
    v_fma_f32 {v(pQ + 1)}, -{v(pS1)}, {v(pCS + 1)}, {v(pQ + 1)}
    v_mul_f32 {v(pQ)}, {v(pS2)}, {v(pQ)}
    v_mul_f32 {v(pQ + 1)}, {v(pS2)}, {v(pQ + 1)}
    v_cvt_pk_bf16_f32 {v(pQ)}, {v(pQ)}, {v(pQ + 1)}
    ds_write_b32 {v(pLW)}, {v(pQ)}
    """)


aQV, aONE, aLA, IDX2, aQK, aP, aACC, aS, aT = 16, 32, 36, 40, 48, 52, 64, 60, 61


def att_addr(layer):
    t = aT
    lane_expr(aQA, t, [(4, 2, 64), (0, 2, 16)], L_Q)
    s_expr(T0, [(W, 128)], L_P)
    lane_expr(aPW, t, [(0, 1, 64), (2, 1, 32), (4, 1, 16), (1, 1, 8), (5, 1, 4), (3, 1, 2)], T0)
    lane_expr(aPR, t, [(4, 2, 32), (2, 1, 16)], T0)
    lin(aOWW, 3, [(W, OWS)], L_OW)
    s_expr(T0, [(W, 16)], L_ML + 128 * layer)
    lane_expr(aMLW, t, [(4, 1, 8)], T0)
    s_expr(T0, [(W, 32)], L_OW)
    lane_expr(aOWR, t, [(0, 2, 2 * OWS), (2, 2, 4 * OWJ), (4, 2, 8)], T0)
    lane_expr(aMLR, t, [(0, 2, 32)], L_ML + 128 * layer)
    a(f"s_lshr_b32 {T1}, {W}, 1\ns_and_b32 {T2}, {W}, 1")
    s_expr(T0, [(T1, 1024), (T2, 32), (BB, 64)], OB)
    a(f"s_lshr_b32 {T1}, {J}, 3\ns_and_b32 {T2}, {J}, 1")
    s_expr(T0, [(T0, 1), (T1, 2048), (T2, 16)])
    lane_expr(aOBA, t, [(4, 2, 256), (2, 2, 4)], T0)
    s_expr(T0, [(BB, 32), (T1, 8), (T2, 4)], LSE)
    a(f"v_writelane_b32 {v(aOBA)}, {T0}, 1")


def att_init(lo=16, acc=True):
    zero(list(range(lo, 32)) + list(range(aQK, aQK + 8)) + (list(range(aACC, aACC + 32)) if acc else []))
    for i in range(4):
        a(f"v_mov_b32 {v(aONE + i)}, {ONES}")
    a(f"""
    v_bfe_u32 {v(IDX2)}, v0, 2, 1
    v_mul_u32_u24 {v(IDX2)}, 0xaaaa, {v(IDX2)}
    v_add_u32 {v(IDX2)}, 0x4444, {v(IDX2)}
    """)


hdr = open("cdna_kernels/%s.s.ref" % NAME).read().split("\n")
for line in hdr:
    if line.startswith("; @launch"):
        a.raw("; @launch grid=(256,1,1) block=(512,1,1) lds=%d" % LDS_BYTES)
    elif line.startswith(";"):
        a.raw(line)
    else:
        break
a.raw('.amdgcn_target "amdgcn-amd-amdhsa--gfx950"')
a.raw(".text")
a.raw(".globl %s_kernel" % NAME)
a.raw(".p2align 8")
a.raw(".type %s_kernel,@function" % NAME)
a.raw("%s_kernel:" % NAME)
a(f"""
    s_cmp_ge_u32 s2, 256
    s_cbranch_scc1 L_END
    s_load_dwordx16 s[8:23], s[0:1], 0
    s_load_dwordx8 s[24:31], s[0:1], 64
""")
a.c("pull the kernel's own code into L2: four 128-byte lines per workgroup")
a(f"""
    s_getpc_b64 {sp(TB)}
L_PC:
    s_and_b32 {T0}, s2, 0xf8
    s_lshl_b32 {T0}, {T0}, 6
    v_and_b32 v1, 3, v0
    v_lshl_add_u32 v1, v1, 7, {T0}
    v_min_u32 v1, L_END-L_PC, v1
    global_load_dword {v(vDUM)}, v1, {sp(TB)}
    s_mov_b32 {LAYER}, 0
""")
if OPT["padto"]:
    a("s_memrealtime s[96:97]")
if DIAG:
    for i in range(16):
        a(f"s_mov_b64 {sp(STAMP0 + 2 * i)}, 0")
    a("s_memrealtime s[96:97]\ns_memtime s[100:101]")
a(f"""
    v_lshrrev_b32 v1, 6, v0
    v_and_b32 v0, 63, v0
    v_readfirstlane_b32 {W}, v1
    s_and_b32 {G}, s2, 7
    s_lshr_b32 {J}, s2, 3
    s_lshr_b32 {T0}, {J}, 3
    s_add_u32 {H}, {G}, {T0}
    s_and_b32 {H}, {H}, 7
    s_and_b32 {T0}, {J}, 24
    s_add_u32 {H}, {H}, {T0}
    s_bfe_u32 {BB}, {J}, 0x20001
    s_and_b32 {T1}, {J}, 1
""")
s_expr(T2, [(BB, 1 << 25), (H, 1 << 20), (T1, 1 << 17), (W, 1 << (11 if OPT["lay"] else 13))], 0xC0000 + (0 if OPT["lay"] else 4096))
lane_expr(vK, 60, [(1, 3, 256), (0, 1, 64), (4, 2, 16)])
a(f"v_lshlrev_b32 {v(vV)}, 4, v0")
for i in range(4):
    a(f"v_mov_b32 {v(124 + i)}, -1")
a(f"s_lshl_b32 {T0}, {J}, 3\ns_add_u32 {T0}, {T0}, {W}\ns_waitcnt lgkmcnt(0)")
add64(KB, pK, T2)
add64(VB, pV, T2)
a(f"s_cmp_lg_u32 {T0}, {999 if CUT & 128 else 1}\ns_cbranch_scc1 L_PRO_L")
a.c("wave 1 of the group's first workgroup: reset the group's arrival markers, then raise the group's flag")
lin(60, 4, [(G, 32 * MSTR)], MK)
a(f"""
    s_lshl_b32 {T0}, {G}, 5
    v_mov_b32 v62, {T0}
    s_mov_b32 exec_hi, 0
    global_store_dwordx4 v60, v[124:127], {sp(pWS)} sc1
    s_waitcnt vmcnt(0)
    s_mov_b64 exec, 1
    global_store_dword v62, v124, {sp(pDBG)} sc1
    s_mov_b64 exec, -1
L_PRO_L:
""")
a(f"s_cmp_lg_u32 {W}, 2\ns_cselect_b64 vcc, 0, -1\ns_cbranch_scc1 L_PRO_C")


def fill_local(fl, d):
    D = v(d, 4)
    lin(60, 4, [(G, GS), (J, 1152)], 0)
    a(f"global_store_dwordx4 v60, {D}, {sp(pWS)}{fl}")
    a(f"s_mov_b64 exec, 0xff\nglobal_store_dwordx4 v60, {D}, {sp(pWS)} offset:1024{fl}\ns_mov_b64 exec, -1")
    lin(60, 4, [(G, 32 * QRS), (J, QRS)], QR)
    a(f"global_store_dwordx4 v60, {D}, {sp(pWS)}{fl}\nglobal_store_dwordx4 v60, {D}, {sp(pWS)} offset:1024{fl}")
    a(f"s_mov_b32 exec_hi, 0\nglobal_store_dwordx4 v60, {D}, {sp(pWS)} offset:2048{fl}\ns_mov_b64 exec, -1")


def fill_pb(hop, d):
    a(f"s_lshr_b32 {T1}, {J}, 1\ns_and_b32 {T2}, {J}, 1")
    s_expr(T0, [(T1, 16384), (T2, 4096), (G, 256)], PBB + hop * PBH)
    lane_expr(60, 61, [(5, 1, 8192), (4, 1, 2048), (0, 4, 16)], T0)
    a(f"global_store_dwordx4 v60, {v(d, 4)}, {sp(pWS)} sc1")


a.c("wave 2: sentinel fill; plain stores are enough if the group shares one L2 (checked later, redone otherwise)")
if not CUT & 2:
    fill_local("", 124)
    a(f"s_cmp_ge_u32 {J}, 20\ns_cbranch_scc1 L_PRO_C")
    fill_pb(0, 124)
    if OPT["fb"] == 0:
        a(f"v_add_u32 v60, {PBH}, v60\nglobal_store_dwordx4 v60, v[124:127], {sp(pWS)} sc1")
a.label("L_PRO_C")
SKIP = [False]


def stream(i, thr=True):
    if OPT["lay"]:
        B_ = KB if i < 16 else VB
        if i & 15 and not i & 1:
            add64(B_, B_, 16384)
        if i < 16:
            a(f"global_load_dwordx4 {v(KREG + 4 * i, 4)}, {v(vK)}, {sp(KB)} offset:{(i & 1) * 128} nt")
        else:
            a(f"global_load_dwordx4 {v(SREG + (i - 16) * 4, 4)}, {v(vV)}, {sp(VB)} offset:{(i & 1) * 1024} nt")
    elif i < 16:
        if i == 8:
            add64(KB, KB, 65536)
        kq, hf = (i >> 1) & 3, i & 1
        a(f"global_load_dwordx4 {v(KREG + 4 * i, 4)}, {v(vK)}, {sp(KB)} offset:{kq * 2048 + hf * 128 - 4096} nt")
    else:
        if i == 24:
            add64(VB, VB, 65536)
        a(f"global_load_dwordx4 {v(SREG + (i - 16) * 4, 4)}, {v(vV)}, {sp(VB)} offset:{(i & 7) * 1024 - 4096} nt")
    if thr:
        l = a.newlabel("TS")
        if SKIP[0]:
            a(f"s_cbranch_vccnz {l}")
        a(f"s_waitcnt vmcnt({THR - 1})")
        a.label(l)


def only_wave(w, label, off=False):
    a(f"s_cmp_lg_u32 {W}, {9 if off else w}\ns_cbranch_scc1 {label}")


def h_first():
    a(f"s_cmp_ge_u32 {W}, 4\ns_cbranch_scc1 L_PRO_X")
    a(f"s_lshl_b32 {TILE}, {J}, 1\ns_add_u32 {TILE}, {TILE}, {W}")
    a(f"s_cmp_eq_u32 {W}, 3\ns_cbranch_scc1 L_PRO_X3\ns_cmp_eq_u32 {W}, 2\ns_cbranch_scc1 L_PRO_X2")
    a(f"s_min_u32 {T1}, {TILE}, 39")
    s_expr(T0, [(T1, 32)])
    lane_expr(60, 61, [(2, 2, 1280), (0, 2, 8), (5, 1, 4)], T0)
    a(f"global_load_dword {v(rX0)}, v60, {sp(pX)}")
    a("s_branch L_PRO_A")
    a.label("L_PRO_X2")
    a.c("wave 2: LDS zero areas")
    zero(range(44, 48))
    a(f"""
    v_lshlrev_b32 v62, 2, v0
    v_add_u32 v62, {L_ML}, v62
    ds_write_b32 v62, v124
    v_add_u32 v62, {L_WD + 6 * R32}, {v(vV)}
    s_cmp_ge_u32 {J}, 20
    s_cbranch_scc1 L_PRO_A
    ds_write_b128 v62, v[44:47]
    ds_write_b128 v62, v[44:47] offset:1024
    ds_write_b128 v62, v[44:47] offset:{R32}
    ds_write_b128 v62, v[44:47] offset:{R32 + 1024}
    s_branch L_PRO_A
    """)
    a.label("L_PRO_X3")
    lin(60, 2, [(BB, 1280)], 0)
    for u in range(5):
        a(f"global_load_dword {v(pX_ + u)}, v60, {sp(pX)} offset:{u * 256}")
    a("s_branch L_PRO_A")
    a.label("L_PRO_X")
    a(f"s_and_b32 {T1}, {J}, 3")
    s_expr(T0, [(T1, 320)])
    q = Q1M
    lane_expr(q.XA0, q.T, [(2, 2, 1280), (0, 1, 128), (1, 1, 64), (4, 2, 16)], T0)
    lane_expr(q.XA1, q.T, [(2, 2, 1280), (4, 2, 16)], T0)
    a(f"global_load_dwordx4 {v(q.X, 4)}, {v(q.XA0)}, {sp(pX)}")
    a(f"global_load_dwordx4 {v(q.X + 4, 4)}, {v(q.XA1)}, {sp(pX)} offset:256")
    a.label("L_PRO_A")
    lane_expr(vWQ, 61, [(3, 3, 8192), (0, 3, 16)])
    a(f"s_and_b32 {T1}, {J}, 3\ns_and_b32 {T2}, {J}, 4")
    s_expr(T0, [(T1, 160 * 8192), (W, 8 * 8192), (H, 256), (T2, 32)])
    add64(TB, pWQ, T0)
    prostamp(0)


def h_wq(n):
    l = a.newlabel("WQ")
    if n == 2:
        a(f"s_cmp_ge_u32 {W}, 4\ns_cbranch_scc1 {l}")
    a(f"s_lshl_b32 {T1}, {W}, 10\ns_add_u32 m0, {T1}, {L_WQ + n * 8192}")
    if not CUT & 4:
        a(f"global_load_lds_dwordx4 {v(vWQ)}, {sp(TB)} nt")
    if n < 2:
        add64(TB, TB, 64 * 8192)
    a.label(l)


def h_setup1():
    a(f"""
    s_mov_b32 {ONES}, 0x3f803f80
    v_bfe_u32 {v(IDX)}, v0, 1, 1
    v_mul_u32_u24 {v(IDX)}, 0xaaaa, {v(IDX)}
    v_add_u32 {v(IDX)}, 0x4444, {v(IDX)}
    s_mov_b32 {CSC}, {f32(math.log2(math.e) / math.sqrt(128.0))}
    s_mov_b32 {PLO}, 0x05040100
    s_mov_b32 {PHI}, 0x07060302
    s_mov_b32 s{ODD}, 0xaaaaaaaa
    s_mov_b32 s{ODD + 1}, 0xaaaaaaaa
    s_mov_b32 s{OBM}, 0x11111111
    s_mov_b32 s{OBM + 1}, 0x11111111
    s_cmp_eq_u32 {W}, 0
    s_cselect_b32 s{OBM}, 0x11111113, s{OBM}
    s_mul_i32 {T0}, {G}, {GS}
    s_add_u32 s{EX}, s{pWS}, {T0}
    s_addc_u32 s{EX + 1}, s{pWS + 1}, 0
    s_cmp_lt_u32 {G}, 6
    s_cselect_b32 {NU}, 7, 6
    s_mul_i32 {FB0}, {G}, 7
    s_min_u32 {FB0}, {FB0}, 48
    s_sub_u32 {T0}, {J}, 20
    s_cmp_lt_u32 {T0}, {NU}
    s_cselect_b32 {ROLE}, 1, 2
    s_cmp_lt_u32 {J}, 20
    s_cselect_b32 {ROLE}, 0, {ROLE}
    """)
    a.c("PATH: 0 out/down projection, 1 gate/up, 2 q projection or q collector, 3 nothing")
    a(f"""
    s_cmp_ge_u32 {W}, 3
    s_cselect_b32 {PATH}, 2, 3
    s_lshl_b32 {T0}, 2, {ROLE}
    s_and_b32 {T0}, {T0}, 7
    s_cmp_lt_u32 {W}, {T0}
    s_cselect_b32 {PATH}, {ROLE}, {PATH}
    s_cmp_lg_u32 {ROLE}, 0
    s_cbranch_scc1 L_PRO_RU
    """)
    a.c("role weight staging: source pointer, swizzled per-lane offset, LDS base")
    lane_expr(vDMA, 60, [(2, 4, 1280), (0, 2, 16)])
    s_expr(T0, [(W, 16 * 1280), (J, 64)])
    add64(WOB, pWO, T0)
    a(f"s_lshr_b32 {T1}, {W}, 1")
    s_expr(T2L, [(W, 1024), (T1, 128)], L_WO)
    a("s_branch L_PRO_R")
    a.label("L_PRO_RU")
    lane_expr(vDMA, 60, [(2, 4, 3456), (0, 2, 16)])
    a(f"""
    s_and_b32 {T0}, {W}, 4
    s_lshl_b32 {T0}, {T0}, 2
    v_xor_b32 {v(vDMA)}, {T0}, {v(vDMA)}
    s_add_u32 {T1}, {FB0}, {J}
    s_sub_u32 {T1}, {T1}, 20
    s_and_b32 {T2}, {W}, 3
    s_cmp_ge_u32 {W}, 4
    s_cselect_b32 s{WOB}, s{pWU}, s{pWG}
    s_cselect_b32 s{WOB + 1}, s{pWU + 1}, s{pWG + 1}
    s_mov_b32 {T2L}, {L_WG}
    s_cselect_b32 {T2L}, {L_WU}, {T2L}
    s_lshr_b32 {T0}, {T2}, 1
    """)
    s_expr(T2L, [(T2L, 1), (T2, 1024), (T0, 128)])
    s_expr(T0, [(T1, 64), (T2, 16 * 3456)])
    add64(WOB, WOB, T0)
    a.label("L_PRO_R")
    a(f"v_and_b32 v60, 16, v0\nv_lshlrev_b32 v60, 1, v60\nv_xor_b32 {v(vDMA)}, {v(vDMA)}, v60")


def h_setup3():
    att_init(24, acc=False)
    lin(oBA, 4, [], OB + 4096)
    lane_expr(oLA, 61, [(4, 2, 32), (0, 2, 8)], LSE)
    a(f"s_lshr_b32 {T1}, {J}, 1\ns_and_b32 {T2}, {J}, 1")
    lin(oSA, 2, [(T1, 16384), (T2, 4096), (W, 2048), (G, 256)], 0)
    zero([41, 42, pA, pC])


def h_flag():
    a(f"""
    v_and_b32 v17, 7, v0
    v_lshlrev_b32 v17, 5, v17
    v_mov_b32 v18, 0
    v_lshlrev_b32 v19, 4, v0
    v_add_u32 v19, {MK}, v19
    """)
    only_wave(2, "L_HA0", CUT & 32)
    a(f"global_load_dword v18, v17, {sp(pDBG)} sc1")
    a.label("L_HA0")


def h_bq(nafter, nflag):
    a(f"s_waitcnt vmcnt({nafter}) lgkmcnt(0)")
    only_wave(2, "L_HA1", CUT & 32)
    a.c("wave 2: sentinel fill done and the group's markers reset -> publish this workgroup's XCD id")
    lin(62, 2, [(G, 32 * MSTR), (J, MSTR)], MK)
    a(f"""
    s_getreg_b32 {XCC}, hwreg(HW_REG_XCC_ID, 0, 4)
    v_mov_b32 v44, {XCC}
    s_mov_b32 {SPIN}, {SPIN_MAX}
    s_barrier
    s_waitcnt vmcnt({nflag})
L_ARR:
    v_readlane_b32 {T0}, v18, {G}
    s_cmp_lg_u32 {T0}, 0
    s_cbranch_scc1 L_ARR_OK
    global_load_dword v18, v17, {sp(pDBG)} sc1
    s_waitcnt vmcnt(0)
    s_sub_u32 {SPIN}, {SPIN}, 1
    s_cbranch_scc0 L_ARR
L_ARR_OK:
    s_mov_b64 exec, 1
    global_store_dwordx4 v62, v[44:47], {sp(pWS)} sc1
    s_mov_b64 exec, -1
    s_branch L_PRO_KV
L_HA1:
    """)
    prostamp(3)
    a(f"""
    s_barrier
    s_cmp_ge_u32 {W}, {9 if CUT & 16 else 4}
    s_cbranch_scc1 L_PRO_Q
    s_cmp_eq_u32 {W}, 3
    s_cbranch_scc1 L_PRO_P
    v_and_b32 {v(rX1)}, 0xffff0000, {v(rX0)}
    v_lshlrev_b32 {v(rX0)}, 16, {v(rX0)}
    s_branch L_PRO_KV
    """)
    a.label("L_PRO_Q")
    a.c("waves 4..7: partial q projection of layer 1 and partial column sums")
    qp_setup(Q1M)
    qp_saddr(Q1M.SA, 0)
    qB, qSA, qACC = Q1M.B, Q1M.SA, Q1M.A[0]
    qp_saddr(112, 2048, 128)
    zero(range(116, 124))
    for i in range(4):
        a(f"v_mov_b32 {v(124 + i)}, {ONES}")
    a("s_waitcnt lgkmcnt(0)")
    qp_mm(Q1M)
    a(f"""
    {SMF} v[116:119], v[124:127], {v(qB, 8)}, {v(IDX)}
    {SMF} v[116:119], v[124:127], {v(qB + 8, 8)}, {v(IDX)}
    {SMF} v[120:123], v[124:127], {v(qB + 16, 8)}, {v(IDX)}
    """)
    qp_sum(Q1M)
    a(f"""
    v_add_f32 v116, v116, v118
    v_add_f32 v116, v116, v120
    v_min_u32 v42, -2, v116
    v_mov_b32 v41, {v(qACC)}
    global_store_dword {v(qSA)}, v41, {sp(pWS)}
    s_mov_b32 exec_hi, 0
    global_store_dword v112, v42, {sp(pWS)}
    s_mov_b64 exec, -1
    s_mov_b64 vcc, -1
    s_branch L_PRO_KV
    """)
    a.label("L_PRO_P")
    a.c("wave 3: LayerNorm statistics of its row")
    if not CUT & 8:
        a(f"global_load_dword v18, v17, {sp(pDBG)} sc1")
    poller_qaddr(0)
    s_expr(T0, [(G, 32 * QRS), (T1, QRS)], QR + 2048 + 3840)
    lane_expr(pC, pT, [(5, 1, 4 * QRS), (3, 2, 128), (0, 3, 8)], T0)
    poller_stats()
    a.label("L_PRO_KV")
    prostamp(4)


MK_LOADS = "\n".join(f"global_load_dword {v(20 + u)}, v19, {sp(pWS)} offset:{u * 64 * MSTR} sc1" for u in range(4))


def q1_loads():
    for ins, _, _ in poller_qloads():
        a(ins)
    for kq in range(4):
        a(f"global_load_dwordx2 {v(pX_ + 2 * kq, 2)}, {v(pC)}, {sp(pWS)} offset:{kq * QRS - 3840} sc1")


def h_p1(ny):
    only_wave(3, "L_H1", CUT & 8)
    a.c("wave 3: all groups have reset their markers -> read the markers")
    a(f"""
    s_mov_b32 {SPIN}, {SPIN_MAX}
    s_waitcnt vmcnt({ny})
L_FLG:
    v_cmp_eq_u32 vcc, 0, v18
    s_cbranch_vccz L_FLG_OK
    global_load_dword v18, v17, {sp(pDBG)} sc1
    s_waitcnt vmcnt(0)
    s_sub_u32 {SPIN}, {SPIN}, 1
    s_cbranch_scc0 L_FLG
L_FLG_OK:
    {MK_LOADS}
    s_mov_b64 vcc, -1
L_H1:
    """)
    prostamp(2)


def h_p2(ny):
    only_wave(3, "L_H2", CUT & 8)
    a.c("wave 3: the whole group has arrived -> fetch q partials; decide whether the group shares one L2")
    a(f"""
    s_getreg_b32 {XCC}, hwreg(HW_REG_XCC_ID, 0, 4)
    s_mov_b32 {SPIN}, {SPIN_MAX}
    s_waitcnt vmcnt({ny})
L_CNT:
    s_bitcmp1_b32 {G}, 1
    s_cselect_b64 vcc, -1, 0
    v_cndmask_b32 v17, v20, v21, vcc
    v_cndmask_b32 v18, v22, v23, vcc
    s_bitcmp1_b32 {G}, 2
    s_cselect_b64 vcc, -1, 0
    v_cndmask_b32 v17, v17, v18, vcc
    v_cmp_eq_u32 vcc, -1, v17
    s_bitcmp1_b32 {G}, 0
    s_cselect_b32 {T0}, vcc_hi, vcc_lo
    s_cmp_eq_u32 {T0}, 0
    s_cbranch_scc1 L_CNT_OK
    {MK_LOADS}
    s_waitcnt vmcnt(0)
    s_sub_u32 {SPIN}, {SPIN}, 1
    s_cbranch_scc0 L_CNT
L_CNT_OK:
    """)
    q1_loads()
    a(f"""
    {MK_LOADS}
    v_cmp_ne_u32 vcc, {XCC}, v17
    v_mov_b32 v18, {L_FLAG}
    s_bitcmp1_b32 {G}, 0
    s_cselect_b32 {T0}, vcc_hi, vcc_lo
    s_cmp_lg_u32 {T0}, 0
    s_cselect_b32 {T0}, 0, {0 if OPT['force_global'] else 1}
    s_mov_b32 {LOCAL}, {T0}
    v_mov_b32 v17, {T0}
    ds_write_b32 v18, v17
    s_mov_b64 vcc, -1
L_H2:
    """)
    prostamp(5)


def h_p4():
    a.c("wave 3: every workgroup of every group must have arrived before this workgroup publishes or polls anything else")
    a(f"""
    s_mov_b32 {SPIN}, {SPIN_MAX}
L_ALL:
    v_max3_u32 v17, v20, v21, v22
    v_max_u32 v17, v17, v23
    v_cmp_eq_u32 vcc, -1, v17
    s_cbranch_vccz L_ALL_OK
    s_sleep 4
    {MK_LOADS}
    s_waitcnt vmcnt(0)
    s_sub_u32 {SPIN}, {SPIN}, 1
    s_cbranch_scc0 L_ALL
L_ALL_OK:
    """)
    if OPT["warm"] & 2:
        a.c("keep the hand-off lines in L2 so that the first polls do not miss")
        s_expr(T0, [(J, 1152)])
        a(f"""
        v_min_u32 v17, 8, v0
        v_lshl_add_u32 v17, v17, 7, {T0}
        global_load_dword {v(vDUM)}, v17, {sp(EX)} sc1
        """)
        s_expr(T0, [(G, 32 * QRS), (J, QRS)], QR + 1024)
        a(f"""
        v_and_b32 v17, 7, v0
        v_lshl_add_u32 v17, v17, 7, {T0}
        global_load_dword {v(vDUM)}, v17, {sp(pWS)} sc1
        """)
    a.label("L_H4")


def q1_collect(tag):
    a(f"s_mov_b32 {SPIN}, {SPIN_MAX}")
    a.label("L_Q1" + tag)
    for s_ in check_ops(range(pX_, pX_ + 16), pT):
        a(s_)
    a(f"s_cbranch_vccz L_Q1_OK{tag}")
    q1_loads()
    a(f"""
    s_waitcnt vmcnt(0)
    s_sub_u32 {SPIN}, {SPIN}, 1
    s_cbranch_scc0 L_Q1{tag}
L_Q1_OK{tag}:
    v_pk_add_f32 {v(pX_, 2)}, {v(pX_, 2)}, {v(pX_ + 2, 2)}
    v_pk_add_f32 {v(pX_ + 4, 2)}, {v(pX_ + 4, 2)}, {v(pX_ + 6, 2)}
    v_pk_add_f32 {v(pCS, 2)}, {v(pX_, 2)}, {v(pX_ + 4, 2)}
    """)
    poller_finish()


def h_p3(ny):
    only_wave(3, "L_H3", CUT & 8)
    a(f"s_waitcnt vmcnt({ny})\ns_cmp_eq_u32 {LOCAL}, 0\ns_cbranch_scc1 L_H3B")
    q1_collect("")
    a.label("L_H3B")
    h_p4()
    a("s_waitcnt lgkmcnt(0)")
    a.label("L_H3")
    prostamp(6)


K0, BQ, HF, HC, HD, BP = OPT["k0"], OPT["bq"], OPT["hf"], OPT["hc"], OPT["hd"], OPT["bp"]
hooks = {}


def h_unfree():
    a(f"s_cmp_eq_u32 {W}, 3\ns_cselect_b64 vcc, vcc, 0")


for pos, fn in [(K0, h_first), (K0, lambda: h_wq(0)), (K0, lambda: h_wq(1)), (K0, lambda: h_wq(2)),
                (K0 + 1, h_setup1), (K0 + 2, h_setup3), (HF, h_flag),
                (BQ + 2, lambda: h_bq(BQ + 2 - K0, BQ + 2 - HF)), (BQ + 3, lambda: att_addr(0)),
                (BQ + 2 + OPT["free"], h_unfree),
                (HC, lambda: h_p1(HC - BQ - 2)), (HC + HD, lambda: h_p2(HD)), (HC + 2 * HD, lambda: h_p3(HD))]:
    hooks.setdefault(pos, []).append(fn)
assert K0 + 2 <= BQ + 2 <= 16 and K0 <= HF < BQ + 2 <= HC and HC + 2 * HD < BP and 24 <= BP <= 26
SKIP[0] = True
for i in range(BP):
    for fn in hooks.get(i, []):
        fn()
    stream(i, thr=not (i < K0 or BQ <= i < BQ + 2 or i >= BP - 2))
SKIP[0] = False
a("s_waitcnt vmcnt(%d)" % (BP - 16))
prostamp(1)
a(f"""
    v_mov_b32 v62, {L_FLAG}
    s_barrier
    ds_read_b32 v62, v62
    v_mov_b32 v63, {CSC}
    s_waitcnt lgkmcnt(0)
    v_readfirstlane_b32 {LOCAL}, v62
    s_cmp_eq_u32 {LOCAL}, {9 if CUT else 0}
    s_cbranch_scc1 L_SLOW
L_SLOW_RET:
""")
zero(range(16, 24))
a("s_mov_b32 exec_lo, 0x000f000f\ns_mov_b32 exec_hi, 0x000f000f\ns_branch L_BAR2")


def perms(t, pp):
    for j in range(8):
        s0 = SREG + t * 32 + (2 * pp) * 4 + (j >> 1)
        a(f"v_perm_b32 {v(VREG + j * 8 + t * 4 + pp)}, {v(s0 + 4)}, {v(s0)}, {PHI if j & 1 else PLO}")


def gu_prefetch(lo, hi, issue=True):
    s_expr(T1, [(J, 8), (W, 1)], -160)
    a(f"""
    s_cmp_ge_u32 {T1}, 48
    s_cselect_b32 s{TB}, s{pWU}, s{pWG}
    s_cselect_b32 s{TB + 1}, s{pWU + 1}, s{pWG + 1}
    s_cselect_b32 {T0}, 48, 0
    s_sub_u32 {T1}, {T1}, {T0}
    s_mul_i32 {T1}, {T1}, 14
    s_add_u32 {T1}, {T1}, {lo}
    s_lshr_b32 {T2}, {FB0}, 1
    s_min_u32 {T2}, {T2}, 23
    s_lshl_b32 {T2}, {T2}, 7
    v_lshrrev_b32 {v(vPF)}, 2, v0
    v_min_u32 {v(vPF)}, {hi - lo - 1}, {v(vPF)}
    v_add_u32 {v(vPF)}, {T1}, {v(vPF)}
    v_min_u32 {v(vPF)}, 639, {v(vPF)}
    v_mul_u32_u24 {v(vPF)}, 3456, {v(vPF)}
    v_and_b32 {v(vK)}, 3, v0
    v_lshl_add_u32 {v(vPF)}, {v(vK)}, 7, {v(vPF)}
    v_add_u32 {v(vPF)}, {T2}, {v(vPF)}
    """)
    if issue:
        a(f"global_load_dword {v(vDUM)}, {v(vPF)}, {sp(TB)}")


NTAIL = 1


def v_tail():
    done = 0
    for i in range(BP, 32):
        stream(i, thr=i < 31)
        if done < 4:
            a(f"s_waitcnt vmcnt({i - (17 + 2 * done)})")
            perms(0, done)
            done += 1
    assert done == 4
    if OPT["nm"] == 0:
        a(f"s_and_b32 {T1}, {J}, 7")
        s_expr(T0, [(H, 128 * 1280), (T1, 8 * 2560), (W, 2560)])
        a(f"""
        v_min_u32 {v(vPF)}, 19, v0
        v_lshl_add_u32 {v(vPF)}, {v(vPF)}, 7, {T0}
        global_load_dword {v(vDUM)}, {v(vPF)}, {sp(pWO)}
        """)
    else:
        a(f"s_cmp_lg_u32 {ROLE}, 0\ns_cbranch_scc1 L_PFU")
        a(f"""
        s_and_b32 {T1}, {J}, 3
        s_add_u32 {T0}, {G}, {T1}
        s_and_b32 {T0}, {T0}, 7
        s_lshr_b32 {T2}, {J}, 2
        """)
        s_expr(T0, [(T0, 128 * 1280), (T1, 1024 * 1280), (T2, 8 * 4096), (W, 4096)])
        a(f"""
        v_and_b32 {v(vPF)}, 31, v0
        v_lshl_add_u32 {v(vPF)}, {v(vPF)}, 7, {T0}
        global_load_dword {v(vDUM)}, {v(vPF)}, {sp(pWO)}
        s_branch L_PFE
        """)
        a.label("L_PFU")
        gu_prefetch(0, OPT["nm"])
        a.label("L_PFE")
    prostamp(7)
    zero(range(aACC, aACC + 32))
    for pp in range(4):
        a(f"s_waitcnt vmcnt({6 - 2 * pp + NTAIL})")
        perms(1, pp)
        if pp == 2:
            a(f"s_cmp_eq_u32 {ROLE}, 0\ns_cbranch_scc1 L_NT0")
            gu_prefetch(0, OPT["nt"], issue=False)
            a("s_branch L_NT2")
            a.label("L_NT0")
            s_expr(T0, [(FB0, 32 * 1280), (W, 16 * 1280), (J, 64)])
            add64(TB, pWD, T0)
            a(f"s_add_u32 m0, {T2L}, {L_WD - L_WO}\ns_lshl_b32 {T1}, {NU}, 1\ns_sub_u32 {T1}, {T1}, 8")
            a.label("L_NT2")
    a.c("K and V are in: W_down slice (out/down workgroups) or the first part of the W_gate / W_up prefetch")
    a(f"s_cmp_eq_u32 {ROLE}, 0\ns_cbranch_scc1 L_NT1")
    a(f"global_load_dword {v(vDUM)}, {v(vPF)}, {sp(TB)}\ns_branch L_PV")
    a.label("L_NT1")
    a(f"global_load_lds_dwordx4 {v(vDMA)}, {sp(TB)}\ns_cmp_ge_u32 {W}, {T1}\ns_cbranch_scc1 L_PV")
    add64(TB, TB, 128 * 1280)
    a(f"s_add_u32 m0, {T2L}, {L_WD - L_WO + 4 * R32}")
    a(f"global_load_lds_dwordx4 {v(vDMA)}, {sp(TB)}")


MXS = "s44"
a.label("L_BAR")
a(f"""
    v_mov_b32 v63, {CSC}
    s_mov_b32 exec_lo, 0x000f000f
    s_mov_b32 exec_hi, 0x000f000f
    s_barrier
L_BAR2:
""")
stamp(0)
cyc(0)
for o in range(4):
    a(f"ds_read_b128 {v(aQV + 4 * o, 4)}, {v(aQA)}")
    a("s_lshl_b64 exec, exec, 4" if o < 3 else "s_mov_b64 exec, -1")
for o in range(4):
    a(f"s_waitcnt lgkmcnt({3 - o})")
    for t in range(2):
        a(f"{SMF} {v(aQK + 4 * t, 4)}, {v(aQV + 4 * o, 4)}, {v(KREG + (t * 4 + o) * 8, 8)}, {v(IDX)}")
cyc(1)
a(f"""
    v_pk_add_f32 {v(aQK, 2)}, {v(aQK, 2)}, {v(aQK + 2, 2)}
    v_pk_add_f32 {v(aQK + 4, 2)}, {v(aQK + 4, 2)}, {v(aQK + 6, 2)}
    v_cndmask_b32 {v(aT)}, {v(aQK + 4)}, {v(aQK + 1)}, {sp(ODD)}
    v_cndmask_b32 {v(aS)}, {v(aQK)}, {v(aQK + 5)}, {sp(ODD)}
    v_add_f32_dpp {v(aS)}, {v(aT)}, {v(aS)} quad_perm:[1,0,3,2] {DPP}
    v_max_f32_dpp {v(aT)}, {v(aS)}, {v(aS)} quad_perm:[1,0,3,2] {DPP}
    v_max_f32_dpp {v(aT)}, {v(aT)}, {v(aT)} quad_perm:[2,3,0,1] {DPP}
    v_max_f32_dpp {v(aT)}, {v(aT)}, {v(aT)} row_ror:4 {DPP}
    v_max_f32_dpp {v(aT)}, {v(aT)}, {v(aT)} row_ror:8 {DPP}
    v_max_f32_dpp {v(aT)}, {v(aT)}, {v(aT)} row_bcast:15 row_mask:0xa bank_mask:0xf
    v_max_f32_dpp {v(aT)}, {v(aT)}, {v(aT)} row_bcast:31 row_mask:0xc bank_mask:0xf
    v_readlane_b32 {MXS}, {v(aT)}, 63
    v_mul_f32 {v(aT)}, {MXS}, v63
    v_fma_f32 {v(aS)}, {v(aS)}, v63, -{v(aT)}
    v_exp_f32 {v(aS)}, {v(aS)}
    v_cvt_pk_bf16_f32 {v(aS)}, {v(aS)}, {v(aS)}
    ds_write_b16 {v(aPW)}, {v(aS)}
    ds_read_b128 {v(aP, 4)}, {v(aPR)}
    v_min_u32 {v(aT)}, -2, {v(aT)}
""")
cyc(2)
a(f"s_cmp_eq_u32 {LAYER}, 0\ns_cbranch_scc1 L_VT")
a.label("L_PV")
a("s_mov_b32 exec_hi, 0\ns_waitcnt lgkmcnt(0)")
cyc(3)
pvm = [f"{SMF} {v(aACC + 4 * j, 4)}, {v(aP, 4)}, {v(VREG + j * 8, 8)}, {v(IDX2)}" for j in range(8)]
oww = [f"ds_write2_b32 {v(aOWW)}, {v(aACC + 8 * jp)}, {v(aACC + 8 * jp + 4)} offset0:{OWJ * jp} offset1:{OWJ * jp + 1}"
       for jp in range(4)]
a(f"""
    {MFMA} {v(aLA, 4)}, {v(aP, 4)}, {v(aONE, 4)}, 0
    {pvm[0]}
    s_nop 0
    {pvm[1]}
    s_mov_b32 {SPIN}, {SPIN_MAX}
    {pvm[2]}
    s_nop 0
    {pvm[3]}
    s_cmp_lt_u32 {W}, 4
    v_min_u32 {v(aLA)}, -2, {v(aLA)}
    {pvm[4]}
    ds_write2_b32 {v(aMLW)}, {v(aT)}, {v(aLA)} offset0:0 offset1:1
    {pvm[5]}
    {oww[0]}
    {pvm[6]}
    {pvm[7]}
    {oww[1]}
    {oww[2]}
    {oww[3]}
    s_mov_b64 exec, -1
""")
cyc(4)
a("s_cbranch_scc1 L_CMB")
a("s_waitcnt lgkmcnt(0)")
cyc(5)
a("s_barrier\ns_branch L_ATT_END")
a.label("L_CMB")
a.c("waves 0..3: softmax weights of the eight partial results, then (behind the barrier) the weighted sum")
cM, cO, cW = 16, 24, 44
a(f"""
L_MXC:
    ds_read_b128 {v(cM, 4)}, {v(aMLR)}
    ds_read_b128 {v(cM + 4, 4)}, {v(aMLR)} offset:16
    s_sub_u32 {SPIN}, {SPIN}, 1
    s_cbranch_scc1 L_MXD
    s_waitcnt lgkmcnt(0)
""")
for o in check_ops([cM, cM + 1, cM + 3, cM + 4, cM + 5, cM + 7], aS):
    a(o)
a(f"""
    v_max_f32 {v(aT)}, {v(cM)}, {v(cM + 4)}
    s_cbranch_vccnz L_MXC
L_MXD:
    v_add_f32 {v(cM + 1)}, {v(cM + 1)}, {v(cM + 3)}
    v_max_f32_dpp {v(aT)}, {v(aT)}, {v(aT)} quad_perm:[1,0,3,2] {DPP}
    v_add_f32 {v(cM + 5)}, {v(cM + 5)}, {v(cM + 7)}
    v_cmp_eq_u32 vcc, 1, v0
    v_max_f32_dpp {v(aT)}, {v(aT)}, {v(aT)} quad_perm:[2,3,0,1] {DPP}
    v_sub_f32 {v(cW)}, {v(cM)}, {v(aT)}
    v_sub_f32 {v(cW + 1)}, {v(cM + 4)}, {v(aT)}
    v_exp_f32 {v(cW)}, {v(cW)}
    v_exp_f32 {v(cW + 1)}, {v(cW + 1)}
    v_mul_f32 {v(aS)}, {v(cW)}, {v(cM + 1)}
    v_fmac_f32 {v(aS)}, {v(cW + 1)}, {v(cM + 5)}
    v_add_f32_dpp {v(aS)}, {v(aS)}, {v(aS)} quad_perm:[1,0,3,2] {DPP}
""")
local_test()
cyc(5)
a("s_barrier")
cyc(6)
a(f"""
    ds_read_b64 {v(cO, 2)}, {v(aOWR)}
    ds_read_b64 {v(cO + 2, 2)}, {v(aOWR)} offset:128
    ds_read_b64 {v(cO + 4, 2)}, {v(aOWR)} offset:{OWS}
    ds_read_b64 {v(cO + 6, 2)}, {v(aOWR)} offset:{OWS + 128}
    v_add_f32_dpp {v(aS)}, {v(aS)}, {v(aS)} quad_perm:[2,3,0,1] {DPP}
    v_rcp_f32 {v(cW + 2)}, {v(aS)}
    v_log_f32 {v(aS)}, {v(aS)}
    v_pk_mul_f32 {v(cW, 2)}, {v(cW, 2)}, {v(cW + 2, 2)} op_sel_hi:[1,0]
    v_add_f32 {v(aS)}, {v(aS)}, {v(aT)}
    s_waitcnt lgkmcnt(2)
    v_pk_add_f32 {v(cO, 2)}, {v(cO, 2)}, {v(cO + 2, 2)}
    v_pk_mul_f32 {v(cO, 2)}, {v(cO, 2)}, {v(cW, 2)} op_sel_hi:[1,0]
    s_waitcnt lgkmcnt(0)
    v_pk_add_f32 {v(cO + 4, 2)}, {v(cO + 4, 2)}, {v(cO + 6, 2)}
    v_pk_fma_f32 {v(cO, 2)}, {v(cO + 4, 2)}, {v(cW, 2)}, {v(cO, 2)} op_sel:[0,1,0] op_sel_hi:[1,1,1]
""")
lane_sum([cO, cO + 1], ["x1", "x2"], [])
a(f"""
    v_cvt_pk_bf16_f32 {v(cO)}, {v(cO)}, {v(cO + 1)}
    v_cndmask_b32 {v(cO)}, {v(cO)}, {v(aS)}, vcc
    s_mov_b64 exec, {sp(OBM)}
    v_min_u32 {v(cO)}, -2, {v(cO)}
""")
cyc(7)
store_local(f"global_store_dword {v(aOBA)}, {v(cO)}, {sp(EX)}")
a("s_mov_b64 exec, -1")
a.label("L_ATT_END")
stamp(3)
if CUT & 1:
    a("s_branch L_FIN")
a(f"s_cmp_eq_u32 {LAYER}, 0\ns_cbranch_scc1 L_STAGE")
a.label("L_ROLE")
a(f"s_cmp_lg_u32 {PATH}, 0\ns_cbranch_scc1 L_ROLE2")

oB, oA, oACC, oL, oT, oT2 = 64, 16, 48, 4, 6, 7
rL, rR, rA, rS, rT, rSC = 48, 16, 2, 4, 5, 8


EG, EG2 = VB, KB


def pb_store(addr, data):
    a(f"global_store_dword {v(addr)}, {v(data)}, {sp(EG)} sc1")
    a(f"global_store_dword {v(addr)}, {v(data)}, {sp(EG2)} sc1")


def op_load_b(base):
    lane_expr(oT2, oT, [(4, 1, 32)])
    a(f"s_lshl_b32 {T0}, {W}, 5\nv_xor_b32 v9, {T0}, {v(oT2)}")
    b_addr(oT, oT2, 64, [(0, 2, 8)], base, R32)
    a(f"v_add_u32 {v(oT)}, {v(oT)}, v9")


ld = [(f"global_load_dwordx4 {v(oA + 4 * n, 4)}, {v(oBA)}, {sp(EX)} offset:{n * 1024 - 4096} sc1", oA + 4 * n, 4)
      for n in range(8)]
ld.append((f"global_load_dwordx2 {v(oL, 2)}, {v(oLA)}, {sp(EX)} sc1", oL, 2))
op_load_b(L_WO)
a(f"s_cmp_eq_u32 {LAYER}, 0\ns_cbranch_scc1 L_OPB")
b_reads(oB, oT, 8, 64, R32)
a.label("L_OPB")


def op_pre():
    zero(range(oACC, oACC + 16))
    a(f"s_lshr_b32 {T1}, {TILE}, 2\ns_and_b32 {T2}, {TILE}, 3")
    lin(rA, 4, [(T1, 16384), (T2, 2048)], 0)
    s_expr(T0, [(LAYER, 2 * PBH)], PBB)
    add64(EG, pWS, T0)
    add64(EG2, EG, 8192)
    a(f"s_cmp_eq_u32 {LAYER}, 0\ns_cbranch_scc1 L_OPB1")
    a.label("L_OPB2")


poll(ld, oT2, OPT["p_op"], pre=op_pre)
a("s_waitcnt lgkmcnt(0)")
wops = [f"v_sub_f32 {v(oT)}, {v(oL + 1)}, {v(oL)}", f"v_exp_f32 {v(oT)}, {v(oT)}", f"v_add_f32 {v(oT)}, 1.0, {v(oT)}",
        f"v_rcp_f32 v8, {v(oT)}", "v_sub_f32 v9, 1.0, v8"]


def op_fold(hh):
    r = oACC + 4 * hh
    qp_ = f"quad_perm:[{hh},{hh},{hh},{hh}] {DPP}"
    op = "v_mul_f32_dpp" if hh == 0 else "v_fmac_f32_dpp"
    a(f"{op} {v(oT)}, v8, {v(r)} {qp_}\n{op} {v(oT2)}, v9, {v(r + 1)} {qp_}")


for n in range(8):
    a(f"{SMF} {v(oACC + 4 * (n >> 1), 4)}, {v(oA + 4 * n, 4)}, {v(oB + 8 * n, 8)}, {v(IDX)}")
    if wops:
        a(wops.pop(0))
stamp(4)
for hh in range(4):
    r = oACC + 4 * hh
    a(f"v_pk_add_f32 {v(r, 2)}, {v(r, 2)}, {v(r + 2, 2)}")
    if hh:
        op_fold(hh - 1)
op_fold(3)
a(f"""
    v_add_f32 {v(oT)}, {v(oT)}, {v(oT2)}
    v_min_u32 v60, -2, {v(oT)}
""")
pb_store(oSA, 60)
stamp(5)
cy2(0)

def red_dst(dst):
    if dst == XA:
        a(f"s_lshr_b32 {T1}, {TILE}, 3\ns_and_b32 {T2}, {TILE}, 7\ns_lshl_b32 {T1}, {T1}, 10")
    else:
        a(f"""
        s_mul_i32 {T1}, {TILE}, 26
        s_lshr_b32 {T1}, {T1}, 8
        s_mul_i32 {T2}, {T1}, 10
        s_sub_u32 {T2}, {TILE}, {T2}
        s_mul_i32 {T1}, {T1}, 1280
        """)
    s_expr(T0, [(T1, 1)], dst)
    a(f"""
    s_and_b32 {T1}, {T2}, 1
    s_lshl_b32 {T1}, {T1}, 9
    s_and_b32 {T3}, {T2}, 2
    s_lshl_b32 {T3}, {T3}, 4
    s_add_u32 {T1}, {T1}, {T3}
    s_and_b32 {T3}, {T2}, 4
    s_lshl_b32 {T3}, {T3}, 2
    s_add_u32 {T1}, {T1}, {T3}
    s_lshl_b32 {T3}, {T2}, 7
    s_cmp_ge_u32 {T2}, 8
    s_cselect_b32 {T1}, {T3}, {T1}
    s_cselect_b32 {T2}, 4, 6
    s_add_u32 {T0}, {T0}, {T1}
    """)
    lane_expr(rS, rT, [(1, 1, 4), (2, 2, 1)])
    a(f"""
    v_lshlrev_b32 {v(rS)}, {T2}, {v(rS)}
    v_and_b32 {v(rT)}, 1, v0
    v_lshl_add_u32 {v(rS)}, {v(rT)}, 3, {v(rS)}
    v_lshrrev_b32 {v(rT)}, 5, v0
    v_lshl_add_u32 {v(rS)}, {v(rT)}, 2, {v(rS)}
    v_add_u32 {v(rS)}, {T0}, {v(rS)}
    """)


def red_collect(st, scale, mid):
    mid()
    if OPT["near"]:
        a(f"""
        s_waitcnt vmcnt(1)
        s_nop {OPT["gap"]}
        s_getreg_b32 {T0}, hwreg(HW_REG_IB_STS, 0, 4)
        s_cmp_eq_u32 {T0}, 0
        s_cselect_b32 s{TB}, s{EG2}, s{EG}
        s_cselect_b32 s{TB + 1}, s{EG2 + 1}, s{EG + 1}
        """)
    base = TB if OPT["near"] else EG
    poll([(f"global_load_dwordx4 {v(rR + 4 * i, 4)}, {v(rA)}, {sp(base)} offset:{i * 1024} sc1", rR + 4 * i, 4)
          for i in range(2)], rT, 2)
    a(f"v_pk_add_f32 {v(rL, 2)}, {v(rR, 2)}, {v(rR + 4, 2)}\nv_pk_add_f32 {v(rL + 2, 2)}, {v(rR + 2, 2)}, {v(rR + 6, 2)}")
    stamp(st)
    a(f"""
    v_permlane32_swap_b32 {v(rL)}, {v(rL + 2)}
    v_permlane32_swap_b32 {v(rL + 1)}, {v(rL + 3)}
    v_pk_add_f32 {v(rL, 2)}, {v(rL, 2)}, {v(rL + 2, 2)}
    v_mov_b32 {v(rL + 2)}, {v(rL)}
    v_mov_b32 {v(rL + 3)}, {v(rL + 1)}
    v_permlane16_swap_b32 {v(rL)}, {v(rL + 2)}
    v_permlane16_swap_b32 {v(rL + 1)}, {v(rL + 3)}
    v_pk_add_f32 {v(rL, 2)}, {v(rL, 2)}, {v(rL + 2, 2)}
    """)
    if scale:
        a(f"v_pk_mul_f32 {v(rL, 2)}, {v(rL, 2)}, {v(rSC, 2)} op_sel_hi:[1,0]")
    a(f"""
    v_cvt_pk_bf16_f32 {v(rL)}, {v(rL)}, {v(rL + 1)}
    v_and_b32 {v(rL + 1)}, 0xffff0000, {v(rL)}
    v_lshlrev_b32 {v(rL)}, 16, {v(rL)}
    v_pk_add_f32 {v(rL, 2)}, {v(rL, 2)}, {v(rX0, 2)}
    v_cvt_pk_bf16_f32 {v(rL)}, {v(rL)}, {v(rL + 1)}
    s_mov_b32 exec_lo, 0xffff
    s_mov_b32 exec_hi, 0xffff
    """)


def red_publish():
    local_test()
    a(f"v_min_u32 {v(rL + 1)}, -2, {v(rL)}")
    store_local(f"global_store_dword {v(rS)}, {v(rL + 1)}, {sp(EX)}")
    a(f"""
    s_mov_b64 exec, -1
    v_and_b32 {v(rX1)}, 0xffff0000, {v(rL)}
    v_lshlrev_b32 {v(rX0)}, 16, {v(rL)}
    """)


red_collect(6, False, lambda: red_dst(XA))
red_publish()
stamp(7)
dB, dA, dACC, dHA0, dHA1, dSA, dT, dT2, dX = 64, 48, 56, 3, 4, 5, 6, 7, 96
def red_stats():
    ln_stats(range(dX, dX + 20), 9, rSC, ["x1", "x2", "s16", "s32"], 10, dT)
    a(f"v_rcp_f32 {v(rSC)}, {v(rSC)}")


lin(dHA0, 4, [], HB)
a(f"""
    s_cmp_eq_u32 {NU}, 6
    s_cselect_b32 {T1}, 2, 0
    v_or_b32 {v(dT)}, {T1}, v0
    v_lshrrev_b32 {v(dT2)}, 1, {v(dT)}
    v_and_b32 {v(dT)}, {v(dT)}, {v(dT2)}
    v_and_b32 {v(dT)}, 1, {v(dT)}
    v_lshlrev_b32 {v(dT)}, 4, {v(dT)}
    v_sub_u32 {v(dHA1)}, {v(dHA0)}, {v(dT)}
    v_add_u32 {v(dSA)}, {PBH}, {v(oSA)}
    v_add_u32 {v(rA)}, {PBH}, {v(rA)}
""")
lin(10, 4, [], XA + 2048)
def fill_l2():
    a.c("layer 1: sentinel fill of this wave's partial tiles of layer 2 (complete before its next partial goes out)")
    a(f"s_lshr_b32 {T1}, {TILE}, 2\ns_and_b32 {T2}, {TILE}, 3")
    s_expr(T0, [(T1, 16384), (T2, 2048), (G, 256)], 2 * PBH)
    lane_expr(43, 42, [(5, 1, PBH), (4, 1, 8192), (0, 4, 16)], T0)
    for i in range(4):
        a(f"v_mov_b32 {v(44 + i)}, -1")
    a(f"global_store_dwordx4 v43, v[44:47], {sp(EG)} sc1")


op_load_b(L_WD)
b_reads(dB, oT, 4, 64, R32)
zero(range(dACC, dACC + 8))
a(f"s_cmp_lg_u32 {LAYER}, 0\ns_cbranch_scc1 L_WD6")
fill_l2()
a.label("L_WD6")
a.c("variance of x: 1/(var+eps) scales the FFN output after the reduce")
poll([(f"global_load_dwordx4 {v(dX + 4 * u, 4)}, v10, {sp(EX)} offset:{u * 1024 - 2048} sc1", dX + 4 * u, 4)
      for u in range(5)], dT2, 0)
a("s_waitcnt lgkmcnt(0)")
poll([(f"global_load_dwordx4 {v(dA, 4)}, {v(dHA0)}, {sp(EX)} sc1", dA, 4),
      (f"global_load_dwordx4 {v(dA + 4, 4)}, {v(dHA1)}, {sp(EX)} offset:1024 sc1", dA + 4, 4)], dT2, OPT["p_dn"],
     pre=red_stats)
for n in range(4):
    u, q = n >> 1, n & 1
    a(f"{SMF} {v(dACC + 4 * q, 4)}, {v(dA + 4 * u, 4)}, {v(dB + 8 * n, 8)}, {v(IDX)}")
a(f"""
    s_and_b32 {T0}, {TILE}, 7
    s_cmp_lg_u32 {T0}, {G}
    s_cselect_b32 {T0}, {LAYER}, 0
    s_cmp_lg_u32 {T0}, 0
    v_add_f32 {v(dACC)}, {v(dACC)}, {v(dACC + 2)}
    v_add_f32 {v(dACC + 5)}, {v(dACC + 5)}, {v(dACC + 7)}
    v_add_f32 {v(dACC)}, {v(dACC)}, {v(dACC + 5)}
    v_min_u32 {v(dACC)}, -2, {v(dACC)}
""")
pb_store(dSA, dACC)
if DIAG and OPT["stamps"] & 2:
    stamp(1)
    a(f"s_cmp_lg_u32 {T0}, 0")
a("s_cbranch_scc1 L_FIN")


def red2_mid():
    red_dst(XF)
    s_expr(T0, [(TILE, 32)])
    lane_expr(6, 7, [(2, 2, 1280), (0, 2, 8), (5, 1, 4)], T0)


red_collect(2, True, red2_mid)
a(f"""
    s_cmp_eq_u32 {LAYER}, 0
    s_cbranch_scc1 L_RED2P
    global_store_dword v6, {v(rL)}, {sp(pOUT)}
    s_mov_b64 exec, -1
    s_branch L_FIN
L_RED2P:
""")
red_publish()
a("s_branch L_NEXT")

a.label("L_OPB1")
prostamp(3, 2)
a("s_barrier")
prostamp(4, 2)
b_reads(oB, oT, 8, 64, R32)
a("s_branch L_OPB2")
a.label("L_VT")
v_tail()
a("s_nop 1\ns_branch L_PV")

a.label("L_STAGE")
a.c("stage this workgroup's role weights (L2 hits after the prefetch), then make them visible to every wave")
prostamp(0, 2)
a(f"s_cmp_lg_u32 {ROLE}, 0\ns_cbranch_scc1 L_RG_U")
a(f"s_cmp_eq_u32 {PATH}, 0\ns_cbranch_scc1 L_ROLE")
for i in range(4):
    a(f"""
    s_add_u32 {T0}, {G}, {i}
    s_and_b32 {T0}, {T0}, 7
    s_add_u32 {T0}, {T0}, {8 * i}
    s_mul_i32 {T0}, {T0}, {128 * 1280}
    s_add_u32 m0, {T2L}, {i * 4 * R32}
    """)
    add64(TB, WOB, T0)
    a(f"global_load_lds_dwordx4 {v(vDMA)}, {sp(TB)}")
    l = a.newlabel("RG")
    a(f"""
    s_cmp_ge_u32 {W}, 4
    s_cbranch_scc1 {l}
    s_add_u32 m0, {T2L}, {i * 4 * R32 - R32}
    s_sub_u32 s{TB}, s{TB}, {32 * 1280}
    s_subb_u32 s{TB + 1}, s{TB + 1}, 0
    global_load_lds_dwordx4 {v(vDMA)}, {sp(TB)}
    {l}:
    """)
prostamp(3, 2)
a("s_waitcnt vmcnt(0)")
prostamp(4, 2)
a("s_barrier")
prostamp(5, 2)
a("s_branch L_ROLE")
a.label("L_RG_U")
a("s_barrier")
a.c("other workgroups: one dword per 128-byte line of the W_gate / W_up columns of this group")
if OPT["nm"] + OPT["nt"] < 14:
    gu_prefetch(OPT["nm"] + OPT["nt"], 14)
a.label("L_RG_G")
prostamp(1, 2)
a(f"s_waitcnt vmcnt(0)\ns_cmp_lg_u32 {ROLE}, 1\ns_cbranch_scc1 L_ROLE2")
prostamp(2, 2)
for i in range(10):
    a(f"s_add_u32 m0, {T2L}, {i * 2 * R32}")
    a(f"global_load_lds_dwordx4 {v(vDMA)}, {sp(WOB)}")
    if i < 9:
        add64(WOB, WOB, 64 * 3456)
a("s_waitcnt vmcnt(0)\ns_barrier")
prostamp(5, 2)

a.label("L_ROLE2")
a(f"""
    s_cmp_eq_u32 {PATH}, 2
    s_cbranch_scc1 L_HI
    s_cmp_eq_u32 {PATH}, 3
    s_cbranch_scc1 L_IDLE
""")
uB, uX, uACC, uS1, uONE, uXA, uSA, uCS, uT = 48, 28, 20, 16, 8, 3, 4, 5, 6
lin(uXA, 4, [], XA + 2048)


def up_setup():
    lane_expr(uSA, uCS, [(4, 1, 32), (1, 1, 16)])
    a(f"s_lshl_b32 {T0}, {W}, 4\nv_xor_b32 {v(uSA)}, {T0}, {v(uSA)}")
    b_addr(uT, uCS, 64, [(0, 1, 8), (1, 1, L_WU - L_WG)], L_WG, R32)
    a(f"v_add_u32 {v(uT)}, {v(uT)}, {v(uSA)}")
    for i in range(4):
        a(f"v_mov_b32 {v(uONE + i)}, {ONES}")
    zero(range(uS1, uS1 + 4))
    for n in range(10):
        for rho in range(4):
            off = 2 * R32 * n + (16 * (rho >> 1) + 2 * (rho & 1)) * 64
            a(f"ds_read_b64_tr_b16 {v(uB + 8 * n + 2 * rho, 2)}, {v(uT)} offset:{off}")
        if n >= 3:
            a("s_waitcnt lgkmcnt(12)")
            a(f"{SMF} {v(uS1, 4)}, {v(uONE, 4)}, {v(uB + 8 * (n - 3), 8)}, {v(IDX)}")
    a(f"""
    s_sub_u32 {T1}, {J}, 20
    s_lshr_b32 {T0}, {T1}, 2
    s_lshl_b32 {T0}, {T0}, 10
    s_and_b32 {T2}, {T1}, 2
    s_and_b32 {T1}, {T1}, 1
    """)
    s_expr(T0, [(T0, 1), (T2, 8), (T1, 32), (W, 256)], HB)
    lane_expr(uSA, uT, [(4, 2, 64), (1, 2, 4)], T0)
    zero(range(uACC, uACC + 8))
    for n in range(7, 10):
        a(f"s_waitcnt lgkmcnt({4 * (9 - n)})")
        a(f"{SMF} {v(uS1, 4)}, {v(uONE, 4)}, {v(uB + 8 * n, 8)}, {v(IDX)}")
    a(f"""
    v_add_f32 {v(uCS)}, {v(uS1)}, {v(uS1 + 2)}
    v_mul_f32 {v(uCS)}, {f32(1.0 / 640)}, {v(uCS)}
    """)
    stamp(7)


poll([(f"global_load_dwordx4 {v(uX + 4 * u, 4)}, {v(uXA)}, {sp(EX)} offset:{u * 1024 - 2048} sc1", uX + 4 * u, 4)
      for u in range(5)], uT, 0, pre=up_setup, slp=OPT["usl"])
stamp(4)
for u in range(5):
    a(f"{MFMA} {v(uS1, 4)}, {v(uX + 4 * u, 4)}, {v(uONE, 4)}, {'0' if u == 0 else v(uS1, 4)}")
for n in range(10):
    u, q = n >> 1, n & 1
    a(f"{SMF} {v(uACC + 4 * q, 4)}, {v(uX + 4 * u, 4)}, {v(uB + 8 * n, 8)}, {v(IDX)}")
    if n == 7:
        a(f"v_pk_add_f32 {v(uS1, 2)}, {v(uS1, 2)}, {v(uS1 + 2, 2)}")
    if n == 8:
        a(f"v_add_f32 {v(uS1)}, {v(uS1)}, {v(uS1 + 1)}")
a(f"s_mov_b32 s{MSK}, 0x00550055\ns_mov_b32 s{MSK + 1}, 0x00550055")
local_test()
a(f"""
    v_add_f32 {v(uACC)}, {v(uACC)}, {v(uACC + 2)}
    v_add_f32 {v(uACC + 5)}, {v(uACC + 5)}, {v(uACC + 7)}
    v_fma_f32 {v(uACC)}, -{v(uS1)}, {v(uCS)}, {v(uACC)}
    v_add_f32 {v(uACC)}, {v(uACC)}, {v(uACC + 5)}
    v_cvt_pk_bf16_f32 {v(uACC)}, {v(uACC)}, {v(uACC)}
    v_and_b32 {v(uACC)}, 0xffff0000, {v(uACC)}
    v_max_f32 {v(uACC + 1)}, 0, {v(uACC)}
    v_mul_f32_dpp {v(uACC + 1)}, {v(uACC)}, {v(uACC + 1)} row_ror:8 {DPP}
    v_mov_b32_dpp {v(uACC)}, {v(uACC + 1)} quad_perm:[1,1,3,3] {DPP}
    v_cvt_pk_bf16_f32 {v(uACC)}, {v(uACC + 1)}, {v(uACC)}
    v_min_u32 {v(uACC)}, -2, {v(uACC)}
    s_mov_b64 exec, {sp(MSK)}
""")
store_local(f"global_store_dword {v(uSA)}, {v(uACC)}, {sp(EX)}")
a("s_mov_b64 exec, -1")
stamp(5)
a.label("L_IDLE")
a(f"s_cmp_lg_u32 {LAYER}, 0\ns_cbranch_scc1 L_FIN")
a.label("L_NEXT")
a(f"s_cmp_eq_u32 {W}, 3\ns_cbranch_scc1 L_HI")
att_addr(1)
att_init()
a("s_waitcnt lgkmcnt(0)")
a(f"s_mov_b32 {LAYER}, 1")
add64(EX, EX, LS)
a("s_branch L_BAR")

a.label("L_HI")
a(f"s_cmp_lg_u32 {LAYER}, 0\ns_cbranch_scc1 L_FIN")
a.c("stay off the L2 until the first half of the layer is done")
a(f"v_mov_b32 v17, {HB if OPT['gate'] else XA}")
light(f"global_load_dword v18, v17, {sp(EX)} sc1", 18, 4 if OPT['gate'] else 8)
att_addr(1)
att_init()
if OPT["gsl"]:
    a(f"s_sleep {OPT['gsl']}")
add64(EX, EX, LS)
a(f"s_cmp_eq_u32 {W}, 3\ns_cbranch_scc1 L_POLLER")
q = Q2M
qp_setup(q)
a(f"s_and_b32 {T1}, {J}, 3")
lin(q.XA0, 4, [(T1, 1280)], XF - LS)
lane_expr(q.XA1, q.T, [(2, 4, 16)], T0)
qp_saddr(q.SA, 1024)
a("s_waitcnt lgkmcnt(0)")
poll([(f"global_load_dwordx4 {v(q.X, 4)}, {v(q.XA0)}, {sp(EX)} sc1", q.X, 4),
      (f"global_load_dwordx4 {v(q.X + 4, 4)}, {v(q.XA1)}, {sp(EX)} offset:1024 sc1", q.X + 4, 4)], q.T, OPT["p_qp"], slp=OPT["qsl"])
qp_mm(q)
stamp(4)
local_test()
qp_sum(q)
store_local(f"global_store_dword {v(q.SA)}, {v(q.A[0])}, {sp(pWS)}")
stamp(5)
a(f"s_mov_b32 {LAYER}, 1\ns_branch L_BAR")

a.label("L_POLLER")
poller_qaddr(1024)
if OPT["warm"] & 1:
    for ins, _, _ in poller_qloads():
        a(ins)
s_expr(T0, [(BB, 64)], XF - LS)
lane_expr(96, pT, [(4, 2, 1280), (2, 2, 256), (0, 2, 16)], T0)
s_expr(T0, [(BB, 16)], XF - LS + 1024)
lane_expr(97, pT, [(4, 2, 1280), (2, 2, 64), (0, 2, 4)], T0)
poll([(f"global_load_dwordx4 {v(pX_, 4)}, v96, {sp(EX)} sc1", pX_, 4),
      (f"global_load_dword {v(pX_ + 4)}, v97, {sp(EX)} sc1", pX_ + 4, 1)], pT, OPT["p_px"], slp=OPT["qsl"])
stamp(4)
poller_stats()
stamp(5)
poll(poller_qloads(), pT, 0)
stamp(6)
poller_finish()
a(f"s_mov_b32 {LAYER}, 1\ns_waitcnt lgkmcnt(0)\ns_branch L_BAR")

a.label("L_SLOW")
a.c("the group is spread over several XCDs: redo the sentinel fill and the q hand-off with write-through stores")
only_wave(2, "L_SL1")
for i in range(4):
    a(f"v_mov_b32 {v(44 + i)}, -1")
fill_local(" sc1", 44)
a("s_waitcnt vmcnt(0)")
a.label("L_SL1")
a(f"s_barrier\ns_cmp_lt_u32 {W}, 4\ns_cbranch_scc1 L_SL2")
qp_saddr(60, 0)
qp_saddr(61, 2048, 128)
a(f"""
    global_store_dword v60, v41, {sp(pWS)} sc1
    s_mov_b32 exec_hi, 0
    global_store_dword v61, v42, {sp(pWS)} sc1
    s_mov_b64 exec, -1
L_SL2:
""")
only_wave(2, "L_SL3")
lin(60, 2, [(G, 32 * MSTR), (J, MSTR)], MK)
a(f"""
    v_mov_b32 v61, 0x100
    s_mov_b64 exec, 1
    global_store_dword v60, v61, {sp(pWS)} sc1
    s_mov_b64 exec, -1
L_SL3:
""")
only_wave(3, "L_SL4")
s_expr(T0, [(G, 32 * MSTR)], MK)
a(f"""
    v_and_b32 v17, 31, v0
    v_lshl_add_u32 v17, v17, 4, {T0}
    s_mov_b32 {SPIN}, {SPIN_MAX}
    s_mov_b32 {T1}, 0x100
L_SL5:
    global_load_dword v18, v17, {sp(pWS)} sc1
    s_waitcnt vmcnt(0)
    v_cmp_ne_u32 vcc, {T1}, v18
    s_cbranch_vccz L_SL6
    s_sub_u32 {SPIN}, {SPIN}, 1
    s_cbranch_scc0 L_SL5
L_SL6:
""")
q1_loads()
a("s_waitcnt vmcnt(0)")
q1_collect("S")
a("s_waitcnt lgkmcnt(0)")
a.label("L_SL4")
a("s_barrier\ns_branch L_SLOW_RET")

a.label("L_FIN")
if OPT["padto"]:
    a(f"""
L_PAD:
    s_sleep 4
    s_memrealtime s[98:99]
    s_waitcnt lgkmcnt(0)
    s_sub_u32 s98, s98, s96
    s_cmp_lt_u32 s98, {OPT["padto"] * 100}
    s_cbranch_scc1 L_PAD
    """)
if DIAG:
    a("s_memrealtime s[98:99]\ns_memtime s[50:51]\ns_waitcnt lgkmcnt(0)\nv_mov_b32 v1, 0\ns_sub_u32 s50, s50, s100\nv_writelane_b32 v1, s50, 21")
    for i in range(16):
        a(f"v_writelane_b32 v1, s{STAMP0 + 2 * i}, {(i // 8) * 10 + i % 8}")
    a(f"""
    v_writelane_b32 v1, s96, 9
    v_writelane_b32 v1, s98, 19
    v_writelane_b32 v1, {LOCAL}, 20
    s_lshl_b32 {T0}, s2, 3
    s_add_u32 {T0}, {T0}, {W}
    s_lshl_b32 {T0}, {T0}, 8
    s_add_u32 {T0}, {T0}, {DIAG_OFF}
    v_lshl_add_u32 v2, v0, 2, {T0}
    global_store_dword v2, v1, {sp(pWS)}
    """)
a.label("L_END")
a("s_endpgm")

a.raw(f""".section .rodata,"a"
.p2align 6
.amdhsa_kernel {NAME}_kernel
  .amdhsa_next_free_vgpr 256
  .amdhsa_next_free_sgpr 102
  .amdhsa_accum_offset 256
  .amdhsa_group_segment_fixed_size 0
  .amdhsa_kernarg_size 96
  .amdhsa_user_sgpr_count 2
  .amdhsa_user_sgpr_kernarg_segment_ptr 1
  .amdhsa_system_sgpr_workgroup_id_x 1
  .amdhsa_float_denorm_mode_32 3
.end_amdhsa_kernel""")

open(sys.argv[1], "w").write(a.text())
print("written", sys.argv[1], "lines", len(a.out), "pad states", a.nops)
```

```python
import math
import struct
import sys

sys.path.insert(0, "gen")
from asmlib import Asm

NAME = "interleave_layers__sliding_block_cached__glu_gated_reglu__decode"

OPT = dict(diag=0, stamps=0xff, pro=0, padto=0, cut=0, force_global=0, cyc=0, cy2=0,
           thr=4, d2=39, xp=0, pol=1, early=0, k0=4, wq1=4, wq2=4, wq3=4, bq=6, hf=6, hc=16, hd=4, bp=26, xc=0, wide=0, late=0, lay=1, free=6, warm=2, fb=0, fl=0, gate=1, gsl=0, nt=7, wdp=1, pfp=31, upfree=1, fsl=6, qsl=0, usl=0, near=1, gap=3, nm=0,
           slp=1, p_op=2, p_up=0, p_dn=0, p_qp=0, p_px=0)
for a_ in sys.argv[2:]:
    k_, v_ = a_.split("=")
    assert k_ in OPT, k_
    OPT[k_] = int(v_, 0)
DIAG, THR, CUT = OPT["diag"], OPT["thr"], OPT["cut"]

OB, XA, HB, LSE, LS = 0, 8192, 13312, 15360, 15488
XF = 2 * LS
GS = 36864
QR = 8 * GS
QRS = 2560
MK = QR + 256 * QRS
PBB, PBH = 966656, 163840
assert XF + 5120 <= GS and MK + 4096 <= PBB and PBB % 16384 == 0
MSTR = 16
DIAG_OFF = 16 << 20

L_WQ = 0
R32 = 2176
D32 = 1088
L_WO, L_WD = 20480, 55296
L_WG, L_WU = 20480, 64000
assert (L_WU - L_WG) % 256 == 0 and L_WU - L_WG >= 20 * R32 and L_WD >= L_WO + 16 * R32
L_OW = L_WU + 20 * R32
OWS, OWJ = 1184, 68
L_ML = L_OW + 8 * OWS
L_Q = L_ML + 256
L_P = L_Q + 256
L_OX = L_P + 1024
L_FLAG = L_OX + 4096
LDS_BYTES = L_FLAG + 256

W, G, J, LAYER, LOCAL = "s3", "s4", "s5", "s6", "s7"
pX, pK, pV, pWQ, pWO, pWG, pWU, pWD, pOUT, pDBG, pWS = 8, 10, 12, 14, 16, 20, 22, 24, 26, 28, 30
PM = 8
WOB = 0
KB, VB, TB, MSK, EX, OBM, ODD = 32, 34, 36, 44, 46, 52, 58
T0, T1, T2, T3 = "s38", "s39", "s49", "s50"
CSC, PLO, PHI, SPIN, XCC, PATH = "s40", "s41", "s42", "s43", "s48", "s51"
ONES, H, TILE, BB = "s54", "s55", "s56", "s57"
NU, FB0, ROLE, T2L = "s92", "s93", "s94", "s95"
OPW = H
NEAR = XCC
STAMP0 = 60

KREG, VREG, SREG = 128, 192, 64
IDX, vV = 1, 2
aQA, aPW, aPR, aOWW, aMLW, aOWR, aMLR, aOBA = 3, 4, 5, 6, 7, 8, 9, 10
oBA, oLA, oSA = 11, 12, 13
pCS = 12
rX0, rX1 = 14, 15
vDUM, vPF, vK, vDMA = 56, 57, 58, 59
vWQ = 16

DPP = "row_mask:0xf bank_mask:0xf"
MFMA = "v_mfma_f32_16x16x32_bf16"
SMF = "v_smfmac_f32_16x16x64_bf16"
SPIN_MAX = 1 << 18

a = Asm()


def sp(n):
    return "s[%d:%d]" % (n, n + 1)


def v(n, cnt=1):
    return "v%d" % n if cnt == 1 else "v[%d:%d]" % (n, n + cnt - 1)


def f32(x):
    return "0x%08x" % struct.unpack("<I", struct.pack("<f", x))[0]


def stamp(i):
    if not DIAG or not (OPT["stamps"] >> i) & 1:
        return
    l1, l2 = a.newlabel("ST"), a.newlabel("ST")
    a(f"""
    s_cmp_eq_u32 {LAYER}, 0
    s_cbranch_scc1 {l1}
    s_memrealtime {sp(STAMP0 + 16 + 2 * i)}
    s_branch {l2}
    {l1}:
    s_memrealtime {sp(STAMP0 + 2 * i)}
    {l2}:
    """)


def prostamp(slot, lvl=1):
    if DIAG and OPT["pro"] == lvl:
        a(f"s_memrealtime {sp(STAMP0 + 2 * slot)}")


def cyc(slot):
    if DIAG and (OPT["cyc"] >> slot) & 1:
        a(f"s_memtime {sp(STAMP0 + 2 * slot)}")


def cy2(slot):
    if DIAG and OPT["cy2"]:
        a(f"s_memtime {sp(STAMP0 + 2 * slot)}")


def add64(dst, src, off):
    a(f"s_add_u32 s{dst}, s{src}, {off}\ns_addc_u32 s{dst + 1}, s{src + 1}, 0")


def lane_expr(reg, tmp, fields, base=None):
    first = True
    for pos, width, mul in fields:
        dst = reg if first else tmp
        if pos + width >= 6:
            a(f"v_lshrrev_b32 {v(dst)}, {pos}, v0" if pos else f"v_mov_b32 {v(dst)}, v0")
        elif pos == 0:
            a(f"v_and_b32 {v(dst)}, {(1 << width) - 1}, v0")
        else:
            a(f"v_bfe_u32 {v(dst)}, v0, {pos}, {width}")
        p2 = mul & (mul - 1) == 0
        if first:
            if mul != 1:
                a(f"v_lshlrev_b32 {v(reg)}, {mul.bit_length() - 1}, {v(reg)}" if p2
                  else f"v_mul_u32_u24 {v(reg)}, {mul}, {v(reg)}")
        elif p2:
            a(f"v_lshl_add_u32 {v(reg)}, {v(tmp)}, {mul.bit_length() - 1}, {v(reg)}")
        else:
            a(f"v_mul_u32_u24 {v(tmp)}, {mul}, {v(tmp)}\nv_add_u32 {v(reg)}, {v(reg)}, {v(tmp)}")
        first = False
    if base is not None:
        a(f"v_add_u32 {v(reg)}, {base}, {v(reg)}")


def s_expr(dst, terms, const=0):
    if not terms:
        a(f"s_mov_b32 {dst}, {const}")
        return
    first = True
    for s, mul in terms:
        d = dst if first else T3
        if mul == 1:
            if first:
                if s != d:
                    a(f"s_mov_b32 {d}, {s}")
            else:
                d = s
        elif mul & (mul - 1) == 0:
            a(f"s_lshl_b32 {d}, {s}, {mul.bit_length() - 1}")
        else:
            a(f"s_mul_i32 {d}, {s}, {mul}")
        if not first:
            a(f"s_add_u32 {dst}, {dst}, {d}")
        first = False
    if const:
        a(f"s_add_u32 {dst}, {dst}, {const}")


def lin(reg, shift, terms, const):
    s_expr(T0, terms, const)
    a(f"v_lshl_add_u32 {v(reg)}, v0, {shift}, {T0}")


def store_local(ins):
    lg, le = a.newlabel("SG"), a.newlabel("SE")
    a(f"""
    s_cbranch_scc1 {lg}
    {ins}
    s_branch {le}
    {lg}:
    {ins} sc1
    {le}:
    """)


def local_test():
    a(f"s_cmp_eq_u32 {LOCAL}, 0")


def check_ops(regs, tmp, dst="vcc"):
    ops, regs = [], list(regs)
    if len(regs) == 1:
        return [f"v_cmp_eq_u32 {dst}, -1, {v(regs[0])}"]
    if len(regs) == 2:
        ops.append(f"v_max_u32 {v(tmp)}, {v(regs[0])}, {v(regs[1])}")
    else:
        ops.append(f"v_max3_u32 {v(tmp)}, {v(regs[0])}, {v(regs[1])}, {v(regs[2])}")
        rest = regs[3:]
        while len(rest) >= 2:
            ops.append(f"v_max3_u32 {v(tmp)}, {v(tmp)}, {v(rest[0])}, {v(rest[1])}")
            rest = rest[2:]
        if rest:
            ops.append(f"v_max_u32 {v(tmp)}, {v(tmp)}, {v(rest[0])}")
    ops.append(f"v_cmp_eq_u32 {dst}, -1, {v(tmp)}")
    return ops


def light(ins, r0, slp):
    l1, ok = a.newlabel("PL"), a.newlabel("PK")
    a(f"s_mov_b32 {SPIN}, {SPIN_MAX}\ns_mov_b64 exec, 1")
    a.label(l1)
    a(f"{ins}\ns_waitcnt vmcnt(0)\nv_cmp_eq_u32 vcc, -1, {v(r0)}\ns_cbranch_vccz {ok}")
    if slp:
        a(f"s_sleep {slp}")
    a(f"s_sub_u32 {SPIN}, {SPIN}, 1\ns_cbranch_scc0 {l1}\n{ok}:\ns_mov_b64 exec, -1")


def poll(loads, tmp, mode=0, pre=None, slp=0, deep=False):
    if mode == 1:
        light(loads[-1][0], loads[-1][1], OPT["slp"])
    if mode == 2:
        a("s_waitcnt vmcnt(0)")
    l2, chk, done = a.newlabel("PM"), a.newlabel("PC"), a.newlabel("PD")
    for ins, r0, n in loads:
        a(ins)
    a(f"s_mov_b32 {SPIN}, {SPIN_MAX}")
    if pre:
        pre()
    if deep:
        if not pre:
            a("s_nop 15\ns_nop 7")
        for ins, r0, n in loads:
            a(ins)
    a(f"s_branch {chk}")
    a.label(l2)
    if slp:
        a(f"s_sleep {slp}")
    for u, (ins, r0, n) in enumerate(loads):
        a(f"s_mov_b64 exec, {sp(PM + 2 * u)}")
        a(ins)
    a(f"s_mov_b64 exec, -1\ns_sub_u32 {SPIN}, {SPIN}, 1\ns_cbranch_scc1 {done}")
    a.label(chk)
    nl = len(loads)
    for u, (ins, r0, n) in enumerate(loads):
        a(f"s_waitcnt vmcnt({nl - 1 - u + (nl if deep else 0)})")
        for o in check_ops(range(r0, r0 + n), tmp, sp(PM + 2 * u)):
            a(o)
        if u == 1:
            pend = f"s_or_b64 {sp(MSK)}, {sp(PM)}, {sp(PM + 2)}"
        elif u > 1:
            a(pend)
            pend = f"s_or_b64 {sp(MSK)}, {sp(MSK)}, {sp(PM + 2 * u)}"
    a(pend)
    a(f"s_cbranch_scc1 {l2}\n{done}:")


def quad_gather(r):
    for k in (1, 2, 3):
        a(f"v_mov_b32_dpp {v(r + k)}, {v(r)} quad_perm:[{k},{k},{k},{k}] {DPP}")
    a(f"s_mov_b32 exec_lo, 0x11111111\ns_mov_b32 exec_hi, 0x11111111")


def zero(regs):
    for r in regs:
        a(f"v_mov_b32 {v(r)}, 0")


def b_addr(reg, tmp, rowbytes, extra, base, r32=None):
    lane_expr(reg, tmp, [(3, 1, r32 or 32 * rowbytes), (4, 2, 4 * rowbytes), (2, 1, rowbytes)] + extra, base)


def b_reads(dst, addr, nblk, rowbytes, r32=None):
    r32 = r32 or 32 * rowbytes
    for blk in range(nblk):
        for rho in range(4):
            off = 2 * r32 * blk + (16 * (rho >> 1) + 2 * (rho & 1)) * rowbytes
            a(f"ds_read_b64_tr_b16 {v(dst + 8 * blk + 2 * rho, 2)}, {v(addr)} offset:{off}")


def lane_sum(regs, steps, tmps):
    for st in steps:
        if st in ("s16", "s32"):
            for r, t in zip(regs, tmps):
                a(f"v_mov_b32 {v(t)}, {v(r)}")
            for r, t in zip(regs, tmps):
                a(f"v_permlane{st[1:]}_swap_b32 {v(r)}, {v(t)}")
            for r, t in zip(regs, tmps):
                a(f"v_add_f32 {v(r)}, {v(r)}, {v(t)}")
        else:
            pat = {"x1": "quad_perm:[1,0,3,2]", "x2": "quad_perm:[2,3,0,1]", "hm": "row_half_mirror",
                   "r4": "row_ror:4", "r8": "row_ror:8"}[st]
            for r in regs:
                a(f"v_add_f32_dpp {v(r)}, {v(r)}, {v(r)} {pat} {DPP}")


def ln_stats(xregs, s1, s2, steps, t1, t2):
    for n, r in enumerate(xregs):
        a(f"v_dot2_f32_bf16 {v(s1)}, {v(r)}, {ONES}, {'0' if n == 0 else v(s1)}")
        a(f"v_dot2_f32_bf16 {v(s2)}, {v(r)}, {v(r)}, {'0' if n == 0 else v(s2)}")
    lane_sum([s1, s2], steps, [t1, t2])
    a(f"""
    v_mul_f32 {v(s1)}, {f32(1.0 / 640)}, {v(s1)}
    v_mul_f32 {v(s2)}, {f32(1.0 / 640)}, {v(s2)}
    v_fma_f32 {v(s2)}, -{v(s1)}, {v(s1)}, {v(s2)}
    v_max_f32 {v(s2)}, 0, {v(s2)}
    v_add_f32 {v(s2)}, {f32(1e-5)}, {v(s2)}
    """)


class QM:
    def __init__(self, B, X, A, XA0, XA1, SA, T):
        self.B, self.X, self.A, self.XA0, self.XA1, self.SA, self.T = B, X, A, XA0, XA1, SA, T


Q1M = QM(64, 88, [96, 100, 104], 108, 109, 110, 111)
Q2M = QM(96, 120, [36, 44, 56], 41, 42, 43, 60)


def qp_setup(q):
    s_expr(T0, [(W, 32)], L_WQ - 4 * 32)
    b_addr(q.T, q.SA, 128, [(0, 2, 8)], T0)
    b_reads(q.B, q.T, 3, 128)
    for r in q.A:
        zero(range(r, r + 4))


def qp_saddr(reg, off, wmul=256):
    lin(reg, 2, [(G, 32 * QRS), (J, QRS), (W, wmul)], QR + off - 4 * wmul)


def qp_mm(q):
    a(f"""
    {SMF} {v(q.A[0], 4)}, {v(q.X, 4)}, {v(q.B, 8)}, {v(IDX)}
    {SMF} {v(q.A[1], 4)}, {v(q.X, 4)}, {v(q.B + 8, 8)}, {v(IDX)}
    {SMF} {v(q.A[2], 4)}, {v(q.X + 4, 4)}, {v(q.B + 16, 8)}, {v(IDX)}
    """)


def qp_sum(q):
    A0, A1, A2 = q.A
    a(f"""
    v_add_f32 {v(A0)}, {v(A0)}, {v(A0 + 2)}
    v_add_f32 {v(A1 + 1)}, {v(A1 + 1)}, {v(A1 + 3)}
    v_add_f32 {v(A0)}, {v(A0)}, {v(A1 + 1)}
    v_add_f32 {v(A0)}, {v(A0)}, {v(A2)}
    v_min_u32 {v(A0)}, -2, {v(A0)}
    """)


pX_, pQ, pS1, pS2, pA, pC, pLW, pT, pT2 = 104, 112, 120, 121, 122, 123, 124, 125, 126


def poller_stats():
    ln_stats(range(pX_, pX_ + 5), pS1, pS2, ["x1", "x2", "r4", "r8", "s16", "s32"], pT, pT2)
    a(f"v_rsq_f32 {v(pS2)}, {v(pS2)}")


def poller_qaddr(off):
    a(f"s_and_b32 {T1}, {J}, 24")
    s_expr(T0, [(G, 32 * QRS), (T1, QRS), (BB, 64)], QR + off + 3840)
    lane_expr(pA, pT, [(5, 1, 4 * QRS), (3, 2, 256), (0, 3, 8)], T0)
    lane_expr(pLW, pT, [(5, 1, 128), (3, 1, 64), (0, 1, 32), (4, 1, 16), (1, 2, 4)], L_Q)


def poller_qloads():
    return [(f"global_load_dwordx2 {v(pQ + 2 * kq, 2)}, {v(pA)}, {sp(pWS)} offset:{kq * QRS - 3840} sc1", pQ + 2 * kq, 2) for kq in range(4)]


def poller_finish():
    r = pX_
    a(f"""
    v_pk_add_f32 {v(r, 2)}, {v(pQ, 2)}, {v(pQ + 2, 2)}
    v_pk_add_f32 {v(r + 2, 2)}, {v(pQ + 4, 2)}, {v(pQ + 6, 2)}
    v_pk_fma_f32 {v(r, 2)}, {v(r, 2)}, {v(pS1, 2)}, {v(r + 4, 2)} op_sel:[0,1,0] op_sel_hi:[1,1,1]
    v_pk_fma_f32 {v(r, 2)}, {v(r + 2, 2)}, {v(pS1, 2)}, {v(r, 2)} op_sel:[0,1,0] op_sel_hi:[1,1,1]
    v_cvt_pk_bf16_f32 {v(r)}, {v(r)}, {v(r + 1)}
    ds_write_b32 {v(pLW)}, {v(r)}
    """)


def poller_bias():
    a(f"""
    v_mul_f32 {v(pT)}, {v(pS1)}, {v(pS2)}
    v_mul_f32 {v(pX_ + 4)}, -{v(pT)}, {v(pCS)}
    v_mul_f32 {v(pX_ + 5)}, -{v(pT)}, {v(pCS + 1)}
    """)


aQV, aONE, aLA, IDX2, aQK, aP, aACC, aS, aT = 16, 32, 36, 40, 48, 52, 64, 60, 61


def att_addr(layer):
    t = aT
    lane_expr(aQA, t, [(4, 2, 64), (0, 2, 16)], L_Q)
    s_expr(T0, [(W, 128)], L_P)
    lane_expr(aPW, t, [(0, 1, 64), (2, 1, 32), (4, 1, 16), (1, 1, 8), (5, 1, 4), (3, 1, 2)], T0)
    lane_expr(aPR, t, [(4, 2, 32), (2, 1, 16)], T0)
    lin(aOWW, 3, [(W, OWS)], L_OW)
    s_expr(T0, [(W, 16)], L_ML + 128 * layer)
    lane_expr(aMLW, t, [(4, 1, 8)], T0)
    s_expr(T0, [(W, 32)], L_OW)
    lane_expr(aOWR, t, [(0, 2, 2 * OWS), (2, 2, 4 * OWJ), (4, 2, 8)], T0)
    lane_expr(aMLR, t, [(0, 2, 32)], L_ML + 128 * layer)
    a(f"s_lshr_b32 {T1}, {W}, 1\ns_and_b32 {T2}, {W}, 1")
    s_expr(T0, [(T1, 1024), (T2, 32), (BB, 64)], OB)
    a(f"s_lshr_b32 {T1}, {J}, 3\ns_and_b32 {T2}, {J}, 1")
    s_expr(T0, [(T0, 1), (T1, 2048), (T2, 16)])
    lane_expr(aOBA, t, [(4, 2, 256), (2, 2, 4)], T0)
    s_expr(T0, [(BB, 32), (T1, 8), (T2, 4)], LSE)
    a(f"v_writelane_b32 {v(aOBA)}, {T0}, 1")


def att_init(lo=16, acc=True):
    zero(list(range(lo, 32)) + list(range(aQK, aQK + 8)) + (list(range(aACC, aACC + 32)) if acc else []))
    for i in range(4):
        a(f"v_mov_b32 {v(aONE + i)}, {ONES}")
    a(f"""
    v_bfe_u32 {v(IDX2)}, v0, 2, 1
    v_mul_u32_u24 {v(IDX2)}, 0xaaaa, {v(IDX2)}
    v_add_u32 {v(IDX2)}, 0x4444, {v(IDX2)}
    """)


hdr = open("cdna_kernels/%s.s.ref" % NAME).read().split("\n")
for line in hdr:
    if line.startswith("; @launch"):
        a.raw("; @launch grid=(256,1,1) block=(512,1,1) lds=%d" % LDS_BYTES)
    elif line.startswith(";"):
        a.raw(line)
    else:
        break
a.raw('.amdgcn_target "amdgcn-amd-amdhsa--gfx950"')
a.raw(".text")
a.raw(".globl %s_kernel" % NAME)
a.raw(".p2align 8")
a.raw(".type %s_kernel,@function" % NAME)
a.raw("%s_kernel:" % NAME)
a(f"""
    s_cmp_ge_u32 s2, 256
    s_cbranch_scc1 L_END
    s_load_dwordx16 s[8:23], s[0:1], 0
    s_load_dwordx8 s[24:31], s[0:1], 64
""")
a.c("pull the kernel's own code into L2: four 128-byte lines per workgroup")
a(f"""
    s_getpc_b64 {sp(TB)}
L_PC:
    s_and_b32 {T0}, s2, 0xf8
    s_lshl_b32 {T0}, {T0}, 6
    v_and_b32 v1, 3, v0
    v_lshl_add_u32 v1, v1, 7, {T0}
    v_min_u32 v1, L_END-L_PC, v1
    global_load_dword {v(vDUM)}, v1, {sp(TB)}
    s_mov_b32 {LAYER}, 0
""")
if OPT["padto"]:
    a("s_memrealtime s[96:97]")
if DIAG:
    for i in range(16):
        a(f"s_mov_b64 {sp(STAMP0 + 2 * i)}, 0")
    a("s_memrealtime s[96:97]\ns_memtime s[100:101]")
a(f"""
    v_lshrrev_b32 v1, 6, v0
    v_and_b32 v0, 63, v0
    v_readfirstlane_b32 {W}, v1
    s_and_b32 {G}, s2, 7
    s_lshr_b32 {J}, s2, 3
    s_lshr_b32 {T0}, {J}, 3
    s_add_u32 {H}, {G}, {T0}
    s_and_b32 {H}, {H}, 7
    s_and_b32 {T0}, {J}, 24
    s_add_u32 {H}, {H}, {T0}
    s_bfe_u32 {BB}, {J}, 0x20001
    s_and_b32 {T1}, {J}, 1
""")
s_expr(T2, [(BB, 1 << 25), (H, 1 << 20), (T1, 1 << 17), (W, 1 << (11 if OPT["lay"] else 13))], 0xC0000 + (0 if OPT["lay"] else 4096))
lane_expr(vK, 60, [(1, 3, 256), (0, 1, 64), (4, 2, 16)])
a(f"v_lshlrev_b32 {v(vV)}, 4, v0")
for i in range(4):
    a(f"v_mov_b32 {v(124 + i)}, -1")
a(f"s_lshl_b32 {T0}, {J}, 3\ns_add_u32 {T0}, {T0}, {W}\ns_waitcnt lgkmcnt(0)")
add64(KB, pK, T2)
add64(VB, pV, T2)
a(f"s_cmp_lg_u32 {T0}, {999 if CUT & 128 else 1}\ns_cbranch_scc1 L_PRO_L")
a.c("wave 1 of the group's first workgroup: reset the group's arrival markers, then raise the group's flag")
lin(60, 4, [(G, 32 * MSTR)], MK)
a(f"""
    s_lshl_b32 {T0}, {G}, 5
    v_mov_b32 v62, {T0}
    s_mov_b32 exec_hi, 0
    global_store_dwordx4 v60, v[124:127], {sp(pWS)} sc1
    s_waitcnt vmcnt(0)
    s_mov_b64 exec, 1
    global_store_dword v62, v124, {sp(pDBG)} sc1
    s_mov_b64 exec, -1
L_PRO_L:
""")
a(f"s_cmp_lg_u32 {W}, 2\ns_cselect_b64 vcc, 0, -1\ns_cbranch_scc1 L_PRO_C")


def fill_local(fl, d):
    D = v(d, 4)
    lin(60, 4, [(G, GS), (J, 1152)], 0)
    a(f"global_store_dwordx4 v60, {D}, {sp(pWS)}{fl}")
    a(f"s_mov_b64 exec, 0xff\nglobal_store_dwordx4 v60, {D}, {sp(pWS)} offset:1024{fl}\ns_mov_b64 exec, -1")
    lin(60, 4, [(G, 32 * QRS), (J, QRS)], QR)
    a(f"global_store_dwordx4 v60, {D}, {sp(pWS)}{fl}\nglobal_store_dwordx4 v60, {D}, {sp(pWS)} offset:1024{fl}")
    a(f"s_mov_b32 exec_hi, 0\nglobal_store_dwordx4 v60, {D}, {sp(pWS)} offset:2048{fl}\ns_mov_b64 exec, -1")


def fill_pb(hop, d):
    a(f"s_lshr_b32 {T1}, {J}, 1\ns_and_b32 {T2}, {J}, 1")
    s_expr(T0, [(T1, 16384), (T2, 4096), (G, 256)], PBB + hop * PBH)
    lane_expr(60, 61, [(5, 1, 8192), (4, 1, 2048), (0, 4, 16)], T0)
    a(f"global_store_dwordx4 v60, {v(d, 4)}, {sp(pWS)} sc1")


a.c("wave 2: sentinel fill; plain stores are enough if the group shares one L2 (checked later, redone otherwise)")
if not CUT & 2:
    if not OPT["xc"] & 1:
        fill_local("", 124)
    a(f"s_cmp_ge_u32 {J}, {0 if OPT['xc'] & 2 else 20}\ns_cbranch_scc1 L_PRO_C")
    fill_pb(0, 124)
    if OPT["fb"] == 0:
        a(f"v_add_u32 v60, {PBH}, v60\nglobal_store_dwordx4 v60, v[124:127], {sp(pWS)} sc1")
a.label("L_PRO_C")
SKIP = [False]


def stream(i, thr=True):
    if OPT["lay"]:
        B_ = KB if i < 16 else VB
        if i & 15 and not i & 1:
            add64(B_, B_, 16384)
        if i < 16:
            a(f"global_load_dwordx4 {v(KREG + 4 * i, 4)}, {v(vK)}, {sp(KB)} offset:{(i & 1) * 128} nt")
        else:
            a(f"global_load_dwordx4 {v(SREG + (i - 16) * 4, 4)}, {v(vV)}, {sp(VB)} offset:{(i & 1) * 1024} nt")
    elif i < 16:
        if i == 8:
            add64(KB, KB, 65536)
        kq, hf = (i >> 1) & 3, i & 1
        a(f"global_load_dwordx4 {v(KREG + 4 * i, 4)}, {v(vK)}, {sp(KB)} offset:{kq * 2048 + hf * 128 - 4096} nt")
    else:
        if i == 24:
            add64(VB, VB, 65536)
        a(f"global_load_dwordx4 {v(SREG + (i - 16) * 4, 4)}, {v(vV)}, {sp(VB)} offset:{(i & 7) * 1024 - 4096} nt")
    if thr:
        l = a.newlabel("TS")
        if SKIP[0]:
            a(f"s_cbranch_vccnz {l}")
        a(f"s_waitcnt vmcnt({THR - 1})")
        a.label(l)


def only_wave(w, label, off=False):
    a(f"s_cmp_lg_u32 {W}, {9 if off else w}\ns_cbranch_scc1 {label}")


def h_first():
    a(f"s_cmp_ge_u32 {W}, 4\ns_cbranch_scc1 L_PRO_X")
    a(f"s_lshl_b32 {TILE}, {J}, 1\ns_add_u32 {TILE}, {TILE}, {W}")
    a(f"s_cmp_eq_u32 {W}, 3\ns_cbranch_scc1 L_PRO_X3\ns_cmp_eq_u32 {W}, 2\ns_cbranch_scc1 L_PRO_X2")
    a(f"s_min_u32 {T1}, {TILE}, 39")
    s_expr(T0, [(T1, 32)])
    lane_expr(60, 61, [(2, 2, 1280), (0, 2, 8), (5, 1, 4)], T0)
    a(f"global_load_dword {v(rX0)}, v60, {sp(pX)}")
    a("s_branch L_PRO_A")
    a.label("L_PRO_X2")
    a.c("wave 2: LDS zero areas")
    zero(range(44, 48))
    a(f"""
    v_lshlrev_b32 v62, 2, v0
    v_add_u32 v62, {L_ML}, v62
    ds_write_b32 v62, v124
    v_mov_b32 v62, {L_FLAG + 16}
    ds_write_b128 v62, v[124:127]
    v_add_u32 v62, {L_OX}, {v(vV)}
    ds_write_b128 v62, v[124:127]
    ds_write_b128 v62, v[124:127] offset:1024
    ds_write_b128 v62, v[124:127] offset:2048
    ds_write_b128 v62, v[124:127] offset:3072
    v_add_u32 v62, {L_WD + 6 * R32}, {v(vV)}
    s_cmp_ge_u32 {J}, 20
    s_cbranch_scc1 L_PRO_A
    ds_write_b128 v62, v[44:47]
    ds_write_b128 v62, v[44:47] offset:1024
    ds_write_b128 v62, v[44:47] offset:{R32}
    ds_write_b128 v62, v[44:47] offset:{R32 + 1024}
    s_branch L_PRO_A
    """)
    a.label("L_PRO_X3")
    lin(60, 2, [(BB, 1280)], 0)
    for u in range(5):
        a(f"global_load_dword {v(pX_ + u)}, v60, {sp(pX)} offset:{u * 256}")
    a("s_branch L_PRO_A")
    a.label("L_PRO_X")
    a(f"s_and_b32 {T1}, {J}, 3")
    s_expr(T0, [(T1, 320)])
    q = Q1M
    lane_expr(q.XA0, q.T, [(2, 2, 1280), (0, 1, 128), (1, 1, 64), (4, 2, 16)], T0)
    lane_expr(q.XA1, q.T, [(2, 2, 1280), (4, 2, 16)], T0)
    a(f"global_load_dwordx4 {v(q.X, 4)}, {v(q.XA0)}, {sp(pX)}")
    a(f"global_load_dwordx4 {v(q.X + 4, 4)}, {v(q.XA1)}, {sp(pX)} offset:256")
    a.label("L_PRO_A")
    lane_expr(vWQ, 61, [(3, 3, 8192), (0, 3, 16)])
    a(f"s_and_b32 {T1}, {J}, 3\ns_and_b32 {T2}, {J}, 4")
    s_expr(T0, [(T1, 160 * 8192), (W, 8 * 8192), (H, 256), (T2, 32)])
    add64(TB, pWQ, T0)
    prostamp(0)


def h_wq(n):
    l = a.newlabel("WQ")
    if n == 2:
        a(f"s_cmp_ge_u32 {W}, 4\ns_cbranch_scc1 {l}")
    a(f"s_lshl_b32 {T1}, {W}, 10\ns_add_u32 m0, {T1}, {L_WQ + n * 8192}")
    if not CUT & 4:
        a(f"global_load_lds_dwordx4 {v(vWQ)}, {sp(TB)} nt")
    if n < 2:
        add64(TB, TB, 64 * 8192)
    a.label(l)


def h_setup1():
    a(f"""
    s_mov_b32 {ONES}, 0x3f803f80
    v_bfe_u32 {v(IDX)}, v0, 1, 1
    v_mul_u32_u24 {v(IDX)}, 0xaaaa, {v(IDX)}
    v_add_u32 {v(IDX)}, 0x4444, {v(IDX)}
    s_mov_b32 {CSC}, {f32(math.log2(math.e) / math.sqrt(128.0))}
    s_mov_b32 {PLO}, 0x05040100
    s_mov_b32 {PHI}, 0x07060302
    s_mov_b32 s{ODD}, 0xaaaaaaaa
    s_mov_b32 s{ODD + 1}, 0xaaaaaaaa
    s_mov_b32 s{OBM}, 0x11111111
    s_mov_b32 s{OBM + 1}, 0x11111111
    s_cmp_eq_u32 {W}, 0
    s_cselect_b32 s{OBM}, 0x11111113, s{OBM}
    s_mul_i32 {T0}, {G}, {GS}
    s_add_u32 s{EX}, s{pWS}, {T0}
    s_addc_u32 s{EX + 1}, s{pWS + 1}, 0
    s_cmp_lt_u32 {G}, 6
    s_cselect_b32 {NU}, 7, 6
    s_mul_i32 {FB0}, {G}, 7
    s_min_u32 {FB0}, {FB0}, 48
    s_sub_u32 {T0}, {J}, 20
    s_cmp_lt_u32 {T0}, {NU}
    s_cselect_b32 {ROLE}, 1, 2
    s_cmp_lt_u32 {J}, 20
    s_cselect_b32 {ROLE}, 0, {ROLE}
    """)
    a.c("PATH: 0 out/down projection, 1 gate/up, 2 q projection or q collector, 3 nothing")
    a(f"""
    s_cmp_ge_u32 {W}, 3
    s_cselect_b32 {PATH}, 2, 3
    s_lshl_b32 {T0}, 2, {ROLE}
    s_and_b32 {T0}, {T0}, 7
    s_cmp_lt_u32 {W}, {T0}
    s_cselect_b32 {PATH}, {ROLE}, {PATH}
    s_cmp_lg_u32 {ROLE}, 0
    s_cbranch_scc1 L_PRO_RU
    """)
    a.c("role weight staging: source pointer, swizzled per-lane offset, LDS base")
    lane_expr(vDMA, 60, [(2, 4, 1280), (0, 2, 16)])
    s_expr(T0, [(W, 16 * 1280), (J, 64)])
    add64(WOB, pWO, T0)
    a(f"s_lshr_b32 {T1}, {W}, 1")
    s_expr(T2L, [(W, 1024), (T1, 128)], L_WO)
    a("s_branch L_PRO_R")
    a.label("L_PRO_RU")
    lane_expr(vDMA, 60, [(2, 4, 3456), (0, 2, 16)])
    a(f"""
    s_and_b32 {T0}, {W}, 4
    s_lshl_b32 {T0}, {T0}, 2
    v_xor_b32 {v(vDMA)}, {T0}, {v(vDMA)}
    s_add_u32 {T1}, {FB0}, {J}
    s_sub_u32 {T1}, {T1}, 20
    s_and_b32 {T2}, {W}, 3
    s_cmp_ge_u32 {W}, 4
    s_cselect_b32 s{WOB}, s{pWU}, s{pWG}
    s_cselect_b32 s{WOB + 1}, s{pWU + 1}, s{pWG + 1}
    s_mov_b32 {T2L}, {L_WG}
    s_cselect_b32 {T2L}, {L_WU}, {T2L}
    s_lshr_b32 {T0}, {T2}, 1
    """)
    s_expr(T2L, [(T2L, 1), (T2, 1024), (T0, 128)])
    s_expr(T0, [(T1, 64), (T2, 16 * 3456)])
    add64(WOB, WOB, T0)
    a.label("L_PRO_R")
    a(f"v_and_b32 v60, 16, v0\nv_lshlrev_b32 v60, 1, v60\nv_xor_b32 {v(vDMA)}, {v(vDMA)}, v60")


def h_setup3():
    att_init(24, acc=False)
    lin(oBA, 4, [(W, 2048)], OB)
    zero([12])
    a(f"s_lshr_b32 {T1}, {J}, 1\ns_and_b32 {T2}, {J}, 1")
    lin(oSA, 2, [(T1, 16384), (T2, 4096), (W, 2048), (G, 256)], 0)
    zero([41, 42, vPF, pA, pC])


def h_flag():
    a(f"""
    v_and_b32 v17, 7, v0
    v_lshlrev_b32 v17, 5, v17
    v_mov_b32 v18, 0
    v_lshlrev_b32 v19, 4, v0
    v_add_u32 v19, {MK}, v19
    """)
    only_wave(2, "L_HA0", CUT & 32)
    a(f"global_load_dword v18, v17, {sp(pDBG)} sc1")
    a.label("L_HA0")


def h_bq(nafter, nflag):
    a(f"s_waitcnt vmcnt({nafter}) lgkmcnt(0)")
    only_wave(2, "L_HA1", CUT & 32)
    a.c("wave 2: sentinel fill done and the group's markers reset -> publish this workgroup's XCD id")
    lin(62, 2, [(G, 32 * MSTR), (J, MSTR)], MK)
    a(f"""
    s_getreg_b32 {XCC}, hwreg(HW_REG_XCC_ID, 0, 4)
    v_mov_b32 v44, {XCC}
    s_mov_b32 {SPIN}, {SPIN_MAX}
    s_barrier
    s_waitcnt vmcnt({nflag})
L_ARR:
    v_readlane_b32 {T0}, v18, {G}
    s_cmp_lg_u32 {T0}, 0
    s_cbranch_scc1 L_ARR_OK
    global_load_dword v18, v17, {sp(pDBG)} sc1
    s_waitcnt vmcnt(0)
    s_sub_u32 {SPIN}, {SPIN}, 1
    s_cbranch_scc0 L_ARR
L_ARR_OK:
    s_mov_b64 exec, 1
    global_store_dwordx4 v62, v[44:47], {sp(pWS)} sc1
    s_mov_b64 exec, -1
    s_branch L_PRO_KV
L_HA1:
    """)
    prostamp(3)
    a(f"""
    s_barrier
    s_cmp_ge_u32 {W}, {9 if CUT & 16 else 4}
    s_cbranch_scc1 L_PRO_Q
    s_cmp_eq_u32 {W}, 3
    s_cbranch_scc1 L_PRO_P
    v_and_b32 {v(rX1)}, 0xffff0000, {v(rX0)}
    v_lshlrev_b32 {v(rX0)}, 16, {v(rX0)}
    s_branch L_PRO_KV
    """)
    a.label("L_PRO_Q")
    a.c("waves 4..7: partial q projection of layer 1 and partial column sums")
    qp_setup(Q1M)
    qp_saddr(Q1M.SA, 0)
    qB, qSA, qACC = Q1M.B, Q1M.SA, Q1M.A[0]
    qp_saddr(112, 2048, 128)
    zero(range(116, 124))
    for i in range(4):
        a(f"v_mov_b32 {v(124 + i)}, {ONES}")
    a("s_waitcnt lgkmcnt(0)")
    qp_mm(Q1M)
    a(f"""
    {SMF} v[116:119], v[124:127], {v(qB, 8)}, {v(IDX)}
    {SMF} v[116:119], v[124:127], {v(qB + 8, 8)}, {v(IDX)}
    {SMF} v[120:123], v[124:127], {v(qB + 16, 8)}, {v(IDX)}
    """)
    qp_sum(Q1M)
    a(f"""
    v_add_f32 v116, v116, v118
    v_add_f32 v116, v116, v120
    v_min_u32 v42, -2, v116
    v_mov_b32 v41, {v(qACC)}
    global_store_dword {v(qSA)}, v41, {sp(pWS)}
    s_mov_b32 exec_hi, 0
    global_store_dword v112, v42, {sp(pWS)}
    s_mov_b64 exec, -1
    s_mov_b64 vcc, -1
    s_branch L_PRO_KV
    """)
    a.label("L_PRO_P")
    a.c("wave 3: LayerNorm statistics of its row")
    if not CUT & 8:
        a(f"global_load_dword v18, v17, {sp(pDBG)} sc1")
    poller_qaddr(0)
    s_expr(T0, [(G, 32 * QRS), (T1, QRS)], QR + 2048 + 3840)
    lane_expr(pC, pT, [(5, 1, 4 * QRS), (3, 2, 128), (0, 3, 8)], T0)
    poller_stats()
    a.label("L_PRO_KV")
    prostamp(4)


MK_LOADS = "\n".join(f"global_load_dword {v(20 + u)}, v19, {sp(pWS)} offset:{u * 64 * MSTR} sc1" for u in range(4))


def q1_loads():
    for ins, _, _ in poller_qloads():
        a(ins)
    for kq in range(4):
        a(f"global_load_dwordx2 {v(pX_ + 2 * kq, 2)}, {v(pC)}, {sp(pWS)} offset:{kq * QRS - 3840} sc1")


def h_p1(ny):
    only_wave(3, "L_H1", CUT & 8)
    a.c("wave 3: all groups have reset their markers -> read the markers")
    a(f"""
    s_mov_b32 {SPIN}, {SPIN_MAX}
    s_waitcnt vmcnt({ny})
L_FLG:
    v_cmp_eq_u32 vcc, 0, v18
    s_cbranch_vccz L_FLG_OK
    global_load_dword v18, v17, {sp(pDBG)} sc1
    s_waitcnt vmcnt(0)
    s_sub_u32 {SPIN}, {SPIN}, 1
    s_cbranch_scc0 L_FLG
L_FLG_OK:
    {MK_LOADS}
    s_mov_b64 vcc, -1
L_H1:
    """)
    prostamp(2)


def h_p2(ny):
    only_wave(3, "L_H2", CUT & 8)
    a.c("wave 3: the whole group has arrived -> fetch q partials; decide whether the group shares one L2")
    a(f"""
    s_getreg_b32 {XCC}, hwreg(HW_REG_XCC_ID, 0, 4)
    s_mov_b32 {SPIN}, {SPIN_MAX}
    s_waitcnt vmcnt({ny})
L_CNT:
    s_bitcmp1_b32 {G}, 1
    s_cselect_b64 vcc, -1, 0
    v_cndmask_b32 v17, v20, v21, vcc
    v_cndmask_b32 v18, v22, v23, vcc
    s_bitcmp1_b32 {G}, 2
    s_cselect_b64 vcc, -1, 0
    v_cndmask_b32 v17, v17, v18, vcc
    v_cmp_eq_u32 vcc, -1, v17
    s_bitcmp1_b32 {G}, 0
    s_cselect_b32 {T0}, vcc_hi, vcc_lo
    s_cmp_eq_u32 {T0}, 0
    s_cbranch_scc1 L_CNT_OK
    {MK_LOADS}
    s_waitcnt vmcnt(0)
    s_sub_u32 {SPIN}, {SPIN}, 1
    s_cbranch_scc0 L_CNT
L_CNT_OK:
    """)
    q1_loads()
    a(f"""
    {MK_LOADS}
    v_cmp_ne_u32 vcc, {XCC}, v17
    v_mov_b32 v18, {L_FLAG}
    s_bitcmp1_b32 {G}, 0
    s_cselect_b32 {T0}, vcc_hi, vcc_lo
    s_cmp_lg_u32 {T0}, 0
    s_cselect_b32 {T0}, 0, {0 if OPT['force_global'] else 1}
    s_mov_b32 {LOCAL}, {T0}
    v_mov_b32 v17, {T0}
    ds_write_b32 v18, v17
    s_mov_b64 vcc, -1
L_H2:
    """)
    prostamp(5)


def h_p4():
    a.c("wave 3: every workgroup of every group must have arrived before this workgroup publishes or polls anything else")
    a(f"""
    s_mov_b32 {SPIN}, {SPIN_MAX}
L_ALL:
    v_max3_u32 v17, v20, v21, v22
    v_max_u32 v17, v17, v23
    v_cmp_eq_u32 vcc, -1, v17
    s_cbranch_vccz L_ALL_OK
    s_sleep 4
    {MK_LOADS}
    s_waitcnt vmcnt(0)
    s_sub_u32 {SPIN}, {SPIN}, 1
    s_cbranch_scc0 L_ALL
L_ALL_OK:
    """)
    if OPT["warm"] & 2:
        a.c("keep the hand-off lines in L2 so that the first polls do not miss")
        s_expr(T0, [(J, 1152)])
        a(f"""
        v_min_u32 v17, 8, v0
        v_lshl_add_u32 v17, v17, 7, {T0}
        global_load_dword {v(vDUM)}, v17, {sp(EX)} sc1
        """)
        s_expr(T0, [(G, 32 * QRS), (J, QRS)], QR + 1024)
        a(f"""
        v_and_b32 v17, 7, v0
        v_lshl_add_u32 v17, v17, 7, {T0}
        global_load_dword {v(vDUM)}, v17, {sp(pWS)} sc1
        """)
    a.label("L_H4")


def q1_collect(tag):
    a(f"s_mov_b32 {SPIN}, {SPIN_MAX}")
    a.label("L_Q1" + tag)
    for s_ in check_ops(range(pX_, pX_ + 16), pT):
        a(s_)
    a(f"s_cbranch_vccz L_Q1_OK{tag}")
    q1_loads()
    a(f"""
    s_waitcnt vmcnt(0)
    s_sub_u32 {SPIN}, {SPIN}, 1
    s_cbranch_scc0 L_Q1{tag}
L_Q1_OK{tag}:
    v_pk_add_f32 {v(pX_, 2)}, {v(pX_, 2)}, {v(pX_ + 2, 2)}
    v_pk_add_f32 {v(pX_ + 4, 2)}, {v(pX_ + 4, 2)}, {v(pX_ + 6, 2)}
    v_pk_add_f32 {v(pCS, 2)}, {v(pX_, 2)}, {v(pX_ + 4, 2)}
    """)
    poller_bias()
    poller_finish()


def h_p3(ny):
    only_wave(3, "L_H3", CUT & 8)
    a(f"s_waitcnt vmcnt({ny})\ns_cmp_eq_u32 {LOCAL}, 0\ns_cbranch_scc1 L_H3B")
    q1_collect("")
    a.label("L_H3B")
    h_p4()
    a("s_waitcnt lgkmcnt(0)")
    a.label("L_H3")
    prostamp(6)


K0, BQ, HF, HC, HD, BP = OPT["k0"], OPT["bq"], OPT["hf"], OPT["hc"], OPT["hd"], OPT["bp"]
hooks = {}


def h_unfree():
    a(f"s_cmp_eq_u32 {W}, 3\ns_cselect_b64 vcc, vcc, 0")


for pos, fn in [(K0, h_first), (K0, lambda: h_wq(0)), (K0, lambda: h_wq(1)), (K0, lambda: h_wq(2)),
                (K0 + 1, h_setup1), (K0 + 2, h_setup3), (HF, h_flag),
                (BQ + 2, lambda: h_bq(BQ + 2 - K0, BQ + 2 - HF)), (BQ + 3, lambda: att_addr(0)),
                (BQ + 2 + OPT["free"], h_unfree),
                (HC, lambda: h_p1(HC - BQ - 2)), (HC + HD, lambda: h_p2(HD)), (HC + 2 * HD, lambda: h_p3(HD))]:
    hooks.setdefault(pos, []).append(fn)
assert K0 + 2 <= BQ + 2 <= 16 and K0 <= HF < BQ + 2 <= HC and HC + 2 * HD < BP and 24 <= BP <= 26
SKIP[0] = True
for i in range(BP):
    for fn in hooks.get(i, []):
        fn()
    stream(i, thr=not (i < K0 or BQ <= i < BQ + 2 or i >= BP - 2))
SKIP[0] = False
a("s_waitcnt vmcnt(%d)" % (BP - 16))
prostamp(1)
a(f"""
    v_mov_b32 v62, {L_FLAG}
    s_barrier
    ds_read_b32 v62, v62
    v_mov_b32 v63, {CSC}
    s_waitcnt lgkmcnt(0)
    v_readfirstlane_b32 {LOCAL}, v62
    s_cmp_eq_u32 {LOCAL}, {9 if CUT else 0}
    s_cbranch_scc1 L_SLOW
L_SLOW_RET:
""")
zero(range(16, 24))
a("s_mov_b32 exec_lo, 0x000f000f\ns_mov_b32 exec_hi, 0x000f000f\ns_branch L_BAR2")


def perms(t, pp):
    for j in range(8):
        s0 = SREG + t * 32 + (2 * pp) * 4 + (j >> 1)
        a(f"v_perm_b32 {v(VREG + j * 8 + t * 4 + pp)}, {v(s0 + 4)}, {v(s0)}, {PHI if j & 1 else PLO}")


def gu_prefetch(lo, hi, issue=True):
    s_expr(T1, [(J, 8), (W, 1)], -160)
    a(f"""
    s_cmp_ge_u32 {T1}, 48
    s_cselect_b32 s{TB}, s{pWU}, s{pWG}
    s_cselect_b32 s{TB + 1}, s{pWU + 1}, s{pWG + 1}
    s_cselect_b32 {T0}, 48, 0
    s_sub_u32 {T1}, {T1}, {T0}
    s_mul_i32 {T1}, {T1}, 14
    s_add_u32 {T1}, {T1}, {lo}
    s_lshr_b32 {T2}, {FB0}, 1
    s_lshl_b32 {T2}, {T2}, 7
    s_sub_u32 {T0}, {NU}, 4
    v_lshrrev_b32 {v(vPF)}, 2, v0
    v_min_u32 {v(vPF)}, {hi - lo - 1}, {v(vPF)}
    v_add_u32 {v(vPF)}, {T1}, {v(vPF)}
    v_min_u32 {v(vPF)}, 639, {v(vPF)}
    v_mul_u32_u24 {v(vPF)}, 3456, {v(vPF)}
    v_and_b32 {v(vK)}, 3, v0
    v_min_u32 {v(vK)}, {T0}, {v(vK)}
    v_lshl_add_u32 {v(vPF)}, {v(vK)}, 7, {v(vPF)}
    v_add_u32 {v(vPF)}, {T2}, {v(vPF)}
    """)
    if issue:
        a(f"global_load_dword {v(vDUM)}, {v(vPF)}, {sp(TB)}")


def wo_prefetch():
    if OPT["upfree"]:
        a.c("wo into L2, one dword per line; the gate/up workgroups are left out so that they finish K/V early")
        a(f"""
        s_sub_u32 {T0}, {J}, 20
        s_cmp_lt_u32 {T0}, 7
        s_cbranch_scc1 L_WPE
        s_cmp_ge_u32 {J}, 20
        s_cselect_b32 {T0}, 7, 0
        s_sub_u32 {T0}, {J}, {T0}
        """)
        s_expr(T0, [(T0, 8 * 26), (W, 26)])
        a(f"""
        v_min_u32 {v(vPF)}, 25, v0
        v_add_u32 {v(vPF)}, {T0}, {v(vPF)}
        v_min_u32 {v(vPF)}, 5119, {v(vPF)}
        v_mul_u32_u24 {v(vK)}, 3277, {v(vPF)}
        v_lshrrev_b32 {v(vK)}, 22, {v(vK)}
        v_add_u32 v62, {G}, {v(vK)}
        v_and_b32 v62, 7, v62
        v_mul_u32_u24 {v(vK)}, 7, {v(vK)}
        v_add_u32 v62, v62, {v(vK)}
        v_mul_u32_u24 v62, 1280, v62
        v_add_lshl_u32 {v(vPF)}, {v(vPF)}, v62, 7
        global_load_dword {v(vDUM)}, {v(vPF)}, {sp(pWO)}
    L_WPE:
        """)
        return
    a(f"s_and_b32 {T1}, {J}, 7")
    s_expr(T0, [(H, 128 * 1280), (T1, 8 * 2560), (W, 2560)])
    a(f"""
    v_min_u32 {v(vPF)}, 19, v0
    v_lshl_add_u32 {v(vPF)}, {v(vPF)}, 7, {T0}
    global_load_dword {v(vDUM)}, {v(vPF)}, {sp(pWO)}
    """)


NTAIL = 1 if OPT["pfp"] == 32 else 0


def v_tail():
    done = 0
    for i in range(BP, 32):
        if i == OPT["pfp"]:
            wo_prefetch()
        stream(i, thr=i < 31)
        if done < 4:
            a(f"s_waitcnt vmcnt({i - (17 + 2 * done)})")
            perms(0, done)
            done += 1
    assert done == 4
    if OPT["pfp"] == 32:
        wo_prefetch()
    prostamp(7)
    a(f"s_lshr_b32 {OPW}, {W}, 2\ns_or_b32 {OPW}, {OPW}, {ROLE}")
    zero(range(aACC, aACC + 32))
    for pp in range(4):
        a(f"s_waitcnt vmcnt({6 - 2 * pp + NTAIL})")
        perms(1, pp)
        if pp == 2:
            a(f"s_cmp_eq_u32 {ROLE}, 0\ns_cbranch_scc1 L_NT0")
            gu_prefetch(0, OPT["nt"], issue=False)
            a.label("L_NT0")
        if pp == 1:
            for i in range(4):
                a(f"""
                s_add_u32 {T0}, {G}, {i}
                s_and_b32 {T0}, {T0}, 7
                s_add_u32 {T0}, {T0}, {8 * i}
                s_mul_i32 s{PM + i}, {T0}, {128 * 1280}
                """)
    a.c("K and V are in: first part of the W_gate / W_up prefetch")
    a(f"s_cmp_eq_u32 {ROLE}, 0\ns_cbranch_scc1 L_NT1")
    a(f"global_load_dword {v(vDUM)}, {v(vPF)}, {sp(TB)}\ns_branch L_PV")
    a.label("L_NT1")
    for i in range(4):
        a(f"s_add_u32 m0, {T2L}, {i * 4 * R32}")
        add64(TB, WOB, f"s{PM + i}")
        a(f"global_load_lds_dwordx4 {v(vDMA)}, {sp(TB)}")


MXS = "s44"
a.label("L_BAR")
a(f"""
    v_mov_b32 v63, {CSC}
    s_mov_b32 exec_lo, 0x000f000f
    s_mov_b32 exec_hi, 0x000f000f
    s_barrier
L_BAR2:
""")
stamp(0)
cyc(0)
for o in range(4):
    a(f"ds_read_b128 {v(aQV + 4 * o, 4)}, {v(aQA)}")
    a("s_lshl_b64 exec, exec, 4" if o < 3 else "s_mov_b64 exec, -1")
for o in range(4):
    a(f"s_waitcnt lgkmcnt({3 - o})")
    for t in range(2):
        a(f"{SMF} {v(aQK + 4 * t, 4)}, {v(aQV + 4 * o, 4)}, {v(KREG + (t * 4 + o) * 8, 8)}, {v(IDX)}")
cyc(1)
a(f"""
    v_pk_add_f32 {v(aQK, 2)}, {v(aQK, 2)}, {v(aQK + 2, 2)}
    v_pk_add_f32 {v(aQK + 4, 2)}, {v(aQK + 4, 2)}, {v(aQK + 6, 2)}
    v_cndmask_b32 {v(aT)}, {v(aQK + 4)}, {v(aQK + 1)}, {sp(ODD)}
    v_cndmask_b32 {v(aS)}, {v(aQK)}, {v(aQK + 5)}, {sp(ODD)}
    v_add_f32_dpp {v(aS)}, {v(aT)}, {v(aS)} quad_perm:[1,0,3,2] {DPP}
    v_max_f32_dpp {v(aT)}, {v(aS)}, {v(aS)} quad_perm:[1,0,3,2] {DPP}
    v_max_f32_dpp {v(aT)}, {v(aT)}, {v(aT)} quad_perm:[2,3,0,1] {DPP}
    v_max_f32_dpp {v(aT)}, {v(aT)}, {v(aT)} row_ror:4 {DPP}
    v_max_f32_dpp {v(aT)}, {v(aT)}, {v(aT)} row_ror:8 {DPP}
    v_max_f32_dpp {v(aT)}, {v(aT)}, {v(aT)} row_bcast:15 row_mask:0xa bank_mask:0xf
    v_max_f32_dpp {v(aT)}, {v(aT)}, {v(aT)} row_bcast:31 row_mask:0xc bank_mask:0xf
    v_readlane_b32 {MXS}, {v(aT)}, 63
    v_mul_f32 {v(aT)}, {MXS}, v63
    v_fma_f32 {v(aS)}, {v(aS)}, v63, -{v(aT)}
    v_exp_f32 {v(aS)}, {v(aS)}
    v_cvt_pk_bf16_f32 {v(aS)}, {v(aS)}, {v(aS)}
    ds_write_b16 {v(aPW)}, {v(aS)}
    ds_read_b128 {v(aP, 4)}, {v(aPR)}
    v_min_u32 {v(aT)}, -2, {v(aT)}
""")
cyc(2)
a(f"s_cmp_eq_u32 {LAYER}, 0\ns_cbranch_scc1 L_VT")
a.label("L_PV")
a("s_mov_b32 exec_hi, 0\ns_waitcnt lgkmcnt(0)")
cyc(3)
pvm = [f"{SMF} {v(aACC + 4 * j, 4)}, {v(aP, 4)}, {v(VREG + j * 8, 8)}, {v(IDX2)}" for j in range(8)]
oww = [f"ds_write2_b32 {v(aOWW)}, {v(aACC + 8 * jp)}, {v(aACC + 8 * jp + 4)} offset0:{OWJ * jp} offset1:{OWJ * jp + 1}"
       for jp in range(4)]
a(f"""
    {MFMA} {v(aLA, 4)}, {v(aP, 4)}, {v(aONE, 4)}, 0
    {pvm[0]}
    s_nop 0
    {pvm[1]}
    s_mov_b32 {SPIN}, {SPIN_MAX}
    {pvm[2]}
    s_nop 0
    {pvm[3]}
    s_cmp_lt_u32 {W}, 4
    v_min_u32 {v(aLA)}, -2, {v(aLA)}
    {pvm[4]}
    ds_write2_b32 {v(aMLW)}, {v(aT)}, {v(aLA)} offset0:0 offset1:1
    {pvm[5]}
    {oww[0]}
    {pvm[6]}
    {pvm[7]}
    {oww[1]}
    {oww[2]}
    {oww[3]}
    s_mov_b64 exec, -1
""")
cyc(4)
a("s_cbranch_scc1 L_CMB")
a(f"s_cmp_lg_u32 {ROLE}, 0\ns_cbranch_scc1 L_YB\ns_waitcnt vmcnt(0)\nL_YB:\ns_waitcnt lgkmcnt(0)")
cyc(5)
a("s_barrier\ns_branch L_ATT_END")
a.label("L_CMB")
a.c("waves 0..3: softmax weights of the eight partial results, then (behind the barrier) the weighted sum")
cM, cO, cW = 16, 24, 44
a(f"""
L_MXC:
    ds_read_b128 {v(cM, 4)}, {v(aMLR)}
    ds_read_b128 {v(cM + 4, 4)}, {v(aMLR)} offset:16
    s_sub_u32 {SPIN}, {SPIN}, 1
    s_cbranch_scc1 L_MXD
    s_waitcnt lgkmcnt(0)
""")
for o in check_ops([cM, cM + 1, cM + 3, cM + 4, cM + 5, cM + 7], aS):
    a(o)
a(f"""
    v_max_f32 {v(aT)}, {v(cM)}, {v(cM + 4)}
    s_cbranch_vccnz L_MXC
L_MXD:
    v_add_f32 {v(cM + 1)}, {v(cM + 1)}, {v(cM + 3)}
    v_max_f32_dpp {v(aT)}, {v(aT)}, {v(aT)} quad_perm:[1,0,3,2] {DPP}
    v_add_f32 {v(cM + 5)}, {v(cM + 5)}, {v(cM + 7)}
    v_cmp_eq_u32 vcc, 1, v0
    v_max_f32_dpp {v(aT)}, {v(aT)}, {v(aT)} quad_perm:[2,3,0,1] {DPP}
    v_sub_f32 {v(cW)}, {v(cM)}, {v(aT)}
    v_sub_f32 {v(cW + 1)}, {v(cM + 4)}, {v(aT)}
    v_exp_f32 {v(cW)}, {v(cW)}
    v_exp_f32 {v(cW + 1)}, {v(cW + 1)}
    v_mul_f32 {v(aS)}, {v(cW)}, {v(cM + 1)}
    v_fmac_f32 {v(aS)}, {v(cW + 1)}, {v(cM + 5)}
    v_add_f32_dpp {v(aS)}, {v(aS)}, {v(aS)} quad_perm:[1,0,3,2] {DPP}
    s_cmp_lg_u32 {ROLE}, 0
    s_cbranch_scc1 L_OB
    s_waitcnt vmcnt(0)
L_OB:
""")
local_test()
cyc(5)
a("s_barrier")
cyc(6)
a(f"""
    ds_read_b64 {v(cO, 2)}, {v(aOWR)}
    ds_read_b64 {v(cO + 2, 2)}, {v(aOWR)} offset:128
    ds_read_b64 {v(cO + 4, 2)}, {v(aOWR)} offset:{OWS}
    ds_read_b64 {v(cO + 6, 2)}, {v(aOWR)} offset:{OWS + 128}
    v_add_f32_dpp {v(aS)}, {v(aS)}, {v(aS)} quad_perm:[2,3,0,1] {DPP}
    v_rcp_f32 {v(cW + 2)}, {v(aS)}
    v_log_f32 {v(aS)}, {v(aS)}
    v_pk_mul_f32 {v(cW, 2)}, {v(cW, 2)}, {v(cW + 2, 2)} op_sel_hi:[1,0]
    v_add_f32 {v(aS)}, {v(aS)}, {v(aT)}
    s_waitcnt lgkmcnt(2)
    v_pk_add_f32 {v(cO, 2)}, {v(cO, 2)}, {v(cO + 2, 2)}
    v_pk_mul_f32 {v(cO, 2)}, {v(cO, 2)}, {v(cW, 2)} op_sel_hi:[1,0]
    s_waitcnt lgkmcnt(0)
    v_pk_add_f32 {v(cO + 4, 2)}, {v(cO + 4, 2)}, {v(cO + 6, 2)}
    v_pk_fma_f32 {v(cO, 2)}, {v(cO + 4, 2)}, {v(cW, 2)}, {v(cO, 2)} op_sel:[0,1,0] op_sel_hi:[1,1,1]
""")
lane_sum([cO, cO + 1], ["x1", "x2"], [])
a(f"""
    v_cvt_pk_bf16_f32 {v(cO)}, {v(cO)}, {v(cO + 1)}
    v_cndmask_b32 {v(cO)}, {v(cO)}, {v(aS)}, vcc
    s_mov_b64 exec, {sp(OBM)}
    v_min_u32 {v(cO)}, -2, {v(cO)}
""")
cyc(7)
store_local(f"global_store_dword {v(aOBA)}, {v(cO)}, {sp(EX)}")
a("s_mov_b64 exec, -1")
a.label("L_ATT_END")
stamp(3)
if CUT & 1:
    a("s_branch L_FIN")
a(f"s_cmp_eq_u32 {LAYER}, 0\ns_cbranch_scc1 L_STAGE")
a.label("L_ROLE")
a(f"s_cmp_lg_u32 {OPW}, 0\ns_cbranch_scc1 L_ROLE2")

oB, oA, oACC, oL, oT, oT2 = 64, 16, 48, 4, 6, 7
rL, rR, rA, rS, rT, rSC = 48, 16, 2, 4, 5, 8


EG, EG2 = VB, KB


def pb_store(addr, data):
    a(f"global_store_dword {v(addr)}, {v(data)}, {sp(EG)} sc1")
    a(f"global_store_dword {v(addr)}, {v(data)}, {sp(EG2)} sc1")


def op_load_b(base):
    lane_expr(oT2, oT, [(4, 1, 32)])
    a(f"s_lshl_b32 {T0}, {W}, 5\nv_xor_b32 v9, {T0}, {v(oT2)}")
    b_addr(oT, oT2, 64, [(0, 2, 8)], base, R32)
    a(f"v_add_u32 {v(oT)}, {v(oT)}, v9")


a.c("waves 0..3: one head each, both column tiles; waves 0,1 then add the four partial results of their tile")
oL, oLA_, oXW, oB1 = 24, 3, 4, 5
ld = [(f"global_load_dwordx4 {v(oA + 4 * n, 4)}, {v(oBA)}, {sp(EX)} offset:{n * 1024} sc1", oA + 4 * n, 4) for n in range(2)]
ld.append((f"global_load_dwordx2 {v(oL, 2)}, {v(oLA_)}, {sp(EX)} sc1", oL, 2))
cy2(0)
s_expr(T0, [(W, 4 * R32)], L_WO)
b_addr(oT, oT2, 64, [(0, 2, 8)], T0, R32)
a(f"""
    v_and_b32 {v(oT2)}, 16, v0
    v_lshl_add_u32 {v(oB1)}, {v(oT2)}, 1, {v(oT)}
    v_xor_b32 {v(oT2)}, 16, {v(oT2)}
    v_lshl_add_u32 {v(oT)}, {v(oT2)}, 1, {v(oT)}
""")


def op_reads():
    b_reads(oB, oB1, 2, 64, R32)
    b_reads(oB + 16, oT, 2, 64, R32)


op_reads()
s_expr(T0, [(W, 8)], LSE)
lane_expr(oLA_, oT2, [(4, 2, 32)], T0)


def op_pre():
    cy2(1)
    zero(range(oACC, oACC + 8))
    lin(oXW, 2, [(LAYER, 2048), (W, 256)], L_OX)
    lin(10, 2, [(LAYER, 2048), (W, 1024)], L_OX)
    a(f"s_lshr_b32 {T1}, {TILE}, 2\ns_and_b32 {T2}, {TILE}, 3")
    lin(rA, 4, [(T1, 16384), (T2, 2048)], 0)
    s_expr(T0, [(LAYER, 2 * PBH)], PBB)
    add64(EG, pWS, T0)
    add64(EG2, EG, 8192)
    a("s_waitcnt lgkmcnt(0)")


poll(ld, oT2, OPT["p_op"], pre=op_pre, deep=OPT["d2"] & 32)
cy2(2)
if OPT["cy2"]:
    a(f"s_sub_u32 s{STAMP0 + 8}, {SPIN_MAX + 1}, {SPIN}")
sm = lambda t, u: f"{SMF} {v(oACC + 4 * t, 4)}, {v(oA + 4 * u, 4)}, {v(oB + 16 * t + 8 * u, 8)}, {v(IDX)}"
a(f"""
    {sm(0, 0)}
    v_sub_f32 v8, {v(oL + 1)}, {v(oL)}
    {sm(0, 1)}
    v_exp_f32 v8, v8
    {sm(1, 0)}
    v_add_f32 v8, 1.0, v8
    {sm(1, 1)}
    v_rcp_f32 v8, v8
    s_mov_b32 {SPIN}, {SPIN_MAX}
    s_cmp_ge_u32 {W}, 2
    v_sub_f32 v9, 1.0, v8
    v_pk_add_f32 {v(oACC, 2)}, {v(oACC, 2)}, {v(oACC + 2, 2)}
    v_mul_f32 {v(oACC)}, v8, {v(oACC)}
    v_fmac_f32 {v(oACC)}, v9, {v(oACC + 1)}
    v_pk_add_f32 {v(oACC + 4, 2)}, {v(oACC + 4, 2)}, {v(oACC + 6, 2)}
    v_min_u32 {v(oACC)}, -2, {v(oACC)}
    v_mul_f32 {v(oACC + 4)}, v8, {v(oACC + 4)}
    v_fmac_f32 {v(oACC + 4)}, v9, {v(oACC + 5)}
    v_min_u32 {v(oACC + 4)}, -2, {v(oACC + 4)}
    ds_write2st64_b32 {v(oXW)}, {v(oACC)}, {v(oACC + 4)} offset0:0 offset1:4
    s_cbranch_scc1 L_ROLE2
L_OXP:
    ds_read2st64_b32 v[56:57], v10 offset0:0 offset1:1
    ds_read2st64_b32 v[58:59], v10 offset0:2 offset1:3
    s_sub_u32 {SPIN}, {SPIN}, 1
    s_cbranch_scc1 L_OXD
    s_waitcnt lgkmcnt(0)
    v_max3_u32 {v(oT2)}, v56, v57, v58
    v_max_u32 {v(oT2)}, {v(oT2)}, v59
    v_cmp_eq_u32 vcc, -1, {v(oT2)}
    v_pk_add_f32 v[60:61], v[56:57], v[58:59]
    s_cbranch_vccnz L_OXP
L_OXD:
""")
stamp(4)
a("v_add_f32 v60, v60, v61\nv_min_u32 v60, -2, v60")
cy2(3)
pb_store(oSA, 60)
stamp(5)

def red_dst(dst):
    if dst == XA:
        a(f"s_lshr_b32 {T1}, {TILE}, 3\ns_and_b32 {T2}, {TILE}, 7\ns_lshl_b32 {T1}, {T1}, 10")
    else:
        a(f"""
        s_mul_i32 {T1}, {TILE}, 26
        s_lshr_b32 {T1}, {T1}, 8
        s_mul_i32 {T2}, {T1}, 10
        s_sub_u32 {T2}, {TILE}, {T2}
        s_mul_i32 {T1}, {T1}, 1280
        """)
    s_expr(T0, [(T1, 1)], dst)
    a(f"""
    s_and_b32 {T1}, {T2}, 1
    s_lshl_b32 {T1}, {T1}, 9
    s_and_b32 {T3}, {T2}, 2
    s_lshl_b32 {T3}, {T3}, 4
    s_add_u32 {T1}, {T1}, {T3}
    s_and_b32 {T3}, {T2}, 4
    s_lshl_b32 {T3}, {T3}, 2
    s_add_u32 {T1}, {T1}, {T3}
    s_lshl_b32 {T3}, {T2}, 7
    s_cmp_ge_u32 {T2}, 8
    s_cselect_b32 {T1}, {T3}, {T1}
    s_cselect_b32 {T2}, 4, 6
    s_add_u32 {T0}, {T0}, {T1}
    """)
    lane_expr(rS, rT, [(1, 1, 4), (2, 2, 1)])
    a(f"""
    v_lshlrev_b32 {v(rS)}, {T2}, {v(rS)}
    v_and_b32 {v(rT)}, 1, v0
    v_lshl_add_u32 {v(rS)}, {v(rT)}, 3, {v(rS)}
    v_lshrrev_b32 {v(rT)}, 5, v0
    v_lshl_add_u32 {v(rS)}, {v(rT)}, 2, {v(rS)}
    v_add_u32 {v(rS)}, {T0}, {v(rS)}
    """)


def near_probe():
    a(f"""
    s_waitcnt vmcnt(1)
    s_nop {OPT["gap"]}
    s_getreg_b32 {T0}, hwreg(HW_REG_IB_STS, 0, 4)
    s_cmp_eq_u32 {T0}, 0
    s_cselect_b32 {NEAR}, 8192, 0
    """)


def red_collect(st, scale, mid):
    a("s_waitcnt vmcnt(2)")
    mid()
    l, l2 = a.newlabel("NR"), a.newlabel("NR")
    if scale and OPT["pol"]:
        add64(TB, EG, NEAR)
        a(f"s_sleep {OPT['early']}" if OPT["early"] else "s_waitcnt vmcnt(0)")
    else:
        if OPT["pol"]:
            a(f"s_cmp_lg_u32 {LAYER}, 0\ns_cbranch_scc1 {l}")
        near_probe()
        a(f"s_waitcnt vmcnt(0)\ns_branch {l2}")
        a.label(l)
        a(f"s_sleep {OPT['early']}" if OPT["early"] else "s_waitcnt vmcnt(0)")
        a.label(l2)
        add64(TB, EG, NEAR)
    poll([(f"global_load_dwordx4 {v(rR + 4 * i, 4)}, {v(rA)}, {sp(TB)} offset:{i * 1024} sc1", rR + 4 * i, 4)
          for i in range(2)], rT, 0, deep=OPT["d2"] & 8)
    a(f"v_pk_add_f32 {v(rL, 2)}, {v(rR, 2)}, {v(rR + 4, 2)}\nv_pk_add_f32 {v(rL + 2, 2)}, {v(rR + 2, 2)}, {v(rR + 6, 2)}")
    stamp(st)
    a(f"""
    v_permlane32_swap_b32 {v(rL)}, {v(rL + 2)}
    v_permlane32_swap_b32 {v(rL + 1)}, {v(rL + 3)}
    v_pk_add_f32 {v(rL, 2)}, {v(rL, 2)}, {v(rL + 2, 2)}
    v_mov_b32 {v(rL + 2)}, {v(rL)}
    v_mov_b32 {v(rL + 3)}, {v(rL + 1)}
    v_permlane16_swap_b32 {v(rL)}, {v(rL + 2)}
    v_permlane16_swap_b32 {v(rL + 1)}, {v(rL + 3)}
    v_pk_add_f32 {v(rL, 2)}, {v(rL, 2)}, {v(rL + 2, 2)}
    """)
    if scale:
        a(f"v_pk_mul_f32 {v(rL, 2)}, {v(rL, 2)}, {v(rSC, 2)} op_sel_hi:[1,0]")
    a(f"""
    v_cvt_pk_bf16_f32 {v(rL)}, {v(rL)}, {v(rL + 1)}
    v_and_b32 {v(rL + 1)}, 0xffff0000, {v(rL)}
    v_lshlrev_b32 {v(rL)}, 16, {v(rL)}
    v_pk_add_f32 {v(rL, 2)}, {v(rL, 2)}, {v(rX0, 2)}
    v_cvt_pk_bf16_f32 {v(rL)}, {v(rL)}, {v(rL + 1)}
    s_mov_b32 exec_lo, 0xffff
    s_mov_b32 exec_hi, 0xffff
    """)


def red_publish():
    local_test()
    a(f"v_min_u32 {v(rL + 1)}, -2, {v(rL)}")
    store_local(f"global_store_dword {v(rS)}, {v(rL + 1)}, {sp(EX)}")
    a(f"""
    s_mov_b64 exec, -1
    v_and_b32 {v(rX1)}, 0xffff0000, {v(rL)}
    v_lshlrev_b32 {v(rX0)}, 16, {v(rL)}
    """)


red_collect(6, False, lambda: red_dst(XA))
red_publish()
s_expr(T0, [(W, 4)], L_FLAG + 16)
a(f"v_mov_b32 v3, {T0}\nds_write_b32 v3, v0")
stamp(7)
dB, dA, dACC, dHA0, dHA1, dSA, dT, dT2, dX = 64, 48, 56, 3, 4, 5, 6, 7, 96
def red_stats():
    ln_stats(range(dX, dX + 20), 9, rSC, ["x1", "x2", "s16", "s32"], 10, dT2)
    a(f"v_rcp_f32 {v(rSC)}, {v(rSC)}")


lin(dHA0, 4, [], HB)
a(f"""
    s_cmp_eq_u32 {NU}, 6
    s_cselect_b32 {T1}, 2, 0
    v_or_b32 {v(dT)}, {T1}, v0
    v_lshrrev_b32 {v(dT2)}, 1, {v(dT)}
    v_and_b32 {v(dT)}, {v(dT)}, {v(dT2)}
    v_and_b32 {v(dT)}, 1, {v(dT)}
    v_lshlrev_b32 {v(dT)}, 4, {v(dT)}
    v_sub_u32 {v(dHA1)}, {v(dHA0)}, {v(dT)}
    v_add_u32 {v(dSA)}, {PBH}, {v(oSA)}
    v_add_u32 {v(rA)}, {PBH}, {v(rA)}
""")
lin(10, 4, [], XA + 2048)
op_load_b(L_WD)
zero(range(dACC, dACC + 8))
a.c("variance of x: 1/(var+eps) scales the FFN output after the reduce")
poll([(f"global_load_dwordx4 {v(dX + 4 * u, 4)}, v10, {sp(EX)} offset:{u * 1024 - 2048} sc1", dX + 4 * u, 4)
      for u in range(5)], dT2, 0)


def dn_pre():
    red_stats()
    a(f"""
    v_mov_b32 v10, {L_FLAG + 24}
L_DNF:
    ds_read_b32 v9, v10
    s_sub_u32 {SPIN}, {SPIN}, 1
    s_cbranch_scc1 L_DNG
    s_waitcnt lgkmcnt(0)
    v_cmp_eq_u32 vcc, -1, v9
    s_cbranch_vccnz L_DNF
L_DNG:
    v_readfirstlane_b32 {NEAR}, v9
    s_and_b32 {NEAR}, {NEAR}, 8192
    """)
    b_reads(dB, oT, 4, 64, R32)
    a(f"s_mov_b32 {SPIN}, {SPIN_MAX}\ns_waitcnt lgkmcnt(0)")


poll([(f"global_load_dwordx4 {v(dA, 4)}, {v(dHA0)}, {sp(EX)} sc1", dA, 4),
      (f"global_load_dwordx4 {v(dA + 4, 4)}, {v(dHA1)}, {sp(EX)} offset:1024 sc1", dA + 4, 4)], dT2, OPT["p_dn"],
     pre=dn_pre, deep=OPT["d2"] & 1)
for n in range(4):
    u, q = n >> 1, n & 1
    a(f"{SMF} {v(dACC + 4 * q, 4)}, {v(dA + 4 * u, 4)}, {v(dB + 8 * n, 8)}, {v(IDX)}")
a(f"""
    s_and_b32 {T0}, {TILE}, 7
    s_cmp_lg_u32 {T0}, {G}
    s_cselect_b32 {T0}, {LAYER}, 0
    s_cmp_lg_u32 {T0}, 0
    v_add_f32 {v(dACC)}, {v(dACC)}, {v(dACC + 2)}
    v_add_f32 {v(dACC + 5)}, {v(dACC + 5)}, {v(dACC + 7)}
    v_add_f32 {v(dACC)}, {v(dACC)}, {v(dACC + 5)}
    v_min_u32 {v(dACC)}, -2, {v(dACC)}
""")
pb_store(dSA, dACC)
if DIAG and OPT["stamps"] & 2:
    stamp(1)
    a(f"s_cmp_lg_u32 {T0}, 0")
a("s_cbranch_scc1 L_FIN")


def red2_mid():
    red_dst(XF)
    s_expr(T0, [(TILE, 32)])
    lane_expr(6, 7, [(2, 2, 1280), (0, 2, 8), (5, 1, 4)], T0)


red_collect(2, True, red2_mid)
a(f"""
    s_cmp_eq_u32 {LAYER}, 0
    s_cbranch_scc1 L_RED2P
    global_store_dword v6, {v(rL)}, {sp(pOUT)}
    s_mov_b64 exec, -1
    s_branch L_FIN
L_RED2P:
""")
red_publish()
a("s_branch L_NEXT")

a.label("L_VT")
v_tail()
a("s_nop 1\ns_branch L_PV")

a.label("L_STAGE")
a.c("stage this workgroup's role weights (L2 hits after the prefetch), then make them visible to every wave")
prostamp(0, 2)
a(f"s_cmp_lg_u32 {ROLE}, 0\ns_cbranch_scc1 L_RG_U")
s_expr(T0, [(FB0, 32 * 1280)])
add64(WOB, pWD, T0)
a(f"v_mov_b32 v41, {v(vDMA)}\ns_branch L_ROLE")
a.label("L_RG_U")
a("s_barrier")
a.c("other workgroups: one dword per 128-byte line of the W_gate / W_up columns of this group")
if OPT["nm"] + OPT["nt"] < 14:
    gu_prefetch(OPT["nm"] + OPT["nt"], 14)
if OPT["wdp"]:
    a.c("workgroups without a role also pull W_down in")
    a(f"s_cmp_lt_u32 {J}, 27\ns_cbranch_scc1 L_RG_G")
    s_expr(T1, [(J, 8), (W, 1)], -27 * 8)
    s_expr(T0, [(FB0, 32 * 1280)])
    add64(TB, pWD, T0)
    a(f"""
    s_mul_i32 {T0}, {T1}, {NU}
    s_lshl_b32 {T0}, {T0}, 3
    s_lshl_b32 {T1}, {NU}, 3
    s_sub_u32 {T1}, {T1}, 1
    v_min_u32 {v(vPF)}, {T1}, v0
    v_add_u32 {v(vPF)}, {T0}, {v(vPF)}
    v_lshlrev_b32 {v(vPF)}, 7, {v(vPF)}
    s_barrier
    global_load_dword {v(vDUM)}, {v(vPF)}, {sp(TB)}
    """)
a.label("L_RG_G")
prostamp(1, 2)
a(f"s_waitcnt vmcnt(0)\ns_cmp_lg_u32 {ROLE}, 1\ns_cbranch_scc1 L_ROLE2")
prostamp(2, 2)
for i in range(10):
    a(f"s_add_u32 m0, {T2L}, {i * 2 * R32}")
    a(f"global_load_lds_dwordx4 {v(vDMA)}, {sp(WOB)}")
    if i < 9:
        add64(WOB, WOB, 64 * 3456)
a("s_waitcnt vmcnt(0)\ns_barrier")
prostamp(5, 2)

a.label("L_ROLE2")
a("s_waitcnt vmcnt(0)")
a(f"""
    s_cmp_eq_u32 {PATH}, 2
    s_cbranch_scc1 L_HI
    s_cmp_eq_u32 {PATH}, 3
    s_cbranch_scc1 L_W2
""")
uB, uX, uACC, uS1, uONE, uXA, uSA, uCS, uT = 48, 28, 20, 16, 8, 3, 4, 5, 6
lin(uXA, 4, [], XA + 2048)


def up_setup():
    lane_expr(uSA, uCS, [(4, 1, 32), (1, 1, 16)])
    a(f"s_lshl_b32 {T0}, {W}, 4\nv_xor_b32 {v(uSA)}, {T0}, {v(uSA)}")
    b_addr(uT, uCS, 64, [(0, 1, 8), (1, 1, L_WU - L_WG)], L_WG, R32)
    a(f"v_add_u32 {v(uT)}, {v(uT)}, {v(uSA)}")
    for i in range(4):
        a(f"v_mov_b32 {v(uONE + i)}, {ONES}")
    zero(range(uS1, uS1 + 4))
    for n in range(10):
        for rho in range(4):
            off = 2 * R32 * n + (16 * (rho >> 1) + 2 * (rho & 1)) * 64
            a(f"ds_read_b64_tr_b16 {v(uB + 8 * n + 2 * rho, 2)}, {v(uT)} offset:{off}")
        if n >= 3:
            a("s_waitcnt lgkmcnt(12)")
            a(f"{SMF} {v(uS1, 4)}, {v(uONE, 4)}, {v(uB + 8 * (n - 3), 8)}, {v(IDX)}")
    a(f"""
    s_sub_u32 {T1}, {J}, 20
    s_lshr_b32 {T0}, {T1}, 2
    s_lshl_b32 {T0}, {T0}, 10
    s_and_b32 {T2}, {T1}, 2
    s_and_b32 {T1}, {T1}, 1
    """)
    s_expr(T0, [(T0, 1), (T2, 8), (T1, 32), (W, 256)], HB)
    lane_expr(uSA, uT, [(4, 2, 64), (1, 2, 4)], T0)
    zero(range(uACC, uACC + 8))
    for n in range(7, 10):
        a(f"s_waitcnt lgkmcnt({4 * (9 - n)})")
        a(f"{SMF} {v(uS1, 4)}, {v(uONE, 4)}, {v(uB + 8 * n, 8)}, {v(IDX)}")
    a(f"""
    v_add_f32 {v(uCS)}, {v(uS1)}, {v(uS1 + 2)}
    v_mul_f32 {v(uCS)}, {f32(1.0 / 640)}, {v(uCS)}
    """)
    stamp(7)


poll([(f"global_load_dwordx4 {v(uX + 4 * u, 4)}, {v(uXA)}, {sp(EX)} offset:{u * 1024 - 2048} sc1", uX + 4 * u, 4)
      for u in range(5)], uT, 0, pre=up_setup, slp=OPT["usl"], deep=OPT["d2"] & 16)
stamp(4)
for u in range(5):
    a(f"{MFMA} {v(uS1, 4)}, {v(uX + 4 * u, 4)}, {v(uONE, 4)}, {'0' if u == 0 else v(uS1, 4)}")
for n in range(10):
    u, q = n >> 1, n & 1
    a(f"{SMF} {v(uACC + 4 * q, 4)}, {v(uX + 4 * u, 4)}, {v(uB + 8 * n, 8)}, {v(IDX)}")
    if n == 7:
        a(f"v_pk_add_f32 {v(uS1, 2)}, {v(uS1, 2)}, {v(uS1 + 2, 2)}")
    if n == 8:
        a(f"v_add_f32 {v(uS1)}, {v(uS1)}, {v(uS1 + 1)}")
a(f"s_mov_b32 s{MSK}, 0x00550055\ns_mov_b32 s{MSK + 1}, 0x00550055")
local_test()
a(f"""
    v_add_f32 {v(uACC)}, {v(uACC)}, {v(uACC + 2)}
    v_add_f32 {v(uACC + 5)}, {v(uACC + 5)}, {v(uACC + 7)}
    v_fma_f32 {v(uACC)}, -{v(uS1)}, {v(uCS)}, {v(uACC)}
    v_add_f32 {v(uACC)}, {v(uACC)}, {v(uACC + 5)}
    v_cvt_pk_bf16_f32 {v(uACC)}, {v(uACC)}, {v(uACC)}
    v_and_b32 {v(uACC)}, 0xffff0000, {v(uACC)}
    v_max_f32 {v(uACC + 1)}, 0, {v(uACC)}
    v_mul_f32_dpp {v(uACC + 1)}, {v(uACC)}, {v(uACC + 1)} row_ror:8 {DPP}
    v_mov_b32_dpp {v(uACC)}, {v(uACC + 1)} quad_perm:[1,1,3,3] {DPP}
    v_cvt_pk_bf16_f32 {v(uACC)}, {v(uACC + 1)}, {v(uACC)}
    v_min_u32 {v(uACC)}, -2, {v(uACC)}
    s_mov_b64 exec, {sp(MSK)}
""")
store_local(f"global_store_dword {v(uSA)}, {v(uACC)}, {sp(EX)}")
a("s_mov_b64 exec, -1")
stamp(5)
a.label("L_IDLE")
a(f"s_cmp_lg_u32 {LAYER}, 0\ns_cbranch_scc1 L_FIN")
a.label("L_NEXT")
a("s_waitcnt vmcnt(0)")
a(f"s_cmp_eq_u32 {W}, 3\ns_cbranch_scc1 L_HI")
att_addr(1)
att_init()
a("s_waitcnt lgkmcnt(0)")
a(f"s_mov_b32 {LAYER}, 1")
add64(EX, EX, LS)
a("s_branch L_BAR")

a.label("L_HI")
a(f"s_cmp_lg_u32 {LAYER}, 0\ns_cbranch_scc1 L_FIN")
a("s_waitcnt vmcnt(0)")
a.c("stay off the L2 until the first half of the layer is done")
a(f"v_mov_b32 v17, {HB if OPT['gate'] else XA}")
light(f"global_load_dword v18, v17, {sp(EX)} sc1", 18, 4 if OPT['gate'] else 8)
att_addr(1)
att_init()
if OPT["gsl"]:
    a(f"s_sleep {OPT['gsl']}")
add64(EX, EX, LS)
a(f"s_cmp_eq_u32 {W}, 3\ns_cbranch_scc1 L_POLLER")
q = Q2M
qp_setup(q)
a(f"s_and_b32 {T1}, {J}, 3")
lin(q.XA0, 4, [(T1, 1280)], XF - LS)
lane_expr(q.XA1, q.T, [(2, 4, 16)], T0)
qp_saddr(q.SA, 1024)
a("s_waitcnt lgkmcnt(0)")
poll([(f"global_load_dwordx4 {v(q.X, 4)}, {v(q.XA0)}, {sp(EX)} sc1", q.X, 4),
      (f"global_load_dwordx4 {v(q.X + 4, 4)}, {v(q.XA1)}, {sp(EX)} offset:1024 sc1", q.X + 4, 4)], q.T, OPT["p_qp"], slp=OPT["qsl"], deep=OPT["d2"] & 2)
qp_mm(q)
stamp(4)
local_test()
qp_sum(q)
store_local(f"global_store_dword {v(q.SA)}, {v(q.A[0])}, {sp(pWS)}")
stamp(5)
a(f"s_mov_b32 {LAYER}, 1\ns_branch L_BAR")

a.label("L_POLLER")
poller_qaddr(1024)
if OPT["warm"] & 1:
    for ins, _, _ in poller_qloads():
        a(ins)
s_expr(T0, [(BB, 64)], XF - LS)
lane_expr(96, pT, [(4, 2, 1280), (2, 2, 256), (0, 2, 16)], T0)
s_expr(T0, [(BB, 16)], XF - LS + 1024)
lane_expr(97, pT, [(4, 2, 1280), (2, 2, 64), (0, 2, 4)], T0)
poll([(f"global_load_dwordx4 {v(pX_, 4)}, v96, {sp(EX)} sc1", pX_, 4),
      (f"global_load_dword {v(pX_ + 4)}, v97, {sp(EX)} sc1", pX_ + 4, 1)], pT, OPT["p_px"], slp=OPT["qsl"])
stamp(4)
poller_stats()
poller_bias()
stamp(5)
poll(poller_qloads(), pT, 0, deep=OPT["d2"] & 4)
stamp(6)
poller_finish()
a(f"s_mov_b32 {LAYER}, 1\ns_waitcnt lgkmcnt(0)\ns_branch L_BAR")

a.label("L_W2")
a(f"s_or_b32 {T0}, {LAYER}, {ROLE}\ns_cbranch_scc1 L_IDLE")
a.c("wave 2 of out/down workgroups, layer 1: sentinel fill of the partial tiles of layer 2, W_down into LDS once x is out")
a(f"s_lshr_b32 {T1}, {J}, 1\ns_and_b32 {T2}, {J}, 1")
s_expr(T0, [(T1, 16384), (T2, 4096), (G, 256)], 2 * PBH)
lane_expr(3, 4, [(5, 1, PBH), (4, 1, 2048), (0, 4, 16)], T0)
for i in range(4):
    a(f"v_mov_b32 {v(44 + i)}, -1")
a(f"""
    s_lshl_b32 {T0}, {J}, 6
    v_mov_b32 v6, {L_FLAG + 16}
    s_mov_b32 {SPIN}, {SPIN_MAX}
""")
add64(WOB, WOB, T0)
a(f"""
L_W2P:
    s_sleep 1
    ds_read_b64 v[8:9], v6
    s_sub_u32 {SPIN}, {SPIN}, 1
    s_cbranch_scc1 L_W2G
    s_waitcnt lgkmcnt(0)
    v_max_u32 v8, v8, v9
    v_cmp_eq_u32 vcc, -1, v8
    s_cbranch_vccnz L_W2P
L_W2G:
    global_store_dwordx4 v3, v[44:47], {sp(EG)} sc1
    global_store_dwordx4 v3, v[44:47], {sp(EG2)} sc1
""")
for n in range(14):
    if n == 12:
        a(f"s_cmp_eq_u32 {NU}, 6\ns_cselect_b64 exec, 0, -1\ns_cselect_b32 {T0}, 0, {16 * 1280}")
        add64(WOB, WOB, T0)
    a(f"s_mov_b32 m0, {L_WD + n * 1024 + (n >> 1) * 128}")
    a(f"global_load_lds_dwordx4 v41, {sp(WOB)}")
    if n < 11:
        add64(WOB, WOB, 16 * 1280)
    if n == 12:
        add64(WOB, WOB, T0)
a(f"""
    s_mov_b64 exec, -1
    s_waitcnt vmcnt(15)
    s_nop {OPT["gap"]}
    s_getreg_b32 {T0}, hwreg(HW_REG_IB_STS, 0, 4)
    s_cmp_eq_u32 {T0}, 15
    s_cselect_b32 {NEAR}, 0, 8192
    v_mov_b32 v7, {NEAR}
    s_waitcnt vmcnt(0)
    ds_write_b32 v6, v7 offset:8
    s_branch L_IDLE
""")

a.label("L_SLOW")
a.c("the group is spread over several XCDs: redo the sentinel fill and the q hand-off with write-through stores")
only_wave(2, "L_SL1")
for i in range(4):
    a(f"v_mov_b32 {v(44 + i)}, -1")
fill_local(" sc1", 44)
a("s_waitcnt vmcnt(0)")
a.label("L_SL1")
a(f"s_barrier\ns_cmp_lt_u32 {W}, 4\ns_cbranch_scc1 L_SL2")
qp_saddr(60, 0)
qp_saddr(61, 2048, 128)
a(f"""
    global_store_dword v60, v41, {sp(pWS)} sc1
    s_mov_b32 exec_hi, 0
    global_store_dword v61, v42, {sp(pWS)} sc1
    s_mov_b64 exec, -1
L_SL2:
""")
only_wave(2, "L_SL3")
lin(60, 2, [(G, 32 * MSTR), (J, MSTR)], MK)
a(f"""
    v_mov_b32 v61, 0x100
    s_mov_b64 exec, 1
    global_store_dword v60, v61, {sp(pWS)} sc1
    s_mov_b64 exec, -1
L_SL3:
""")
only_wave(3, "L_SL4")
s_expr(T0, [(G, 32 * MSTR)], MK)
a(f"""
    v_and_b32 v17, 31, v0
    v_lshl_add_u32 v17, v17, 4, {T0}
    s_mov_b32 {SPIN}, {SPIN_MAX}
    s_mov_b32 {T1}, 0x100
L_SL5:
    global_load_dword v18, v17, {sp(pWS)} sc1
    s_waitcnt vmcnt(0)
    v_cmp_ne_u32 vcc, {T1}, v18
    s_cbranch_vccz L_SL6
    s_sub_u32 {SPIN}, {SPIN}, 1
    s_cbranch_scc0 L_SL5
L_SL6:
""")
q1_loads()
a("s_waitcnt vmcnt(0)")
q1_collect("S")
a("s_waitcnt lgkmcnt(0)")
a.label("L_SL4")
a("s_barrier\ns_branch L_SLOW_RET")

a.label("L_FIN")
if OPT["padto"]:
    a(f"""
L_PAD:
    s_sleep 4
    s_memrealtime s[98:99]
    s_waitcnt lgkmcnt(0)
    s_sub_u32 s98, s98, s96
    s_cmp_lt_u32 s98, {OPT["padto"] * 100}
    s_cbranch_scc1 L_PAD
    """)
if DIAG:
    a("s_memrealtime s[98:99]\ns_memtime s[50:51]\ns_waitcnt lgkmcnt(0)\nv_mov_b32 v1, 0\ns_sub_u32 s50, s50, s100\nv_writelane_b32 v1, s50, 21")
    for i in range(16):
        a(f"v_writelane_b32 v1, s{STAMP0 + 2 * i}, {(i // 8) * 10 + i % 8}")
    a(f"""
    v_writelane_b32 v1, s96, 9
    v_writelane_b32 v1, s98, 19
    v_writelane_b32 v1, {LOCAL}, 20
    s_lshl_b32 {T0}, s2, 3
    s_add_u32 {T0}, {T0}, {W}
    s_lshl_b32 {T0}, {T0}, 8
    s_add_u32 {T0}, {T0}, {DIAG_OFF}
    v_lshl_add_u32 v2, v0, 2, {T0}
    global_store_dword v2, v1, {sp(pWS)}
    """)
a.label("L_END")
a("s_endpgm")

a.raw(f""".section .rodata,"a"
.p2align 6
.amdhsa_kernel {NAME}_kernel
  .amdhsa_next_free_vgpr 256
  .amdhsa_next_free_sgpr 102
  .amdhsa_accum_offset 256
  .amdhsa_group_segment_fixed_size 0
  .amdhsa_kernarg_size 96
  .amdhsa_user_sgpr_count 2
  .amdhsa_user_sgpr_kernarg_segment_ptr 1
  .amdhsa_system_sgpr_workgroup_id_x 1
  .amdhsa_float_denorm_mode_32 3
.end_amdhsa_kernel""")

open(sys.argv[1], "w").write(a.text())
print("written", sys.argv[1], "lines", len(a.out), "pad states", a.nops)
```

```python
import math
import struct
import sys

sys.path.insert(0, "gen")
from asmlib import Asm

NAME = "interleave_layers__sliding_block_cached__glu_gated_reglu__decode"

OPT = dict(diag=0, stamps=0xff, pro=0, padto=0, cut=0, force_global=0, cyc=0, cy2=0,
           thr=4, d2=39, xp=0, pol=1, early=0, k0=4, wq1=4, wq2=4, wq3=4, bq=6, hf=6, hc=16, hd=4, bp=26, xc=0, wide=0, late=0, lay=1, free=6, warm=2, fb=0, fl=0, gate=1, gsl=14, nt=7, wdp=1, pfp=31, upfree=1, fsl=2, mrd=5, prio=1, qsl=0, usl=0, near=1, gap=3, nm=0,
           slp=1, p_op=2, p_up=0, p_dn=0, p_qp=0, p_px=0)
for a_ in sys.argv[2:]:
    k_, v_ = a_.split("=")
    assert k_ in OPT, k_
    OPT[k_] = int(v_, 0)
DIAG, THR, CUT = OPT["diag"], OPT["thr"], OPT["cut"]

OB, XA, HB, LSE, LS = 0, 8192, 13312, 15360, 15488
XF = 2 * LS
GS = 36864
QR = 8 * GS
QRS = 2560
MK = QR + 256 * QRS
PBB, PBH = 966656, 163840
assert XF + 5120 <= GS and MK + 4096 <= PBB and PBB % 16384 == 0
MSTR = 16
DIAG_OFF = 16 << 20

L_WQ = 0
R32 = 2176
D32 = 1088
L_WO, L_WD = 20480, 55296
L_WG, L_WU = 20480, 64000
assert (L_WU - L_WG) % 256 == 0 and L_WU - L_WG >= 20 * R32 and L_WD >= L_WO + 16 * R32
L_OW = L_WU + 20 * R32
OWS, OWJ = 1344, 80
L_ML = L_OW + 8 * OWS
L_Q = L_ML + 256
L_P = L_Q + 256
L_OX = L_P + 1024
L_FLAG = L_OX + 4096
LDS_BYTES = L_FLAG + 256

W, G, J, LAYER, LOCAL = "s3", "s4", "s5", "s6", "s7"
pX, pK, pV, pWQ, pWO, pWG, pWU, pWD, pOUT, pDBG, pWS = 8, 10, 12, 14, 16, 20, 22, 24, 26, 28, 30
PM = 8
WOB = 0
KB, VB, TB, MSK, EX, OBM, ODD = 32, 34, 36, 44, 46, 52, 58
T0, T1, T2, T3 = "s38", "s39", "s49", "s50"
CSC, PLO, PHI, SPIN, XCC, PATH = "s40", "s41", "s42", "s43", "s48", "s51"
ONES, H, TILE, BB = "s54", "s55", "s56", "s57"
NU, FB0, ROLE, T2L = "s92", "s93", "s94", "s95"
OPW = H
NEAR = XCC
LO8 = 96
STAMP0 = 60

KREG, VREG, SREG = 128, 192, 64
IDX, vV = 1, 2
aQA, aPW, aPR, aOWW, aMLW, aOWR, aMLR, aOBA = 3, 4, 5, 6, 7, 8, 9, 10
oBA, oLA, oSA = 11, 12, 13
pCS = 12
rX0, rX1 = 14, 15
vDUM, vPF, vK, vDMA = 56, 57, 58, 59
vWQ = 16

DPP = "row_mask:0xf bank_mask:0xf"
MFMA = "v_mfma_f32_16x16x32_bf16"
SMF = "v_smfmac_f32_16x16x64_bf16"
SPIN_MAX = 1 << 18

a = Asm()


def sp(n):
    return "s[%d:%d]" % (n, n + 1)


def v(n, cnt=1):
    return "v%d" % n if cnt == 1 else "v[%d:%d]" % (n, n + cnt - 1)


def f32(x):
    return "0x%08x" % struct.unpack("<I", struct.pack("<f", x))[0]


def stamp(i):
    if not DIAG or not (OPT["stamps"] >> i) & 1:
        return
    l1, l2 = a.newlabel("ST"), a.newlabel("ST")
    a(f"""
    s_cmp_eq_u32 {LAYER}, 0
    s_cbranch_scc1 {l1}
    s_memrealtime {sp(STAMP0 + 16 + 2 * i)}
    s_branch {l2}
    {l1}:
    s_memrealtime {sp(STAMP0 + 2 * i)}
    {l2}:
    """)


def prostamp(slot, lvl=1):
    if DIAG and OPT["pro"] == lvl:
        a(f"s_memrealtime {sp(STAMP0 + 2 * slot)}")


def cyc(slot):
    if DIAG and (OPT["cyc"] >> slot) & 1:
        a(f"s_memtime {sp(STAMP0 + 2 * slot)}")


def cy2(slot):
    if DIAG and OPT["cy2"]:
        a(f"s_memtime {sp(STAMP0 + 2 * slot)}")


def add64(dst, src, off):
    a(f"s_add_u32 s{dst}, s{src}, {off}\ns_addc_u32 s{dst + 1}, s{src + 1}, 0")


def lane_expr(reg, tmp, fields, base=None):
    first = True
    for pos, width, mul in fields:
        dst = reg if first else tmp
        if pos + width >= 6:
            a(f"v_lshrrev_b32 {v(dst)}, {pos}, v0" if pos else f"v_mov_b32 {v(dst)}, v0")
        elif pos == 0:
            a(f"v_and_b32 {v(dst)}, {(1 << width) - 1}, v0")
        else:
            a(f"v_bfe_u32 {v(dst)}, v0, {pos}, {width}")
        p2 = mul & (mul - 1) == 0
        if first:
            if mul != 1:
                a(f"v_lshlrev_b32 {v(reg)}, {mul.bit_length() - 1}, {v(reg)}" if p2
                  else f"v_mul_u32_u24 {v(reg)}, {mul}, {v(reg)}")
        elif p2:
            a(f"v_lshl_add_u32 {v(reg)}, {v(tmp)}, {mul.bit_length() - 1}, {v(reg)}")
        else:
            a(f"v_mul_u32_u24 {v(tmp)}, {mul}, {v(tmp)}\nv_add_u32 {v(reg)}, {v(reg)}, {v(tmp)}")
        first = False
    if base is not None:
        a(f"v_add_u32 {v(reg)}, {base}, {v(reg)}")


def s_expr(dst, terms, const=0):
    if not terms:
        a(f"s_mov_b32 {dst}, {const}")
        return
    first = True
    for s, mul in terms:
        d = dst if first else T3
        if mul == 1:
            if first:
                if s != d:
                    a(f"s_mov_b32 {d}, {s}")
            else:
                d = s
        elif mul & (mul - 1) == 0:
            a(f"s_lshl_b32 {d}, {s}, {mul.bit_length() - 1}")
        else:
            a(f"s_mul_i32 {d}, {s}, {mul}")
        if not first:
            a(f"s_add_u32 {dst}, {dst}, {d}")
        first = False
    if const:
        a(f"s_add_u32 {dst}, {dst}, {const}")


def lin(reg, shift, terms, const):
    s_expr(T0, terms, const)
    a(f"v_lshl_add_u32 {v(reg)}, v0, {shift}, {T0}")


def store_local(ins):
    lg, le = a.newlabel("SG"), a.newlabel("SE")
    a(f"""
    s_cbranch_scc1 {lg}
    {ins}
    s_branch {le}
    {lg}:
    {ins} sc1
    {le}:
    """)


def local_test():
    a(f"s_cmp_eq_u32 {LOCAL}, 0")


def check_ops(regs, tmp, dst="vcc"):
    ops, regs = [], list(regs)
    if len(regs) == 1:
        return [f"v_cmp_eq_u32 {dst}, -1, {v(regs[0])}"]
    if len(regs) == 2:
        ops.append(f"v_max_u32 {v(tmp)}, {v(regs[0])}, {v(regs[1])}")
    else:
        ops.append(f"v_max3_u32 {v(tmp)}, {v(regs[0])}, {v(regs[1])}, {v(regs[2])}")
        rest = regs[3:]
        while len(rest) >= 2:
            ops.append(f"v_max3_u32 {v(tmp)}, {v(tmp)}, {v(rest[0])}, {v(rest[1])}")
            rest = rest[2:]
        if rest:
            ops.append(f"v_max_u32 {v(tmp)}, {v(tmp)}, {v(rest[0])}")
    ops.append(f"v_cmp_eq_u32 {dst}, -1, {v(tmp)}")
    return ops


def light(ins, r0, slp):
    l1, ok = a.newlabel("PL"), a.newlabel("PK")
    a(f"s_mov_b32 {SPIN}, {SPIN_MAX}\ns_mov_b64 exec, 1")
    a.label(l1)
    a(f"{ins}\ns_waitcnt vmcnt(0)\nv_cmp_eq_u32 vcc, -1, {v(r0)}\ns_cbranch_vccz {ok}")
    if slp:
        a(f"s_sleep {slp}")
    a(f"s_sub_u32 {SPIN}, {SPIN}, 1\ns_cbranch_scc0 {l1}\n{ok}:\ns_mov_b64 exec, -1")


def poll(loads, tmp, mode=0, pre=None, slp=0, deep=False, each=None, longpre=False):
    assert not (deep and each)
    if mode == 1:
        light(loads[-1][0], loads[-1][1], OPT["slp"])
    if mode == 2:
        a("s_waitcnt vmcnt(0)")
    l2, chk, done = a.newlabel("PM"), a.newlabel("PC"), a.newlabel("PD")
    for ins, r0, n in loads:
        a(ins)
    a(f"s_mov_b32 {SPIN}, {SPIN_MAX}")
    if pre:
        pre()
    if deep:
        if not pre:
            a("s_nop 15\ns_nop 7")
        for ins, r0, n in loads:
            a(ins)
        if longpre:
            a("s_nop 11")
    a(f"s_branch {chk}")
    a.label(l2)
    if slp:
        a(f"s_sleep {slp}")
    for u, (ins, r0, n) in enumerate(loads):
        a(f"s_mov_b64 exec, {sp(PM + 2 * u)}")
        a(ins)
    a(f"s_mov_b64 exec, -1\ns_sub_u32 {SPIN}, {SPIN}, 1\ns_cbranch_scc1 {done}")
    a.label(chk)
    nl = len(loads)
    for u, (ins, r0, n) in enumerate(loads):
        a(f"s_waitcnt vmcnt({nl - 1 - u + (nl if deep else 0)})")
        if each:
            a(each(u))
        for o in check_ops(range(r0, r0 + n), tmp, sp(PM + 2 * u)):
            a(o)
        if u == 1:
            pend = f"s_or_b64 {sp(MSK)}, {sp(PM)}, {sp(PM + 2)}"
        elif u > 1:
            a(pend)
            pend = f"s_or_b64 {sp(MSK)}, {sp(MSK)}, {sp(PM + 2 * u)}"
    a(pend)
    a(f"s_cbranch_scc1 {l2}\n{done}:")


def quad_gather(r):
    for k in (1, 2, 3):
        a(f"v_mov_b32_dpp {v(r + k)}, {v(r)} quad_perm:[{k},{k},{k},{k}] {DPP}")
    a(f"s_mov_b32 exec_lo, 0x11111111\ns_mov_b32 exec_hi, 0x11111111")


def zero(regs):
    for r in regs:
        a(f"v_mov_b32 {v(r)}, 0")


def b_addr(reg, tmp, rowbytes, extra, base, r32=None):
    lane_expr(reg, tmp, [(3, 1, r32 or 32 * rowbytes), (4, 2, 4 * rowbytes), (2, 1, rowbytes)] + extra, base)


def b_reads(dst, addr, nblk, rowbytes, r32=None):
    r32 = r32 or 32 * rowbytes
    for blk in range(nblk):
        for rho in range(4):
            off = 2 * r32 * blk + (16 * (rho >> 1) + 2 * (rho & 1)) * rowbytes
            a(f"ds_read_b64_tr_b16 {v(dst + 8 * blk + 2 * rho, 2)}, {v(addr)} offset:{off}")


def lane_sum(regs, steps, tmps):
    for st in steps:
        if st in ("s16", "s32"):
            for r, t in zip(regs, tmps):
                a(f"v_mov_b32 {v(t)}, {v(r)}")
            for r, t in zip(regs, tmps):
                a(f"v_permlane{st[1:]}_swap_b32 {v(r)}, {v(t)}")
            for r, t in zip(regs, tmps):
                a(f"v_add_f32 {v(r)}, {v(r)}, {v(t)}")
        else:
            pat = {"x1": "quad_perm:[1,0,3,2]", "x2": "quad_perm:[2,3,0,1]", "hm": "row_half_mirror",
                   "r4": "row_ror:4", "r8": "row_ror:8"}[st]
            for r in regs:
                a(f"v_add_f32_dpp {v(r)}, {v(r)}, {v(r)} {pat} {DPP}")


def ln_stats(xregs, s1, s2, steps, t1, t2):
    for n, r in enumerate(xregs):
        a(f"v_dot2_f32_bf16 {v(s1)}, {v(r)}, {ONES}, {'0' if n == 0 else v(s1)}")
        a(f"v_dot2_f32_bf16 {v(s2)}, {v(r)}, {v(r)}, {'0' if n == 0 else v(s2)}")
    lane_sum([s1, s2], steps, [t1, t2])
    a(f"""
    v_mul_f32 {v(s1)}, {f32(1.0 / 640)}, {v(s1)}
    v_mul_f32 {v(s2)}, {f32(1.0 / 640)}, {v(s2)}
    v_fma_f32 {v(s2)}, -{v(s1)}, {v(s1)}, {v(s2)}
    v_max_f32 {v(s2)}, 0, {v(s2)}
    v_add_f32 {v(s2)}, {f32(1e-5)}, {v(s2)}
    """)


class QM:
    def __init__(self, B, X, A, XA0, XA1, SA, T):
        self.B, self.X, self.A, self.XA0, self.XA1, self.SA, self.T = B, X, A, XA0, XA1, SA, T


Q1M = QM(64, 88, [96, 100, 104], 108, 109, 110, 111)
Q2M = QM(96, 120, [36, 44, 56], 41, 42, 43, 60)


def qp_setup(q):
    s_expr(T0, [(W, 32)], L_WQ - 4 * 32)
    b_addr(q.T, q.SA, 128, [(0, 2, 8)], T0)
    b_reads(q.B, q.T, 3, 128)
    for r in q.A:
        zero(range(r, r + 4))


def qp_saddr(reg, off, wmul=256):
    lin(reg, 2, [(G, 32 * QRS), (J, QRS), (W, wmul)], QR + off - 4 * wmul)


def qp_mm(q):
    a(f"""
    {SMF} {v(q.A[0], 4)}, {v(q.X, 4)}, {v(q.B, 8)}, {v(IDX)}
    {SMF} {v(q.A[1], 4)}, {v(q.X, 4)}, {v(q.B + 8, 8)}, {v(IDX)}
    {SMF} {v(q.A[2], 4)}, {v(q.X + 4, 4)}, {v(q.B + 16, 8)}, {v(IDX)}
    """)


def qp_sum(q):
    A0, A1, A2 = q.A
    a(f"""
    v_add_f32 {v(A0)}, {v(A0)}, {v(A0 + 2)}
    v_add_f32 {v(A1 + 1)}, {v(A1 + 1)}, {v(A1 + 3)}
    v_add_f32 {v(A0)}, {v(A0)}, {v(A1 + 1)}
    v_add_f32 {v(A0)}, {v(A0)}, {v(A2)}
    v_min_u32 {v(A0)}, -2, {v(A0)}
    """)


pX_, pQ, pS1, pS2, pA, pC, pLW, pT, pT2 = 104, 112, 120, 121, 122, 123, 124, 125, 126


def poller_stats():
    ln_stats(range(pX_, pX_ + 5), pS1, pS2, ["x1", "x2", "r4", "r8", "s16", "s32"], pT, pT2)
    a(f"v_rsq_f32 {v(pS2)}, {v(pS2)}")


def poller_qaddr(off):
    a(f"s_and_b32 {T1}, {J}, 24")
    s_expr(T0, [(G, 32 * QRS), (T1, QRS), (BB, 64)], QR + off + 3840)
    lane_expr(pA, pT, [(5, 1, 4 * QRS), (3, 2, 256), (0, 3, 8)], T0)
    lane_expr(pLW, pT, [(5, 1, 128), (3, 1, 64), (0, 1, 32), (4, 1, 16), (1, 2, 4)], L_Q)


def poller_qloads():
    return [(f"global_load_dwordx2 {v(pQ + 2 * kq, 2)}, {v(pA)}, {sp(pWS)} offset:{kq * QRS - 3840} sc1", pQ + 2 * kq, 2) for kq in range(4)]


def poller_finish():
    r = pX_
    a(f"""
    v_pk_add_f32 {v(r, 2)}, {v(pQ, 2)}, {v(pQ + 2, 2)}
    v_pk_add_f32 {v(r + 2, 2)}, {v(pQ + 4, 2)}, {v(pQ + 6, 2)}
    v_pk_fma_f32 {v(r, 2)}, {v(r, 2)}, {v(pS1, 2)}, {v(r + 4, 2)} op_sel:[0,1,0] op_sel_hi:[1,1,1]
    v_pk_fma_f32 {v(r, 2)}, {v(r + 2, 2)}, {v(pS1, 2)}, {v(r, 2)} op_sel:[0,1,0] op_sel_hi:[1,1,1]
    v_cvt_pk_bf16_f32 {v(r)}, {v(r)}, {v(r + 1)}
    ds_write_b32 {v(pLW)}, {v(r)}
    """)


def poller_bias():
    a(f"""
    v_mul_f32 {v(pT)}, {v(pS1)}, {v(pS2)}
    v_mul_f32 {v(pX_ + 4)}, -{v(pT)}, {v(pCS)}
    v_mul_f32 {v(pX_ + 5)}, -{v(pT)}, {v(pCS + 1)}
    """)


aQV, aONE, aLA, IDX2, aQK, aP, aACC, aS, aT = 16, 32, 36, 40, 48, 52, 64, 60, 61


def att_addr(layer):
    t = aT
    lane_expr(aQA, t, [(4, 2, 64), (0, 2, 16)], L_Q)
    s_expr(T0, [(W, 128)], L_P)
    lane_expr(aPW, t, [(0, 1, 64), (2, 1, 32), (4, 1, 16), (1, 1, 8), (5, 1, 4), (3, 1, 2)], T0)
    lane_expr(aPR, t, [(4, 2, 32), (2, 1, 16)], T0)
    s_expr(T0, [(W, OWS)], L_OW)
    lane_expr(aOWW, t, [(0, 4, 16), (4, 1, 8), (5, 1, 8 * OWJ)], T0)
    s_expr(T0, [(W, 8)], L_ML + 128 * layer)
    lane_expr(aMLW, t, [(4, 1, 4)], T0)
    s_expr(T0, [(W, 64)], L_OW)
    lane_expr(aOWR, t, [(0, 2, 2 * OWS), (2, 2, 4 * OWJ), (4, 2, 16)], T0)
    lane_expr(aMLR, t, [(0, 2, 16)], L_ML + 128 * layer)
    a(f"s_lshr_b32 {T1}, {W}, 1\ns_and_b32 {T2}, {W}, 1")
    s_expr(T0, [(T1, 1024), (T2, 32), (BB, 64)], OB)
    a(f"s_lshr_b32 {T1}, {J}, 3\ns_and_b32 {T2}, {J}, 1")
    s_expr(T0, [(T0, 1), (T1, 2048), (T2, 16)])
    lane_expr(aOBA, t, [(4, 2, 256), (2, 2, 4)], T0)
    s_expr(T0, [(BB, 32), (T1, 8), (T2, 4)], LSE)
    a(f"v_writelane_b32 {v(aOBA)}, {T0}, 1")


def att_init(lo=16, acc=True):
    zero(list(range(lo, 32)) + list(range(aQK, aQK + 8)) + (list(range(aACC, aACC + 16)) if acc else []))
    for i in range(4):
        a(f"v_mov_b32 {v(aONE + i)}, {ONES}")
    a(f"""
    v_bfe_u32 {v(IDX2)}, v0, 2, 1
    v_mul_u32_u24 {v(IDX2)}, 0xaaaa, {v(IDX2)}
    v_add_u32 {v(IDX2)}, 0x4444, {v(IDX2)}
    """)


hdr = open("cdna_kernels/%s.s.ref" % NAME).read().split("\n")
for line in hdr:
    if line.startswith("; @launch"):
        a.raw("; @launch grid=(256,1,1) block=(512,1,1) lds=%d" % LDS_BYTES)
    elif line.startswith(";"):
        a.raw(line)
    else:
        break
a.raw('.amdgcn_target "amdgcn-amd-amdhsa--gfx950"')
a.raw(".text")
a.raw(".globl %s_kernel" % NAME)
a.raw(".p2align 8")
a.raw(".type %s_kernel,@function" % NAME)
a.raw("%s_kernel:" % NAME)
a(f"""
    s_cmp_ge_u32 s2, 256
    s_cbranch_scc1 L_END
    s_load_dwordx16 s[8:23], s[0:1], 0
    s_load_dwordx8 s[24:31], s[0:1], 64
""")
a.c("pull the kernel's own code into L2: four 128-byte lines per workgroup")
a(f"""
    s_getpc_b64 {sp(TB)}
L_PC:
    s_and_b32 {T0}, s2, 0xf8
    s_lshl_b32 {T0}, {T0}, 6
    v_and_b32 v1, 3, v0
    v_lshl_add_u32 v1, v1, 7, {T0}
    v_min_u32 v1, L_END-L_PC, v1
    global_load_dword {v(vDUM)}, v1, {sp(TB)}
    s_mov_b32 {LAYER}, 0
""")
if OPT["padto"]:
    a("s_memrealtime s[100:101]")
if DIAG:
    for i in range(16):
        a(f"s_mov_b64 {sp(STAMP0 + 2 * i)}, 0")
    a("s_memrealtime s[100:101]")
a(f"""
    v_lshrrev_b32 v1, 6, v0
    v_and_b32 v0, 63, v0
    v_readfirstlane_b32 {W}, v1
    s_and_b32 {G}, s2, 7
    s_lshr_b32 {J}, s2, 3
    s_lshr_b32 {T0}, {J}, 3
    s_add_u32 {H}, {G}, {T0}
    s_and_b32 {H}, {H}, 7
    s_and_b32 {T0}, {J}, 24
    s_add_u32 {H}, {H}, {T0}
    s_bfe_u32 {BB}, {J}, 0x20001
    s_and_b32 {T1}, {J}, 1
""")
s_expr(T2, [(BB, 1 << 25), (H, 1 << 20), (T1, 1 << 17), (W, 1 << (11 if OPT["lay"] else 13))], 0xC0000 + (0 if OPT["lay"] else 4096))
lane_expr(vK, 60, [(1, 3, 256), (0, 1, 64), (4, 2, 16)])
a(f"v_lshlrev_b32 {v(vV)}, 4, v0")
for i in range(4):
    a(f"v_mov_b32 {v(124 + i)}, -1")
a(f"s_lshl_b32 {T0}, {J}, 3\ns_add_u32 {T0}, {T0}, {W}\ns_waitcnt lgkmcnt(0)")
add64(KB, pK, T2)
add64(VB, pV, T2)
a(f"s_cmp_lg_u32 {T0}, {999 if CUT & 128 else 1}\ns_cbranch_scc1 L_PRO_L")
a.c("wave 1 of the group's first workgroup: reset the group's arrival markers, then raise the group's flag")
lin(60, 4, [(G, 32 * MSTR)], MK)
a(f"""
    s_lshl_b32 {T0}, {G}, 5
    v_mov_b32 v62, {T0}
    s_mov_b32 exec_hi, 0
    global_store_dwordx4 v60, v[124:127], {sp(pWS)} sc1
    s_waitcnt vmcnt(0)
    s_mov_b64 exec, 1
    global_store_dword v62, v124, {sp(pDBG)} sc1
    s_mov_b64 exec, -1
L_PRO_L:
""")
a(f"s_cmp_lg_u32 {W}, 2\ns_cselect_b64 vcc, 0, -1\ns_cbranch_scc1 L_PRO_C")


def fill_local(fl, d):
    D = v(d, 4)
    lin(60, 4, [(G, GS), (J, 1152)], 0)
    a(f"global_store_dwordx4 v60, {D}, {sp(pWS)}{fl}")
    a(f"s_mov_b64 exec, 0xff\nglobal_store_dwordx4 v60, {D}, {sp(pWS)} offset:1024{fl}\ns_mov_b64 exec, -1")
    lin(60, 4, [(G, 32 * QRS), (J, QRS)], QR)
    a(f"global_store_dwordx4 v60, {D}, {sp(pWS)}{fl}\nglobal_store_dwordx4 v60, {D}, {sp(pWS)} offset:1024{fl}")
    a(f"s_mov_b32 exec_hi, 0\nglobal_store_dwordx4 v60, {D}, {sp(pWS)} offset:2048{fl}\ns_mov_b64 exec, -1")


def fill_pb(hop, d):
    a(f"s_lshr_b32 {T1}, {J}, 1\ns_and_b32 {T2}, {J}, 1")
    s_expr(T0, [(T1, 16384), (T2, 4096), (G, 256)], PBB + hop * PBH)
    lane_expr(60, 61, [(5, 1, 8192), (4, 1, 2048), (0, 4, 16)], T0)
    a(f"global_store_dwordx4 v60, {v(d, 4)}, {sp(pWS)} sc1")


a.c("wave 2: sentinel fill; plain stores are enough if the group shares one L2 (checked later, redone otherwise)")
if not CUT & 2:
    if not OPT["xc"] & 1:
        fill_local("", 124)
    a(f"s_cmp_ge_u32 {J}, {0 if OPT['xc'] & 2 else 20}\ns_cbranch_scc1 L_PRO_C")
    fill_pb(0, 124)
    if OPT["fb"] == 0:
        a(f"v_add_u32 v60, {PBH}, v60\nglobal_store_dwordx4 v60, v[124:127], {sp(pWS)} sc1")
a.label("L_PRO_C")
SKIP = [False]


def stream(i, thr=True):
    if OPT["lay"]:
        B_ = KB if i < 16 else VB
        if i & 15 and not i & 1:
            add64(B_, B_, 16384)
        if i < 16:
            a(f"global_load_dwordx4 {v(KREG + 4 * i, 4)}, {v(vK)}, {sp(KB)} offset:{(i & 1) * 128} nt")
        else:
            a(f"global_load_dwordx4 {v(SREG + (i - 16) * 4, 4)}, {v(vV)}, {sp(VB)} offset:{(i & 1) * 1024} nt")
    elif i < 16:
        if i == 8:
            add64(KB, KB, 65536)
        kq, hf = (i >> 1) & 3, i & 1
        a(f"global_load_dwordx4 {v(KREG + 4 * i, 4)}, {v(vK)}, {sp(KB)} offset:{kq * 2048 + hf * 128 - 4096} nt")
    else:
        if i == 24:
            add64(VB, VB, 65536)
        a(f"global_load_dwordx4 {v(SREG + (i - 16) * 4, 4)}, {v(vV)}, {sp(VB)} offset:{(i & 7) * 1024 - 4096} nt")
    if thr:
        l = a.newlabel("TS")
        if SKIP[0]:
            a(f"s_cbranch_vccnz {l}")
        a(f"s_waitcnt vmcnt({THR - 1})")
        a.label(l)


def only_wave(w, label, off=False):
    a(f"s_cmp_lg_u32 {W}, {9 if off else w}\ns_cbranch_scc1 {label}")


def h_first():
    a(f"s_cmp_ge_u32 {W}, 4\ns_cbranch_scc1 L_PRO_X")
    a(f"s_lshl_b32 {TILE}, {J}, 1\ns_add_u32 {TILE}, {TILE}, {W}")
    a(f"s_cmp_eq_u32 {W}, 3\ns_cbranch_scc1 L_PRO_X3\ns_cmp_eq_u32 {W}, 2\ns_cbranch_scc1 L_PRO_X2")
    a(f"s_min_u32 {T1}, {TILE}, 39")
    s_expr(T0, [(T1, 32)])
    lane_expr(60, 61, [(2, 2, 1280), (0, 2, 8), (5, 1, 4)], T0)
    a(f"global_load_dword {v(rX0)}, v60, {sp(pX)}")
    a("s_branch L_PRO_A")
    a.label("L_PRO_X2")
    a.c("wave 2: LDS zero areas")
    zero(range(44, 48))
    a(f"""
    v_lshlrev_b32 v62, 2, v0
    v_add_u32 v62, {L_ML}, v62
    ds_write_b32 v62, v124
    v_lshlrev_b32 v62, 2, v0
    v_add_u32 v62, {L_FLAG}, v62
    ds_write_b32 v62, v124
    v_add_u32 v62, {L_OX}, {v(vV)}
    ds_write_b128 v62, v[124:127]
    ds_write_b128 v62, v[124:127] offset:1024
    ds_write_b128 v62, v[124:127] offset:2048
    ds_write_b128 v62, v[124:127] offset:3072
    v_add_u32 v62, {L_WD + 6 * R32}, {v(vV)}
    s_cmp_ge_u32 {J}, 20
    s_cbranch_scc1 L_PRO_A
    ds_write_b128 v62, v[44:47]
    ds_write_b128 v62, v[44:47] offset:1024
    ds_write_b128 v62, v[44:47] offset:{R32}
    ds_write_b128 v62, v[44:47] offset:{R32 + 1024}
    s_branch L_PRO_A
    """)
    a.label("L_PRO_X3")
    lin(60, 2, [(BB, 1280)], 0)
    for u in range(5):
        a(f"global_load_dword {v(pX_ + u)}, v60, {sp(pX)} offset:{u * 256}")
    a("s_branch L_PRO_A")
    a.label("L_PRO_X")
    a(f"s_and_b32 {T1}, {J}, 3")
    s_expr(T0, [(T1, 320)])
    q = Q1M
    lane_expr(q.XA0, q.T, [(2, 2, 1280), (0, 1, 128), (1, 1, 64), (4, 2, 16)], T0)
    lane_expr(q.XA1, q.T, [(2, 2, 1280), (4, 2, 16)], T0)
    a(f"global_load_dwordx4 {v(q.X, 4)}, {v(q.XA0)}, {sp(pX)}")
    a(f"global_load_dwordx4 {v(q.X + 4, 4)}, {v(q.XA1)}, {sp(pX)} offset:256")
    a.label("L_PRO_A")
    lane_expr(vWQ, 61, [(3, 3, 8192), (0, 3, 16)])
    a(f"s_and_b32 {T1}, {J}, 3\ns_and_b32 {T2}, {J}, 4")
    s_expr(T0, [(T1, 160 * 8192), (W, 8 * 8192), (H, 256), (T2, 32)])
    add64(TB, pWQ, T0)
    prostamp(0)


def h_wq(n):
    l = a.newlabel("WQ")
    if n == 2:
        a(f"s_cmp_ge_u32 {W}, 4\ns_cbranch_scc1 {l}")
    a(f"s_lshl_b32 {T1}, {W}, 10\ns_add_u32 m0, {T1}, {L_WQ + n * 8192}")
    if not CUT & 4:
        a(f"global_load_lds_dwordx4 {v(vWQ)}, {sp(TB)} nt")
    if n < 2:
        add64(TB, TB, 64 * 8192)
    a.label(l)


def h_setup1():
    a(f"""
    s_mov_b32 {ONES}, 0x3f803f80
    v_bfe_u32 {v(IDX)}, v0, 1, 1
    v_mul_u32_u24 {v(IDX)}, 0xaaaa, {v(IDX)}
    v_add_u32 {v(IDX)}, 0x4444, {v(IDX)}
    s_mov_b32 {CSC}, {f32(math.log2(math.e) / math.sqrt(128.0))}
    s_mov_b32 {PLO}, 0x05040100
    s_mov_b32 {PHI}, 0x07060302
    s_mov_b32 s{ODD}, 0xaaaaaaaa
    s_mov_b32 s{ODD + 1}, 0xaaaaaaaa
    s_mov_b32 s{LO8}, 0x00ff00ff
    s_mov_b32 s{LO8 + 1}, 0x00ff00ff
    s_mov_b32 s{OBM}, 0x11111111
    s_mov_b32 s{OBM + 1}, 0x11111111
    s_cmp_eq_u32 {W}, 0
    s_cselect_b32 s{OBM}, 0x11111113, s{OBM}
    s_mul_i32 {T0}, {G}, {GS}
    s_add_u32 s{EX}, s{pWS}, {T0}
    s_addc_u32 s{EX + 1}, s{pWS + 1}, 0
    s_cmp_lt_u32 {G}, 6
    s_cselect_b32 {NU}, 7, 6
    s_mul_i32 {FB0}, {G}, 7
    s_min_u32 {FB0}, {FB0}, 48
    s_sub_u32 {T0}, {J}, 20
    s_cmp_lt_u32 {T0}, {NU}
    s_cselect_b32 {ROLE}, 1, 2
    s_cmp_lt_u32 {J}, 20
    s_cselect_b32 {ROLE}, 0, {ROLE}
    """)
    a.c("PATH: 0 out/down projection, 1 gate/up, 2 q projection or q collector, 3 nothing")
    a(f"""
    s_cmp_ge_u32 {W}, 3
    s_cselect_b32 {PATH}, 2, 3
    s_lshl_b32 {T0}, 2, {ROLE}
    s_and_b32 {T0}, {T0}, 7
    s_cmp_lt_u32 {W}, {T0}
    s_cselect_b32 {PATH}, {ROLE}, {PATH}
    s_cmp_lg_u32 {ROLE}, 0
    s_cbranch_scc1 L_PRO_RU
    """)
    a.c("role weight staging: source pointer, swizzled per-lane offset, LDS base")
    lane_expr(vDMA, 60, [(2, 4, 1280), (0, 2, 16)])
    s_expr(T0, [(W, 16 * 1280), (J, 64)])
    add64(WOB, pWO, T0)
    a(f"s_lshr_b32 {T1}, {W}, 1")
    s_expr(T2L, [(W, 1024), (T1, 128)], L_WO)
    a("s_branch L_PRO_R")
    a.label("L_PRO_RU")
    lane_expr(vDMA, 60, [(2, 4, 3456), (0, 2, 16)])
    a(f"""
    s_and_b32 {T0}, {W}, 4
    s_lshl_b32 {T0}, {T0}, 2
    v_xor_b32 {v(vDMA)}, {T0}, {v(vDMA)}
    s_add_u32 {T1}, {FB0}, {J}
    s_sub_u32 {T1}, {T1}, 20
    s_and_b32 {T2}, {W}, 3
    s_cmp_ge_u32 {W}, 4
    s_cselect_b32 s{WOB}, s{pWU}, s{pWG}
    s_cselect_b32 s{WOB + 1}, s{pWU + 1}, s{pWG + 1}
    s_mov_b32 {T2L}, {L_WG}
    s_cselect_b32 {T2L}, {L_WU}, {T2L}
    s_lshr_b32 {T0}, {T2}, 1
    """)
    s_expr(T2L, [(T2L, 1), (T2, 1024), (T0, 128)])
    s_expr(T0, [(T1, 64), (T2, 16 * 3456)])
    add64(WOB, WOB, T0)
    a.label("L_PRO_R")
    a(f"v_and_b32 v60, 16, v0\nv_lshlrev_b32 v60, 1, v60\nv_xor_b32 {v(vDMA)}, {v(vDMA)}, v60")


def h_setup3():
    att_init(24, acc=False)
    lin(oBA, 4, [(W, 2048)], OB)
    zero([12])
    a(f"s_lshr_b32 {T1}, {J}, 1\ns_and_b32 {T2}, {J}, 1")
    lin(oSA, 2, [(T1, 16384), (T2, 4096), (W, 2048), (G, 256)], 0)
    zero([41, 42, vPF, pA, pC])


def h_flag():
    a(f"""
    v_and_b32 v17, 7, v0
    v_lshlrev_b32 v17, 5, v17
    v_mov_b32 v18, 0
    v_lshlrev_b32 v19, 4, v0
    v_add_u32 v19, {MK}, v19
    """)
    only_wave(2, "L_HA0", CUT & 32)
    a(f"global_load_dword v18, v17, {sp(pDBG)} sc1")
    a.label("L_HA0")


def h_bq(nafter, nflag):
    a(f"s_waitcnt vmcnt({nafter}) lgkmcnt(0)")
    only_wave(2, "L_HA1", CUT & 32)
    a.c("wave 2: sentinel fill done and the group's markers reset -> publish this workgroup's XCD id")
    lin(62, 2, [(G, 32 * MSTR), (J, MSTR)], MK)
    a(f"""
    s_getreg_b32 {XCC}, hwreg(HW_REG_XCC_ID, 0, 4)
    v_mov_b32 v44, {XCC}
    s_mov_b32 {SPIN}, {SPIN_MAX}
    s_barrier
    s_waitcnt vmcnt({nflag})
L_ARR:
    v_readlane_b32 {T0}, v18, {G}
    s_cmp_lg_u32 {T0}, 0
    s_cbranch_scc1 L_ARR_OK
    global_load_dword v18, v17, {sp(pDBG)} sc1
    s_waitcnt vmcnt(0)
    s_sub_u32 {SPIN}, {SPIN}, 1
    s_cbranch_scc0 L_ARR
L_ARR_OK:
    s_mov_b64 exec, 1
    global_store_dwordx4 v62, v[44:47], {sp(pWS)} sc1
    s_mov_b64 exec, -1
    s_branch L_PRO_KV
L_HA1:
    """)
    prostamp(3)
    a(f"""
    s_barrier
    s_cmp_ge_u32 {W}, {9 if CUT & 16 else 4}
    s_cbranch_scc1 L_PRO_Q
    s_cmp_eq_u32 {W}, 3
    s_cbranch_scc1 L_PRO_P
    v_and_b32 {v(rX1)}, 0xffff0000, {v(rX0)}
    v_lshlrev_b32 {v(rX0)}, 16, {v(rX0)}
    s_branch L_PRO_KV
    """)
    a.label("L_PRO_Q")
    a.c("waves 4..7: partial q projection of layer 1 and partial column sums")
    qp_setup(Q1M)
    qp_saddr(Q1M.SA, 0)
    qB, qSA, qACC = Q1M.B, Q1M.SA, Q1M.A[0]
    qp_saddr(112, 2048, 128)
    zero(range(116, 124))
    for i in range(4):
        a(f"v_mov_b32 {v(124 + i)}, {ONES}")
    a("s_waitcnt lgkmcnt(0)")
    qp_mm(Q1M)
    a(f"""
    {SMF} v[116:119], v[124:127], {v(qB, 8)}, {v(IDX)}
    {SMF} v[116:119], v[124:127], {v(qB + 8, 8)}, {v(IDX)}
    {SMF} v[120:123], v[124:127], {v(qB + 16, 8)}, {v(IDX)}
    """)
    qp_sum(Q1M)
    a(f"""
    v_add_f32 v116, v116, v118
    v_add_f32 v116, v116, v120
    v_min_u32 v42, -2, v116
    v_mov_b32 v41, {v(qACC)}
    global_store_dword {v(qSA)}, v41, {sp(pWS)}
    s_mov_b32 exec_hi, 0
    global_store_dword v112, v42, {sp(pWS)}
    s_mov_b64 exec, -1
    s_mov_b64 vcc, -1
    s_branch L_PRO_KV
    """)
    a.label("L_PRO_P")
    a.c("wave 3: LayerNorm statistics of its row")
    if not CUT & 8:
        a(f"global_load_dword v18, v17, {sp(pDBG)} sc1")
    poller_qaddr(0)
    s_expr(T0, [(G, 32 * QRS), (T1, QRS)], QR + 2048 + 3840)
    lane_expr(pC, pT, [(5, 1, 4 * QRS), (3, 2, 128), (0, 3, 8)], T0)
    poller_stats()
    a.label("L_PRO_KV")
    prostamp(4)


MK_LOADS = "\n".join(f"global_load_dword {v(20 + u)}, v19, {sp(pWS)} offset:{u * 64 * MSTR} sc1" for u in range(4))


def q1_loads():
    for ins, _, _ in poller_qloads():
        a(ins)
    for kq in range(4):
        a(f"global_load_dwordx2 {v(pX_ + 2 * kq, 2)}, {v(pC)}, {sp(pWS)} offset:{kq * QRS - 3840} sc1")


def h_p1(ny):
    only_wave(3, "L_H1", CUT & 8)
    a.c("wave 3: all groups have reset their markers -> read the markers")
    a(f"""
    s_mov_b32 {SPIN}, {SPIN_MAX}
    s_waitcnt vmcnt({ny})
L_FLG:
    v_cmp_eq_u32 vcc, 0, v18
    s_cbranch_vccz L_FLG_OK
    global_load_dword v18, v17, {sp(pDBG)} sc1
    s_waitcnt vmcnt(0)
    s_sub_u32 {SPIN}, {SPIN}, 1
    s_cbranch_scc0 L_FLG
L_FLG_OK:
    {MK_LOADS}
    s_mov_b64 vcc, -1
L_H1:
    """)
    prostamp(2)


def h_p2(ny):
    only_wave(3, "L_H2", CUT & 8)
    a.c("wave 3: the whole group has arrived -> fetch q partials; decide whether the group shares one L2")
    a(f"""
    s_getreg_b32 {XCC}, hwreg(HW_REG_XCC_ID, 0, 4)
    s_mov_b32 {SPIN}, {SPIN_MAX}
    s_waitcnt vmcnt({ny})
L_CNT:
    s_bitcmp1_b32 {G}, 1
    s_cselect_b64 vcc, -1, 0
    v_cndmask_b32 v17, v20, v21, vcc
    v_cndmask_b32 v18, v22, v23, vcc
    s_bitcmp1_b32 {G}, 2
    s_cselect_b64 vcc, -1, 0
    v_cndmask_b32 v17, v17, v18, vcc
    v_cmp_eq_u32 vcc, -1, v17
    s_bitcmp1_b32 {G}, 0
    s_cselect_b32 {T0}, vcc_hi, vcc_lo
    s_cmp_eq_u32 {T0}, 0
    s_cbranch_scc1 L_CNT_OK
    {MK_LOADS}
    s_waitcnt vmcnt(0)
    s_sub_u32 {SPIN}, {SPIN}, 1
    s_cbranch_scc0 L_CNT
L_CNT_OK:
    """)
    q1_loads()
    a(f"""
    {MK_LOADS}
    v_cmp_ne_u32 vcc, {XCC}, v17
    v_mov_b32 v18, {L_FLAG}
    s_bitcmp1_b32 {G}, 0
    s_cselect_b32 {T0}, vcc_hi, vcc_lo
    s_cmp_lg_u32 {T0}, 0
    s_cselect_b32 {T0}, 0, {0 if OPT['force_global'] else 1}
    s_mov_b32 {LOCAL}, {T0}
    v_mov_b32 v17, {T0}
    ds_write_b32 v18, v17
    s_mov_b64 vcc, -1
L_H2:
    """)
    prostamp(5)


def h_p4():
    a.c("wave 3: every workgroup of every group must have arrived before this workgroup publishes or polls anything else")
    a(f"""
    s_mov_b32 {SPIN}, {SPIN_MAX}
L_ALL:
    v_max3_u32 v17, v20, v21, v22
    v_max_u32 v17, v17, v23
    v_cmp_eq_u32 vcc, -1, v17
    s_cbranch_vccz L_ALL_OK
    s_sleep 4
    {MK_LOADS}
    s_waitcnt vmcnt(0)
    s_sub_u32 {SPIN}, {SPIN}, 1
    s_cbranch_scc0 L_ALL
L_ALL_OK:
    """)
    if OPT["warm"] & 2:
        a.c("keep the hand-off lines in L2 so that the first polls do not miss")
        s_expr(T0, [(J, 1152)])
        a(f"""
        v_min_u32 v17, 8, v0
        v_lshl_add_u32 v17, v17, 7, {T0}
        global_load_dword {v(vDUM)}, v17, {sp(EX)} sc1
        """)
        s_expr(T0, [(G, 32 * QRS), (J, QRS)], QR + 1024)
        a(f"""
        v_and_b32 v17, 7, v0
        v_lshl_add_u32 v17, v17, 7, {T0}
        global_load_dword {v(vDUM)}, v17, {sp(pWS)} sc1
        """)
    a.label("L_H4")


def q1_collect(tag):
    a(f"s_mov_b32 {SPIN}, {SPIN_MAX}")
    a.label("L_Q1" + tag)
    for s_ in check_ops(range(pX_, pX_ + 16), pT):
        a(s_)
    a(f"s_cbranch_vccz L_Q1_OK{tag}")
    q1_loads()
    a(f"""
    s_waitcnt vmcnt(0)
    s_sub_u32 {SPIN}, {SPIN}, 1
    s_cbranch_scc0 L_Q1{tag}
L_Q1_OK{tag}:
    v_pk_add_f32 {v(pX_, 2)}, {v(pX_, 2)}, {v(pX_ + 2, 2)}
    v_pk_add_f32 {v(pX_ + 4, 2)}, {v(pX_ + 4, 2)}, {v(pX_ + 6, 2)}
    v_pk_add_f32 {v(pCS, 2)}, {v(pX_, 2)}, {v(pX_ + 4, 2)}
    """)
    poller_bias()
    poller_finish()


def h_p3(ny):
    only_wave(3, "L_H3", CUT & 8)
    a(f"s_waitcnt vmcnt({ny})\ns_cmp_eq_u32 {LOCAL}, 0\ns_cbranch_scc1 L_H3B")
    q1_collect("")
    a.label("L_H3B")
    h_p4()
    a("s_waitcnt lgkmcnt(0)")
    a.label("L_H3")
    prostamp(6)


K0, BQ, HF, HC, HD, BP = OPT["k0"], OPT["bq"], OPT["hf"], OPT["hc"], OPT["hd"], OPT["bp"]
hooks = {}


def h_unfree():
    a(f"s_cmp_eq_u32 {W}, 3\ns_cselect_b64 vcc, vcc, 0")


for pos, fn in [(K0, h_first), (K0, lambda: h_wq(0)), (K0, lambda: h_wq(1)), (K0, lambda: h_wq(2)),
                (K0 + 1, h_setup1), (K0 + 2, h_setup3), (HF, h_flag),
                (BQ + 2, lambda: h_bq(BQ + 2 - K0, BQ + 2 - HF)), (BQ + 3, lambda: att_addr(0)),
                (BQ + 2 + OPT["free"], h_unfree),
                (HC, lambda: h_p1(HC - BQ - 2)), (HC + HD, lambda: h_p2(HD)), (HC + 2 * HD, lambda: h_p3(HD))]:
    hooks.setdefault(pos, []).append(fn)
assert K0 + 2 <= BQ + 2 <= 16 and K0 <= HF < BQ + 2 <= HC and HC + 2 * HD < BP and 24 <= BP <= 26
SKIP[0] = True
for i in range(BP):
    for fn in hooks.get(i, []):
        fn()
    stream(i, thr=not (i < K0 or BQ <= i < BQ + 2 or i >= BP - 2))
SKIP[0] = False
a("s_waitcnt vmcnt(%d)" % (BP - 16))
prostamp(1)
a(f"""
    v_mov_b32 v62, {L_FLAG}
    s_barrier
    ds_read_b32 v62, v62
    v_mov_b32 v63, {CSC}
    s_waitcnt lgkmcnt(0)
    v_readfirstlane_b32 {LOCAL}, v62
    s_cmp_eq_u32 {LOCAL}, {9 if CUT else 0}
    s_cbranch_scc1 L_SLOW
L_SLOW_RET:
""")
zero(range(16, 24))
a("s_mov_b32 exec_lo, 0x000f000f\ns_mov_b32 exec_hi, 0x000f000f\ns_branch L_BAR2")


def perms(t, pp):
    for j in range(8):
        s0 = SREG + t * 32 + (2 * pp) * 4 + (j >> 1)
        a(f"v_perm_b32 {v(VREG + j * 8 + t * 4 + pp)}, {v(s0 + 4)}, {v(s0)}, {PHI if j & 1 else PLO}")


def gu_prefetch(lo, hi, issue=True):
    s_expr(T1, [(J, 8), (W, 1)], -160)
    a(f"""
    s_cmp_ge_u32 {T1}, 48
    s_cselect_b32 s{TB}, s{pWU}, s{pWG}
    s_cselect_b32 s{TB + 1}, s{pWU + 1}, s{pWG + 1}
    s_cselect_b32 {T0}, 48, 0
    s_sub_u32 {T1}, {T1}, {T0}
    s_mul_i32 {T1}, {T1}, 14
    s_add_u32 {T1}, {T1}, {lo}
    s_lshr_b32 {T2}, {FB0}, 1
    s_lshl_b32 {T2}, {T2}, 7
    s_sub_u32 {T0}, {NU}, 4
    v_lshrrev_b32 {v(vPF)}, 2, v0
    v_min_u32 {v(vPF)}, {hi - lo - 1}, {v(vPF)}
    v_add_u32 {v(vPF)}, {T1}, {v(vPF)}
    v_min_u32 {v(vPF)}, 639, {v(vPF)}
    v_mul_u32_u24 {v(vPF)}, 3456, {v(vPF)}
    v_and_b32 {v(vK)}, 3, v0
    v_min_u32 {v(vK)}, {T0}, {v(vK)}
    v_lshl_add_u32 {v(vPF)}, {v(vK)}, 7, {v(vPF)}
    v_add_u32 {v(vPF)}, {T2}, {v(vPF)}
    """)
    if issue:
        a(f"global_load_dword {v(vDUM)}, {v(vPF)}, {sp(TB)}")


def wo_prefetch():
    if OPT["upfree"]:
        a.c("wo into L2, one dword per line; the gate/up workgroups are left out so that they finish K/V early")
        a(f"""
        s_sub_u32 {T0}, {J}, 20
        s_cmp_lt_u32 {T0}, 7
        s_cbranch_scc1 L_WPE
        s_cmp_ge_u32 {J}, 20
        s_cselect_b32 {T0}, 7, 0
        s_sub_u32 {T0}, {J}, {T0}
        """)
        s_expr(T0, [(T0, 8 * 26), (W, 26)])
        a(f"""
        v_min_u32 {v(vPF)}, 25, v0
        v_add_u32 {v(vPF)}, {T0}, {v(vPF)}
        v_min_u32 {v(vPF)}, 5119, {v(vPF)}
        v_mul_u32_u24 {v(vK)}, 3277, {v(vPF)}
        v_lshrrev_b32 {v(vK)}, 22, {v(vK)}
        v_add_u32 v62, {G}, {v(vK)}
        v_and_b32 v62, 7, v62
        v_mul_u32_u24 {v(vK)}, 7, {v(vK)}
        v_add_u32 v62, v62, {v(vK)}
        v_mul_u32_u24 v62, 1280, v62
        v_add_lshl_u32 {v(vPF)}, {v(vPF)}, v62, 7
        global_load_dword {v(vDUM)}, {v(vPF)}, {sp(pWO)}
    L_WPE:
        """)
        return
    a(f"s_and_b32 {T1}, {J}, 7")
    s_expr(T0, [(H, 128 * 1280), (T1, 8 * 2560), (W, 2560)])
    a(f"""
    v_min_u32 {v(vPF)}, 19, v0
    v_lshl_add_u32 {v(vPF)}, {v(vPF)}, 7, {T0}
    global_load_dword {v(vDUM)}, {v(vPF)}, {sp(pWO)}
    """)


NTAIL = 1 if OPT["pfp"] == 32 else 0


def v_tail():
    done = 0
    for i in range(BP, 32):
        if i == OPT["pfp"]:
            wo_prefetch()
        stream(i, thr=i < 31)
        if done < 4:
            a(f"s_waitcnt vmcnt({i - (17 + 2 * done)})")
            perms(0, done)
            done += 1
    assert done == 4
    if OPT["pfp"] == 32:
        wo_prefetch()
    prostamp(7)
    a(f"s_lshr_b32 {OPW}, {W}, 2\ns_or_b32 {OPW}, {OPW}, {ROLE}")
    zero(range(aACC, aACC + 16))
    weights("V", True)
    for pp in range(4):
        a(f"s_waitcnt vmcnt({6 - 2 * pp + NTAIL})")
        perms(1, pp)
        if pp == 2:
            a(f"s_cmp_eq_u32 {ROLE}, 0\ns_cbranch_scc1 L_NT0")
            gu_prefetch(0, OPT["nt"], issue=False)
            a.label("L_NT0")
        if pp == 1:
            for i in range(4):
                a(f"""
                s_add_u32 {T0}, {G}, {i}
                s_and_b32 {T0}, {T0}, 7
                s_add_u32 {T0}, {T0}, {8 * i}
                s_mul_i32 s{PM + i}, {T0}, {128 * 1280}
                """)
    a.c("K and V are in: first part of the W_gate / W_up prefetch")
    a(f"s_cmp_eq_u32 {ROLE}, 0\ns_cbranch_scc1 L_NT1")
    a(f"global_load_dword {v(vDUM)}, {v(vPF)}, {sp(TB)}\ns_branch L_PV")
    a.label("L_NT1")
    for i in range(4):
        a(f"s_add_u32 m0, {T2L}, {i * 4 * R32}")
        add64(TB, WOB, f"s{PM + i}")
        a(f"global_load_lds_dwordx4 {v(vDMA)}, {sp(TB)}")


MXS = "s44"
a.label("L_BAR")
a(f"""
    v_mov_b32 v63, {CSC}
    s_mov_b32 exec_lo, 0x000f000f
    s_mov_b32 exec_hi, 0x000f000f
    s_barrier
L_BAR2:
""")
stamp(0)
cyc(0)
for o in range(4):
    a(f"ds_read_b128 {v(aQV + 4 * o, 4)}, {v(aQA)}")
    a("s_lshl_b64 exec, exec, 4" if o < 3 else "s_mov_b64 exec, -1")
for o in range(4):
    a(f"s_waitcnt lgkmcnt({3 - o})")
    for t in range(2):
        a(f"{SMF} {v(aQK + 4 * t, 4)}, {v(aQV + 4 * o, 4)}, {v(KREG + (t * 4 + o) * 8, 8)}, {v(IDX)}")
cyc(1)
a(f"""
    v_pk_add_f32 {v(aQK, 2)}, {v(aQK, 2)}, {v(aQK + 2, 2)}
    v_pk_add_f32 {v(aQK + 4, 2)}, {v(aQK + 4, 2)}, {v(aQK + 6, 2)}
    v_cndmask_b32 {v(aT)}, {v(aQK + 4)}, {v(aQK + 1)}, {sp(ODD)}
    v_cndmask_b32 {v(aS)}, {v(aQK)}, {v(aQK + 5)}, {sp(ODD)}
    v_add_f32_dpp {v(aS)}, {v(aT)}, {v(aS)} quad_perm:[1,0,3,2] {DPP}
    v_max_f32_dpp {v(aT)}, {v(aS)}, {v(aS)} quad_perm:[1,0,3,2] {DPP}
    v_max_f32_dpp {v(aT)}, {v(aT)}, {v(aT)} quad_perm:[2,3,0,1] {DPP}
    v_max_f32_dpp {v(aT)}, {v(aT)}, {v(aT)} row_ror:4 {DPP}
    v_max_f32_dpp {v(aT)}, {v(aT)}, {v(aT)} row_ror:8 {DPP}
    v_max_f32_dpp {v(aT)}, {v(aT)}, {v(aT)} row_bcast:15 row_mask:0xa bank_mask:0xf
    v_max_f32_dpp {v(aT)}, {v(aT)}, {v(aT)} row_bcast:31 row_mask:0xc bank_mask:0xf
    v_readlane_b32 {MXS}, {v(aT)}, 63
    v_mul_f32 {v(aT)}, {MXS}, v63
    v_fma_f32 {v(aS)}, {v(aS)}, v63, -{v(aT)}
    v_exp_f32 {v(aS)}, {v(aS)}
    v_min_u32 {v(aT)}, -2, {v(aT)}
    v_cvt_pk_bf16_f32 {v(aS)}, {v(aS)}, {v(aS)}
    ds_write_b16 {v(aPW)}, {v(aS)}
    s_mov_b64 exec, {sp(LO8)}
    ds_read_b128 v[16:19], {v(aPR)}
    s_not_b64 exec, exec
    ds_read_b128 v[28:31], {v(aPR)}
    s_mov_b64 exec, 1
    ds_write_b32 {v(aMLW)}, {v(aT)} offset:64
    s_mov_b64 exec, -1
""")
cM, cO, cW = 20, 24, 44


def weights(tag, first):
    if first:
        a(f"ds_read_b128 {v(cM, 4)}, {v(aMLR)} offset:64\ns_waitcnt lgkmcnt(0)")
    a(f"""
    s_mov_b32 {SPIN}, {SPIN_MAX}
L_MXC{tag}:
    v_max_u32 {v(aS)}, {v(cM)}, {v(cM + 2)}
    v_cmp_eq_u32 vcc, -1, {v(aS)}
    v_max_f32 {v(aT)}, {v(cM)}, {v(cM + 2)}
    s_cbranch_vccnz L_MXR{tag}
L_MXD{tag}:
    s_nop 0
    v_max_f32_dpp {v(aT)}, {v(aT)}, {v(aT)} quad_perm:[1,0,3,2] {DPP}
    v_max_f32_dpp {v(aT)}, {v(aT)}, {v(aT)} quad_perm:[2,3,0,1] {DPP}
    v_sub_f32 {v(cW)}, {v(cM)}, {v(aT)}
    v_sub_f32 {v(cW + 1)}, {v(cM + 2)}, {v(aT)}
    v_exp_f32 {v(cW)}, {v(cW)}
    v_exp_f32 {v(cW + 1)}, {v(cW + 1)}
    """)


cyc(2)
a(f"s_cmp_eq_u32 {LAYER}, 0\ns_cbranch_scc1 L_VT")
a.label("L_PV")
a("s_waitcnt lgkmcnt(2)")
cyc(3)
pvm = [f"{SMF} {v(aACC + 4 * (j & 3), 4)}, {v(16 if j < 4 else 28, 4)}, {v(VREG + j * 8, 8)}, {v(IDX2)}" for j in range(8)]
oww = [f"ds_write2_b32 {v(aOWW)}, {v(aACC + 8 * jp)}, {v(aACC + 8 * jp + 4)} offset0:{OWJ * jp} offset1:{OWJ * jp + 1}"
       for jp in range(2)]
a(f"{MFMA} {v(aLA, 4)}, v[16:19], {v(aONE, 4)}, 0")
for n, j in enumerate((0, 1, 4, 5, 2, 3, 6, 7)):
    if n == 2:
        a("s_waitcnt lgkmcnt(1)")
    a(pvm[j])
    if n == OPT["mrd"]:
        a(f"ds_read_b128 v[20:23], {v(aMLR)} offset:64")
a(f"""
    s_cmp_eq_u32 {LAYER}, 0
    {oww[0]}
    s_mov_b64 exec, 0x10001
    ds_write_b32 {v(aMLW)}, {v(aLA)}
    s_mov_b64 exec, -1
    {oww[1]}
    s_cbranch_scc1 L_E1
    s_cmp_ge_u32 {W}, 4
    s_cbranch_scc1 L_YB
""")
cyc(4)
a("s_waitcnt lgkmcnt(3)")
weights("", False)
a(f"s_cmp_ge_u32 {W}, 4")
a.label("L_YB")
a("s_waitcnt lgkmcnt(0)")
cyc(5)
a("s_barrier\ns_cbranch_scc1 L_ATT_END")
cyc(6)
a(f"""
    ds_read_b128 {v(cM, 4)}, {v(aMLR)}
    ds_read_b128 {v(cO, 4)}, {v(aOWR)}
    ds_read_b128 {v(cO + 4, 4)}, {v(aOWR)} offset:{OWS}
""")
local_test()
a(f"""
    s_waitcnt lgkmcnt(2)
    v_add_f32 {v(cM)}, {v(cM)}, {v(cM + 1)}
    v_add_f32 {v(cM + 2)}, {v(cM + 2)}, {v(cM + 3)}
    v_mul_f32 {v(aS)}, {v(cW)}, {v(cM)}
    v_fmac_f32 {v(aS)}, {v(cW + 1)}, {v(cM + 2)}
    s_waitcnt lgkmcnt(0)
    v_pk_add_f32 {v(cO, 2)}, {v(cO, 2)}, {v(cO + 2, 2)}
    v_add_f32_dpp {v(aS)}, {v(aS)}, {v(aS)} quad_perm:[1,0,3,2] {DPP}
    v_pk_add_f32 {v(cO + 4, 2)}, {v(cO + 4, 2)}, {v(cO + 6, 2)}
    v_pk_mul_f32 {v(cO, 2)}, {v(cO, 2)}, {v(cW, 2)} op_sel_hi:[1,0]
    v_add_f32_dpp {v(aS)}, {v(aS)}, {v(aS)} quad_perm:[2,3,0,1] {DPP}
    v_pk_fma_f32 {v(cO, 2)}, {v(cO + 4, 2)}, {v(cW, 2)}, {v(cO, 2)} op_sel:[0,1,0] op_sel_hi:[1,1,1]
    v_rcp_f32 {v(cW + 2)}, {v(aS)}
    v_log_f32 {v(aS)}, {v(aS)}
    v_add_f32_dpp {v(cO)}, {v(cO)}, {v(cO)} quad_perm:[1,0,3,2] {DPP}
    v_add_f32_dpp {v(cO + 1)}, {v(cO + 1)}, {v(cO + 1)} quad_perm:[1,0,3,2] {DPP}
    v_add_f32 {v(cM)}, {v(aS)}, {v(aT)}
    v_add_f32_dpp {v(cO)}, {v(cO)}, {v(cO)} quad_perm:[2,3,0,1] {DPP}
    v_add_f32_dpp {v(cO + 1)}, {v(cO + 1)}, {v(cO + 1)} quad_perm:[2,3,0,1] {DPP}
    s_mov_b32 exec_lo, s{OBM + 1}
    v_pk_mul_f32 {v(cO, 2)}, {v(cO, 2)}, {v(cW + 2, 2)} op_sel_hi:[1,0]
    v_cvt_pk_bf16_f32 {v(cM)}, {v(cO)}, {v(cO + 1)}
    s_mov_b64 exec, {sp(OBM)}
    v_min_u32 {v(cO)}, -2, {v(cM)}
""")
cyc(7)
store_local(f"global_store_dword {v(aOBA)}, {v(cO)}, {sp(EX)}")
a("s_mov_b64 exec, -1")
a.label("L_ATT_END")
stamp(3)
if CUT & 1:
    a("s_branch L_FIN")
a(f"s_cmp_eq_u32 {LAYER}, 0\ns_cbranch_scc1 L_STAGE")
a.label("L_ROLE")
a(f"s_cmp_lg_u32 {OPW}, 0\ns_cbranch_scc1 L_ROLE2")

oB, oA, oACC, oL, oT, oT2 = 64, 16, 48, 4, 6, 7
rL, rR, rA, rS, rT, rSC = 48, 16, 2, 4, 5, 8


EG, EG2 = VB, KB


def pb_store(addr, data):
    a(f"global_store_dword {v(addr)}, {v(data)}, {sp(EG)} sc1")
    a(f"global_store_dword {v(addr)}, {v(data)}, {sp(EG2)} sc1")


def op_load_b(base):
    lane_expr(oT2, oT, [(4, 1, 32)])
    a(f"s_lshl_b32 {T0}, {W}, 5\nv_xor_b32 v9, {T0}, {v(oT2)}")
    b_addr(oT, oT2, 64, [(0, 2, 8)], base, R32)
    a(f"v_add_u32 {v(oT)}, {v(oT)}, v9")


a.c("waves 0..3: one head each, both column tiles; waves 0,1 then add the four partial results of their tile")
oL, oLA_, oXW, oB1 = 24, 3, 4, 5
ld = [(f"global_load_dwordx4 {v(oA + 4 * n, 4)}, {v(oBA)}, {sp(EX)} offset:{n * 1024} sc1", oA + 4 * n, 4) for n in range(2)]
ld.append((f"global_load_dwordx2 {v(oL, 2)}, {v(oLA_)}, {sp(EX)} sc1", oL, 2))
cy2(0)
s_expr(T0, [(W, 4 * R32)], L_WO)
b_addr(oT, oT2, 64, [(0, 2, 8)], T0, R32)
a(f"""
    v_and_b32 {v(oT2)}, 16, v0
    v_lshl_add_u32 {v(oB1)}, {v(oT2)}, 1, {v(oT)}
    v_xor_b32 {v(oT2)}, 16, {v(oT2)}
    v_lshl_add_u32 {v(oT)}, {v(oT2)}, 1, {v(oT)}
""")


def op_reads():
    b_reads(oB, oB1, 2, 64, R32)
    b_reads(oB + 16, oT, 2, 64, R32)


op_reads()
s_expr(T0, [(W, 8)], LSE)
lane_expr(oLA_, oT2, [(4, 2, 32)], T0)


def op_pre():
    cy2(1)
    zero(range(oACC, oACC + 8))
    lin(oXW, 2, [(LAYER, 2048), (W, 256)], L_OX)
    lin(10, 2, [(LAYER, 2048), (W, 1024)], L_OX)
    a(f"s_lshr_b32 {T1}, {TILE}, 2\ns_and_b32 {T2}, {TILE}, 3")
    lin(rA, 4, [(T1, 16384), (T2, 2048)], 0)
    s_expr(T0, [(LAYER, 2 * PBH)], PBB)
    add64(EG, pWS, T0)
    add64(EG2, EG, 8192)
    a("s_waitcnt lgkmcnt(0)")


poll(ld, oT2, OPT["p_op"], pre=op_pre, deep=OPT["d2"] & 32)
cy2(2)
if OPT["cy2"]:
    a(f"s_sub_u32 s{STAMP0 + 8}, {SPIN_MAX + 1}, {SPIN}")
sm = lambda t, u: f"{SMF} {v(oACC + 4 * t, 4)}, {v(oA + 4 * u, 4)}, {v(oB + 16 * t + 8 * u, 8)}, {v(IDX)}"
a(f"""
    {sm(0, 0)}
    v_sub_f32 v8, {v(oL + 1)}, {v(oL)}
    {sm(0, 1)}
    v_exp_f32 v8, v8
    {sm(1, 0)}
    v_add_f32 v8, 1.0, v8
    {sm(1, 1)}
    v_rcp_f32 v8, v8
    s_mov_b32 {SPIN}, {SPIN_MAX}
    s_cmp_ge_u32 {W}, 2
    v_sub_f32 v9, 1.0, v8
    v_pk_add_f32 {v(oACC, 2)}, {v(oACC, 2)}, {v(oACC + 2, 2)}
    v_mul_f32 {v(oACC)}, v8, {v(oACC)}
    v_fmac_f32 {v(oACC)}, v9, {v(oACC + 1)}
    v_pk_add_f32 {v(oACC + 4, 2)}, {v(oACC + 4, 2)}, {v(oACC + 6, 2)}
    v_min_u32 {v(oACC)}, -2, {v(oACC)}
    v_mul_f32 {v(oACC + 4)}, v8, {v(oACC + 4)}
    v_fmac_f32 {v(oACC + 4)}, v9, {v(oACC + 5)}
    v_min_u32 {v(oACC + 4)}, -2, {v(oACC + 4)}
    ds_write2st64_b32 {v(oXW)}, {v(oACC)}, {v(oACC + 4)} offset0:0 offset1:4
    s_cbranch_scc1 L_ROLE2
L_OXP:
    ds_read2st64_b32 v[56:57], v10 offset0:0 offset1:1
    ds_read2st64_b32 v[58:59], v10 offset0:2 offset1:3
    s_sub_u32 {SPIN}, {SPIN}, 1
    s_cbranch_scc1 L_OXD
    s_waitcnt lgkmcnt(0)
    v_max3_u32 {v(oT2)}, v56, v57, v58
    v_max_u32 {v(oT2)}, {v(oT2)}, v59
    v_cmp_eq_u32 vcc, -1, {v(oT2)}
    v_pk_add_f32 v[60:61], v[56:57], v[58:59]
    s_cbranch_vccnz L_OXP
L_OXD:
""")
stamp(4)
a("v_add_f32 v60, v60, v61\nv_min_u32 v60, -2, v60")
cy2(3)
pb_store(oSA, 60)
stamp(5)

def red_dst(dst):
    if dst == XA:
        a(f"s_lshr_b32 {T1}, {TILE}, 3\ns_and_b32 {T2}, {TILE}, 7\ns_lshl_b32 {T1}, {T1}, 10")
    else:
        a(f"""
        s_mul_i32 {T1}, {TILE}, 26
        s_lshr_b32 {T1}, {T1}, 8
        s_mul_i32 {T2}, {T1}, 10
        s_sub_u32 {T2}, {TILE}, {T2}
        s_mul_i32 {T1}, {T1}, 1280
        """)
    s_expr(T0, [(T1, 1)], dst)
    a(f"""
    s_and_b32 {T1}, {T2}, 1
    s_lshl_b32 {T1}, {T1}, 9
    s_and_b32 {T3}, {T2}, 2
    s_lshl_b32 {T3}, {T3}, 4
    s_add_u32 {T1}, {T1}, {T3}
    s_and_b32 {T3}, {T2}, 4
    s_lshl_b32 {T3}, {T3}, 2
    s_add_u32 {T1}, {T1}, {T3}
    s_lshl_b32 {T3}, {T2}, 7
    s_cmp_ge_u32 {T2}, 8
    s_cselect_b32 {T1}, {T3}, {T1}
    s_cselect_b32 {T2}, 4, 6
    s_add_u32 {T0}, {T0}, {T1}
    """)
    lane_expr(rS, rT, [(1, 1, 4), (2, 2, 1)])
    a(f"""
    v_lshlrev_b32 {v(rS)}, {T2}, {v(rS)}
    v_and_b32 {v(rT)}, 1, v0
    v_lshl_add_u32 {v(rS)}, {v(rT)}, 3, {v(rS)}
    v_lshrrev_b32 {v(rT)}, 5, v0
    v_lshl_add_u32 {v(rS)}, {v(rT)}, 2, {v(rS)}
    v_add_u32 {v(rS)}, {T0}, {v(rS)}
    """)


def near_probe():
    a(f"""
    s_waitcnt vmcnt(1)
    s_nop {OPT["gap"]}
    s_getreg_b32 {T0}, hwreg(HW_REG_IB_STS, 0, 4)
    s_cmp_eq_u32 {T0}, 0
    s_cselect_b32 {NEAR}, 8192, 0
    """)


def red_scale():
    a.c("1/(var+eps) of x (from wave 2) scales the FFN output after the reduce")
    s_expr(T0, [(LAYER, 64)], L_FLAG + 64)
    lane_expr(9, 10, [(0, 4, 4)], T0)
    a(f"""
    s_mov_b32 {SPIN}, {SPIN_MAX}
L_XS:
    ds_read_b32 {v(rSC)}, v9
    s_sub_u32 {SPIN}, {SPIN}, 1
    s_cbranch_scc1 L_XS_OK
    s_waitcnt lgkmcnt(0)
    v_cmp_eq_u32 vcc, -1, {v(rSC)}
    s_cbranch_vccnz L_XS
L_XS_OK:
    s_mov_b32 {SPIN}, {SPIN_MAX}
    """)


def red_collect(st, scale, mid):
    a("s_waitcnt vmcnt(2)")
    mid()
    l, l2 = a.newlabel("NR"), a.newlabel("NR")
    if scale and OPT["pol"]:
        add64(TB, EG, NEAR)
        a(f"s_sleep {OPT['early']}" if OPT["early"] else "s_waitcnt vmcnt(0)")
    else:
        if OPT["pol"]:
            a(f"s_cmp_lg_u32 {LAYER}, 0\ns_cbranch_scc1 {l}")
        near_probe()
        a(f"s_waitcnt vmcnt(0)\ns_branch {l2}")
        a.label(l)
        a(f"s_sleep {OPT['early']}" if OPT["early"] else "s_waitcnt vmcnt(0)")
        a.label(l2)
        add64(TB, EG, NEAR)
    poll([(f"global_load_dwordx4 {v(rR + 4 * i, 4)}, {v(rA)}, {sp(TB)} offset:{i * 1024} sc1", rR + 4 * i, 4)
          for i in range(2)], rT, 0, deep=OPT["d2"] & 8, pre=red_scale if scale else None)
    a(f"v_pk_add_f32 {v(rL, 2)}, {v(rR, 2)}, {v(rR + 4, 2)}\nv_pk_add_f32 {v(rL + 2, 2)}, {v(rR + 2, 2)}, {v(rR + 6, 2)}")
    stamp(st)
    a(f"""
    v_permlane32_swap_b32 {v(rL)}, {v(rL + 2)}
    v_permlane32_swap_b32 {v(rL + 1)}, {v(rL + 3)}
    v_pk_add_f32 {v(rL, 2)}, {v(rL, 2)}, {v(rL + 2, 2)}
    v_mov_b32 {v(rL + 2)}, {v(rL)}
    v_mov_b32 {v(rL + 3)}, {v(rL + 1)}
    v_permlane16_swap_b32 {v(rL)}, {v(rL + 2)}
    v_permlane16_swap_b32 {v(rL + 1)}, {v(rL + 3)}
    v_pk_add_f32 {v(rL, 2)}, {v(rL, 2)}, {v(rL + 2, 2)}
    """)
    if scale:
        a(f"v_pk_mul_f32 {v(rL, 2)}, {v(rL, 2)}, {v(rSC, 2)} op_sel_hi:[1,0]")
    a(f"""
    v_cvt_pk_bf16_f32 {v(rL)}, {v(rL)}, {v(rL + 1)}
    v_and_b32 {v(rL + 1)}, 0xffff0000, {v(rL)}
    v_lshlrev_b32 {v(rL)}, 16, {v(rL)}
    v_pk_add_f32 {v(rL, 2)}, {v(rL, 2)}, {v(rX0, 2)}
    v_cvt_pk_bf16_f32 {v(rL)}, {v(rL)}, {v(rL + 1)}
    s_mov_b32 exec_lo, 0xffff
    s_mov_b32 exec_hi, 0xffff
    """)


def red_publish():
    local_test()
    a(f"v_min_u32 {v(rL + 1)}, -2, {v(rL)}")
    store_local(f"global_store_dword {v(rS)}, {v(rL + 1)}, {sp(EX)}")
    a(f"""
    s_mov_b64 exec, -1
    v_and_b32 {v(rX1)}, 0xffff0000, {v(rL)}
    v_lshlrev_b32 {v(rX0)}, 16, {v(rL)}
    """)


red_collect(6, False, lambda: red_dst(XA))
red_publish()
s_expr(T0, [(W, 4)], L_FLAG + 16)
a(f"v_mov_b32 v3, {T0}\nds_write_b32 v3, v0")
stamp(7)
dB, dA, dACC, dHA0, dHA1, dSA, dT, dT2, dX = 64, 48, 56, 3, 4, 5, 6, 7, 96
def red_stats():
    ln_stats(range(dX, dX + 20), 9, rSC, ["x1", "x2", "s16", "s32"], 10, dT2)
    a(f"v_rcp_f32 {v(rSC)}, {v(rSC)}")


lin(dHA0, 4, [], HB)
a(f"""
    s_cmp_eq_u32 {NU}, 6
    s_cselect_b32 {T1}, 2, 0
    v_or_b32 {v(dT)}, {T1}, v0
    v_lshrrev_b32 {v(dT2)}, 1, {v(dT)}
    v_and_b32 {v(dT)}, {v(dT)}, {v(dT2)}
    v_and_b32 {v(dT)}, 1, {v(dT)}
    v_lshlrev_b32 {v(dT)}, 4, {v(dT)}
    v_sub_u32 {v(dHA1)}, {v(dHA0)}, {v(dT)}
    v_add_u32 {v(dSA)}, {PBH}, {v(oSA)}
    v_add_u32 {v(rA)}, {PBH}, {v(rA)}
""")
op_load_b(L_WD)
zero(range(dACC, dACC + 8))
def dn_pre():
    if OPT["pro"] == 3:
        stamp(6)
    a(f"""
    v_mov_b32 v10, {L_FLAG + 24}
L_DNF:
    ds_read_b32 v9, v10
    s_sub_u32 {SPIN}, {SPIN}, 1
    s_cbranch_scc1 L_DNG
    s_waitcnt lgkmcnt(0)
    v_cmp_eq_u32 vcc, -1, v9
    s_cbranch_vccnz L_DNF
L_DNG:
    """)
    if OPT["pro"] == 3:
        stamp(4)
    b_reads(dB, oT, 4, 64, R32)
    a(f"""
    s_mov_b32 {SPIN}, {SPIN_MAX}
L_DNH:
    ds_read_b32 v9, v10 offset:4
    s_sub_u32 {SPIN}, {SPIN}, 1
    s_cbranch_scc1 L_DNI
    s_waitcnt lgkmcnt(0)
    v_cmp_eq_u32 vcc, -1, v9
    s_cbranch_vccnz L_DNH
L_DNI:
    v_readfirstlane_b32 {NEAR}, v9
    s_and_b32 {NEAR}, {NEAR}, 8192
    s_mov_b32 {SPIN}, {SPIN_MAX}
    """)
    if OPT["pro"] == 3:
        stamp(5)


poll([(f"global_load_dwordx4 {v(dA, 4)}, {v(dHA0)}, {sp(EX)} sc1", dA, 4),
      (f"global_load_dwordx4 {v(dA + 4, 4)}, {v(dHA1)}, {sp(EX)} offset:1024 sc1", dA + 4, 4)], dT2, OPT["p_dn"],
     pre=dn_pre, deep=OPT["d2"] & 1, longpre=True)
for n in range(4):
    u, q = n >> 1, n & 1
    a(f"{SMF} {v(dACC + 4 * q, 4)}, {v(dA + 4 * u, 4)}, {v(dB + 8 * n, 8)}, {v(IDX)}")
a(f"""
    s_and_b32 {T0}, {TILE}, 7
    s_cmp_lg_u32 {T0}, {G}
    s_cselect_b32 {T0}, {LAYER}, 0
    s_cmp_lg_u32 {T0}, 0
    v_add_f32 {v(dACC)}, {v(dACC)}, {v(dACC + 2)}
    v_add_f32 {v(dACC + 5)}, {v(dACC + 5)}, {v(dACC + 7)}
    v_add_f32 {v(dACC)}, {v(dACC)}, {v(dACC + 5)}
    v_min_u32 {v(dACC)}, -2, {v(dACC)}
""")
pb_store(dSA, dACC)
if DIAG and OPT["stamps"] & 2:
    stamp(1)
    a(f"s_cmp_lg_u32 {T0}, 0")
a("s_cbranch_scc1 L_FIN")


def red2_mid():
    red_dst(XF)
    s_expr(T0, [(TILE, 32)])
    lane_expr(6, 7, [(2, 2, 1280), (0, 2, 8), (5, 1, 4)], T0)


red_collect(2, True, red2_mid)
a(f"""
    s_cmp_eq_u32 {LAYER}, 0
    s_cbranch_scc1 L_RED2P
    global_store_dword v6, {v(rL)}, {sp(pOUT)}
    s_mov_b64 exec, -1
    s_branch L_FIN
L_RED2P:
""")
red_publish()
if OPT["prio"] == 2:
    a("s_sleep 6")
a("s_branch L_NEXT")

for tag in ("", "V"):
    a(f"""
L_MXR{tag}:
    ds_read_b128 {v(cM, 4)}, {v(aMLR)} offset:64
    s_waitcnt lgkmcnt(0)
    s_sub_u32 {SPIN}, {SPIN}, 1
    s_cbranch_scc0 L_MXC{tag}
    s_branch L_MXD{tag}
    """)
a(f"""
L_E1:
    s_cmp_lg_u32 {ROLE}, 0
    s_cbranch_scc1 L_E2
    s_waitcnt vmcnt(0)
L_E2:
    s_cmp_ge_u32 {W}, 4
    s_branch L_YB
""")
a.label("L_VT")
v_tail()
a("s_nop 1\ns_branch L_PV")

a.label("L_STAGE")
a.c("stage this workgroup's role weights (L2 hits after the prefetch), then make them visible to every wave")
prostamp(0, 2)
a(f"s_cmp_lg_u32 {ROLE}, 0\ns_cbranch_scc1 L_RG_U")
s_expr(T0, [(FB0, 32 * 1280)])
add64(WOB, pWD, T0)
a(f"v_mov_b32 v41, {v(vDMA)}\ns_branch L_ROLE")
a.label("L_RG_U")
a("s_barrier")
a.c("other workgroups: one dword per 128-byte line of the W_gate / W_up columns of this group")
if OPT["nm"] + OPT["nt"] < 14:
    gu_prefetch(OPT["nm"] + OPT["nt"], 14)
if OPT["wdp"]:
    a.c("workgroups without a role also pull W_down in")
    a(f"s_cmp_lt_u32 {J}, 27\ns_cbranch_scc1 L_RG_G")
    s_expr(T1, [(J, 8), (W, 1)], -27 * 8)
    s_expr(T0, [(FB0, 32 * 1280)])
    add64(TB, pWD, T0)
    a(f"""
    s_mul_i32 {T0}, {T1}, {NU}
    s_lshl_b32 {T0}, {T0}, 3
    s_lshl_b32 {T1}, {NU}, 3
    s_sub_u32 {T1}, {T1}, 1
    v_min_u32 {v(vPF)}, {T1}, v0
    v_add_u32 {v(vPF)}, {T0}, {v(vPF)}
    v_lshlrev_b32 {v(vPF)}, 7, {v(vPF)}
    s_barrier
    global_load_dword {v(vDUM)}, {v(vPF)}, {sp(TB)}
    """)
a.label("L_RG_G")
prostamp(1, 2)
a(f"s_waitcnt vmcnt(0)\ns_cmp_lg_u32 {ROLE}, 1\ns_cbranch_scc1 L_ROLE2")
prostamp(2, 2)
for i in range(10):
    a(f"s_add_u32 m0, {T2L}, {i * 2 * R32}")
    a(f"global_load_lds_dwordx4 {v(vDMA)}, {sp(WOB)}")
    if i < 9:
        add64(WOB, WOB, 64 * 3456)
a("s_waitcnt vmcnt(0)\ns_barrier")
prostamp(5, 2)

a.label("L_ROLE2")
a("s_waitcnt vmcnt(0)")
a(f"""
    s_cmp_eq_u32 {PATH}, 2
    s_cbranch_scc1 L_HI
    s_cmp_eq_u32 {PATH}, 3
    s_cbranch_scc1 L_W2
""")
uB, uX, uACC, uS1, uONE, uXA, uSA, uCS, uT = 48, 28, 20, 16, 8, 3, 4, 5, 6
lin(uXA, 4, [], XA + 2048)


def up_setup():
    lane_expr(uSA, uCS, [(4, 1, 32), (1, 1, 16)])
    a(f"s_lshl_b32 {T0}, {W}, 4\nv_xor_b32 {v(uSA)}, {T0}, {v(uSA)}")
    b_addr(uT, uCS, 64, [(0, 1, 8), (1, 1, L_WU - L_WG)], L_WG, R32)
    a(f"v_add_u32 {v(uT)}, {v(uT)}, {v(uSA)}")
    for i in range(4):
        a(f"v_mov_b32 {v(uONE + i)}, {ONES}")
    zero(range(uS1, uS1 + 4))
    for n in range(10):
        for rho in range(4):
            off = 2 * R32 * n + (16 * (rho >> 1) + 2 * (rho & 1)) * 64
            a(f"ds_read_b64_tr_b16 {v(uB + 8 * n + 2 * rho, 2)}, {v(uT)} offset:{off}")
        if n >= 3:
            a("s_waitcnt lgkmcnt(12)")
            a(f"{SMF} {v(uS1, 4)}, {v(uONE, 4)}, {v(uB + 8 * (n - 3), 8)}, {v(IDX)}")
    a(f"""
    s_sub_u32 {T1}, {J}, 20
    s_lshr_b32 {T0}, {T1}, 2
    s_lshl_b32 {T0}, {T0}, 10
    s_and_b32 {T2}, {T1}, 2
    s_and_b32 {T1}, {T1}, 1
    """)
    s_expr(T0, [(T0, 1), (T2, 8), (T1, 32), (W, 256)], HB)
    lane_expr(uSA, uT, [(4, 2, 64), (1, 2, 4)], T0)
    zero(range(uACC, uACC + 8))
    for n in range(7, 10):
        a(f"s_waitcnt lgkmcnt({4 * (9 - n)})")
        a(f"{SMF} {v(uS1, 4)}, {v(uONE, 4)}, {v(uB + 8 * n, 8)}, {v(IDX)}")
    a(f"""
    v_add_f32 {v(uCS)}, {v(uS1)}, {v(uS1 + 2)}
    v_mul_f32 {v(uCS)}, {f32(1.0 / 640)}, {v(uCS)}
    """)
    stamp(7)


poll([(f"global_load_dwordx4 {v(uX + 4 * u, 4)}, {v(uXA)}, {sp(EX)} offset:{u * 1024 - 2048} sc1", uX + 4 * u, 4)
      for u in range(5)], uT, 0, pre=up_setup, slp=OPT["usl"], deep=OPT["d2"] & 16,
     each=lambda u: f"{MFMA} {v(uS1, 4)}, {v(uX + 4 * u, 4)}, {v(uONE, 4)}, {'0' if u == 0 else v(uS1, 4)}")
stamp(4)
for n in range(10):
    u, q = n >> 1, n & 1
    a(f"{SMF} {v(uACC + 4 * q, 4)}, {v(uX + 4 * u, 4)}, {v(uB + 8 * n, 8)}, {v(IDX)}")
    if n == 7:
        a(f"v_pk_add_f32 {v(uS1, 2)}, {v(uS1, 2)}, {v(uS1 + 2, 2)}")
    if n == 8:
        a(f"v_add_f32 {v(uS1)}, {v(uS1)}, {v(uS1 + 1)}")
a(f"s_mov_b32 s{MSK}, 0x00550055\ns_mov_b32 s{MSK + 1}, 0x00550055")
local_test()
a(f"""
    v_add_f32 {v(uACC)}, {v(uACC)}, {v(uACC + 2)}
    v_add_f32 {v(uACC + 5)}, {v(uACC + 5)}, {v(uACC + 7)}
    v_fma_f32 {v(uACC)}, -{v(uS1)}, {v(uCS)}, {v(uACC)}
    v_add_f32 {v(uACC)}, {v(uACC)}, {v(uACC + 5)}
    v_cvt_pk_bf16_f32 {v(uACC)}, {v(uACC)}, {v(uACC)}
    v_and_b32 {v(uACC)}, 0xffff0000, {v(uACC)}
    v_max_f32 {v(uACC + 1)}, 0, {v(uACC)}
    v_mul_f32_dpp {v(uACC + 1)}, {v(uACC)}, {v(uACC + 1)} row_ror:8 {DPP}
    v_mov_b32_dpp {v(uACC)}, {v(uACC + 1)} quad_perm:[1,1,3,3] {DPP}
    v_cvt_pk_bf16_f32 {v(uACC)}, {v(uACC + 1)}, {v(uACC)}
    v_min_u32 {v(uACC)}, -2, {v(uACC)}
    s_mov_b64 exec, {sp(MSK)}
""")
store_local(f"global_store_dword {v(uSA)}, {v(uACC)}, {sp(EX)}")
a("s_mov_b64 exec, -1")
stamp(5)
a.label("L_IDLE")
a(f"s_cmp_lg_u32 {LAYER}, 0\ns_cbranch_scc1 L_FIN")
a.label("L_NEXT")
a("s_waitcnt vmcnt(0)")
a(f"s_cmp_eq_u32 {W}, 3\ns_cbranch_scc1 L_HI")
att_addr(1)
att_init()
a("s_waitcnt lgkmcnt(0)")
a(f"s_mov_b32 {LAYER}, 1")
add64(EX, EX, LS)
a("s_branch L_BAR")

a.label("L_HI")
a(f"s_cmp_lg_u32 {LAYER}, 0\ns_cbranch_scc1 L_FIN")
a("s_waitcnt vmcnt(0)")
att_addr(1)
att_init()


def gate():
    a.c("stay off the L2 until the FFN activations are out")
    a(f"v_mov_b32 v62, {HB}")
    add64(TB, EX, -LS & 0xffffffff)
    a(f"s_sub_u32 s{TB + 1}, s{TB + 1}, 1")
    light(f"global_load_dword v61, v62, {sp(TB)} sc1", 61, 4)
    if OPT["gsl"]:
        a(f"s_sleep {OPT['gsl']}")


add64(EX, EX, LS)
a(f"s_cmp_eq_u32 {W}, 3\ns_cbranch_scc1 L_POLLER")
q = Q2M
qp_setup(q)
a(f"s_and_b32 {T1}, {J}, 3")
lin(q.XA0, 4, [(T1, 1280)], XF - LS)
lane_expr(q.XA1, q.T, [(2, 4, 16)], T0)
qp_saddr(q.SA, 1024)
a("s_waitcnt lgkmcnt(0)")
gate()
if OPT["prio"] == 1:
    a("s_setprio 2")
poll([(f"global_load_dwordx4 {v(q.X, 4)}, {v(q.XA0)}, {sp(EX)} sc1", q.X, 4),
      (f"global_load_dwordx4 {v(q.X + 4, 4)}, {v(q.XA1)}, {sp(EX)} offset:1024 sc1", q.X + 4, 4)], q.T, OPT["p_qp"], slp=OPT["qsl"], deep=OPT["d2"] & 2)
qp_mm(q)
stamp(4)
local_test()
qp_sum(q)
store_local(f"global_store_dword {v(q.SA)}, {v(q.A[0])}, {sp(pWS)}")
stamp(5)
a(f"s_setprio 0\ns_mov_b32 {LAYER}, 1\ns_branch L_BAR")

a.label("L_POLLER")
poller_qaddr(1024)
if OPT["warm"] & 1:
    for ins, _, _ in poller_qloads():
        a(ins)
s_expr(T0, [(BB, 64)], XF - LS)
lane_expr(96, pT, [(4, 2, 1280), (2, 2, 256), (0, 2, 16)], T0)
s_expr(T0, [(BB, 16)], XF - LS + 1024)
lane_expr(97, pT, [(4, 2, 1280), (2, 2, 64), (0, 2, 4)], T0)


def x_out_wait(tag, ra, rd):
    a(f"""
    v_mov_b32 {v(ra)}, {L_FLAG + 16}
    s_mov_b32 {SPIN}, {SPIN_MAX}
L_{tag}P:
    s_sleep 1
    ds_read_b64 {v(rd, 2)}, {v(ra)}
    s_sub_u32 {SPIN}, {SPIN}, 1
    s_cbranch_scc1 L_{tag}G
    s_waitcnt lgkmcnt(0)
    v_max_u32 {v(rd)}, {v(rd)}, {v(rd + 1)}
    v_cmp_eq_u32 vcc, -1, {v(rd)}
    s_cbranch_vccnz L_{tag}P
L_{tag}G:
    """)


a(f"s_cmp_lg_u32 {ROLE}, 0\ns_cbranch_scc1 L_W3E")
a.c("out/down workgroups: sentinel fill of the partial tiles of layer 2 (done before waves 0,1 publish again)")
a(f"s_lshr_b32 {T1}, {J}, 1\ns_and_b32 {T2}, {J}, 1")
s_expr(T0, [(T1, 16384), (T2, 4096), (G, 256)], 2 * PBH)
lane_expr(98, 99, [(5, 1, PBH), (4, 1, 2048), (0, 4, 16)], T0)
for i in range(4):
    a(f"v_mov_b32 {v(44 + i)}, -1")
x_out_wait("W3", 99, 100)
a.align(5)
a(f"global_store_dwordx4 v98, v[44:47], {sp(EG)} sc1\nglobal_store_dwordx4 v98, v[44:47], {sp(EG2)} sc1")
near_probe()
a(f"""
    v_mov_b32 v100, {NEAR}
    s_waitcnt vmcnt(0)
    ds_write_b32 v99, v100 offset:12
L_W3E:
""")
gate()
poll([(f"global_load_dwordx4 {v(pX_, 4)}, v96, {sp(EX)} sc1", pX_, 4),
      (f"global_load_dword {v(pX_ + 4)}, v97, {sp(EX)} sc1", pX_ + 4, 1)], pT, OPT["p_px"], slp=OPT["qsl"])
stamp(4)
poller_stats()
poller_bias()
stamp(5)
poll(poller_qloads(), pT, 0, deep=OPT["d2"] & 4)
stamp(6)
poller_finish()
a(f"""
    s_mov_b32 {LAYER}, 1
    v_mov_b32 v63, {CSC}
    s_mov_b32 exec_lo, 0x000f000f
    s_mov_b32 exec_hi, 0x000f000f
    s_waitcnt lgkmcnt(0)
    s_barrier
    s_branch L_BAR2
""")

a.label("L_W2")
a(f"s_cmp_lg_u32 {ROLE}, 0\ns_cbranch_scc1 L_IDLE\ns_cmp_lg_u32 {LAYER}, 0\ns_cbranch_scc1 L_W2S")
a.c("wave 2 of out/down workgroups, layer 1: W_down into LDS once both tiles of x are out")
a(f"s_lshl_b32 {T0}, {J}, 6")
add64(WOB, WOB, T0)
x_out_wait("W2", 6, 8)
a(f"s_sleep {OPT['fsl']}")
for n in range(14):
    if n == 12:
        a(f"s_cmp_eq_u32 {NU}, 6\ns_cbranch_scc1 L_W2D")
    a(f"s_mov_b32 m0, {L_WD + n * 1024 + (n >> 1) * 128}")
    if n:
        add64(WOB, WOB, 16 * 1280)
    a(f"global_load_lds_dwordx4 v41, {sp(WOB)}")
a(f"""
L_W2D:
    s_waitcnt vmcnt(0)
    ds_write_b32 v6, v6 offset:8
L_W2S:
""")
a.c("wave 2: variance of the four rows of x for the reduce waves")
lin(3, 4, [], XA + 2048)
lin(4, 2, [(LAYER, 64)], L_FLAG + 64)
a(f"v_mov_b32 v5, {XA}")
light(f"global_load_dword v6, v5, {sp(EX)} sc1", 6, 4)
poll([(f"global_load_dwordx4 {v(dX + 4 * u, 4)}, v3, {sp(EX)} offset:{u * 1024 - 2048} sc1", dX + 4 * u, 4)
      for u in range(5)], 7, 0, slp=3)
red_stats()
a(f"""
    v_min_u32 {v(rSC)}, -2, {v(rSC)}
    s_mov_b64 exec, 0xffff
    ds_write_b32 v4, {v(rSC)}
    s_mov_b64 exec, -1
    s_branch L_IDLE
""")

a.label("L_SLOW")
a.c("the group is spread over several XCDs: redo the sentinel fill and the q hand-off with write-through stores")
only_wave(2, "L_SL1")
for i in range(4):
    a(f"v_mov_b32 {v(44 + i)}, -1")
fill_local(" sc1", 44)
a("s_waitcnt vmcnt(0)")
a.label("L_SL1")
a(f"s_barrier\ns_cmp_lt_u32 {W}, 4\ns_cbranch_scc1 L_SL2")
qp_saddr(60, 0)
qp_saddr(61, 2048, 128)
a(f"""
    global_store_dword v60, v41, {sp(pWS)} sc1
    s_mov_b32 exec_hi, 0
    global_store_dword v61, v42, {sp(pWS)} sc1
    s_mov_b64 exec, -1
L_SL2:
""")
only_wave(2, "L_SL3")
lin(60, 2, [(G, 32 * MSTR), (J, MSTR)], MK)
a(f"""
    v_mov_b32 v61, 0x100
    s_mov_b64 exec, 1
    global_store_dword v60, v61, {sp(pWS)} sc1
    s_mov_b64 exec, -1
L_SL3:
""")
only_wave(3, "L_SL4")
s_expr(T0, [(G, 32 * MSTR)], MK)
a(f"""
    v_and_b32 v17, 31, v0
    v_lshl_add_u32 v17, v17, 4, {T0}
    s_mov_b32 {SPIN}, {SPIN_MAX}
    s_mov_b32 {T1}, 0x100
L_SL5:
    global_load_dword v18, v17, {sp(pWS)} sc1
    s_waitcnt vmcnt(0)
    v_cmp_ne_u32 vcc, {T1}, v18
    s_cbranch_vccz L_SL6
    s_sub_u32 {SPIN}, {SPIN}, 1
    s_cbranch_scc0 L_SL5
L_SL6:
""")
q1_loads()
a("s_waitcnt vmcnt(0)")
q1_collect("S")
a("s_waitcnt lgkmcnt(0)")
a.label("L_SL4")
a("s_barrier\ns_branch L_SLOW_RET")

a.label("L_FIN")
if OPT["padto"]:
    a(f"""
L_PAD:
    s_sleep 4
    s_memrealtime s[98:99]
    s_waitcnt lgkmcnt(0)
    s_sub_u32 s98, s98, s100
    s_cmp_lt_u32 s98, {OPT["padto"] * 100}
    s_cbranch_scc1 L_PAD
    """)
if DIAG:
    a("s_memrealtime s[98:99]\ns_memtime s[50:51]\ns_waitcnt lgkmcnt(0)\nv_mov_b32 v1, 0\ns_sub_u32 s50, s50, s100\nv_writelane_b32 v1, s50, 21")
    for i in range(16):
        a(f"v_writelane_b32 v1, s{STAMP0 + 2 * i}, {(i // 8) * 10 + i % 8}")
    a(f"""
    v_writelane_b32 v1, s100, 9
    v_writelane_b32 v1, s98, 19
    v_writelane_b32 v1, {LOCAL}, 20
    s_lshl_b32 {T0}, s2, 3
    s_add_u32 {T0}, {T0}, {W}
    s_lshl_b32 {T0}, {T0}, 8
    s_add_u32 {T0}, {T0}, {DIAG_OFF}
    v_lshl_add_u32 v2, v0, 2, {T0}
    global_store_dword v2, v1, {sp(pWS)}
    """)
a.label("L_END")
a("s_endpgm")

a.raw(f""".section .rodata,"a"
.p2align 6
.amdhsa_kernel {NAME}_kernel
  .amdhsa_next_free_vgpr 256
  .amdhsa_next_free_sgpr 102
  .amdhsa_accum_offset 256
  .amdhsa_group_segment_fixed_size 0
  .amdhsa_kernarg_size 96
  .amdhsa_user_sgpr_count 2
  .amdhsa_user_sgpr_kernarg_segment_ptr 1
  .amdhsa_system_sgpr_workgroup_id_x 1
  .amdhsa_float_denorm_mode_32 3
.end_amdhsa_kernel""")

open(sys.argv[1], "w").write(a.text())
print("written", sys.argv[1], "lines", len(a.out), "pad states", a.nops)
```

```python
import re
import subprocess

OK = ("v_mov_b32", "v_add_f32", "v_sub_f32", "v_mul_f32", "v_max_f32", "v_min_u32", "v_max_u32", "v_add_u32", "v_sub_u32",
      "v_and_b32", "v_or_b32", "v_xor_b32", "v_lshlrev_b32", "v_lshrrev_b32", "v_exp_f32", "v_log_f32", "v_rcp_f32",
      "v_rsq_f32", "v_fmac_f32", "v_mul_u32_u24", "v_cmp_eq_u32", "v_cmp_ne_u32", "v_cndmask_b32", "v_subrev_f32")


def sizes(path):
    subprocess.run(["clang", "-x", "assembler", "-target", "amdgcn-amd-amdhsa", "-mcpu=gfx950", "-c",
                    path, "-o", "al.o"], check=True)
    o = subprocess.run(["llvm-objdump", "-d", "--mcpu=gfx950", "al.o"], capture_output=True,
                       text=True).stdout
    res = []
    for m in re.finditer(r"^\t(\S+).*// ([0-9A-F]+): ([0-9A-F ]+)$", o, re.M):
        res.append((m.group(1), int(m.group(2), 16), 4 * len(m.group(3).split())))
    return res


def fix(path):
    lines = open(path).read().split("\n")
    dis = sizes(path)
    start = next(i for i, l in enumerate(lines) if l.endswith("_kernel:"))
    k, off, run, n, bad = 0, 0, [], 0, 0
    for i in range(start + 1, len(lines)):
        l = lines[i].strip()
        if l.startswith(".section"):
            break
        if l.startswith(".p2align"):
            al = 1 << int(l.split()[1])
            while dis[k][1] % al:
                assert dis[k][0] == "s_nop"
                k += 1
            off, run = 0, []
            continue
        if not l or l.startswith(";") or l.endswith(":"):
            continue
        mn = l.split()[0]
        assert dis[k][0].replace("_e32", "").replace("_e64", "") == mn.replace("_e64", ""), (dis[k], l)
        sz = dis[k][2]
        k += 1
        if sz == 4:
            run.append((i, off, mn))
            off ^= 4
            continue
        if off:
            cand = [r for r in run if r[1] == 0 and r[2] in OK]
            if cand:
                j = cand[-1][0]
                lines[j] = lines[j].replace(cand[-1][2], cand[-1][2] + "_e64", 1)
                off = 0
                n += 1
            else:
                nops = [r for r in run if r[2] == "s_nop" and int(lines[r[0]].split()[1]) >= 1]
                waits = [r for r in run if r[2] in ("s_waitcnt", "s_barrier", "s_branch")]
                if nops:
                    j = nops[-1][0]
                    lines[j] = "    s_nop %d\n    s_nop 0" % (int(lines[j].split()[1]) - 1)
                    off = 0
                    n += 1
                elif waits:
                    j = waits[0][0]
                    lines[j] = lines[j] + "\n    s_nop 0" if waits[0][2] == "s_branch" else "    s_nop 0\n" + lines[j]
                    off = 0
                    n += 1
                else:
                    bad += 1
        run = []
    open(path, "w").write("\n".join(lines))
    return n, bad
```

```python
import math
import struct
import sys

sys.path.insert(0, "gen")
from asmlib import Asm

NAME = "interleave_layers__sliding_block_cached__glu_gated_reglu__decode"

OPT = dict(diag=0, stamps=0xff, pro=0, padto=0, cut=0, force_global=0, cyc=0, cy2=0,
           thr=4, d2=39, xp=0, pol=1, early=0, k0=4, wq1=4, wq2=4, wq3=4, bq=6, hf=6, hc=15, hd=3, bp=26, xc=0, wide=0, late=0, lay=1, free=6, warm=2, fb=0, fl=0, gate=1, gsl=14, nt=7, wdp=1, pfp=31, upfree=1, fsl=2, mrd=5, prio=1, al=1, cov=2, vthr=0, a8=0, tlb=0, qsl=0, usl=0, near=1, gap=3, nm=0,
           slp=1, p_op=2, p_up=0, p_dn=0, p_qp=0, p_px=0)
for a_ in sys.argv[2:]:
    k_, v_ = a_.split("=")
    assert k_ in OPT, k_
    OPT[k_] = int(v_, 0)
DIAG, THR, CUT = OPT["diag"], OPT["thr"], OPT["cut"]

OB, XA, HB, LSE, LS = 0, 8192, 13312, 15360, 15488
XF = 2 * LS
GS = 36864
QR = 8 * GS
QRS = 2560
MK = QR + 256 * QRS
PBB, PBH = 966656, 163840
assert XF + 5120 <= GS and MK + 4096 <= PBB and PBB % 16384 == 0
MSTR = 16
DIAG_OFF = 16 << 20

L_WQ = 0
R32 = 2176
D32 = 1088
L_WO, L_WD = 20480, 55296
L_WG, L_WU = 20480, 64000
assert (L_WU - L_WG) % 256 == 0 and L_WU - L_WG >= 20 * R32 and L_WD >= L_WO + 16 * R32
L_OW = L_WU + 20 * R32
OWS, OWJ = 1344, 80
L_ML = L_OW + 8 * OWS
L_Q = L_ML + 256
L_P = L_Q + 256
L_OX = L_P + 1024
L_FLAG = L_OX + 4096
LDS_BYTES = L_FLAG + 256

W, G, J, LAYER, LOCAL = "s3", "s4", "s5", "s6", "s7"
pX, pK, pV, pWQ, pWO, pWG, pWU, pWD, pOUT, pDBG, pWS = 8, 10, 12, 14, 16, 20, 22, 24, 26, 28, 30
PM = 8
WOB = 0
KB, VB, TB, MSK, EX, OBM, ODD = 32, 34, 36, 44, 46, 52, 58
T0, T1, T2, T3 = "s38", "s39", "s49", "s50"
CSC, PLO, PHI, SPIN, XCC, PATH = "s40", "s41", "s42", "s43", "s48", "s51"
ONES, H, TILE, BB = "s54", "s55", "s56", "s57"
NU, FB0, ROLE, T2L = "s92", "s93", "s94", "s95"
OPW = H
NEAR = XCC
LO8 = 96
STAMP0 = 60

KREG, VREG, SREG = 128, 192, 64
IDX, vV = 1, 2
aQA, aPW, aPR, aOWW, aMLW, aOWR, aMLR, aOBA = 3, 4, 5, 6, 7, 8, 9, 10
oBA, oLA, oSA = 11, 12, 13
pCS = 12
rX0, rX1 = 14, 15
vDUM, vPF, vK, vDMA = 56, 57, 58, 59
vWQ = 16

DPP = "row_mask:0xf bank_mask:0xf"
MFMA = "v_mfma_f32_16x16x32_bf16"
SMF = "v_smfmac_f32_16x16x64_bf16"
SPIN_MAX = 1 << 18

a = Asm()


def sp(n):
    return "s[%d:%d]" % (n, n + 1)


def v(n, cnt=1):
    return "v%d" % n if cnt == 1 else "v[%d:%d]" % (n, n + cnt - 1)


def f32(x):
    return "0x%08x" % struct.unpack("<I", struct.pack("<f", x))[0]


def stamp(i):
    if not DIAG or not (OPT["stamps"] >> i) & 1:
        return
    l1, l2 = a.newlabel("ST"), a.newlabel("ST")
    a(f"""
    s_cmp_eq_u32 {LAYER}, 0
    s_cbranch_scc1 {l1}
    s_memrealtime {sp(STAMP0 + 16 + 2 * i)}
    s_branch {l2}
    {l1}:
    s_memrealtime {sp(STAMP0 + 2 * i)}
    {l2}:
    """)


def prostamp(slot, lvl=1):
    if DIAG and OPT["pro"] == lvl:
        a(f"s_memrealtime {sp(STAMP0 + 2 * slot)}")


def cyc(slot):
    if DIAG and (OPT["cyc"] >> slot) & 1:
        a(f"s_memtime {sp(STAMP0 + 2 * slot)}")


def cy2(slot):
    if DIAG and OPT["cy2"]:
        a(f"s_memtime {sp(STAMP0 + 2 * slot)}")


def add64(dst, src, off):
    a(f"s_add_u32 s{dst}, s{src}, {off}\ns_addc_u32 s{dst + 1}, s{src + 1}, 0")


def lane_expr(reg, tmp, fields, base=None):
    first = True
    for pos, width, mul in fields:
        dst = reg if first else tmp
        if pos + width >= 6:
            a(f"v_lshrrev_b32 {v(dst)}, {pos}, v0" if pos else f"v_mov_b32 {v(dst)}, v0")
        elif pos == 0:
            a(f"v_and_b32 {v(dst)}, {(1 << width) - 1}, v0")
        else:
            a(f"v_bfe_u32 {v(dst)}, v0, {pos}, {width}")
        p2 = mul & (mul - 1) == 0
        if first:
            if mul != 1:
                a(f"v_lshlrev_b32 {v(reg)}, {mul.bit_length() - 1}, {v(reg)}" if p2
                  else f"v_mul_u32_u24 {v(reg)}, {mul}, {v(reg)}")
        elif p2:
            a(f"v_lshl_add_u32 {v(reg)}, {v(tmp)}, {mul.bit_length() - 1}, {v(reg)}")
        else:
            a(f"v_mul_u32_u24 {v(tmp)}, {mul}, {v(tmp)}\nv_add_u32 {v(reg)}, {v(reg)}, {v(tmp)}")
        first = False
    if base is not None:
        a(f"v_add_u32 {v(reg)}, {base}, {v(reg)}")


def s_expr(dst, terms, const=0):
    if not terms:
        a(f"s_mov_b32 {dst}, {const}")
        return
    first = True
    for s, mul in terms:
        d = dst if first else T3
        if mul == 1:
            if first:
                if s != d:
                    a(f"s_mov_b32 {d}, {s}")
            else:
                d = s
        elif mul & (mul - 1) == 0:
            a(f"s_lshl_b32 {d}, {s}, {mul.bit_length() - 1}")
        else:
            a(f"s_mul_i32 {d}, {s}, {mul}")
        if not first:
            a(f"s_add_u32 {dst}, {dst}, {d}")
        first = False
    if const:
        a(f"s_add_u32 {dst}, {dst}, {const}")


def lin(reg, shift, terms, const):
    s_expr(T0, terms, const)
    a(f"v_lshl_add_u32 {v(reg)}, v0, {shift}, {T0}")


def store_local(ins):
    lg, le = a.newlabel("SG"), a.newlabel("SE")
    a(f"""
    s_cbranch_scc1 {lg}
    {ins}
    s_branch {le}
    {lg}:
    {ins} sc1
    {le}:
    """)


def local_test():
    a(f"s_cmp_eq_u32 {LOCAL}, 0")


def check_ops(regs, tmp, dst="vcc"):
    ops, regs = [], list(regs)
    if len(regs) == 1:
        return [f"v_cmp_eq_u32 {dst}, -1, {v(regs[0])}"]
    if len(regs) == 2:
        ops.append(f"v_max_u32 {v(tmp)}, {v(regs[0])}, {v(regs[1])}")
    else:
        ops.append(f"v_max3_u32 {v(tmp)}, {v(regs[0])}, {v(regs[1])}, {v(regs[2])}")
        rest = regs[3:]
        while len(rest) >= 2:
            ops.append(f"v_max3_u32 {v(tmp)}, {v(tmp)}, {v(rest[0])}, {v(rest[1])}")
            rest = rest[2:]
        if rest:
            ops.append(f"v_max_u32 {v(tmp)}, {v(tmp)}, {v(rest[0])}")
    ops.append(f"v_cmp_eq_u32 {dst}, -1, {v(tmp)}")
    return ops


def light(ins, r0, slp):
    l1, ok = a.newlabel("PL"), a.newlabel("PK")
    a(f"s_mov_b32 {SPIN}, {SPIN_MAX}\ns_mov_b64 exec, 1")
    a.label(l1)
    a(f"{ins}\ns_waitcnt vmcnt(0)\nv_cmp_eq_u32 vcc, -1, {v(r0)}\ns_cbranch_vccz {ok}")
    if slp:
        a(f"s_sleep {slp}")
    a(f"s_sub_u32 {SPIN}, {SPIN}, 1\ns_cbranch_scc0 {l1}\n{ok}:\ns_mov_b64 exec, -1")


def poll(loads, tmp, mode=0, pre=None, slp=0, deep=False, each=None, longpre=False):
    assert not (deep and each)
    if mode == 1:
        light(loads[-1][0], loads[-1][1], OPT["slp"])
    if mode == 2:
        a("s_waitcnt vmcnt(0)")
    l2, chk, done = a.newlabel("PM"), a.newlabel("PC"), a.newlabel("PD")
    for ins, r0, n in loads:
        a(ins)
    a(f"s_mov_b32 {SPIN}, {SPIN_MAX}")
    if pre:
        pre()
    if deep:
        if not pre:
            a("s_nop 15\ns_nop 7")
        for ins, r0, n in loads:
            a(ins)
        if longpre:
            a("s_nop 11")
    a(f"s_branch {chk}")
    a.label(l2)
    if slp:
        a(f"s_sleep {slp}")
    for u, (ins, r0, n) in enumerate(loads):
        a(f"s_mov_b64 exec, {sp(PM + 2 * u)}")
        a(ins)
    a(f"s_mov_b64 exec, -1\ns_sub_u32 {SPIN}, {SPIN}, 1\ns_cbranch_scc1 {done}")
    a.label(chk)
    nl = len(loads)
    for u, (ins, r0, n) in enumerate(loads):
        a(f"s_waitcnt vmcnt({nl - 1 - u + (nl if deep else 0)})")
        if each:
            a(each(u))
        for o in check_ops(range(r0, r0 + n), tmp, sp(PM + 2 * u)):
            a(o)
        if u == 1:
            pend = f"s_or_b64 {sp(MSK)}, {sp(PM)}, {sp(PM + 2)}"
        elif u > 1:
            a(pend)
            pend = f"s_or_b64 {sp(MSK)}, {sp(MSK)}, {sp(PM + 2 * u)}"
    a(pend)
    a(f"s_cbranch_scc1 {l2}\n{done}:")


def quad_gather(r):
    for k in (1, 2, 3):
        a(f"v_mov_b32_dpp {v(r + k)}, {v(r)} quad_perm:[{k},{k},{k},{k}] {DPP}")
    a(f"s_mov_b32 exec_lo, 0x11111111\ns_mov_b32 exec_hi, 0x11111111")


def zero(regs):
    for r in regs:
        a(f"v_mov_b32 {v(r)}, 0")


def b_addr(reg, tmp, rowbytes, extra, base, r32=None):
    lane_expr(reg, tmp, [(3, 1, r32 or 32 * rowbytes), (4, 2, 4 * rowbytes), (2, 1, rowbytes)] + extra, base)


def b_reads(dst, addr, nblk, rowbytes, r32=None):
    r32 = r32 or 32 * rowbytes
    for blk in range(nblk):
        for rho in range(4):
            off = 2 * r32 * blk + (16 * (rho >> 1) + 2 * (rho & 1)) * rowbytes
            a(f"ds_read_b64_tr_b16 {v(dst + 8 * blk + 2 * rho, 2)}, {v(addr)} offset:{off}")


def lane_sum(regs, steps, tmps):
    for st in steps:
        if st in ("s16", "s32"):
            for r, t in zip(regs, tmps):
                a(f"v_mov_b32 {v(t)}, {v(r)}")
            for r, t in zip(regs, tmps):
                a(f"v_permlane{st[1:]}_swap_b32 {v(r)}, {v(t)}")
            for r, t in zip(regs, tmps):
                a(f"v_add_f32 {v(r)}, {v(r)}, {v(t)}")
        else:
            pat = {"x1": "quad_perm:[1,0,3,2]", "x2": "quad_perm:[2,3,0,1]", "hm": "row_half_mirror",
                   "r4": "row_ror:4", "r8": "row_ror:8"}[st]
            for r in regs:
                a(f"v_add_f32_dpp {v(r)}, {v(r)}, {v(r)} {pat} {DPP}")


def ln_stats(xregs, s1, s2, steps, t1, t2):
    for n, r in enumerate(xregs):
        a(f"v_dot2_f32_bf16 {v(s1)}, {v(r)}, {ONES}, {'0' if n == 0 else v(s1)}")
        a(f"v_dot2_f32_bf16 {v(s2)}, {v(r)}, {v(r)}, {'0' if n == 0 else v(s2)}")
    lane_sum([s1, s2], steps, [t1, t2])
    a(f"""
    v_mul_f32 {v(s1)}, {f32(1.0 / 640)}, {v(s1)}
    v_mul_f32 {v(s2)}, {f32(1.0 / 640)}, {v(s2)}
    v_fma_f32 {v(s2)}, -{v(s1)}, {v(s1)}, {v(s2)}
    v_max_f32 {v(s2)}, 0, {v(s2)}
    v_add_f32 {v(s2)}, {f32(1e-5)}, {v(s2)}
    """)


class QM:
    def __init__(self, B, X, A, XA0, XA1, SA, T):
        self.B, self.X, self.A, self.XA0, self.XA1, self.SA, self.T = B, X, A, XA0, XA1, SA, T


Q1M = QM(64, 88, [96, 100, 104], 108, 109, 110, 111)
Q2M = QM(96, 120, [36, 44, 56], 41, 42, 43, 60)


def qp_setup(q):
    s_expr(T0, [(W, 32)], L_WQ - 4 * 32)
    b_addr(q.T, q.SA, 128, [(0, 2, 8)], T0)
    b_reads(q.B, q.T, 3, 128)
    for r in q.A:
        zero(range(r, r + 4))


def qp_saddr(reg, off, wmul=256):
    lin(reg, 2, [(G, 32 * QRS), (J, QRS), (W, wmul)], QR + off - 4 * wmul)


def qp_mm(q):
    a(f"""
    {SMF} {v(q.A[0], 4)}, {v(q.X, 4)}, {v(q.B, 8)}, {v(IDX)}
    {SMF} {v(q.A[1], 4)}, {v(q.X, 4)}, {v(q.B + 8, 8)}, {v(IDX)}
    {SMF} {v(q.A[2], 4)}, {v(q.X + 4, 4)}, {v(q.B + 16, 8)}, {v(IDX)}
    """)


def qp_sum(q):
    A0, A1, A2 = q.A
    a(f"""
    v_add_f32 {v(A0)}, {v(A0)}, {v(A0 + 2)}
    v_add_f32 {v(A1 + 1)}, {v(A1 + 1)}, {v(A1 + 3)}
    v_add_f32 {v(A0)}, {v(A0)}, {v(A1 + 1)}
    v_add_f32 {v(A0)}, {v(A0)}, {v(A2)}
    v_min_u32 {v(A0)}, -2, {v(A0)}
    """)


pX_, pQ, pS1, pS2, pA, pC, pLW, pT, pT2 = 24, 112, 120, 121, 122, 123, 124, 125, 126


def poller_stats():
    ln_stats(range(pX_, pX_ + 5), pS1, pS2, ["x1", "x2", "r4", "r8", "s16", "s32"], pT, pT2)
    a(f"v_rsq_f32 {v(pS2)}, {v(pS2)}")


def poller_qaddr(off):
    a(f"s_and_b32 {T1}, {J}, 24")
    s_expr(T0, [(G, 32 * QRS), (T1, QRS), (BB, 64)], QR + off + 3840)
    lane_expr(pA, pT, [(5, 1, 4 * QRS), (3, 2, 256), (0, 3, 8)], T0)
    lane_expr(pLW, pT, [(5, 1, 128), (3, 1, 64), (0, 1, 32), (4, 1, 16), (1, 2, 4)], L_Q)


def poller_qloads():
    return [(f"global_load_dwordx2 {v(pQ + 2 * kq, 2)}, {v(pA)}, {sp(pWS)} offset:{kq * QRS - 3840} sc1", pQ + 2 * kq, 2) for kq in range(4)]


def poller_finish():
    r = pX_
    a(f"""
    v_pk_add_f32 {v(r, 2)}, {v(pQ, 2)}, {v(pQ + 2, 2)}
    v_pk_add_f32 {v(r + 2, 2)}, {v(pQ + 4, 2)}, {v(pQ + 6, 2)}
    v_pk_fma_f32 {v(r, 2)}, {v(r, 2)}, {v(pS1, 2)}, {v(r + 4, 2)} op_sel:[0,1,0] op_sel_hi:[1,1,1]
    v_pk_fma_f32 {v(r, 2)}, {v(r + 2, 2)}, {v(pS1, 2)}, {v(r, 2)} op_sel:[0,1,0] op_sel_hi:[1,1,1]
    v_cvt_pk_bf16_f32 {v(r)}, {v(r)}, {v(r + 1)}
    ds_write_b32 {v(pLW)}, {v(r)}
    """)


def poller_bias():
    a(f"""
    v_mul_f32 {v(pT)}, {v(pS1)}, {v(pS2)}
    v_mul_f32 {v(pX_ + 4)}, -{v(pT)}, {v(pCS)}
    v_mul_f32 {v(pX_ + 5)}, -{v(pT)}, {v(pCS + 1)}
    """)


aQV, aONE, aLA, IDX2, aQK, aP, aACC, aS, aT = 16, 32, 36, 40, 48, 52, 64, 60, 61


def att_addr(layer):
    t = aT
    lane_expr(aQA, t, [(4, 2, 64), (0, 2, 16)], L_Q)
    s_expr(T0, [(W, 128)], L_P)
    lane_expr(aPW, t, [(0, 1, 64), (2, 1, 32), (4, 1, 16), (1, 1, 8), (5, 1, 4), (3, 1, 2)], T0)
    lane_expr(aPR, t, [(4, 2, 32), (2, 1, 16)], T0)
    s_expr(T0, [(W, OWS)], L_OW)
    lane_expr(aOWW, t, [(0, 4, 16), (4, 1, 8), (5, 1, 8 * OWJ)], T0)
    s_expr(T0, [(W, 8)], L_ML + 128 * layer)
    lane_expr(aMLW, t, [(4, 1, 4)], T0)
    s_expr(T0, [(W, 64)], L_OW)
    lane_expr(aOWR, t, [(0, 2, 2 * OWS), (2, 2, 4 * OWJ), (4, 2, 16)], T0)
    lane_expr(aMLR, t, [(0, 2, 16)], L_ML + 128 * layer)
    a(f"s_lshr_b32 {T1}, {W}, 1\ns_and_b32 {T2}, {W}, 1")
    s_expr(T0, [(T1, 1024), (T2, 32), (BB, 64)], OB)
    a(f"s_lshr_b32 {T1}, {J}, 3\ns_and_b32 {T2}, {J}, 1")
    s_expr(T0, [(T0, 1), (T1, 2048), (T2, 16)])
    lane_expr(aOBA, t, [(4, 2, 256), (2, 2, 4)], T0)
    s_expr(T0, [(BB, 32), (T1, 8), (T2, 4)], LSE)
    a(f"v_writelane_b32 {v(aOBA)}, {T0}, 1")


def att_init(lo=16, acc=True):
    zero(list(range(lo, 32)) + list(range(aQK, aQK + 8)) + (list(range(aACC, aACC + 16)) if acc else []))
    for i in range(4):
        a(f"v_mov_b32 {v(aONE + i)}, {ONES}")
    a(f"""
    v_bfe_u32 {v(IDX2)}, v0, 2, 1
    v_mul_u32_u24 {v(IDX2)}, 0xaaaa, {v(IDX2)}
    v_add_u32 {v(IDX2)}, 0x4444, {v(IDX2)}
    """)


hdr = open("cdna_kernels/%s.s.ref" % NAME).read().split("\n")
for line in hdr:
    if line.startswith("; @launch"):
        a.raw("; @launch grid=(256,1,1) block=(512,1,1) lds=%d" % LDS_BYTES)
    elif line.startswith(";"):
        a.raw(line)
    else:
        break
a.raw('.amdgcn_target "amdgcn-amd-amdhsa--gfx950"')
a.raw(".text")
a.raw(".globl %s_kernel" % NAME)
if OPT["al"]:
    a.raw(".p2align 12")
a.raw(".p2align 8")
a.raw(".type %s_kernel,@function" % NAME)
a.raw("%s_kernel:" % NAME)
a(f"""
    s_cmp_ge_u32 s2, 256
    s_cbranch_scc1 L_END
    s_load_dwordx16 s[8:23], s[0:1], 0
    s_load_dwordx8 s[24:31], s[0:1], 64
""")
a.c("pull the kernel's own code into L2: four 128-byte lines per workgroup")
a(f"""
    s_getpc_b64 {sp(TB)}
L_PC:
    s_and_b32 {T0}, s2, 0xf8
    s_lshl_b32 {T0}, {T0}, 6
    v_and_b32 v1, 3, v0
    v_lshl_add_u32 v1, v1, 7, {T0}
    v_min_u32 v1, L_END-L_PC, v1
    global_load_dword {v(vDUM)}, v1, {sp(TB)}
    s_mov_b32 {LAYER}, 0
""")
if OPT["padto"]:
    a("s_memrealtime s[100:101]")
if DIAG:
    for i in range(16):
        a(f"s_mov_b64 {sp(STAMP0 + 2 * i)}, 0")
    a("s_memrealtime s[100:101]")
a(f"""
    v_lshrrev_b32 v1, 6, v0
    v_and_b32 v0, 63, v0
    v_readfirstlane_b32 {W}, v1
    s_and_b32 {G}, s2, 7
    s_lshr_b32 {J}, s2, 3
    s_lshr_b32 {T0}, {J}, 3
    s_add_u32 {H}, {G}, {T0}
    s_and_b32 {H}, {H}, 7
    s_and_b32 {T0}, {J}, 24
    s_add_u32 {H}, {H}, {T0}
    s_bfe_u32 {BB}, {J}, 0x20001
    s_and_b32 {T1}, {J}, 1
""")
s_expr(T2, [(BB, 1 << 25), (H, 1 << 20), (T1, 1 << 17), (W, 1 << (11 if OPT["lay"] else 13))], 0xC0000 + (0 if OPT["lay"] else 4096))
lane_expr(vK, 60, [(1, 3, 256), (0, 1, 64), (4, 2, 16)])
a(f"v_lshlrev_b32 {v(vV)}, 4, v0")
for i in range(4):
    a(f"v_mov_b32 {v(124 + i)}, -1")
a(f"s_lshl_b32 {T0}, {J}, 3\ns_add_u32 {T0}, {T0}, {W}\ns_waitcnt lgkmcnt(0)")
add64(KB, pK, T2)
add64(VB, pV, T2)
a(f"s_cmp_eq_u32 {T0}, {999 if CUT & 128 else 1}\ns_cbranch_scc1 L_LEAD\nL_PRO_L:")


def fill_local(fl, d):
    D = v(d, 4)
    lin(60, 4, [(G, GS), (J, 1152)], 0)
    a(f"global_store_dwordx4 v60, {D}, {sp(pWS)}{fl}")
    a(f"s_mov_b64 exec, 0xff\nglobal_store_dwordx4 v60, {D}, {sp(pWS)} offset:1024{fl}\ns_mov_b64 exec, -1")
    lin(60, 4, [(G, 32 * QRS), (J, QRS)], QR)
    a(f"global_store_dwordx4 v60, {D}, {sp(pWS)}{fl}\nglobal_store_dwordx4 v60, {D}, {sp(pWS)} offset:1024{fl}")
    a(f"s_mov_b32 exec_hi, 0\nglobal_store_dwordx4 v60, {D}, {sp(pWS)} offset:2048{fl}\ns_mov_b64 exec, -1")


def fill_pb(hop, d):
    a(f"s_lshr_b32 {T1}, {J}, 1\ns_and_b32 {T2}, {J}, 1")
    s_expr(T0, [(T1, 16384), (T2, 4096), (G, 256)], PBB + hop * PBH)
    lane_expr(60, 61, [(5, 1, 8192), (4, 1, 2048), (0, 4, 16)], T0)
    a(f"global_store_dwordx4 v60, {v(d, 4)}, {sp(pWS)} sc1")


SKIP = [False]


def stream(i, thr=True):
    if OPT["lay"]:
        B_ = KB if i < 16 else VB
        if i & 15 and not i & 1:
            add64(B_, B_, 16384)
        if i < 16:
            a(f"global_load_dwordx4 {v(KREG + 4 * i, 4)}, {v(vK)}, {sp(KB)} offset:{(i & 1) * 128} nt")
        else:
            a(f"global_load_dwordx4 {v(SREG + (i - 16) * 4, 4)}, {v(vV)}, {sp(VB)} offset:{(i & 1) * 1024} nt")
    elif i < 16:
        if i == 8:
            add64(KB, KB, 65536)
        kq, hf = (i >> 1) & 3, i & 1
        a(f"global_load_dwordx4 {v(KREG + 4 * i, 4)}, {v(vK)}, {sp(KB)} offset:{kq * 2048 + hf * 128 - 4096} nt")
    else:
        if i == 24:
            add64(VB, VB, 65536)
        a(f"global_load_dwordx4 {v(SREG + (i - 16) * 4, 4)}, {v(vV)}, {sp(VB)} offset:{(i & 7) * 1024 - 4096} nt")
    if thr:
        l = a.newlabel("TS")
        if SKIP[0]:
            a(f"s_cbranch_vccnz {l}")
        a(f"s_waitcnt vmcnt({THR - 1})")
        a.label(l)


def only_wave(w, label, off=False):
    a(f"s_cmp_lg_u32 {W}, {9 if off else w}\ns_cbranch_scc1 {label}")


def h_first():
    a(f"s_cmp_lg_u32 {W}, 2\ns_cselect_b64 vcc, 0, -1")
    a(f"s_cmp_ge_u32 {W}, 4\ns_cbranch_scc1 L_PRO_X")
    a(f"s_lshl_b32 {TILE}, {J}, 1\ns_add_u32 {TILE}, {TILE}, {W}")
    a(f"s_cmp_eq_u32 {W}, 3\ns_cbranch_scc1 L_PRO_X3\ns_cmp_eq_u32 {W}, 2\ns_cbranch_scc1 L_PRO_X2")
    a(f"s_min_u32 {T1}, {TILE}, 39")
    s_expr(T0, [(T1, 32)])
    lane_expr(60, 61, [(2, 2, 1280), (0, 2, 8), (5, 1, 4)], T0)
    a(f"global_load_dword {v(rX0)}, v60, {sp(pX)}")
    if OPT["tlb"]:
        a.c("first touch of pages that are streamed later")
        a(f"""
        v_and_b32 v60, 1, v0
        v_lshlrev_b32 v60, 16, v60
        global_load_dword {v(vDUM)}, v60, {sp(VB)} nt
        """)
    if OPT["tlb"] & 2:
        a(f"""
        v_and_b32 v60, 3, v0
        v_lshlrev_b32 v60, 20, v60
        v_min_u32 v61, {640 * 3456 - 4}, v60
        global_load_dword {v(vDUM)}, v61, {sp(pWG)} nt
        global_load_dword {v(vDUM)}, v61, {sp(pWU)} nt
        global_load_dword {v(vDUM)}, v61, {sp(pWD)} nt
        v_and_b32 v60, 7, v0
        v_lshlrev_b32 v60, 20, v60
        v_min_u32 v61, {4096 * 1280 - 4}, v60
        global_load_dword {v(vDUM)}, v61, {sp(pWO)} nt
        """)
    a("s_branch L_PRO_A")
    a.label("L_PRO_X2")
    a.c("wave 2: sentinel fill; plain stores are enough if the group shares one L2 (checked later, redone otherwise)")
    if not CUT & 2:
        if not OPT["xc"] & 1:
            fill_local("", 124)
        a(f"s_cmp_ge_u32 {J}, {0 if OPT['xc'] & 2 else 20}\ns_cbranch_scc1 L_PRO_C")
        fill_pb(0, 124)
        if OPT["fb"] == 0:
            a(f"v_add_u32 v60, {PBH}, v60\nglobal_store_dwordx4 v60, v[124:127], {sp(pWS)} sc1")
    a.label("L_PRO_C")
    a.c("wave 2: LDS zero areas")
    zero(range(44, 48))
    a(f"""
    v_lshlrev_b32 v62, 2, v0
    v_add_u32 v62, {L_ML}, v62
    ds_write_b32 v62, v124
    v_lshlrev_b32 v62, 2, v0
    v_add_u32 v62, {L_FLAG}, v62
    ds_write_b32 v62, v124
    v_add_u32 v62, {L_OX}, {v(vV)}
    ds_write_b128 v62, v[124:127]
    ds_write_b128 v62, v[124:127] offset:1024
    ds_write_b128 v62, v[124:127] offset:2048
    ds_write_b128 v62, v[124:127] offset:3072
    v_add_u32 v62, {L_WD + 6 * R32}, {v(vV)}
    s_cmp_ge_u32 {J}, 20
    s_cbranch_scc1 L_PRO_A
    ds_write_b128 v62, v[44:47]
    ds_write_b128 v62, v[44:47] offset:1024
    ds_write_b128 v62, v[44:47] offset:{R32}
    ds_write_b128 v62, v[44:47] offset:{R32 + 1024}
    s_branch L_PRO_A
    """)
    a.label("L_LEAD")
    a.c("wave 1 of the group's first workgroup: reset the group's arrival markers, then raise the group's flag")
    lin(60, 4, [(G, 32 * MSTR)], MK)
    a(f"""
    s_lshl_b32 {T0}, {G}, 5
    v_mov_b32 v62, {T0}
    s_mov_b32 exec_hi, 0
    global_store_dwordx4 v60, v[124:127], {sp(pWS)} sc1
    s_waitcnt vmcnt(0)
    s_mov_b64 exec, 1
    global_store_dword v62, v124, {sp(pDBG)} sc1
    s_mov_b64 exec, -1
    s_branch L_PRO_L
    """)
    a.label("L_PRO_X3")
    lin(60, 2, [(BB, 1280)], 0)
    for u in range(5):
        a(f"global_load_dword {v(pX_ + u)}, v60, {sp(pX)} offset:{u * 256}")
    a("s_branch L_PRO_A")
    a.label("L_PRO_X")
    a(f"s_and_b32 {T1}, {J}, 3")
    s_expr(T0, [(T1, 320)])
    q = Q1M
    lane_expr(q.XA0, q.T, [(2, 2, 1280), (0, 1, 128), (1, 1, 64), (4, 2, 16)], T0)
    lane_expr(q.XA1, q.T, [(2, 2, 1280), (4, 2, 16)], T0)
    a(f"global_load_dwordx4 {v(q.X, 4)}, {v(q.XA0)}, {sp(pX)}")
    a(f"global_load_dwordx4 {v(q.X + 4, 4)}, {v(q.XA1)}, {sp(pX)} offset:256")
    a.label("L_PRO_A")
    lane_expr(vWQ, 61, [(3, 3, 8192), (0, 3, 16)])
    a(f"s_and_b32 {T1}, {J}, 3\ns_and_b32 {T2}, {J}, 4")
    s_expr(T0, [(T1, 160 * 8192), (W, 8 * 8192), (H, 256), (T2, 32)])
    add64(TB, pWQ, T0)
    prostamp(0)


def h_wq(n):
    l = a.newlabel("WQ")
    if n == 2:
        a(f"s_cmp_ge_u32 {W}, 4\ns_cbranch_scc1 {l}")
    a(f"s_lshl_b32 {T1}, {W}, 10\ns_add_u32 m0, {T1}, {L_WQ + n * 8192}")
    if not CUT & 4:
        a(f"global_load_lds_dwordx4 {v(vWQ)}, {sp(TB)} nt")
    if n < 2:
        add64(TB, TB, 64 * 8192)
    a.label(l)


def h_setup1():
    a(f"""
    s_mov_b32 {ONES}, 0x3f803f80
    v_bfe_u32 {v(IDX)}, v0, 1, 1
    v_mul_u32_u24 {v(IDX)}, 0xaaaa, {v(IDX)}
    v_add_u32 {v(IDX)}, 0x4444, {v(IDX)}
    s_mov_b32 {CSC}, {f32(math.log2(math.e) / math.sqrt(128.0))}
    s_mov_b32 {PLO}, 0x05040100
    s_mov_b32 {PHI}, 0x07060302
    s_mov_b32 s{ODD}, 0xaaaaaaaa
    s_mov_b32 s{ODD + 1}, 0xaaaaaaaa
    s_mov_b32 s{LO8}, 0x00ff00ff
    s_mov_b32 s{LO8 + 1}, 0x00ff00ff
    s_mov_b32 s{OBM}, 0x11111111
    s_mov_b32 s{OBM + 1}, 0x11111111
    s_cmp_eq_u32 {W}, 0
    s_cselect_b32 s{OBM}, 0x11111113, s{OBM}
    s_mul_i32 {T0}, {G}, {GS}
    s_add_u32 s{EX}, s{pWS}, {T0}
    s_addc_u32 s{EX + 1}, s{pWS + 1}, 0
    s_cmp_lt_u32 {G}, 6
    s_cselect_b32 {NU}, 7, 6
    s_mul_i32 {FB0}, {G}, 7
    s_min_u32 {FB0}, {FB0}, 48
    s_sub_u32 {T0}, {J}, 20
    s_cmp_lt_u32 {T0}, {NU}
    s_cselect_b32 {ROLE}, 1, 2
    s_cmp_lt_u32 {J}, 20
    s_cselect_b32 {ROLE}, 0, {ROLE}
    """)
    a.c("PATH: 0 out/down projection, 1 gate/up, 2 q projection or q collector, 3 nothing")
    a(f"""
    s_cmp_ge_u32 {W}, 3
    s_cselect_b32 {PATH}, 2, 3
    s_lshl_b32 {T0}, 2, {ROLE}
    s_and_b32 {T0}, {T0}, 7
    s_cmp_lt_u32 {W}, {T0}
    s_cselect_b32 {PATH}, {ROLE}, {PATH}
    s_cmp_lg_u32 {ROLE}, 0
    s_cbranch_scc1 L_PRO_RU
    """)
    a.c("role weight staging: source pointer, swizzled per-lane offset, LDS base")
    lane_expr(vDMA, 60, [(2, 4, 1280), (0, 2, 16)])
    s_expr(T0, [(W, 16 * 1280), (J, 64)])
    add64(WOB, pWO, T0)
    a(f"s_lshr_b32 {T1}, {W}, 1")
    s_expr(T2L, [(W, 1024), (T1, 128)], L_WO)
    a("s_branch L_PRO_R")
    a.label("L_PRO_RU")
    lane_expr(vDMA, 60, [(2, 4, 3456), (0, 2, 16)])
    a(f"""
    s_and_b32 {T0}, {W}, 4
    s_lshl_b32 {T0}, {T0}, 2
    v_xor_b32 {v(vDMA)}, {T0}, {v(vDMA)}
    s_add_u32 {T1}, {FB0}, {J}
    s_sub_u32 {T1}, {T1}, 20
    s_and_b32 {T2}, {W}, 3
    s_cmp_ge_u32 {W}, 4
    s_cselect_b32 s{WOB}, s{pWU}, s{pWG}
    s_cselect_b32 s{WOB + 1}, s{pWU + 1}, s{pWG + 1}
    s_mov_b32 {T2L}, {L_WG}
    s_cselect_b32 {T2L}, {L_WU}, {T2L}
    s_lshr_b32 {T0}, {T2}, 1
    """)
    s_expr(T2L, [(T2L, 1), (T2, 1024), (T0, 128)])
    s_expr(T0, [(T1, 64), (T2, 16 * 3456)])
    add64(WOB, WOB, T0)
    a.label("L_PRO_R")
    a(f"v_and_b32 v60, 16, v0\nv_lshlrev_b32 v60, 1, v60\nv_xor_b32 {v(vDMA)}, {v(vDMA)}, v60")


def h_setup3():
    att_init(32, acc=False)
    lin(oBA, 4, [(W, 2048)], OB)
    zero([12])
    a(f"s_lshr_b32 {T1}, {J}, 1\ns_and_b32 {T2}, {J}, 1")
    lin(oSA, 2, [(T1, 16384), (T2, 4096), (W, 2048), (G, 256)], 0)
    zero([41, 42, vPF, pA, pC])


def h_flag():
    a(f"""
    v_and_b32 v17, 7, v0
    v_lshlrev_b32 v17, 5, v17
    v_mov_b32 v18, 0
    v_lshlrev_b32 v19, 4, v0
    v_add_u32 v19, {MK}, v19
    """)
    only_wave(2, "L_HA0", CUT & 32)
    a(f"global_load_dword v18, v17, {sp(pDBG)} sc1")
    a.label("L_HA0")


def h_bq(nafter, nflag):
    a(f"s_waitcnt vmcnt({nafter}) lgkmcnt(0)")
    only_wave(2, "L_HA1", CUT & 32)
    a.c("wave 2: sentinel fill done and the group's markers reset -> publish this workgroup's XCD id")
    lin(62, 2, [(G, 32 * MSTR), (J, MSTR)], MK)
    a(f"""
    s_getreg_b32 {XCC}, hwreg(HW_REG_XCC_ID, 0, 4)
    v_mov_b32 v44, {XCC}
    s_mov_b32 {SPIN}, {SPIN_MAX}
    s_barrier
    s_waitcnt vmcnt({nflag})
L_ARR:
    v_readlane_b32 {T0}, v18, {G}
    s_cmp_lg_u32 {T0}, 0
    s_cbranch_scc1 L_ARR_OK
    global_load_dword v18, v17, {sp(pDBG)} sc1
    s_waitcnt vmcnt(0)
    s_sub_u32 {SPIN}, {SPIN}, 1
    s_cbranch_scc0 L_ARR
L_ARR_OK:
    s_mov_b64 exec, 1
    global_store_dwordx4 v62, v[44:47], {sp(pWS)} sc1
    s_mov_b64 exec, -1
    s_branch L_PRO_KV
L_HA1:
    """)
    prostamp(3)
    a(f"""
    s_barrier
    s_cmp_ge_u32 {W}, {9 if CUT & 16 else 4}
    s_cbranch_scc1 L_PRO_Q
    s_cmp_eq_u32 {W}, 3
    s_cbranch_scc1 L_PRO_P
    v_and_b32 {v(rX1)}, 0xffff0000, {v(rX0)}
    v_lshlrev_b32 {v(rX0)}, 16, {v(rX0)}
    s_branch L_PRO_KV
    """)
    a.label("L_PRO_Q")
    a.c("waves 4..7: partial q projection of layer 1 and partial column sums")
    qp_setup(Q1M)
    qp_saddr(Q1M.SA, 0)
    qB, qSA, qACC = Q1M.B, Q1M.SA, Q1M.A[0]
    qp_saddr(112, 2048, 128)
    zero(range(116, 124))
    for i in range(4):
        a(f"v_mov_b32 {v(124 + i)}, {ONES}")
    a("s_waitcnt lgkmcnt(0)")
    qp_mm(Q1M)
    a(f"""
    {SMF} v[116:119], v[124:127], {v(qB, 8)}, {v(IDX)}
    {SMF} v[116:119], v[124:127], {v(qB + 8, 8)}, {v(IDX)}
    {SMF} v[120:123], v[124:127], {v(qB + 16, 8)}, {v(IDX)}
    """)
    qp_sum(Q1M)
    a(f"""
    v_add_f32 v116, v116, v118
    v_add_f32 v116, v116, v120
    v_min_u32 v42, -2, v116
    v_mov_b32 v41, {v(qACC)}
    global_store_dword {v(qSA)}, v41, {sp(pWS)}
    s_mov_b32 exec_hi, 0
    global_store_dword v112, v42, {sp(pWS)}
    s_mov_b64 exec, -1
    s_mov_b64 vcc, -1
    s_branch L_PRO_KV
    """)
    a.label("L_PRO_P")
    a.c("wave 3: LayerNorm statistics of its row")
    if not CUT & 8:
        a(f"global_load_dword v18, v17, {sp(pDBG)} sc1")
    poller_qaddr(0)
    s_expr(T0, [(G, 32 * QRS), (T1, QRS)], QR + 2048 + 3840)
    lane_expr(pC, pT, [(5, 1, 4 * QRS), (3, 2, 128), (0, 3, 8)], T0)
    poller_stats()
    a.label("L_PRO_KV")
    prostamp(4)


MK_LOADS = "\n".join(f"global_load_dword {v(20 + u)}, v19, {sp(pWS)} offset:{u * 64 * MSTR} sc1" for u in range(4))


def q1_loads():
    for ins, _, _ in poller_qloads():
        a(ins)
    for kq in range(4):
        a(f"global_load_dwordx2 {v(pX_ + 2 * kq, 2)}, {v(pC)}, {sp(pWS)} offset:{kq * QRS - 3840} sc1")


def h_p1(ny):
    only_wave(3, "L_H1", CUT & 8)
    a.c("wave 3: all groups have reset their markers -> read the markers")
    a(f"""
    s_mov_b32 {SPIN}, {SPIN_MAX}
    s_waitcnt vmcnt({ny})
L_FLG:
    v_cmp_eq_u32 vcc, 0, v18
    s_cbranch_vccz L_FLG_OK
    global_load_dword v18, v17, {sp(pDBG)} sc1
    s_waitcnt vmcnt(0)
    s_sub_u32 {SPIN}, {SPIN}, 1
    s_cbranch_scc0 L_FLG
L_FLG_OK:
    {MK_LOADS}
    s_mov_b64 vcc, -1
L_H1:
    """)
    prostamp(2)


def h_p2(ny):
    only_wave(3, "L_H2", CUT & 8)
    a.c("wave 3: the whole group has arrived -> fetch q partials; decide whether the group shares one L2")
    a(f"""
    s_getreg_b32 {XCC}, hwreg(HW_REG_XCC_ID, 0, 4)
    s_mov_b32 {SPIN}, {SPIN_MAX}
    s_waitcnt vmcnt({ny})
L_CNT:
    s_bitcmp1_b32 {G}, 1
    s_cselect_b64 vcc, -1, 0
    v_cndmask_b32 v17, v20, v21, vcc
    v_cndmask_b32 v18, v22, v23, vcc
    s_bitcmp1_b32 {G}, 2
    s_cselect_b64 vcc, -1, 0
    v_cndmask_b32 v17, v17, v18, vcc
    v_cmp_eq_u32 vcc, -1, v17
    s_bitcmp1_b32 {G}, 0
    s_cselect_b32 {T0}, vcc_hi, vcc_lo
    s_cmp_eq_u32 {T0}, 0
    s_cbranch_scc1 L_CNT_OK
    {MK_LOADS}
    s_waitcnt vmcnt(0)
    s_sub_u32 {SPIN}, {SPIN}, 1
    s_cbranch_scc0 L_CNT
L_CNT_OK:
    """)
    q1_loads()
    a(f"""
    {MK_LOADS}
    v_cmp_ne_u32 vcc, {XCC}, v17
    v_mov_b32 v18, {L_FLAG}
    s_bitcmp1_b32 {G}, 0
    s_cselect_b32 {T0}, vcc_hi, vcc_lo
    s_cmp_lg_u32 {T0}, 0
    s_cselect_b32 {T0}, 0, {0 if OPT['force_global'] else 1}
    s_mov_b32 {LOCAL}, {T0}
    v_mov_b32 v17, {T0}
    ds_write_b32 v18, v17
    s_mov_b64 vcc, -1
L_H2:
    """)
    prostamp(5)


def h_p4():
    a.c("wave 3: every workgroup of every group must have arrived before this workgroup publishes or polls anything else")
    a(f"""
    s_mov_b32 {SPIN}, {SPIN_MAX}
L_ALL:
    v_max3_u32 v17, v20, v21, v22
    v_max_u32 v17, v17, v23
    v_cmp_eq_u32 vcc, -1, v17
    s_cbranch_vccz L_ALL_OK
    s_sleep 4
    {MK_LOADS}
    s_waitcnt vmcnt(0)
    s_sub_u32 {SPIN}, {SPIN}, 1
    s_cbranch_scc0 L_ALL
L_ALL_OK:
    """)
    if OPT["warm"] & 2:
        a.c("keep the hand-off lines in L2 so that the first polls do not miss")
        s_expr(T0, [(J, 1152)])
        a(f"""
        v_min_u32 v17, 8, v0
        v_lshl_add_u32 v17, v17, 7, {T0}
        global_load_dword {v(vDUM)}, v17, {sp(EX)} sc1
        """)
        s_expr(T0, [(G, 32 * QRS), (J, QRS)], QR + 1024)
        a(f"""
        v_and_b32 v17, 7, v0
        v_lshl_add_u32 v17, v17, 7, {T0}
        global_load_dword {v(vDUM)}, v17, {sp(pWS)} sc1
        """)
    a.label("L_H4")


def q1_collect(tag):
    a(f"s_mov_b32 {SPIN}, {SPIN_MAX}")
    a.label("L_Q1" + tag)
    for s_ in check_ops(list(range(pX_, pX_ + 8)) + list(range(pQ, pQ + 8)), pT):
        a(s_)
    a(f"s_cbranch_vccz L_Q1_OK{tag}")
    q1_loads()
    a(f"""
    s_waitcnt vmcnt(0)
    s_sub_u32 {SPIN}, {SPIN}, 1
    s_cbranch_scc0 L_Q1{tag}
L_Q1_OK{tag}:
    v_pk_add_f32 {v(pX_, 2)}, {v(pX_, 2)}, {v(pX_ + 2, 2)}
    v_pk_add_f32 {v(pX_ + 4, 2)}, {v(pX_ + 4, 2)}, {v(pX_ + 6, 2)}
    v_pk_add_f32 {v(pCS, 2)}, {v(pX_, 2)}, {v(pX_ + 4, 2)}
    """)
    poller_bias()
    poller_finish()


def h_p3(ny):
    only_wave(3, "L_H3", CUT & 8)
    a(f"s_waitcnt vmcnt({ny})\ns_cmp_eq_u32 {LOCAL}, 0\ns_cbranch_scc1 L_H3B")
    q1_collect("")
    a.label("L_H3B")
    h_p4()
    a("s_waitcnt lgkmcnt(0)\ns_mov_b64 vcc, -1")
    a.label("L_H3")
    prostamp(6)


K0, BQ, HF, HC, HD, BP = OPT["k0"], OPT["bq"], OPT["hf"], OPT["hc"], OPT["hd"], OPT["bp"]
hooks = {}


def h_unfree():
    a(f"s_cmp_eq_u32 {W}, 3\ns_cselect_b64 vcc, vcc, 0")


for pos, fn in [(K0, h_first), (K0, lambda: h_wq(0)), (K0, lambda: h_wq(1)), (K0, lambda: h_wq(2)),
                (K0 + 1, h_setup1), (K0 + 2, h_setup3), (HF, h_flag),
                (BQ + 2, lambda: h_bq(BQ + 2 - K0, BQ + 2 - HF)), (BQ + 3, lambda: att_addr(0)),
                (BQ + 2 + OPT["free"], h_unfree),
                (HC, lambda: h_p1(HC - BQ - 2)), (HC + HD, lambda: h_p2(HD)), (HC + 2 * HD, lambda: h_p3(HD))]:
    hooks.setdefault(pos, []).append(fn)
assert K0 + 2 <= BQ + 2 <= 16 and K0 <= HF < BQ + 2 <= HC and HC + 2 * HD < BP and 24 <= BP <= 28 and HC + 2 * HD <= 28
SKIP[0] = True
for i in range(BP):
    for fn in hooks.get(i, []):
        fn()
    stream(i, thr=not (i < K0 or BQ <= i < BQ + 2 or i >= BP - OPT['cov']))
SKIP[0] = False
a("s_waitcnt vmcnt(%d)" % (BP - 16))
prostamp(1)
a(f"""
    v_mov_b32 v62, {L_FLAG}
    s_barrier
    ds_read_b32 v62, v62
    v_mov_b32 v63, {CSC}
    s_waitcnt lgkmcnt(0)
    v_readfirstlane_b32 {LOCAL}, v62
    s_cmp_eq_u32 {LOCAL}, {9 if CUT else 0}
    s_cbranch_scc1 L_SLOW
L_SLOW_RET:
""")
zero(range(16, 32))
a("s_mov_b32 exec_lo, 0x000f000f\ns_mov_b32 exec_hi, 0x000f000f\ns_branch L_BAR2")


def perms(t, pp):
    for j in range(8):
        s0 = SREG + t * 32 + (2 * pp) * 4 + (j >> 1)
        a(f"v_perm_b32 {v(VREG + j * 8 + t * 4 + pp)}, {v(s0 + 4)}, {v(s0)}, {PHI if j & 1 else PLO}")


def gu_prefetch(lo, hi, issue=True):
    s_expr(T1, [(J, 8), (W, 1)], -160)
    a(f"""
    s_cmp_ge_u32 {T1}, 48
    s_cselect_b32 s{TB}, s{pWU}, s{pWG}
    s_cselect_b32 s{TB + 1}, s{pWU + 1}, s{pWG + 1}
    s_cselect_b32 {T0}, 48, 0
    s_sub_u32 {T1}, {T1}, {T0}
    s_mul_i32 {T1}, {T1}, 14
    s_add_u32 {T1}, {T1}, {lo}
    s_lshr_b32 {T2}, {FB0}, 1
    s_lshl_b32 {T2}, {T2}, 7
    s_sub_u32 {T0}, {NU}, 4
    v_lshrrev_b32 {v(vPF)}, 2, v0
    v_min_u32 {v(vPF)}, {hi - lo - 1}, {v(vPF)}
    v_add_u32 {v(vPF)}, {T1}, {v(vPF)}
    v_min_u32 {v(vPF)}, 639, {v(vPF)}
    v_mul_u32_u24 {v(vPF)}, 3456, {v(vPF)}
    v_and_b32 {v(vK)}, 3, v0
    v_min_u32 {v(vK)}, {T0}, {v(vK)}
    v_lshl_add_u32 {v(vPF)}, {v(vK)}, 7, {v(vPF)}
    v_add_u32 {v(vPF)}, {T2}, {v(vPF)}
    """)
    if issue:
        a(f"global_load_dword {v(vDUM)}, {v(vPF)}, {sp(TB)}")


def wo_prefetch():
    if OPT["upfree"]:
        a.c("wo into L2, one dword per line; the gate/up workgroups are left out so that they finish K/V early")
        a(f"""
        s_sub_u32 {T0}, {J}, 20
        s_cmp_lt_u32 {T0}, 7
        s_cbranch_scc1 L_WPE
        s_cmp_ge_u32 {J}, 20
        s_cselect_b32 {T0}, 7, 0
        s_sub_u32 {T0}, {J}, {T0}
        """)
        s_expr(T0, [(T0, 8 * 26), (W, 26)])
        a(f"""
        v_min_u32 {v(vPF)}, 25, v0
        v_add_u32 {v(vPF)}, {T0}, {v(vPF)}
        v_min_u32 {v(vPF)}, 5119, {v(vPF)}
        v_mul_u32_u24 {v(vK)}, 3277, {v(vPF)}
        v_lshrrev_b32 {v(vK)}, 22, {v(vK)}
        v_add_u32 v62, {G}, {v(vK)}
        v_and_b32 v62, 7, v62
        v_mul_u32_u24 {v(vK)}, 7, {v(vK)}
        v_add_u32 v62, v62, {v(vK)}
        v_mul_u32_u24 v62, 1280, v62
        v_add_lshl_u32 {v(vPF)}, {v(vPF)}, v62, 7
        global_load_dword {v(vDUM)}, {v(vPF)}, {sp(pWO)}
    L_WPE:
        """)
        return
    a(f"s_and_b32 {T1}, {J}, 7")
    s_expr(T0, [(H, 128 * 1280), (T1, 8 * 2560), (W, 2560)])
    a(f"""
    v_min_u32 {v(vPF)}, 19, v0
    v_lshl_add_u32 {v(vPF)}, {v(vPF)}, 7, {T0}
    global_load_dword {v(vDUM)}, {v(vPF)}, {sp(pWO)}
    """)


NTAIL = 1 if OPT["pfp"] == 32 else 0


def v_tail():
    done = 0
    for i in range(BP, 32):
        if i == OPT["pfp"]:
            wo_prefetch()
        stream(i, thr=i < 31 - OPT['vthr'])
        if done < 4:
            a(f"s_waitcnt vmcnt({i - (17 + 2 * done)})")
            perms(0, done)
            done += 1
    assert done == 4
    if OPT["pfp"] == 32:
        wo_prefetch()
    prostamp(7)
    a(f"s_lshr_b32 {OPW}, {W}, 2\ns_or_b32 {OPW}, {OPW}, {ROLE}")
    zero(range(aACC, aACC + 16))
    weights("V", True)
    for pp in range(4):
        a(f"s_waitcnt vmcnt({6 - 2 * pp + NTAIL})")
        perms(1, pp)
        if pp == 2:
            a(f"s_cmp_eq_u32 {ROLE}, 0\ns_cbranch_scc1 L_NT0")
            gu_prefetch(0, OPT["nt"], issue=False)
            a.label("L_NT0")
        if pp == 1:
            for i in range(4):
                a(f"""
                s_add_u32 {T0}, {G}, {i}
                s_and_b32 {T0}, {T0}, 7
                s_add_u32 {T0}, {T0}, {8 * i}
                s_mul_i32 s{PM + i}, {T0}, {128 * 1280}
                """)
    a.c("K and V are in: first part of the W_gate / W_up prefetch")
    a(f"s_cmp_eq_u32 {ROLE}, 0\ns_cbranch_scc1 L_NT1")
    a(f"global_load_dword {v(vDUM)}, {v(vPF)}, {sp(TB)}\ns_branch L_PV")
    a.label("L_NT1")
    for i in range(4):
        a(f"s_add_u32 m0, {T2L}, {i * 4 * R32}")
        add64(TB, WOB, f"s{PM + i}")
        a(f"global_load_lds_dwordx4 {v(vDMA)}, {sp(TB)}")


MXS = "s44"
a.label("L_BAR")
a(f"""
    v_mov_b32 v63, {CSC}
    s_mov_b32 exec_lo, 0x000f000f
    s_mov_b32 exec_hi, 0x000f000f
    s_barrier
L_BAR2:
""")
stamp(0)
cyc(0)
for o in range(4):
    a(f"ds_read_b128 {v(aQV + 4 * o, 4)}, {v(aQA)}")
    a("s_lshl_b64 exec, exec, 4" if o < 3 else "s_mov_b64 exec, -1")
for o in range(4):
    a(f"s_waitcnt lgkmcnt({3 - o})")
    for t in range(2):
        a(f"{SMF} {v(aQK + 4 * t, 4)}, {v(aQV + 4 * o, 4)}, {v(KREG + (t * 4 + o) * 8, 8)}, {v(IDX)}")
cyc(1)
a(f"""
    v_pk_add_f32 {v(aQK, 2)}, {v(aQK, 2)}, {v(aQK + 2, 2)}
    v_pk_add_f32 {v(aQK + 4, 2)}, {v(aQK + 4, 2)}, {v(aQK + 6, 2)}
    v_cndmask_b32 {v(aT)}, {v(aQK + 4)}, {v(aQK + 1)}, {sp(ODD)}
    v_cndmask_b32 {v(aS)}, {v(aQK)}, {v(aQK + 5)}, {sp(ODD)}
    v_add_f32_dpp {v(aS)}, {v(aT)}, {v(aS)} quad_perm:[1,0,3,2] {DPP}
    v_max_f32_dpp {v(aT)}, {v(aS)}, {v(aS)} quad_perm:[1,0,3,2] {DPP}
    v_max_f32_dpp {v(aT)}, {v(aT)}, {v(aT)} quad_perm:[2,3,0,1] {DPP}
    v_max_f32_dpp {v(aT)}, {v(aT)}, {v(aT)} row_ror:4 {DPP}
    v_max_f32_dpp {v(aT)}, {v(aT)}, {v(aT)} row_ror:8 {DPP}
    v_max_f32_dpp {v(aT)}, {v(aT)}, {v(aT)} row_bcast:15 row_mask:0xa bank_mask:0xf
    v_max_f32_dpp {v(aT)}, {v(aT)}, {v(aT)} row_bcast:31 row_mask:0xc bank_mask:0xf
    v_readlane_b32 {MXS}, {v(aT)}, 63
    v_mul_f32 {v(aT)}, {MXS}, v63
    v_fma_f32 {v(aS)}, {v(aS)}, v63, -{v(aT)}
    v_exp_f32 {v(aS)}, {v(aS)}
    v_min_u32 {v(aT)}, -2, {v(aT)}
    v_cvt_pk_bf16_f32 {v(aS)}, {v(aS)}, {v(aS)}
    ds_write_b16 {v(aPW)}, {v(aS)}
    s_mov_b64 exec, {sp(LO8)}
    ds_read_b128 v[16:19], {v(aPR)}
    s_not_b64 exec, exec
    ds_read_b128 v[28:31], {v(aPR)}
    s_mov_b64 exec, 1
    ds_write_b32 {v(aMLW)}, {v(aT)} offset:64
    s_mov_b64 exec, -1
""")
cM, cO, cW = 20, 24, 44


def weights(tag, first):
    if first:
        a(f"ds_read_b128 {v(cM, 4)}, {v(aMLR)} offset:64\ns_waitcnt lgkmcnt(0)")
    a(f"""
    s_mov_b32 {SPIN}, {SPIN_MAX}
L_MXC{tag}:
    v_max_u32 {v(aS)}, {v(cM)}, {v(cM + 2)}
    v_cmp_eq_u32 vcc, -1, {v(aS)}
    v_max_f32 {v(aT)}, {v(cM)}, {v(cM + 2)}
    s_cbranch_vccnz L_MXR{tag}
L_MXD{tag}:
    s_nop 0
    v_max_f32_dpp {v(aT)}, {v(aT)}, {v(aT)} quad_perm:[1,0,3,2] {DPP}
    v_max_f32_dpp {v(aT)}, {v(aT)}, {v(aT)} quad_perm:[2,3,0,1] {DPP}
    v_sub_f32 {v(cW)}, {v(cM)}, {v(aT)}
    v_sub_f32 {v(cW + 1)}, {v(cM + 2)}, {v(aT)}
    v_exp_f32 {v(cW)}, {v(cW)}
    v_exp_f32 {v(cW + 1)}, {v(cW + 1)}
    """)


cyc(2)
a(f"s_cmp_eq_u32 {LAYER}, 0\ns_cbranch_scc1 L_VT")
a.label("L_PV")
a("s_waitcnt lgkmcnt(2)")
cyc(3)
pvm = [f"{SMF} {v(aACC + 4 * (j & 3), 4)}, {v(16 if j < 4 else 28, 4)}, {v(VREG + j * 8, 8)}, {v(IDX2)}" for j in range(8)]
oww = [f"ds_write2_b32 {v(aOWW)}, {v(aACC + 8 * jp)}, {v(aACC + 8 * jp + 4)} offset0:{OWJ * jp} offset1:{OWJ * jp + 1}"
       for jp in range(2)]
a(f"{MFMA} {v(aLA, 4)}, v[16:19], {v(aONE, 4)}, 0")
for n, j in enumerate((0, 1, 4, 5, 2, 3, 6, 7)):
    if n == 2:
        a("s_waitcnt lgkmcnt(1)")
    a(pvm[j])
    if n == OPT["mrd"]:
        a(f"ds_read_b128 v[20:23], {v(aMLR)} offset:64")
a(f"""
    s_cmp_eq_u32 {LAYER}, 0
    {oww[0]}
    s_mov_b64 exec, 0x10001
    ds_write_b32 {v(aMLW)}, {v(aLA)}
    s_mov_b64 exec, -1
    {oww[1]}
    s_cbranch_scc1 L_E1
    s_cmp_ge_u32 {W}, 4
    s_cbranch_scc1 L_YB
""")
cyc(4)
a("s_waitcnt lgkmcnt(3)")
weights("", False)
a(f"s_cmp_ge_u32 {W}, 4")
a.label("L_YB")
a("s_waitcnt lgkmcnt(0)")
cyc(5)
a("s_barrier\ns_cbranch_scc1 L_ATT_END")
cyc(6)
a(f"""
    ds_read_b128 {v(cM, 4)}, {v(aMLR)}
    ds_read_b128 {v(cO, 4)}, {v(aOWR)}
    ds_read_b128 {v(cO + 4, 4)}, {v(aOWR)} offset:{OWS}
""")
local_test()
a(f"""
    s_waitcnt lgkmcnt(2)
    v_add_f32 {v(cM)}, {v(cM)}, {v(cM + 1)}
    v_add_f32 {v(cM + 2)}, {v(cM + 2)}, {v(cM + 3)}
    v_mul_f32 {v(aS)}, {v(cW)}, {v(cM)}
    v_fmac_f32 {v(aS)}, {v(cW + 1)}, {v(cM + 2)}
    s_waitcnt lgkmcnt(0)
    v_pk_add_f32 {v(cO, 2)}, {v(cO, 2)}, {v(cO + 2, 2)}
    v_add_f32_dpp {v(aS)}, {v(aS)}, {v(aS)} quad_perm:[1,0,3,2] {DPP}
    v_pk_add_f32 {v(cO + 4, 2)}, {v(cO + 4, 2)}, {v(cO + 6, 2)}
    v_pk_mul_f32 {v(cO, 2)}, {v(cO, 2)}, {v(cW, 2)} op_sel_hi:[1,0]
    v_add_f32_dpp {v(aS)}, {v(aS)}, {v(aS)} quad_perm:[2,3,0,1] {DPP}
    v_pk_fma_f32 {v(cO, 2)}, {v(cO + 4, 2)}, {v(cW, 2)}, {v(cO, 2)} op_sel:[0,1,0] op_sel_hi:[1,1,1]
    v_rcp_f32 {v(cW + 2)}, {v(aS)}
    v_log_f32 {v(aS)}, {v(aS)}
    v_add_f32_dpp {v(cO)}, {v(cO)}, {v(cO)} quad_perm:[1,0,3,2] {DPP}
    v_add_f32_dpp {v(cO + 1)}, {v(cO + 1)}, {v(cO + 1)} quad_perm:[1,0,3,2] {DPP}
    v_add_f32 {v(cM)}, {v(aS)}, {v(aT)}
    v_add_f32_dpp {v(cO)}, {v(cO)}, {v(cO)} quad_perm:[2,3,0,1] {DPP}
    v_add_f32_dpp {v(cO + 1)}, {v(cO + 1)}, {v(cO + 1)} quad_perm:[2,3,0,1] {DPP}
    s_mov_b32 exec_lo, s{OBM + 1}
    v_pk_mul_f32 {v(cO, 2)}, {v(cO, 2)}, {v(cW + 2, 2)} op_sel_hi:[1,0]
    v_cvt_pk_bf16_f32 {v(cM)}, {v(cO)}, {v(cO + 1)}
    s_mov_b64 exec, {sp(OBM)}
    v_min_u32 {v(cO)}, -2, {v(cM)}
""")
cyc(7)
store_local(f"global_store_dword {v(aOBA)}, {v(cO)}, {sp(EX)}")
a("s_mov_b64 exec, -1")
a.label("L_ATT_END")
stamp(3)
if CUT & 1:
    a("s_branch L_FIN")
a(f"s_cmp_eq_u32 {LAYER}, 0\ns_cbranch_scc1 L_STAGE")
a.label("L_ROLE")
a(f"s_cmp_lg_u32 {OPW}, 0\ns_cbranch_scc1 L_ROLE2")

oB, oA, oACC, oL, oT, oT2 = 64, 16, 48, 4, 6, 7
rL, rR, rA, rS, rT, rSC = 48, 16, 2, 4, 5, 8


EG, EG2 = VB, KB


def pb_store(addr, data):
    a(f"global_store_dword {v(addr)}, {v(data)}, {sp(EG)} sc1")
    a(f"global_store_dword {v(addr)}, {v(data)}, {sp(EG2)} sc1")


def op_load_b(base):
    lane_expr(oT2, oT, [(4, 1, 32)])
    a(f"s_lshl_b32 {T0}, {W}, 5\nv_xor_b32 v9, {T0}, {v(oT2)}")
    b_addr(oT, oT2, 64, [(0, 2, 8)], base, R32)
    a(f"v_add_u32 {v(oT)}, {v(oT)}, v9")


a.c("waves 0..3: one head each, both column tiles; waves 0,1 then add the four partial results of their tile")
oL, oLA_, oXW, oB1 = 24, 3, 4, 5
ld = [(f"global_load_dwordx4 {v(oA + 4 * n, 4)}, {v(oBA)}, {sp(EX)} offset:{n * 1024} sc1", oA + 4 * n, 4) for n in range(2)]
ld.append((f"global_load_dwordx2 {v(oL, 2)}, {v(oLA_)}, {sp(EX)} sc1", oL, 2))
cy2(0)
s_expr(T0, [(W, 4 * R32)], L_WO)
b_addr(oT, oT2, 64, [(0, 2, 8)], T0, R32)
a(f"""
    v_and_b32 {v(oT2)}, 16, v0
    v_lshl_add_u32 {v(oB1)}, {v(oT2)}, 1, {v(oT)}
    v_xor_b32 {v(oT2)}, 16, {v(oT2)}
    v_lshl_add_u32 {v(oT)}, {v(oT2)}, 1, {v(oT)}
""")


def op_reads():
    b_reads(oB, oB1, 2, 64, R32)
    b_reads(oB + 16, oT, 2, 64, R32)


op_reads()
s_expr(T0, [(W, 8)], LSE)
lane_expr(oLA_, oT2, [(4, 2, 32)], T0)


def op_pre():
    cy2(1)
    zero(range(oACC, oACC + 8))
    lin(oXW, 2, [(LAYER, 2048), (W, 256)], L_OX)
    lin(10, 2, [(LAYER, 2048), (W, 1024)], L_OX)
    a(f"s_lshr_b32 {T1}, {TILE}, 2\ns_and_b32 {T2}, {TILE}, 3")
    lin(rA, 4, [(T1, 16384), (T2, 2048)], 0)
    s_expr(T0, [(LAYER, 2 * PBH)], PBB)
    add64(EG, pWS, T0)
    add64(EG2, EG, 8192)
    a("s_waitcnt lgkmcnt(0)")


poll(ld, oT2, OPT["p_op"], pre=op_pre, deep=OPT["d2"] & 32)
cy2(2)
if OPT["cy2"]:
    a(f"s_sub_u32 s{STAMP0 + 8}, {SPIN_MAX + 1}, {SPIN}")
sm = lambda t, u: f"{SMF} {v(oACC + 4 * t, 4)}, {v(oA + 4 * u, 4)}, {v(oB + 16 * t + 8 * u, 8)}, {v(IDX)}"
a(f"""
    {sm(0, 0)}
    v_sub_f32 v8, {v(oL + 1)}, {v(oL)}
    {sm(0, 1)}
    v_exp_f32 v8, v8
    {sm(1, 0)}
    v_add_f32 v8, 1.0, v8
    {sm(1, 1)}
    v_rcp_f32 v8, v8
    s_mov_b32 {SPIN}, {SPIN_MAX}
    s_cmp_ge_u32 {W}, 2
    v_sub_f32 v9, 1.0, v8
    v_pk_add_f32 {v(oACC, 2)}, {v(oACC, 2)}, {v(oACC + 2, 2)}
    v_mul_f32 {v(oACC)}, v8, {v(oACC)}
    v_fmac_f32 {v(oACC)}, v9, {v(oACC + 1)}
    v_pk_add_f32 {v(oACC + 4, 2)}, {v(oACC + 4, 2)}, {v(oACC + 6, 2)}
    v_min_u32 {v(oACC)}, -2, {v(oACC)}
    v_mul_f32 {v(oACC + 4)}, v8, {v(oACC + 4)}
    v_fmac_f32 {v(oACC + 4)}, v9, {v(oACC + 5)}
    v_min_u32 {v(oACC + 4)}, -2, {v(oACC + 4)}
    ds_write2st64_b32 {v(oXW)}, {v(oACC)}, {v(oACC + 4)} offset0:0 offset1:4
    s_cbranch_scc1 L_ROLE2
L_OXP:
    ds_read2st64_b32 v[56:57], v10 offset0:0 offset1:1
    ds_read2st64_b32 v[58:59], v10 offset0:2 offset1:3
    s_sub_u32 {SPIN}, {SPIN}, 1
    s_cbranch_scc1 L_OXD
    s_waitcnt lgkmcnt(0)
    v_max3_u32 {v(oT2)}, v56, v57, v58
    v_max_u32 {v(oT2)}, {v(oT2)}, v59
    v_cmp_eq_u32 vcc, -1, {v(oT2)}
    v_pk_add_f32 v[60:61], v[56:57], v[58:59]
    s_cbranch_vccnz L_OXP
L_OXD:
""")
stamp(4)
a("v_add_f32 v60, v60, v61\nv_min_u32 v60, -2, v60")
cy2(3)
pb_store(oSA, 60)
stamp(5)

def red_dst(dst):
    if dst == XA:
        a(f"s_lshr_b32 {T1}, {TILE}, 3\ns_and_b32 {T2}, {TILE}, 7\ns_lshl_b32 {T1}, {T1}, 10")
    else:
        a(f"""
        s_mul_i32 {T1}, {TILE}, 26
        s_lshr_b32 {T1}, {T1}, 8
        s_mul_i32 {T2}, {T1}, 10
        s_sub_u32 {T2}, {TILE}, {T2}
        s_mul_i32 {T1}, {T1}, 1280
        """)
    s_expr(T0, [(T1, 1)], dst)
    a(f"""
    s_and_b32 {T1}, {T2}, 1
    s_lshl_b32 {T1}, {T1}, 9
    s_and_b32 {T3}, {T2}, 2
    s_lshl_b32 {T3}, {T3}, 4
    s_add_u32 {T1}, {T1}, {T3}
    s_and_b32 {T3}, {T2}, 4
    s_lshl_b32 {T3}, {T3}, 2
    s_add_u32 {T1}, {T1}, {T3}
    s_lshl_b32 {T3}, {T2}, 7
    s_cmp_ge_u32 {T2}, 8
    s_cselect_b32 {T1}, {T3}, {T1}
    s_cselect_b32 {T2}, 4, 6
    s_add_u32 {T0}, {T0}, {T1}
    """)
    lane_expr(rS, rT, [(1, 1, 4), (2, 2, 1)])
    a(f"""
    v_lshlrev_b32 {v(rS)}, {T2}, {v(rS)}
    v_and_b32 {v(rT)}, 1, v0
    v_lshl_add_u32 {v(rS)}, {v(rT)}, 3, {v(rS)}
    v_lshrrev_b32 {v(rT)}, 5, v0
    v_lshl_add_u32 {v(rS)}, {v(rT)}, 2, {v(rS)}
    v_add_u32 {v(rS)}, {T0}, {v(rS)}
    """)


def near_probe():
    a(f"""
    s_waitcnt vmcnt(1)
    s_nop {OPT["gap"]}
    s_getreg_b32 {T0}, hwreg(HW_REG_IB_STS, 0, 4)
    s_cmp_eq_u32 {T0}, 0
    s_cselect_b32 {NEAR}, 8192, 0
    """)


def red_scale():
    a.c("1/(var+eps) of x (from wave 2) scales the FFN output after the reduce")
    s_expr(T0, [(LAYER, 64)], L_FLAG + 64)
    lane_expr(9, 10, [(0, 4, 4)], T0)
    a(f"""
    s_mov_b32 {SPIN}, {SPIN_MAX}
L_XS:
    ds_read_b32 {v(rSC)}, v9
    s_sub_u32 {SPIN}, {SPIN}, 1
    s_cbranch_scc1 L_XS_OK
    s_waitcnt lgkmcnt(0)
    v_cmp_eq_u32 vcc, -1, {v(rSC)}
    s_cbranch_vccnz L_XS
L_XS_OK:
    s_mov_b32 {SPIN}, {SPIN_MAX}
    """)


def red_collect(st, scale, mid):
    a("s_waitcnt vmcnt(2)")
    mid()
    l, l2 = a.newlabel("NR"), a.newlabel("NR")
    if scale and OPT["pol"]:
        add64(TB, EG, NEAR)
        a(f"s_sleep {OPT['early']}" if OPT["early"] else "s_waitcnt vmcnt(0)")
    else:
        if OPT["pol"]:
            a(f"s_cmp_lg_u32 {LAYER}, 0\ns_cbranch_scc1 {l}")
        near_probe()
        a(f"s_waitcnt vmcnt(0)\ns_branch {l2}")
        a.label(l)
        a(f"s_sleep {OPT['early']}" if OPT["early"] else "s_waitcnt vmcnt(0)")
        a.label(l2)
        add64(TB, EG, NEAR)
    poll([(f"global_load_dwordx4 {v(rR + 4 * i, 4)}, {v(rA)}, {sp(TB)} offset:{i * 1024} sc1", rR + 4 * i, 4)
          for i in range(2)], rT, 0, deep=OPT["d2"] & 8, pre=red_scale if scale else None)
    a(f"v_pk_add_f32 {v(rL, 2)}, {v(rR, 2)}, {v(rR + 4, 2)}\nv_pk_add_f32 {v(rL + 2, 2)}, {v(rR + 2, 2)}, {v(rR + 6, 2)}")
    stamp(st)
    a(f"""
    v_permlane32_swap_b32 {v(rL)}, {v(rL + 2)}
    v_permlane32_swap_b32 {v(rL + 1)}, {v(rL + 3)}
    v_pk_add_f32 {v(rL, 2)}, {v(rL, 2)}, {v(rL + 2, 2)}
    v_mov_b32 {v(rL + 2)}, {v(rL)}
    v_mov_b32 {v(rL + 3)}, {v(rL + 1)}
    v_permlane16_swap_b32 {v(rL)}, {v(rL + 2)}
    v_permlane16_swap_b32 {v(rL + 1)}, {v(rL + 3)}
    v_pk_add_f32 {v(rL, 2)}, {v(rL, 2)}, {v(rL + 2, 2)}
    """)
    if scale:
        a(f"v_pk_mul_f32 {v(rL, 2)}, {v(rL, 2)}, {v(rSC, 2)} op_sel_hi:[1,0]")
    a(f"""
    v_cvt_pk_bf16_f32 {v(rL)}, {v(rL)}, {v(rL + 1)}
    v_and_b32 {v(rL + 1)}, 0xffff0000, {v(rL)}
    v_lshlrev_b32 {v(rL)}, 16, {v(rL)}
    v_pk_add_f32 {v(rL, 2)}, {v(rL, 2)}, {v(rX0, 2)}
    v_cvt_pk_bf16_f32 {v(rL)}, {v(rL)}, {v(rL + 1)}
    s_mov_b32 exec_lo, 0xffff
    s_mov_b32 exec_hi, 0xffff
    """)


def red_publish():
    local_test()
    a(f"v_min_u32 {v(rL + 1)}, -2, {v(rL)}")
    store_local(f"global_store_dword {v(rS)}, {v(rL + 1)}, {sp(EX)}")
    a(f"""
    s_mov_b64 exec, -1
    v_and_b32 {v(rX1)}, 0xffff0000, {v(rL)}
    v_lshlrev_b32 {v(rX0)}, 16, {v(rL)}
    """)


red_collect(6, False, lambda: red_dst(XA))
red_publish()
s_expr(T0, [(W, 4)], L_FLAG + 16)
a(f"v_mov_b32 v3, {T0}\nds_write_b32 v3, v0")
stamp(7)
dB, dA, dACC, dHA0, dHA1, dSA, dT, dT2, dX = 64, 48, 56, 3, 4, 5, 6, 7, 96
def red_stats():
    ln_stats(range(dX, dX + 20), 9, rSC, ["x1", "x2", "s16", "s32"], 10, dT2)
    a(f"v_rcp_f32 {v(rSC)}, {v(rSC)}")


lin(dHA0, 4, [], HB)
a(f"""
    s_cmp_eq_u32 {NU}, 6
    s_cselect_b32 {T1}, 2, 0
    v_or_b32 {v(dT)}, {T1}, v0
    v_lshrrev_b32 {v(dT2)}, 1, {v(dT)}
    v_and_b32 {v(dT)}, {v(dT)}, {v(dT2)}
    v_and_b32 {v(dT)}, 1, {v(dT)}
    v_lshlrev_b32 {v(dT)}, 4, {v(dT)}
    v_sub_u32 {v(dHA1)}, {v(dHA0)}, {v(dT)}
    v_add_u32 {v(dSA)}, {PBH}, {v(oSA)}
    v_add_u32 {v(rA)}, {PBH}, {v(rA)}
""")
op_load_b(L_WD)
zero(range(dACC, dACC + 8))
def dn_pre():
    if OPT["pro"] == 3:
        stamp(6)
    a(f"""
    v_mov_b32 v10, {L_FLAG + 24}
L_DNF:
    ds_read_b32 v9, v10
    s_sub_u32 {SPIN}, {SPIN}, 1
    s_cbranch_scc1 L_DNG
    s_waitcnt lgkmcnt(0)
    v_cmp_eq_u32 vcc, -1, v9
    s_cbranch_vccnz L_DNF
L_DNG:
    """)
    if OPT["pro"] == 3:
        stamp(4)
    b_reads(dB, oT, 4, 64, R32)
    a(f"""
    s_mov_b32 {SPIN}, {SPIN_MAX}
L_DNH:
    ds_read_b32 v9, v10 offset:4
    s_sub_u32 {SPIN}, {SPIN}, 1
    s_cbranch_scc1 L_DNI
    s_waitcnt lgkmcnt(0)
    v_cmp_eq_u32 vcc, -1, v9
    s_cbranch_vccnz L_DNH
L_DNI:
    v_readfirstlane_b32 {NEAR}, v9
    s_and_b32 {NEAR}, {NEAR}, 8192
    s_mov_b32 {SPIN}, {SPIN_MAX}
    """)
    if OPT["pro"] == 3:
        stamp(5)


poll([(f"global_load_dwordx4 {v(dA, 4)}, {v(dHA0)}, {sp(EX)} sc1", dA, 4),
      (f"global_load_dwordx4 {v(dA + 4, 4)}, {v(dHA1)}, {sp(EX)} offset:1024 sc1", dA + 4, 4)], dT2, OPT["p_dn"],
     pre=dn_pre, deep=OPT["d2"] & 1, longpre=True)
for n in range(4):
    u, q = n >> 1, n & 1
    a(f"{SMF} {v(dACC + 4 * q, 4)}, {v(dA + 4 * u, 4)}, {v(dB + 8 * n, 8)}, {v(IDX)}")
a(f"""
    s_and_b32 {T0}, {TILE}, 7
    s_cmp_lg_u32 {T0}, {G}
    s_cselect_b32 {T0}, {LAYER}, 0
    s_cmp_lg_u32 {T0}, 0
    v_add_f32 {v(dACC)}, {v(dACC)}, {v(dACC + 2)}
    v_add_f32 {v(dACC + 5)}, {v(dACC + 5)}, {v(dACC + 7)}
    v_add_f32 {v(dACC)}, {v(dACC)}, {v(dACC + 5)}
    v_min_u32 {v(dACC)}, -2, {v(dACC)}
""")
pb_store(dSA, dACC)
if DIAG and OPT["stamps"] & 2:
    stamp(1)
    a(f"s_cmp_lg_u32 {T0}, 0")
a("s_cbranch_scc1 L_FIN")


def red2_mid():
    red_dst(XF)
    s_expr(T0, [(TILE, 32)])
    lane_expr(6, 7, [(2, 2, 1280), (0, 2, 8), (5, 1, 4)], T0)


red_collect(2, True, red2_mid)
a(f"""
    s_cmp_eq_u32 {LAYER}, 0
    s_cbranch_scc1 L_RED2P
    global_store_dword v6, {v(rL)}, {sp(pOUT)}
    {"s_mov_b64 exec, -1" if DIAG or OPT["padto"] else ""}
    {"s_branch L_FIN" if DIAG or OPT["padto"] else "s_endpgm"}
L_RED2P:
""")
red_publish()
if OPT["prio"] == 2:
    a("s_sleep 6")
a("s_branch L_NEXT")

for tag in ("", "V"):
    a(f"""
L_MXR{tag}:
    ds_read_b128 {v(cM, 4)}, {v(aMLR)} offset:64
    s_waitcnt lgkmcnt(0)
    s_sub_u32 {SPIN}, {SPIN}, 1
    s_cbranch_scc0 L_MXC{tag}
    s_branch L_MXD{tag}
    """)
a(f"""
L_E1:
    s_cmp_lg_u32 {ROLE}, 0
    s_cbranch_scc1 L_E2
    s_waitcnt vmcnt(0)
L_E2:
    s_cmp_ge_u32 {W}, 4
    s_branch L_YB
""")
a.label("L_VT")
v_tail()
a("s_nop 1\ns_branch L_PV")

a.label("L_STAGE")
a.c("stage this workgroup's role weights (L2 hits after the prefetch), then make them visible to every wave")
prostamp(0, 2)
a(f"s_cmp_lg_u32 {ROLE}, 0\ns_cbranch_scc1 L_RG_U")
s_expr(T0, [(FB0, 32 * 1280)])
add64(WOB, pWD, T0)
a(f"v_mov_b32 v41, {v(vDMA)}\ns_branch L_ROLE")
a.label("L_RG_U")
a("s_barrier")
a.c("other workgroups: one dword per 128-byte line of the W_gate / W_up columns of this group")
if OPT["nm"] + OPT["nt"] < 14:
    gu_prefetch(OPT["nm"] + OPT["nt"], 14)
if OPT["wdp"]:
    a.c("workgroups without a role also pull W_down in")
    a(f"s_cmp_lt_u32 {J}, 27\ns_cbranch_scc1 L_RG_G")
    s_expr(T1, [(J, 8), (W, 1)], -27 * 8)
    s_expr(T0, [(FB0, 32 * 1280)])
    add64(TB, pWD, T0)
    a(f"""
    s_mul_i32 {T0}, {T1}, {NU}
    s_lshl_b32 {T0}, {T0}, 3
    s_lshl_b32 {T1}, {NU}, 3
    s_sub_u32 {T1}, {T1}, 1
    v_min_u32 {v(vPF)}, {T1}, v0
    v_add_u32 {v(vPF)}, {T0}, {v(vPF)}
    v_lshlrev_b32 {v(vPF)}, 7, {v(vPF)}
    s_barrier
    global_load_dword {v(vDUM)}, {v(vPF)}, {sp(TB)}
    """)
a.label("L_RG_G")
prostamp(1, 2)
a(f"s_waitcnt vmcnt(0)\ns_cmp_lg_u32 {ROLE}, 1\ns_cbranch_scc1 L_ROLE2")
prostamp(2, 2)
for i in range(10):
    a(f"s_add_u32 m0, {T2L}, {i * 2 * R32}")
    a(f"global_load_lds_dwordx4 {v(vDMA)}, {sp(WOB)}")
    if i < 9:
        add64(WOB, WOB, 64 * 3456)
a("s_waitcnt vmcnt(0)\ns_barrier")
prostamp(5, 2)

a.label("L_ROLE2")
a("s_waitcnt vmcnt(0)")
a(f"""
    s_cmp_eq_u32 {PATH}, 2
    s_cbranch_scc1 L_HI
    s_cmp_eq_u32 {PATH}, 3
    s_cbranch_scc1 L_W2
""")
uB, uX, uACC, uS1, uONE, uXA, uSA, uCS, uT = 48, 28, 20, 16, 8, 3, 4, 5, 6
lin(uXA, 4, [], XA + 2048)


def up_setup():
    lane_expr(uSA, uCS, [(4, 1, 32), (1, 1, 16)])
    a(f"s_lshl_b32 {T0}, {W}, 4\nv_xor_b32 {v(uSA)}, {T0}, {v(uSA)}")
    b_addr(uT, uCS, 64, [(0, 1, 8), (1, 1, L_WU - L_WG)], L_WG, R32)
    a(f"v_add_u32 {v(uT)}, {v(uT)}, {v(uSA)}")
    for i in range(4):
        a(f"v_mov_b32 {v(uONE + i)}, {ONES}")
    zero(range(uS1, uS1 + 4))
    for n in range(10):
        for rho in range(4):
            off = 2 * R32 * n + (16 * (rho >> 1) + 2 * (rho & 1)) * 64
            a(f"ds_read_b64_tr_b16 {v(uB + 8 * n + 2 * rho, 2)}, {v(uT)} offset:{off}")
        if n >= 3:
            a("s_waitcnt lgkmcnt(12)")
            a(f"{SMF} {v(uS1, 4)}, {v(uONE, 4)}, {v(uB + 8 * (n - 3), 8)}, {v(IDX)}")
    a(f"""
    s_sub_u32 {T1}, {J}, 20
    s_lshr_b32 {T0}, {T1}, 2
    s_lshl_b32 {T0}, {T0}, 10
    s_and_b32 {T2}, {T1}, 2
    s_and_b32 {T1}, {T1}, 1
    """)
    s_expr(T0, [(T0, 1), (T2, 8), (T1, 32), (W, 256)], HB)
    lane_expr(uSA, uT, [(4, 2, 64), (1, 2, 4)], T0)
    zero(range(uACC, uACC + 8))
    for n in range(7, 10):
        a(f"s_waitcnt lgkmcnt({4 * (9 - n)})")
        a(f"{SMF} {v(uS1, 4)}, {v(uONE, 4)}, {v(uB + 8 * n, 8)}, {v(IDX)}")
    a(f"""
    v_add_f32 {v(uCS)}, {v(uS1)}, {v(uS1 + 2)}
    v_mul_f32 {v(uCS)}, {f32(1.0 / 640)}, {v(uCS)}
    """)
    stamp(7)


poll([(f"global_load_dwordx4 {v(uX + 4 * u, 4)}, {v(uXA)}, {sp(EX)} offset:{u * 1024 - 2048} sc1", uX + 4 * u, 4)
      for u in range(5)], uT, 0, pre=up_setup, slp=OPT["usl"], deep=OPT["d2"] & 16,
     each=lambda u: f"{MFMA} {v(uS1, 4)}, {v(uX + 4 * u, 4)}, {v(uONE, 4)}, {'0' if u == 0 else v(uS1, 4)}")
stamp(4)
for n in range(10):
    u, q = n >> 1, n & 1
    a(f"{SMF} {v(uACC + 4 * q, 4)}, {v(uX + 4 * u, 4)}, {v(uB + 8 * n, 8)}, {v(IDX)}")
    if n == 7:
        a(f"v_pk_add_f32 {v(uS1, 2)}, {v(uS1, 2)}, {v(uS1 + 2, 2)}")
    if n == 8:
        a(f"v_add_f32 {v(uS1)}, {v(uS1)}, {v(uS1 + 1)}")
a(f"s_mov_b32 s{MSK}, 0x00550055\ns_mov_b32 s{MSK + 1}, 0x00550055")
local_test()
a(f"""
    v_add_f32 {v(uACC)}, {v(uACC)}, {v(uACC + 2)}
    v_add_f32 {v(uACC + 5)}, {v(uACC + 5)}, {v(uACC + 7)}
    v_fma_f32 {v(uACC)}, -{v(uS1)}, {v(uCS)}, {v(uACC)}
    v_add_f32 {v(uACC)}, {v(uACC)}, {v(uACC + 5)}
    v_cvt_pk_bf16_f32 {v(uACC)}, {v(uACC)}, {v(uACC)}
    v_and_b32 {v(uACC)}, 0xffff0000, {v(uACC)}
    v_max_f32 {v(uACC + 1)}, 0, {v(uACC)}
    v_mul_f32_dpp {v(uACC + 1)}, {v(uACC)}, {v(uACC + 1)} row_ror:8 {DPP}
    v_mov_b32_dpp {v(uACC)}, {v(uACC + 1)} quad_perm:[1,1,3,3] {DPP}
    v_cvt_pk_bf16_f32 {v(uACC)}, {v(uACC + 1)}, {v(uACC)}
    v_min_u32 {v(uACC)}, -2, {v(uACC)}
    s_mov_b64 exec, {sp(MSK)}
""")
store_local(f"global_store_dword {v(uSA)}, {v(uACC)}, {sp(EX)}")
a("s_mov_b64 exec, -1")
stamp(5)
a.label("L_IDLE")
a(f"s_cmp_lg_u32 {LAYER}, 0\ns_cbranch_scc1 L_FIN")
a.label("L_NEXT")
a("s_waitcnt vmcnt(0)")
a(f"s_cmp_eq_u32 {W}, 3\ns_cbranch_scc1 L_HI")
att_addr(1)
att_init()
a("s_waitcnt lgkmcnt(0)")
a(f"s_mov_b32 {LAYER}, 1")
add64(EX, EX, LS)
a("s_branch L_BAR")

a.label("L_HI")
a(f"s_cmp_lg_u32 {LAYER}, 0\ns_cbranch_scc1 L_FIN")
a("s_waitcnt vmcnt(0)")
att_addr(1)
att_init()


def gate():
    a.c("stay off the L2 until the FFN activations are out")
    a(f"v_mov_b32 v62, {HB}")
    add64(TB, EX, -LS & 0xffffffff)
    a(f"s_sub_u32 s{TB + 1}, s{TB + 1}, 1")
    light(f"global_load_dword v61, v62, {sp(TB)} sc1", 61, 4)
    if OPT["gsl"]:
        a(f"s_sleep {OPT['gsl']}")


add64(EX, EX, LS)
a(f"s_cmp_eq_u32 {W}, 3\ns_cbranch_scc1 L_POLLER")
q = Q2M
qp_setup(q)
a(f"s_and_b32 {T1}, {J}, 3")
lin(q.XA0, 4, [(T1, 1280)], XF - LS)
lane_expr(q.XA1, q.T, [(2, 4, 16)], T0)
qp_saddr(q.SA, 1024)
a("s_waitcnt lgkmcnt(0)")
gate()
if OPT["prio"] == 1:
    a("s_setprio 2")
poll([(f"global_load_dwordx4 {v(q.X, 4)}, {v(q.XA0)}, {sp(EX)} sc1", q.X, 4),
      (f"global_load_dwordx4 {v(q.X + 4, 4)}, {v(q.XA1)}, {sp(EX)} offset:1024 sc1", q.X + 4, 4)], q.T, OPT["p_qp"], slp=OPT["qsl"], deep=OPT["d2"] & 2)
qp_mm(q)
stamp(4)
local_test()
qp_sum(q)
store_local(f"global_store_dword {v(q.SA)}, {v(q.A[0])}, {sp(pWS)}")
stamp(5)
a(f"s_setprio 0\ns_mov_b32 {LAYER}, 1\ns_branch L_BAR")

a.label("L_POLLER")
pX_ = 104
poller_qaddr(1024)
if OPT["warm"] & 1:
    for ins, _, _ in poller_qloads():
        a(ins)
s_expr(T0, [(BB, 64)], XF - LS)
lane_expr(96, pT, [(4, 2, 1280), (2, 2, 256), (0, 2, 16)], T0)
s_expr(T0, [(BB, 16)], XF - LS + 1024)
lane_expr(97, pT, [(4, 2, 1280), (2, 2, 64), (0, 2, 4)], T0)


def x_out_wait(tag, ra, rd):
    a(f"""
    v_mov_b32 {v(ra)}, {L_FLAG + 16}
    s_mov_b32 {SPIN}, {SPIN_MAX}
L_{tag}P:
    s_sleep 1
    ds_read_b64 {v(rd, 2)}, {v(ra)}
    s_sub_u32 {SPIN}, {SPIN}, 1
    s_cbranch_scc1 L_{tag}G
    s_waitcnt lgkmcnt(0)
    v_max_u32 {v(rd)}, {v(rd)}, {v(rd + 1)}
    v_cmp_eq_u32 vcc, -1, {v(rd)}
    s_cbranch_vccnz L_{tag}P
L_{tag}G:
    """)


a(f"s_cmp_lg_u32 {ROLE}, 0\ns_cbranch_scc1 L_W3E")
a.c("out/down workgroups: sentinel fill of the partial tiles of layer 2 (done before waves 0,1 publish again)")
a(f"s_lshr_b32 {T1}, {J}, 1\ns_and_b32 {T2}, {J}, 1")
s_expr(T0, [(T1, 16384), (T2, 4096), (G, 256)], 2 * PBH)
lane_expr(98, 99, [(5, 1, PBH), (4, 1, 2048), (0, 4, 16)], T0)
for i in range(4):
    a(f"v_mov_b32 {v(44 + i)}, -1")
x_out_wait("W3", 99, 100)
a.align(5)
a(f"global_store_dwordx4 v98, v[44:47], {sp(EG)} sc1\nglobal_store_dwordx4 v98, v[44:47], {sp(EG2)} sc1")
near_probe()
a(f"""
    v_mov_b32 v100, {NEAR}
    s_waitcnt vmcnt(0)
    ds_write_b32 v99, v100 offset:12
L_W3E:
""")
gate()
poll([(f"global_load_dwordx4 {v(pX_, 4)}, v96, {sp(EX)} sc1", pX_, 4),
      (f"global_load_dword {v(pX_ + 4)}, v97, {sp(EX)} sc1", pX_ + 4, 1)], pT, OPT["p_px"], slp=OPT["qsl"])
stamp(4)
poller_stats()
poller_bias()
stamp(5)
poll(poller_qloads(), pT, 0, deep=OPT["d2"] & 4)
stamp(6)
poller_finish()
a(f"""
    s_mov_b32 {LAYER}, 1
    v_mov_b32 v63, {CSC}
    s_mov_b32 exec_lo, 0x000f000f
    s_mov_b32 exec_hi, 0x000f000f
    s_waitcnt lgkmcnt(0)
    s_barrier
    s_branch L_BAR2
""")

a.label("L_W2")
a(f"s_cmp_lg_u32 {ROLE}, 0\ns_cbranch_scc1 L_IDLE\ns_cmp_lg_u32 {LAYER}, 0\ns_cbranch_scc1 L_W2S")
a.c("wave 2 of out/down workgroups, layer 1: W_down into LDS once both tiles of x are out")
a(f"s_lshl_b32 {T0}, {J}, 6")
add64(WOB, WOB, T0)
x_out_wait("W2", 6, 8)
a(f"s_sleep {OPT['fsl']}")
for n in range(14):
    if n == 12:
        a(f"s_cmp_eq_u32 {NU}, 6\ns_cbranch_scc1 L_W2D")
    a(f"s_mov_b32 m0, {L_WD + n * 1024 + (n >> 1) * 128}")
    if n:
        add64(WOB, WOB, 16 * 1280)
    a(f"global_load_lds_dwordx4 v41, {sp(WOB)}")
a(f"""
L_W2D:
    s_waitcnt vmcnt(0)
    ds_write_b32 v6, v6 offset:8
L_W2S:
""")
a.c("wave 2: variance of the four rows of x for the reduce waves")
lin(3, 4, [], XA + 2048)
lin(4, 2, [(LAYER, 64)], L_FLAG + 64)
a(f"v_mov_b32 v5, {XA}")
light(f"global_load_dword v6, v5, {sp(EX)} sc1", 6, 4)
poll([(f"global_load_dwordx4 {v(dX + 4 * u, 4)}, v3, {sp(EX)} offset:{u * 1024 - 2048} sc1", dX + 4 * u, 4)
      for u in range(5)], 7, 0, slp=3)
red_stats()
a(f"""
    v_min_u32 {v(rSC)}, -2, {v(rSC)}
    s_mov_b64 exec, 0xffff
    ds_write_b32 v4, {v(rSC)}
    s_mov_b64 exec, -1
    s_branch L_IDLE
""")

pX_ = 24
a.label("L_SLOW")
a.c("the group is spread over several XCDs: redo the sentinel fill and the q hand-off with write-through stores")
only_wave(2, "L_SL1")
for i in range(4):
    a(f"v_mov_b32 {v(44 + i)}, -1")
fill_local(" sc1", 44)
a("s_waitcnt vmcnt(0)")
a.label("L_SL1")
a(f"s_barrier\ns_cmp_lt_u32 {W}, 4\ns_cbranch_scc1 L_SL2")
qp_saddr(60, 0)
qp_saddr(61, 2048, 128)
a(f"""
    global_store_dword v60, v41, {sp(pWS)} sc1
    s_mov_b32 exec_hi, 0
    global_store_dword v61, v42, {sp(pWS)} sc1
    s_mov_b64 exec, -1
L_SL2:
""")
only_wave(2, "L_SL3")
lin(60, 2, [(G, 32 * MSTR), (J, MSTR)], MK)
a(f"""
    v_mov_b32 v61, 0x100
    s_mov_b64 exec, 1
    global_store_dword v60, v61, {sp(pWS)} sc1
    s_mov_b64 exec, -1
L_SL3:
""")
only_wave(3, "L_SL4")
s_expr(T0, [(G, 32 * MSTR)], MK)
a(f"""
    v_and_b32 v17, 31, v0
    v_lshl_add_u32 v17, v17, 4, {T0}
    s_mov_b32 {SPIN}, {SPIN_MAX}
    s_mov_b32 {T1}, 0x100
L_SL5:
    global_load_dword v18, v17, {sp(pWS)} sc1
    s_waitcnt vmcnt(0)
    v_cmp_ne_u32 vcc, {T1}, v18
    s_cbranch_vccz L_SL6
    s_sub_u32 {SPIN}, {SPIN}, 1
    s_cbranch_scc0 L_SL5
L_SL6:
""")
q1_loads()
a("s_waitcnt vmcnt(0)")
q1_collect("S")
a("s_waitcnt lgkmcnt(0)")
a.label("L_SL4")
a("s_barrier\ns_branch L_SLOW_RET")

a.label("L_FIN")
if OPT["padto"]:
    a(f"""
L_PAD:
    s_sleep 4
    s_memrealtime s[98:99]
    s_waitcnt lgkmcnt(0)
    s_sub_u32 s98, s98, s100
    s_cmp_lt_u32 s98, {OPT["padto"] * 100}
    s_cbranch_scc1 L_PAD
    """)
if DIAG:
    a("s_memrealtime s[98:99]\ns_memtime s[50:51]\ns_waitcnt lgkmcnt(0)\nv_mov_b32 v1, 0\ns_sub_u32 s50, s50, s100\nv_writelane_b32 v1, s50, 21")
    for i in range(16):
        a(f"v_writelane_b32 v1, s{STAMP0 + 2 * i}, {(i // 8) * 10 + i % 8}")
    a(f"""
    v_writelane_b32 v1, s100, 9
    v_writelane_b32 v1, s98, 19
    v_writelane_b32 v1, {LOCAL}, 20
    s_lshl_b32 {T0}, s2, 3
    s_add_u32 {T0}, {T0}, {W}
    s_lshl_b32 {T0}, {T0}, 8
    s_add_u32 {T0}, {T0}, {DIAG_OFF}
    v_lshl_add_u32 v2, v0, 2, {T0}
    global_store_dword v2, v1, {sp(pWS)}
    """)
a.label("L_END")
a("s_endpgm")

a.raw(f""".section .rodata,"a"
.p2align 6
.amdhsa_kernel {NAME}_kernel
  .amdhsa_next_free_vgpr 256
  .amdhsa_next_free_sgpr 102
  .amdhsa_accum_offset 256
  .amdhsa_group_segment_fixed_size 0
  .amdhsa_kernarg_size 96
  .amdhsa_user_sgpr_count 2
  .amdhsa_user_sgpr_kernarg_segment_ptr 1
  .amdhsa_system_sgpr_workgroup_id_x 1
  .amdhsa_float_denorm_mode_32 3
.end_amdhsa_kernel""")

open(sys.argv[1], "w").write(a.text())
if OPT["a8"]:
    import align8
    print("aligned / left misaligned:", align8.fix(sys.argv[1]))
print("written", sys.argv[1], "lines", len(a.out), "pad states", a.nops)
```

```python
import math
import struct
import sys

sys.path.insert(0, "gen")
from asmlib import Asm

NAME = "interleave_layers__sliding_block_cached__glu_gated_reglu__decode"

OPT = dict(diag=0, stamps=0xff, pro=0, padto=0, cut=0, force_global=0, cyc=0, cy2=0,
           thr=4, d2=39, xp=0, pol=1, early=0, k0=4, wq1=4, wq2=4, wq3=4, bq=6, hf=6, hc=15, hd=3, bp=26, xc=0, wide=0, late=0, lay=1, free=6, warm=2, fb=0, fl=0, gate=1, gsl=14, nt=7, wdp=1, pfp=31, upfree=1, fsl=2, mrd=5, prio=1, al=1, cov=2, vthr=0, a8=0, tlb=0, padfrom=0, qsl=0, usl=0, near=1, gap=3, nm=0,
           slp=1, p_op=2, p_up=0, p_dn=0, p_qp=0, p_px=0)
for a_ in sys.argv[2:]:
    k_, v_ = a_.split("=")
    assert k_ in OPT, k_
    OPT[k_] = int(v_, 0)
DIAG, THR, CUT = OPT["diag"], OPT["thr"], OPT["cut"]

OB, XA, HB, LSE, LS = 0, 8192, 13312, 15360, 15488
XF = 2 * LS
GS = 36864
QR = 8 * GS
QRS = 2560
MK = QR + 256 * QRS
PBB, PBH = 966656, 163840
assert XF + 5120 <= GS and MK + 4096 <= PBB and PBB % 16384 == 0
MSTR = 16
DIAG_OFF = 16 << 20

L_WQ = 0
R32 = 2176
D32 = 1088
L_WO, L_WD = 20480, 55296
L_WG, L_WU = 20480, 64000
assert (L_WU - L_WG) % 256 == 0 and L_WU - L_WG >= 20 * R32 and L_WD >= L_WO + 16 * R32
L_OW = L_WU + 20 * R32
OWS, OWJ = 1344, 80
L_ML = L_OW + 8 * OWS
L_Q = L_ML + 256
L_P = L_Q + 256
L_OX = L_P + 1024
L_FLAG = L_OX + 4096
LDS_BYTES = L_FLAG + 256

W, G, J, LAYER, LOCAL = "s3", "s4", "s5", "s6", "s7"
pX, pK, pV, pWQ, pWO, pWG, pWU, pWD, pOUT, pDBG, pWS = 8, 10, 12, 14, 16, 20, 22, 24, 26, 28, 30
PM = 8
WOB = 0
KB, VB, TB, MSK, EX, OBM, ODD = 32, 34, 36, 44, 46, 52, 58
T0, T1, T2, T3 = "s38", "s39", "s49", "s50"
CSC, PLO, PHI, SPIN, XCC, PATH = "s40", "s41", "s42", "s43", "s48", "s51"
ONES, H, TILE, BB = "s54", "s55", "s56", "s57"
NU, FB0, ROLE, T2L = "s92", "s93", "s94", "s95"
OPW = H
NEAR = XCC
LO8 = 96
STAMP0 = 60

KREG, VREG, SREG = 128, 192, 64
IDX, vV = 1, 2
aQA, aPW, aPR, aOWW, aMLW, aOWR, aMLR, aOBA = 3, 4, 5, 6, 7, 8, 9, 10
oBA, oLA, oSA = 11, 12, 13
pCS = 12
rX0, rX1 = 14, 15
vDUM, vPF, vK, vDMA = 56, 57, 58, 59
vWQ = 16

DPP = "row_mask:0xf bank_mask:0xf"
MFMA = "v_mfma_f32_16x16x32_bf16"
SMF = "v_smfmac_f32_16x16x64_bf16"
SPIN_MAX = 1 << 18

a = Asm()


def sp(n):
    return "s[%d:%d]" % (n, n + 1)


def v(n, cnt=1):
    return "v%d" % n if cnt == 1 else "v[%d:%d]" % (n, n + cnt - 1)


def f32(x):
    return "0x%08x" % struct.unpack("<I", struct.pack("<f", x))[0]


def stamp(i):
    if not DIAG or not (OPT["stamps"] >> i) & 1:
        return
    l1, l2 = a.newlabel("ST"), a.newlabel("ST")
    a(f"""
    s_cmp_eq_u32 {LAYER}, 0
    s_cbranch_scc1 {l1}
    s_memrealtime {sp(STAMP0 + 16 + 2 * i)}
    s_branch {l2}
    {l1}:
    s_memrealtime {sp(STAMP0 + 2 * i)}
    {l2}:
    """)


def prostamp(slot, lvl=1):
    if DIAG and OPT["pro"] == lvl:
        a(f"s_memrealtime {sp(STAMP0 + 2 * slot)}")


def cyc(slot):
    if DIAG and (OPT["cyc"] >> slot) & 1:
        a(f"s_memtime {sp(STAMP0 + 2 * slot)}")


def cy2(slot):
    if DIAG and OPT["cy2"]:
        a(f"s_memtime {sp(STAMP0 + 2 * slot)}")


def add64(dst, src, off):
    a(f"s_add_u32 s{dst}, s{src}, {off}\ns_addc_u32 s{dst + 1}, s{src + 1}, 0")


def lane_expr(reg, tmp, fields, base=None):
    first = True
    for pos, width, mul in fields:
        dst = reg if first else tmp
        if pos + width >= 6:
            a(f"v_lshrrev_b32 {v(dst)}, {pos}, v0" if pos else f"v_mov_b32 {v(dst)}, v0")
        elif pos == 0:
            a(f"v_and_b32 {v(dst)}, {(1 << width) - 1}, v0")
        else:
            a(f"v_bfe_u32 {v(dst)}, v0, {pos}, {width}")
        p2 = mul & (mul - 1) == 0
        if first:
            if mul != 1:
                a(f"v_lshlrev_b32 {v(reg)}, {mul.bit_length() - 1}, {v(reg)}" if p2
                  else f"v_mul_u32_u24 {v(reg)}, {mul}, {v(reg)}")
        elif p2:
            a(f"v_lshl_add_u32 {v(reg)}, {v(tmp)}, {mul.bit_length() - 1}, {v(reg)}")
        else:
            a(f"v_mul_u32_u24 {v(tmp)}, {mul}, {v(tmp)}\nv_add_u32 {v(reg)}, {v(reg)}, {v(tmp)}")
        first = False
    if base is not None:
        a(f"v_add_u32 {v(reg)}, {base}, {v(reg)}")


def s_expr(dst, terms, const=0):
    if not terms:
        a(f"s_mov_b32 {dst}, {const}")
        return
    first = True
    for s, mul in terms:
        d = dst if first else T3
        if mul == 1:
            if first:
                if s != d:
                    a(f"s_mov_b32 {d}, {s}")
            else:
                d = s
        elif mul & (mul - 1) == 0:
            a(f"s_lshl_b32 {d}, {s}, {mul.bit_length() - 1}")
        else:
            a(f"s_mul_i32 {d}, {s}, {mul}")
        if not first:
            a(f"s_add_u32 {dst}, {dst}, {d}")
        first = False
    if const:
        a(f"s_add_u32 {dst}, {dst}, {const}")


def lin(reg, shift, terms, const):
    s_expr(T0, terms, const)
    a(f"v_lshl_add_u32 {v(reg)}, v0, {shift}, {T0}")


def store_local(ins):
    lg, le = a.newlabel("SG"), a.newlabel("SE")
    a(f"""
    s_cbranch_scc1 {lg}
    {ins}
    s_branch {le}
    {lg}:
    {ins} sc1
    {le}:
    """)


def local_test():
    a(f"s_cmp_eq_u32 {LOCAL}, 0")


def check_ops(regs, tmp, dst="vcc"):
    ops, regs = [], list(regs)
    if len(regs) == 1:
        return [f"v_cmp_eq_u32 {dst}, -1, {v(regs[0])}"]
    if len(regs) == 2:
        ops.append(f"v_max_u32 {v(tmp)}, {v(regs[0])}, {v(regs[1])}")
    else:
        ops.append(f"v_max3_u32 {v(tmp)}, {v(regs[0])}, {v(regs[1])}, {v(regs[2])}")
        rest = regs[3:]
        while len(rest) >= 2:
            ops.append(f"v_max3_u32 {v(tmp)}, {v(tmp)}, {v(rest[0])}, {v(rest[1])}")
            rest = rest[2:]
        if rest:
            ops.append(f"v_max_u32 {v(tmp)}, {v(tmp)}, {v(rest[0])}")
    ops.append(f"v_cmp_eq_u32 {dst}, -1, {v(tmp)}")
    return ops


def light(ins, r0, slp):
    l1, ok = a.newlabel("PL"), a.newlabel("PK")
    a(f"s_mov_b32 {SPIN}, {SPIN_MAX}\ns_mov_b64 exec, 1")
    a.label(l1)
    a(f"{ins}\ns_waitcnt vmcnt(0)\nv_cmp_eq_u32 vcc, -1, {v(r0)}\ns_cbranch_vccz {ok}")
    if slp:
        a(f"s_sleep {slp}")
    a(f"s_sub_u32 {SPIN}, {SPIN}, 1\ns_cbranch_scc0 {l1}\n{ok}:\ns_mov_b64 exec, -1")


def poll(loads, tmp, mode=0, pre=None, slp=0, deep=False, each=None, longpre=False):
    assert not (deep and each)
    if mode == 1:
        light(loads[-1][0], loads[-1][1], OPT["slp"])
    if mode == 2:
        a("s_waitcnt vmcnt(0)")
    l2, chk, done = a.newlabel("PM"), a.newlabel("PC"), a.newlabel("PD")
    for ins, r0, n in loads:
        a(ins)
    a(f"s_mov_b32 {SPIN}, {SPIN_MAX}")
    if pre:
        pre()
    if deep:
        if not pre:
            a("s_nop 15\ns_nop 7")
        for ins, r0, n in loads:
            a(ins)
        if longpre:
            a("s_nop 11")
    a(f"s_branch {chk}")
    a.label(l2)
    if slp:
        a(f"s_sleep {slp}")
    for u, (ins, r0, n) in enumerate(loads):
        a(f"s_mov_b64 exec, {sp(PM + 2 * u)}")
        a(ins)
    a(f"s_mov_b64 exec, -1\ns_sub_u32 {SPIN}, {SPIN}, 1\ns_cbranch_scc1 {done}")
    a.label(chk)
    nl = len(loads)
    for u, (ins, r0, n) in enumerate(loads):
        a(f"s_waitcnt vmcnt({nl - 1 - u + (nl if deep else 0)})")
        if each:
            a(each(u))
        for o in check_ops(range(r0, r0 + n), tmp, sp(PM + 2 * u)):
            a(o)
        if u == 1:
            pend = f"s_or_b64 {sp(MSK)}, {sp(PM)}, {sp(PM + 2)}"
        elif u > 1:
            a(pend)
            pend = f"s_or_b64 {sp(MSK)}, {sp(MSK)}, {sp(PM + 2 * u)}"
    a(pend)
    a(f"s_cbranch_scc1 {l2}\n{done}:")


def quad_gather(r):
    for k in (1, 2, 3):
        a(f"v_mov_b32_dpp {v(r + k)}, {v(r)} quad_perm:[{k},{k},{k},{k}] {DPP}")
    a(f"s_mov_b32 exec_lo, 0x11111111\ns_mov_b32 exec_hi, 0x11111111")


def zero(regs):
    for r in regs:
        a(f"v_mov_b32 {v(r)}, 0")


def b_addr(reg, tmp, rowbytes, extra, base, r32=None):
    lane_expr(reg, tmp, [(3, 1, r32 or 32 * rowbytes), (4, 2, 4 * rowbytes), (2, 1, rowbytes)] + extra, base)


def b_reads(dst, addr, nblk, rowbytes, r32=None):
    r32 = r32 or 32 * rowbytes
    for blk in range(nblk):
        for rho in range(4):
            off = 2 * r32 * blk + (16 * (rho >> 1) + 2 * (rho & 1)) * rowbytes
            a(f"ds_read_b64_tr_b16 {v(dst + 8 * blk + 2 * rho, 2)}, {v(addr)} offset:{off}")


def lane_sum(regs, steps, tmps):
    for st in steps:
        if st in ("s16", "s32"):
            for r, t in zip(regs, tmps):
                a(f"v_mov_b32 {v(t)}, {v(r)}")
            for r, t in zip(regs, tmps):
                a(f"v_permlane{st[1:]}_swap_b32 {v(r)}, {v(t)}")
            for r, t in zip(regs, tmps):
                a(f"v_add_f32 {v(r)}, {v(r)}, {v(t)}")
        else:
            pat = {"x1": "quad_perm:[1,0,3,2]", "x2": "quad_perm:[2,3,0,1]", "hm": "row_half_mirror",
                   "r4": "row_ror:4", "r8": "row_ror:8"}[st]
            for r in regs:
                a(f"v_add_f32_dpp {v(r)}, {v(r)}, {v(r)} {pat} {DPP}")


def ln_stats(xregs, s1, s2, steps, t1, t2):
    for n, r in enumerate(xregs):
        a(f"v_dot2_f32_bf16 {v(s1)}, {v(r)}, {ONES}, {'0' if n == 0 else v(s1)}")
        a(f"v_dot2_f32_bf16 {v(s2)}, {v(r)}, {v(r)}, {'0' if n == 0 else v(s2)}")
    lane_sum([s1, s2], steps, [t1, t2])
    a(f"""
    v_mul_f32 {v(s1)}, {f32(1.0 / 640)}, {v(s1)}
    v_mul_f32 {v(s2)}, {f32(1.0 / 640)}, {v(s2)}
    v_fma_f32 {v(s2)}, -{v(s1)}, {v(s1)}, {v(s2)}
    v_max_f32 {v(s2)}, 0, {v(s2)}
    v_add_f32 {v(s2)}, {f32(1e-5)}, {v(s2)}
    """)


class QM:
    def __init__(self, B, X, A, XA0, XA1, SA, T):
        self.B, self.X, self.A, self.XA0, self.XA1, self.SA, self.T = B, X, A, XA0, XA1, SA, T


Q1M = QM(64, 88, [96, 100, 104], 108, 109, 110, 111)
Q2M = QM(96, 120, [36, 44, 56], 41, 42, 43, 60)


def qp_setup(q):
    s_expr(T0, [(W, 32)], L_WQ - 4 * 32)
    b_addr(q.T, q.SA, 128, [(0, 2, 8)], T0)
    b_reads(q.B, q.T, 3, 128)
    for r in q.A:
        zero(range(r, r + 4))


def qp_saddr(reg, off, wmul=256):
    lin(reg, 2, [(G, 32 * QRS), (J, QRS), (W, wmul)], QR + off - 4 * wmul)


def qp_mm(q):
    a(f"""
    {SMF} {v(q.A[0], 4)}, {v(q.X, 4)}, {v(q.B, 8)}, {v(IDX)}
    {SMF} {v(q.A[1], 4)}, {v(q.X, 4)}, {v(q.B + 8, 8)}, {v(IDX)}
    {SMF} {v(q.A[2], 4)}, {v(q.X + 4, 4)}, {v(q.B + 16, 8)}, {v(IDX)}
    """)


def qp_sum(q):
    A0, A1, A2 = q.A
    a(f"""
    v_add_f32 {v(A0)}, {v(A0)}, {v(A0 + 2)}
    v_add_f32 {v(A1 + 1)}, {v(A1 + 1)}, {v(A1 + 3)}
    v_add_f32 {v(A0)}, {v(A0)}, {v(A1 + 1)}
    v_add_f32 {v(A0)}, {v(A0)}, {v(A2)}
    v_min_u32 {v(A0)}, -2, {v(A0)}
    """)


pX_, pQ, pS1, pS2, pA, pC, pLW, pT, pT2 = 24, 112, 120, 121, 122, 123, 124, 125, 126


def poller_stats():
    ln_stats(range(pX_, pX_ + 5), pS1, pS2, ["x1", "x2", "r4", "r8", "s16", "s32"], pT, pT2)
    a(f"v_rsq_f32 {v(pS2)}, {v(pS2)}")


def poller_qaddr(off):
    a(f"s_and_b32 {T1}, {J}, 24")
    s_expr(T0, [(G, 32 * QRS), (T1, QRS), (BB, 64)], QR + off + 3840)
    lane_expr(pA, pT, [(5, 1, 4 * QRS), (3, 2, 256), (0, 3, 8)], T0)
    lane_expr(pLW, pT, [(5, 1, 128), (3, 1, 64), (0, 1, 32), (4, 1, 16), (1, 2, 4)], L_Q)


def poller_qloads():
    return [(f"global_load_dwordx2 {v(pQ + 2 * kq, 2)}, {v(pA)}, {sp(pWS)} offset:{kq * QRS - 3840} sc1", pQ + 2 * kq, 2) for kq in range(4)]


def poller_finish():
    r = pX_
    a(f"""
    v_pk_add_f32 {v(r, 2)}, {v(pQ, 2)}, {v(pQ + 2, 2)}
    v_pk_add_f32 {v(r + 2, 2)}, {v(pQ + 4, 2)}, {v(pQ + 6, 2)}
    v_pk_fma_f32 {v(r, 2)}, {v(r, 2)}, {v(pS1, 2)}, {v(r + 4, 2)} op_sel:[0,1,0] op_sel_hi:[1,1,1]
    v_pk_fma_f32 {v(r, 2)}, {v(r + 2, 2)}, {v(pS1, 2)}, {v(r, 2)} op_sel:[0,1,0] op_sel_hi:[1,1,1]
    v_cvt_pk_bf16_f32 {v(r)}, {v(r)}, {v(r + 1)}
    ds_write_b32 {v(pLW)}, {v(r)}
    """)


def poller_bias():
    a(f"""
    v_mul_f32 {v(pT)}, {v(pS1)}, {v(pS2)}
    v_mul_f32 {v(pX_ + 4)}, -{v(pT)}, {v(pCS)}
    v_mul_f32 {v(pX_ + 5)}, -{v(pT)}, {v(pCS + 1)}
    """)


aQV, aONE, aLA, IDX2, aQK, aP, aACC, aS, aT = 16, 32, 36, 40, 48, 52, 64, 60, 61


def att_addr(layer):
    t = aT
    lane_expr(aQA, t, [(4, 2, 64), (0, 2, 16)], L_Q)
    s_expr(T0, [(W, 128)], L_P)
    lane_expr(aPW, t, [(0, 1, 64), (2, 1, 32), (4, 1, 16), (1, 1, 8), (5, 1, 4), (3, 1, 2)], T0)
    lane_expr(aPR, t, [(4, 2, 32), (2, 1, 16)], T0)
    s_expr(T0, [(W, OWS)], L_OW)
    lane_expr(aOWW, t, [(0, 4, 16), (4, 1, 8), (5, 1, 8 * OWJ)], T0)
    s_expr(T0, [(W, 8)], L_ML + 128 * layer)
    lane_expr(aMLW, t, [(4, 1, 4)], T0)
    s_expr(T0, [(W, 64)], L_OW)
    lane_expr(aOWR, t, [(0, 2, 2 * OWS), (2, 2, 4 * OWJ), (4, 2, 16)], T0)
    lane_expr(aMLR, t, [(0, 2, 16)], L_ML + 128 * layer)
    a(f"s_lshr_b32 {T1}, {W}, 1\ns_and_b32 {T2}, {W}, 1")
    s_expr(T0, [(T1, 1024), (T2, 32), (BB, 64)], OB)
    a(f"s_lshr_b32 {T1}, {J}, 3\ns_and_b32 {T2}, {J}, 1")
    s_expr(T0, [(T0, 1), (T1, 2048), (T2, 16)])
    lane_expr(aOBA, t, [(4, 2, 256), (2, 2, 4)], T0)
    s_expr(T0, [(BB, 32), (T1, 8), (T2, 4)], LSE)
    a(f"v_writelane_b32 {v(aOBA)}, {T0}, 1")


def att_init(lo=16, acc=True):
    zero(list(range(lo, 32)) + list(range(aQK, aQK + 8)) + (list(range(aACC, aACC + 16)) if acc else []))
    for i in range(4):
        a(f"v_mov_b32 {v(aONE + i)}, {ONES}")
    a(f"""
    v_bfe_u32 {v(IDX2)}, v0, 2, 1
    v_mul_u32_u24 {v(IDX2)}, 0xaaaa, {v(IDX2)}
    v_add_u32 {v(IDX2)}, 0x4444, {v(IDX2)}
    """)


hdr = open("cdna_kernels/%s.s.ref" % NAME).read().split("\n")
for line in hdr:
    if line.startswith("; @launch"):
        a.raw("; @launch grid=(256,1,1) block=(512,1,1) lds=%d" % LDS_BYTES)
    elif line.startswith(";"):
        a.raw(line)
    else:
        break
a.raw('.amdgcn_target "amdgcn-amd-amdhsa--gfx950"')
a.raw(".text")
a.raw(".globl %s_kernel" % NAME)
if OPT["al"]:
    a.raw(".p2align 12")
a.raw(".p2align 8")
a.raw(".type %s_kernel,@function" % NAME)
a.raw("%s_kernel:" % NAME)
a(f"""
    s_cmp_ge_u32 s2, 256
    s_cbranch_scc1 L_END
    s_load_dwordx16 s[8:23], s[0:1], 0
    s_load_dwordx8 s[24:31], s[0:1], 64
""")
a.c("pull the kernel's own code into L2: four 128-byte lines per workgroup")
a(f"""
    s_getpc_b64 {sp(TB)}
L_PC:
    s_and_b32 {T0}, s2, 0xf8
    s_lshl_b32 {T0}, {T0}, 6
    v_and_b32 v1, 3, v0
    v_lshl_add_u32 v1, v1, 7, {T0}
    v_min_u32 v1, L_END-L_PC, v1
    global_load_dword {v(vDUM)}, v1, {sp(TB)}
    s_mov_b32 {LAYER}, 0
""")
if OPT["padto"]:
    a("s_memrealtime s[100:101]")
if DIAG:
    for i in range(16):
        a(f"s_mov_b64 {sp(STAMP0 + 2 * i)}, 0")
    a("s_memrealtime s[100:101]")
a(f"""
    v_lshrrev_b32 v1, 6, v0
    v_and_b32 v0, 63, v0
    v_readfirstlane_b32 {W}, v1
    s_and_b32 {G}, s2, 7
    s_lshr_b32 {J}, s2, 3
    s_lshr_b32 {T0}, {J}, 3
    s_add_u32 {H}, {G}, {T0}
    s_and_b32 {H}, {H}, 7
    s_and_b32 {T0}, {J}, 24
    s_add_u32 {H}, {H}, {T0}
    s_bfe_u32 {BB}, {J}, 0x20001
    s_and_b32 {T1}, {J}, 1
""")
s_expr(T2, [(BB, 1 << 25), (H, 1 << 20), (T1, 1 << 17), (W, 1 << (11 if OPT["lay"] else 13))], 0xC0000 + (0 if OPT["lay"] else 4096))
lane_expr(vK, 60, [(1, 3, 256), (0, 1, 64), (4, 2, 16)])
a(f"v_lshlrev_b32 {v(vV)}, 4, v0")
for i in range(4):
    a(f"v_mov_b32 {v(124 + i)}, -1")
a(f"s_lshl_b32 {T0}, {J}, 3\ns_add_u32 {T0}, {T0}, {W}\ns_waitcnt lgkmcnt(0)")
add64(KB, pK, T2)
add64(VB, pV, T2)
a(f"s_cmp_eq_u32 {T0}, {999 if CUT & 128 else 1}\ns_cbranch_scc1 L_LEAD\nL_PRO_L:")


def fill_local(fl, d):
    D = v(d, 4)
    lin(60, 4, [(G, GS), (J, 1152)], 0)
    a(f"global_store_dwordx4 v60, {D}, {sp(pWS)}{fl}")
    a(f"s_mov_b64 exec, 0xff\nglobal_store_dwordx4 v60, {D}, {sp(pWS)} offset:1024{fl}\ns_mov_b64 exec, -1")
    lin(60, 4, [(G, 32 * QRS), (J, QRS)], QR)
    a(f"global_store_dwordx4 v60, {D}, {sp(pWS)}{fl}\nglobal_store_dwordx4 v60, {D}, {sp(pWS)} offset:1024{fl}")
    a(f"s_mov_b32 exec_hi, 0\nglobal_store_dwordx4 v60, {D}, {sp(pWS)} offset:2048{fl}\ns_mov_b64 exec, -1")


def fill_pb(hop, d):
    a(f"s_lshr_b32 {T1}, {J}, 1\ns_and_b32 {T2}, {J}, 1")
    s_expr(T0, [(T1, 16384), (T2, 4096), (G, 256)], PBB + hop * PBH)
    lane_expr(60, 61, [(5, 1, 8192), (4, 1, 2048), (0, 4, 16)], T0)
    a(f"global_store_dwordx4 v60, {v(d, 4)}, {sp(pWS)} sc1")


SKIP = [False]


def stream(i, thr=True):
    if OPT["lay"]:
        B_ = KB if i < 16 else VB
        if i & 15 and not i & 1:
            add64(B_, B_, 16384)
        if i < 16:
            a(f"global_load_dwordx4 {v(KREG + 4 * i, 4)}, {v(vK)}, {sp(KB)} offset:{(i & 1) * 128} nt")
        else:
            a(f"global_load_dwordx4 {v(SREG + (i - 16) * 4, 4)}, {v(vV)}, {sp(VB)} offset:{(i & 1) * 1024} nt")
    elif i < 16:
        if i == 8:
            add64(KB, KB, 65536)
        kq, hf = (i >> 1) & 3, i & 1
        a(f"global_load_dwordx4 {v(KREG + 4 * i, 4)}, {v(vK)}, {sp(KB)} offset:{kq * 2048 + hf * 128 - 4096} nt")
    else:
        if i == 24:
            add64(VB, VB, 65536)
        a(f"global_load_dwordx4 {v(SREG + (i - 16) * 4, 4)}, {v(vV)}, {sp(VB)} offset:{(i & 7) * 1024 - 4096} nt")
    if thr:
        l = a.newlabel("TS")
        if SKIP[0]:
            a(f"s_cbranch_vccnz {l}")
        a(f"s_waitcnt vmcnt({THR - 1})")
        a.label(l)


def only_wave(w, label, off=False):
    a(f"s_cmp_lg_u32 {W}, {9 if off else w}\ns_cbranch_scc1 {label}")


def h_first():
    a(f"s_cmp_lg_u32 {W}, 2\ns_cselect_b64 vcc, 0, -1")
    a(f"s_cmp_ge_u32 {W}, 4\ns_cbranch_scc1 L_PRO_X")
    a(f"s_lshl_b32 {TILE}, {J}, 1\ns_add_u32 {TILE}, {TILE}, {W}")
    a(f"s_cmp_eq_u32 {W}, 3\ns_cbranch_scc1 L_PRO_X3\ns_cmp_eq_u32 {W}, 2\ns_cbranch_scc1 L_PRO_X2")
    a(f"s_min_u32 {T1}, {TILE}, 39")
    s_expr(T0, [(T1, 32)])
    lane_expr(60, 61, [(2, 2, 1280), (0, 2, 8), (5, 1, 4)], T0)
    a(f"global_load_dword {v(rX0)}, v60, {sp(pX)}")
    if OPT["tlb"]:
        a.c("first touch of pages that are streamed later")
        a(f"""
        v_and_b32 v60, 1, v0
        v_lshlrev_b32 v60, 16, v60
        global_load_dword {v(vDUM)}, v60, {sp(VB)} nt
        """)
    if OPT["tlb"] & 2:
        a(f"""
        v_and_b32 v60, 3, v0
        v_lshlrev_b32 v60, 20, v60
        v_min_u32 v61, {640 * 3456 - 4}, v60
        global_load_dword {v(vDUM)}, v61, {sp(pWG)} nt
        global_load_dword {v(vDUM)}, v61, {sp(pWU)} nt
        global_load_dword {v(vDUM)}, v61, {sp(pWD)} nt
        v_and_b32 v60, 7, v0
        v_lshlrev_b32 v60, 20, v60
        v_min_u32 v61, {4096 * 1280 - 4}, v60
        global_load_dword {v(vDUM)}, v61, {sp(pWO)} nt
        """)
    a("s_branch L_PRO_A")
    a.label("L_PRO_X2")
    a.c("wave 2: sentinel fill; plain stores are enough if the group shares one L2 (checked later, redone otherwise)")
    if not CUT & 2:
        if not OPT["xc"] & 1:
            fill_local("", 124)
        a(f"s_cmp_ge_u32 {J}, {0 if OPT['xc'] & 2 else 20}\ns_cbranch_scc1 L_PRO_C")
        fill_pb(0, 124)
        if OPT["fb"] == 0:
            a(f"v_add_u32 v60, {PBH}, v60\nglobal_store_dwordx4 v60, v[124:127], {sp(pWS)} sc1")
    a.label("L_PRO_C")
    a.c("wave 2: LDS zero areas")
    zero(range(44, 48))
    a(f"""
    v_lshlrev_b32 v62, 2, v0
    v_add_u32 v62, {L_ML}, v62
    ds_write_b32 v62, v124
    v_lshlrev_b32 v62, 2, v0
    v_add_u32 v62, {L_FLAG}, v62
    ds_write_b32 v62, v124
    v_add_u32 v62, {L_OX}, {v(vV)}
    ds_write_b128 v62, v[124:127]
    ds_write_b128 v62, v[124:127] offset:1024
    ds_write_b128 v62, v[124:127] offset:2048
    ds_write_b128 v62, v[124:127] offset:3072
    v_add_u32 v62, {L_WD + 6 * R32}, {v(vV)}
    s_cmp_ge_u32 {J}, 20
    s_cbranch_scc1 L_PRO_A
    ds_write_b128 v62, v[44:47]
    ds_write_b128 v62, v[44:47] offset:1024
    ds_write_b128 v62, v[44:47] offset:{R32}
    ds_write_b128 v62, v[44:47] offset:{R32 + 1024}
    s_branch L_PRO_A
    """)
    a.label("L_LEAD")
    a.c("wave 1 of the group's first workgroup: reset the group's arrival markers, then raise the group's flag")
    lin(60, 4, [(G, 32 * MSTR)], MK)
    a(f"""
    s_lshl_b32 {T0}, {G}, 5
    v_mov_b32 v62, {T0}
    s_mov_b32 exec_hi, 0
    global_store_dwordx4 v60, v[124:127], {sp(pWS)} sc1
    s_waitcnt vmcnt(0)
    s_mov_b64 exec, 1
    global_store_dword v62, v124, {sp(pDBG)} sc1
    s_mov_b64 exec, -1
    s_branch L_PRO_L
    """)
    a.label("L_PRO_X3")
    lin(60, 2, [(BB, 1280)], 0)
    for u in range(5):
        a(f"global_load_dword {v(pX_ + u)}, v60, {sp(pX)} offset:{u * 256}")
    a("s_branch L_PRO_A")
    a.label("L_PRO_X")
    a(f"s_and_b32 {T1}, {J}, 3")
    s_expr(T0, [(T1, 320)])
    q = Q1M
    lane_expr(q.XA0, q.T, [(2, 2, 1280), (0, 1, 128), (1, 1, 64), (4, 2, 16)], T0)
    lane_expr(q.XA1, q.T, [(2, 2, 1280), (4, 2, 16)], T0)
    a(f"global_load_dwordx4 {v(q.X, 4)}, {v(q.XA0)}, {sp(pX)}")
    a(f"global_load_dwordx4 {v(q.X + 4, 4)}, {v(q.XA1)}, {sp(pX)} offset:256")
    a.label("L_PRO_A")
    lane_expr(vWQ, 61, [(3, 3, 8192), (0, 3, 16)])
    a(f"s_and_b32 {T1}, {J}, 3\ns_and_b32 {T2}, {J}, 4")
    s_expr(T0, [(T1, 160 * 8192), (W, 8 * 8192), (H, 256), (T2, 32)])
    add64(TB, pWQ, T0)
    prostamp(0)


def h_wq(n):
    l = a.newlabel("WQ")
    if n == 2:
        a(f"s_cmp_ge_u32 {W}, 4\ns_cbranch_scc1 {l}")
    a(f"s_lshl_b32 {T1}, {W}, 10\ns_add_u32 m0, {T1}, {L_WQ + n * 8192}")
    if not CUT & 4:
        a(f"global_load_lds_dwordx4 {v(vWQ)}, {sp(TB)} nt")
    if n < 2:
        add64(TB, TB, 64 * 8192)
    a.label(l)


def h_setup1():
    a(f"""
    s_mov_b32 {ONES}, 0x3f803f80
    v_bfe_u32 {v(IDX)}, v0, 1, 1
    v_mul_u32_u24 {v(IDX)}, 0xaaaa, {v(IDX)}
    v_add_u32 {v(IDX)}, 0x4444, {v(IDX)}
    s_mov_b32 {CSC}, {f32(math.log2(math.e) / math.sqrt(128.0))}
    s_mov_b32 {PLO}, 0x05040100
    s_mov_b32 {PHI}, 0x07060302
    s_mov_b32 s{ODD}, 0xaaaaaaaa
    s_mov_b32 s{ODD + 1}, 0xaaaaaaaa
    s_mov_b32 s{LO8}, 0x00ff00ff
    s_mov_b32 s{LO8 + 1}, 0x00ff00ff
    s_mov_b32 s{OBM}, 0x11111111
    s_mov_b32 s{OBM + 1}, 0x11111111
    s_cmp_eq_u32 {W}, 0
    s_cselect_b32 s{OBM}, 0x11111113, s{OBM}
    s_mul_i32 {T0}, {G}, {GS}
    s_add_u32 s{EX}, s{pWS}, {T0}
    s_addc_u32 s{EX + 1}, s{pWS + 1}, 0
    s_cmp_lt_u32 {G}, 6
    s_cselect_b32 {NU}, 7, 6
    s_mul_i32 {FB0}, {G}, 7
    s_min_u32 {FB0}, {FB0}, 48
    s_sub_u32 {T0}, {J}, 20
    s_cmp_lt_u32 {T0}, {NU}
    s_cselect_b32 {ROLE}, 1, 2
    s_cmp_lt_u32 {J}, 20
    s_cselect_b32 {ROLE}, 0, {ROLE}
    """)
    a.c("PATH: 0 out/down projection, 1 gate/up, 2 q projection or q collector, 3 nothing")
    a(f"""
    s_cmp_ge_u32 {W}, 3
    s_cselect_b32 {PATH}, 2, 3
    s_lshl_b32 {T0}, 2, {ROLE}
    s_and_b32 {T0}, {T0}, 7
    s_cmp_lt_u32 {W}, {T0}
    s_cselect_b32 {PATH}, {ROLE}, {PATH}
    s_cmp_lg_u32 {ROLE}, 0
    s_cbranch_scc1 L_PRO_RU
    """)
    a.c("role weight staging: source pointer, swizzled per-lane offset, LDS base")
    lane_expr(vDMA, 60, [(2, 4, 1280), (0, 2, 16)])
    s_expr(T0, [(W, 16 * 1280), (J, 64)])
    add64(WOB, pWO, T0)
    a(f"s_lshr_b32 {T1}, {W}, 1")
    s_expr(T2L, [(W, 1024), (T1, 128)], L_WO)
    a("s_branch L_PRO_R")
    a.label("L_PRO_RU")
    lane_expr(vDMA, 60, [(2, 4, 3456), (0, 2, 16)])
    a(f"""
    s_and_b32 {T0}, {W}, 4
    s_lshl_b32 {T0}, {T0}, 2
    v_xor_b32 {v(vDMA)}, {T0}, {v(vDMA)}
    s_add_u32 {T1}, {FB0}, {J}
    s_sub_u32 {T1}, {T1}, 20
    s_and_b32 {T2}, {W}, 3
    s_cmp_ge_u32 {W}, 4
    s_cselect_b32 s{WOB}, s{pWU}, s{pWG}
    s_cselect_b32 s{WOB + 1}, s{pWU + 1}, s{pWG + 1}
    s_mov_b32 {T2L}, {L_WG}
    s_cselect_b32 {T2L}, {L_WU}, {T2L}
    s_lshr_b32 {T0}, {T2}, 1
    """)
    s_expr(T2L, [(T2L, 1), (T2, 1024), (T0, 128)])
    s_expr(T0, [(T1, 64), (T2, 16 * 3456)])
    add64(WOB, WOB, T0)
    a.label("L_PRO_R")
    a(f"v_and_b32 v60, 16, v0\nv_lshlrev_b32 v60, 1, v60\nv_xor_b32 {v(vDMA)}, {v(vDMA)}, v60")


def h_setup3():
    att_init(32, acc=False)
    lin(oBA, 4, [(W, 2048)], OB)
    zero([12])
    a(f"s_lshr_b32 {T1}, {J}, 1\ns_and_b32 {T2}, {J}, 1")
    lin(oSA, 2, [(T1, 16384), (T2, 4096), (W, 2048), (G, 256)], 0)
    zero([41, 42, vPF, pA, pC])


def h_flag():
    a(f"""
    v_and_b32 v17, 7, v0
    v_lshlrev_b32 v17, 5, v17
    v_mov_b32 v18, 0
    v_lshlrev_b32 v19, 4, v0
    v_add_u32 v19, {MK}, v19
    """)
    only_wave(2, "L_HA0", CUT & 32)
    a(f"global_load_dword v18, v17, {sp(pDBG)} sc1")
    a.label("L_HA0")


def h_bq(nafter, nflag):
    a(f"s_waitcnt vmcnt({nafter}) lgkmcnt(0)")
    only_wave(2, "L_HA1", CUT & 32)
    a.c("wave 2: sentinel fill done and the group's markers reset -> publish this workgroup's XCD id")
    lin(62, 2, [(G, 32 * MSTR), (J, MSTR)], MK)
    a(f"""
    s_getreg_b32 {XCC}, hwreg(HW_REG_XCC_ID, 0, 4)
    v_mov_b32 v44, {XCC}
    s_mov_b32 {SPIN}, {SPIN_MAX}
    s_barrier
    s_waitcnt vmcnt({nflag})
L_ARR:
    v_readlane_b32 {T0}, v18, {G}
    s_cmp_lg_u32 {T0}, 0
    s_cbranch_scc1 L_ARR_OK
    global_load_dword v18, v17, {sp(pDBG)} sc1
    s_waitcnt vmcnt(0)
    s_sub_u32 {SPIN}, {SPIN}, 1
    s_cbranch_scc0 L_ARR
L_ARR_OK:
    s_mov_b64 exec, 1
    global_store_dwordx4 v62, v[44:47], {sp(pWS)} sc1
    s_mov_b64 exec, -1
    s_branch L_PRO_KV
L_HA1:
    """)
    prostamp(3)
    a(f"""
    s_barrier
    s_cmp_ge_u32 {W}, {9 if CUT & 16 else 4}
    s_cbranch_scc1 L_PRO_Q
    s_cmp_eq_u32 {W}, 3
    s_cbranch_scc1 L_PRO_P
    v_and_b32 {v(rX1)}, 0xffff0000, {v(rX0)}
    v_lshlrev_b32 {v(rX0)}, 16, {v(rX0)}
    s_branch L_PRO_KV
    """)
    a.label("L_PRO_Q")
    a.c("waves 4..7: partial q projection of layer 1 and partial column sums")
    qp_setup(Q1M)
    qp_saddr(Q1M.SA, 0)
    qB, qSA, qACC = Q1M.B, Q1M.SA, Q1M.A[0]
    qp_saddr(112, 2048, 128)
    zero(range(116, 124))
    for i in range(4):
        a(f"v_mov_b32 {v(124 + i)}, {ONES}")
    a("s_waitcnt lgkmcnt(0)")
    qp_mm(Q1M)
    a(f"""
    {SMF} v[116:119], v[124:127], {v(qB, 8)}, {v(IDX)}
    {SMF} v[116:119], v[124:127], {v(qB + 8, 8)}, {v(IDX)}
    {SMF} v[120:123], v[124:127], {v(qB + 16, 8)}, {v(IDX)}
    """)
    qp_sum(Q1M)
    a(f"""
    v_add_f32 v116, v116, v118
    v_add_f32 v116, v116, v120
    v_min_u32 v42, -2, v116
    v_mov_b32 v41, {v(qACC)}
    global_store_dword {v(qSA)}, v41, {sp(pWS)}
    s_mov_b32 exec_hi, 0
    global_store_dword v112, v42, {sp(pWS)}
    s_mov_b64 exec, -1
    s_mov_b64 vcc, -1
    s_branch L_PRO_KV
    """)
    a.label("L_PRO_P")
    a.c("wave 3: LayerNorm statistics of its row")
    if not CUT & 8:
        a(f"global_load_dword v18, v17, {sp(pDBG)} sc1")
    poller_qaddr(0)
    s_expr(T0, [(G, 32 * QRS), (T1, QRS)], QR + 2048 + 3840)
    lane_expr(pC, pT, [(5, 1, 4 * QRS), (3, 2, 128), (0, 3, 8)], T0)
    poller_stats()
    a.label("L_PRO_KV")
    if OPT["padfrom"] == 3:
        a("s_memrealtime s[100:101]")
    prostamp(4)


MK_LOADS = "\n".join(f"global_load_dword {v(20 + u)}, v19, {sp(pWS)} offset:{u * 64 * MSTR} sc1" for u in range(4))


def q1_loads():
    for ins, _, _ in poller_qloads():
        a(ins)
    for kq in range(4):
        a(f"global_load_dwordx2 {v(pX_ + 2 * kq, 2)}, {v(pC)}, {sp(pWS)} offset:{kq * QRS - 3840} sc1")


def h_p1(ny):
    only_wave(3, "L_H1", CUT & 8)
    a.c("wave 3: all groups have reset their markers -> read the markers")
    a(f"""
    s_mov_b32 {SPIN}, {SPIN_MAX}
    s_waitcnt vmcnt({ny})
L_FLG:
    v_cmp_eq_u32 vcc, 0, v18
    s_cbranch_vccz L_FLG_OK
    global_load_dword v18, v17, {sp(pDBG)} sc1
    s_waitcnt vmcnt(0)
    s_sub_u32 {SPIN}, {SPIN}, 1
    s_cbranch_scc0 L_FLG
L_FLG_OK:
    {MK_LOADS}
    s_mov_b64 vcc, -1
L_H1:
    """)
    prostamp(2)


def h_p2(ny):
    only_wave(3, "L_H2", CUT & 8)
    a.c("wave 3: the whole group has arrived -> fetch q partials; decide whether the group shares one L2")
    a(f"""
    s_getreg_b32 {XCC}, hwreg(HW_REG_XCC_ID, 0, 4)
    s_mov_b32 {SPIN}, {SPIN_MAX}
    s_waitcnt vmcnt({ny})
L_CNT:
    s_bitcmp1_b32 {G}, 1
    s_cselect_b64 vcc, -1, 0
    v_cndmask_b32 v17, v20, v21, vcc
    v_cndmask_b32 v18, v22, v23, vcc
    s_bitcmp1_b32 {G}, 2
    s_cselect_b64 vcc, -1, 0
    v_cndmask_b32 v17, v17, v18, vcc
    v_cmp_eq_u32 vcc, -1, v17
    s_bitcmp1_b32 {G}, 0
    s_cselect_b32 {T0}, vcc_hi, vcc_lo
    s_cmp_eq_u32 {T0}, 0
    s_cbranch_scc1 L_CNT_OK
    {MK_LOADS}
    s_waitcnt vmcnt(0)
    s_sub_u32 {SPIN}, {SPIN}, 1
    s_cbranch_scc0 L_CNT
L_CNT_OK:
    """)
    q1_loads()
    a(f"""
    {MK_LOADS}
    v_cmp_ne_u32 vcc, {XCC}, v17
    v_mov_b32 v18, {L_FLAG}
    s_bitcmp1_b32 {G}, 0
    s_cselect_b32 {T0}, vcc_hi, vcc_lo
    s_cmp_lg_u32 {T0}, 0
    s_cselect_b32 {T0}, 0, {0 if OPT['force_global'] else 1}
    s_mov_b32 {LOCAL}, {T0}
    v_mov_b32 v17, {T0}
    ds_write_b32 v18, v17
    s_mov_b64 vcc, -1
L_H2:
    """)
    prostamp(5)


def h_p4():
    a.c("wave 3: every workgroup of every group must have arrived before this workgroup publishes or polls anything else")
    a(f"""
    s_mov_b32 {SPIN}, {SPIN_MAX}
L_ALL:
    v_max3_u32 v17, v20, v21, v22
    v_max_u32 v17, v17, v23
    v_cmp_eq_u32 vcc, -1, v17
    s_cbranch_vccz L_ALL_OK
    s_sleep 4
    {MK_LOADS}
    s_waitcnt vmcnt(0)
    s_sub_u32 {SPIN}, {SPIN}, 1
    s_cbranch_scc0 L_ALL
L_ALL_OK:
    """)
    if OPT["warm"] & 2:
        a.c("keep the hand-off lines in L2 so that the first polls do not miss")
        s_expr(T0, [(J, 1152)])
        a(f"""
        v_min_u32 v17, 8, v0
        v_lshl_add_u32 v17, v17, 7, {T0}
        global_load_dword {v(vDUM)}, v17, {sp(EX)} sc1
        """)
        s_expr(T0, [(G, 32 * QRS), (J, QRS)], QR + 1024)
        a(f"""
        v_and_b32 v17, 7, v0
        v_lshl_add_u32 v17, v17, 7, {T0}
        global_load_dword {v(vDUM)}, v17, {sp(pWS)} sc1
        """)
    a.label("L_H4")


def q1_collect(tag):
    a(f"s_mov_b32 {SPIN}, {SPIN_MAX}")
    a.label("L_Q1" + tag)
    for s_ in check_ops(list(range(pX_, pX_ + 8)) + list(range(pQ, pQ + 8)), pT):
        a(s_)
    a(f"s_cbranch_vccz L_Q1_OK{tag}")
    q1_loads()
    a(f"""
    s_waitcnt vmcnt(0)
    s_sub_u32 {SPIN}, {SPIN}, 1
    s_cbranch_scc0 L_Q1{tag}
L_Q1_OK{tag}:
    v_pk_add_f32 {v(pX_, 2)}, {v(pX_, 2)}, {v(pX_ + 2, 2)}
    v_pk_add_f32 {v(pX_ + 4, 2)}, {v(pX_ + 4, 2)}, {v(pX_ + 6, 2)}
    v_pk_add_f32 {v(pCS, 2)}, {v(pX_, 2)}, {v(pX_ + 4, 2)}
    """)
    poller_bias()
    poller_finish()


def h_p3(ny):
    only_wave(3, "L_H3", CUT & 8)
    a(f"s_waitcnt vmcnt({ny})\ns_cmp_eq_u32 {LOCAL}, 0\ns_cbranch_scc1 L_H3B")
    q1_collect("")
    a.label("L_H3B")
    h_p4()
    a("s_waitcnt lgkmcnt(0)\ns_mov_b64 vcc, -1")
    a.label("L_H3")
    prostamp(6)


K0, BQ, HF, HC, HD, BP = OPT["k0"], OPT["bq"], OPT["hf"], OPT["hc"], OPT["hd"], OPT["bp"]
hooks = {}


def h_unfree():
    a(f"s_cmp_eq_u32 {W}, 3\ns_cselect_b64 vcc, vcc, 0")


for pos, fn in [(K0, h_first), (K0, lambda: h_wq(0)), (K0, lambda: h_wq(1)), (K0, lambda: h_wq(2)),
                (K0 + 1, h_setup1), (K0 + 2, h_setup3), (HF, h_flag),
                (BQ + 2, lambda: h_bq(BQ + 2 - K0, BQ + 2 - HF)), (BQ + 3, lambda: att_addr(0)),
                (BQ + 2 + OPT["free"], h_unfree),
                (HC, lambda: h_p1(HC - BQ - 2)), (HC + HD, lambda: h_p2(HD)), (HC + 2 * HD, lambda: h_p3(HD))]:
    hooks.setdefault(pos, []).append(fn)
assert K0 + 2 <= BQ + 2 <= 16 and K0 <= HF < BQ + 2 <= HC and HC + 2 * HD < BP and 24 <= BP <= 28 and HC + 2 * HD <= 28
SKIP[0] = True
for i in range(BP):
    for fn in hooks.get(i, []):
        fn()
    stream(i, thr=not (i < K0 or BQ <= i < BQ + 2 or i >= BP - OPT['cov']))
SKIP[0] = False
a("s_waitcnt vmcnt(%d)" % (BP - 16))
prostamp(1)
a(f"""
    v_mov_b32 v62, {L_FLAG}
    s_barrier
    ds_read_b32 v62, v62
    v_mov_b32 v63, {CSC}
    s_waitcnt lgkmcnt(0)
    v_readfirstlane_b32 {LOCAL}, v62
    s_cmp_eq_u32 {LOCAL}, {9 if CUT else 0}
    s_cbranch_scc1 L_SLOW
L_SLOW_RET:
""")
if OPT["padfrom"] == 2:
    a("s_memrealtime s[100:101]")
zero(range(16, 32))
a("s_mov_b32 exec_lo, 0x000f000f\ns_mov_b32 exec_hi, 0x000f000f\ns_branch L_BAR2")


def perms(t, pp):
    for j in range(8):
        s0 = SREG + t * 32 + (2 * pp) * 4 + (j >> 1)
        a(f"v_perm_b32 {v(VREG + j * 8 + t * 4 + pp)}, {v(s0 + 4)}, {v(s0)}, {PHI if j & 1 else PLO}")


def gu_prefetch(lo, hi, issue=True):
    s_expr(T1, [(J, 8), (W, 1)], -160)
    a(f"""
    s_cmp_ge_u32 {T1}, 48
    s_cselect_b32 s{TB}, s{pWU}, s{pWG}
    s_cselect_b32 s{TB + 1}, s{pWU + 1}, s{pWG + 1}
    s_cselect_b32 {T0}, 48, 0
    s_sub_u32 {T1}, {T1}, {T0}
    s_mul_i32 {T1}, {T1}, 14
    s_add_u32 {T1}, {T1}, {lo}
    s_lshr_b32 {T2}, {FB0}, 1
    s_lshl_b32 {T2}, {T2}, 7
    s_sub_u32 {T0}, {NU}, 4
    v_lshrrev_b32 {v(vPF)}, 2, v0
    v_min_u32 {v(vPF)}, {hi - lo - 1}, {v(vPF)}
    v_add_u32 {v(vPF)}, {T1}, {v(vPF)}
    v_min_u32 {v(vPF)}, 639, {v(vPF)}
    v_mul_u32_u24 {v(vPF)}, 3456, {v(vPF)}
    v_and_b32 {v(vK)}, 3, v0
    v_min_u32 {v(vK)}, {T0}, {v(vK)}
    v_lshl_add_u32 {v(vPF)}, {v(vK)}, 7, {v(vPF)}
    v_add_u32 {v(vPF)}, {T2}, {v(vPF)}
    """)
    if issue:
        a(f"global_load_dword {v(vDUM)}, {v(vPF)}, {sp(TB)}")


def wo_prefetch():
    if OPT["upfree"]:
        a.c("wo into L2, one dword per line; the gate/up workgroups are left out so that they finish K/V early")
        a(f"""
        s_sub_u32 {T0}, {J}, 20
        s_cmp_lt_u32 {T0}, 7
        s_cbranch_scc1 L_WPE
        s_cmp_ge_u32 {J}, 20
        s_cselect_b32 {T0}, 7, 0
        s_sub_u32 {T0}, {J}, {T0}
        """)
        s_expr(T0, [(T0, 8 * 26), (W, 26)])
        a(f"""
        v_min_u32 {v(vPF)}, 25, v0
        v_add_u32 {v(vPF)}, {T0}, {v(vPF)}
        v_min_u32 {v(vPF)}, 5119, {v(vPF)}
        v_mul_u32_u24 {v(vK)}, 3277, {v(vPF)}
        v_lshrrev_b32 {v(vK)}, 22, {v(vK)}
        v_add_u32 v62, {G}, {v(vK)}
        v_and_b32 v62, 7, v62
        v_mul_u32_u24 {v(vK)}, 7, {v(vK)}
        v_add_u32 v62, v62, {v(vK)}
        v_mul_u32_u24 v62, 1280, v62
        v_add_lshl_u32 {v(vPF)}, {v(vPF)}, v62, 7
        global_load_dword {v(vDUM)}, {v(vPF)}, {sp(pWO)}
    L_WPE:
        """)
        return
    a(f"s_and_b32 {T1}, {J}, 7")
    s_expr(T0, [(H, 128 * 1280), (T1, 8 * 2560), (W, 2560)])
    a(f"""
    v_min_u32 {v(vPF)}, 19, v0
    v_lshl_add_u32 {v(vPF)}, {v(vPF)}, 7, {T0}
    global_load_dword {v(vDUM)}, {v(vPF)}, {sp(pWO)}
    """)


NTAIL = 1 if OPT["pfp"] == 32 else 0


def v_tail():
    done = 0
    for i in range(BP, 32):
        if i == OPT["pfp"]:
            wo_prefetch()
        stream(i, thr=i < 31 - OPT['vthr'])
        if done < 4:
            a(f"s_waitcnt vmcnt({i - (17 + 2 * done)})")
            perms(0, done)
            done += 1
    assert done == 4
    if OPT["pfp"] == 32:
        wo_prefetch()
    prostamp(7)
    a(f"s_lshr_b32 {OPW}, {W}, 2\ns_or_b32 {OPW}, {OPW}, {ROLE}")
    zero(range(aACC, aACC + 16))
    weights("V", True)
    for pp in range(4):
        a(f"s_waitcnt vmcnt({6 - 2 * pp + NTAIL})")
        perms(1, pp)
        if pp == 2:
            a(f"s_cmp_eq_u32 {ROLE}, 0\ns_cbranch_scc1 L_NT0")
            gu_prefetch(0, OPT["nt"], issue=False)
            a.label("L_NT0")
        if pp == 1:
            for i in range(4):
                a(f"""
                s_add_u32 {T0}, {G}, {i}
                s_and_b32 {T0}, {T0}, 7
                s_add_u32 {T0}, {T0}, {8 * i}
                s_mul_i32 s{PM + i}, {T0}, {128 * 1280}
                """)
    a.c("K and V are in: first part of the W_gate / W_up prefetch")
    a(f"s_cmp_eq_u32 {ROLE}, 0\ns_cbranch_scc1 L_NT1")
    a(f"global_load_dword {v(vDUM)}, {v(vPF)}, {sp(TB)}\ns_branch L_PV")
    a.label("L_NT1")
    for i in range(4):
        a(f"s_add_u32 m0, {T2L}, {i * 4 * R32}")
        add64(TB, WOB, f"s{PM + i}")
        a(f"global_load_lds_dwordx4 {v(vDMA)}, {sp(TB)}")


MXS = "s44"
a.label("L_BAR")
a(f"""
    v_mov_b32 v63, {CSC}
    s_mov_b32 exec_lo, 0x000f000f
    s_mov_b32 exec_hi, 0x000f000f
    s_barrier
L_BAR2:
""")
stamp(0)
cyc(0)
for o in range(4):
    a(f"ds_read_b128 {v(aQV + 4 * o, 4)}, {v(aQA)}")
    a("s_lshl_b64 exec, exec, 4" if o < 3 else "s_mov_b64 exec, -1")
for o in range(4):
    a(f"s_waitcnt lgkmcnt({3 - o})")
    for t in range(2):
        a(f"{SMF} {v(aQK + 4 * t, 4)}, {v(aQV + 4 * o, 4)}, {v(KREG + (t * 4 + o) * 8, 8)}, {v(IDX)}")
cyc(1)
a(f"""
    v_pk_add_f32 {v(aQK, 2)}, {v(aQK, 2)}, {v(aQK + 2, 2)}
    v_pk_add_f32 {v(aQK + 4, 2)}, {v(aQK + 4, 2)}, {v(aQK + 6, 2)}
    v_cndmask_b32 {v(aT)}, {v(aQK + 4)}, {v(aQK + 1)}, {sp(ODD)}
    v_cndmask_b32 {v(aS)}, {v(aQK)}, {v(aQK + 5)}, {sp(ODD)}
    v_add_f32_dpp {v(aS)}, {v(aT)}, {v(aS)} quad_perm:[1,0,3,2] {DPP}
    v_max_f32_dpp {v(aT)}, {v(aS)}, {v(aS)} quad_perm:[1,0,3,2] {DPP}
    v_max_f32_dpp {v(aT)}, {v(aT)}, {v(aT)} quad_perm:[2,3,0,1] {DPP}
    v_max_f32_dpp {v(aT)}, {v(aT)}, {v(aT)} row_ror:4 {DPP}
    v_max_f32_dpp {v(aT)}, {v(aT)}, {v(aT)} row_ror:8 {DPP}
    v_max_f32_dpp {v(aT)}, {v(aT)}, {v(aT)} row_bcast:15 row_mask:0xa bank_mask:0xf
    v_max_f32_dpp {v(aT)}, {v(aT)}, {v(aT)} row_bcast:31 row_mask:0xc bank_mask:0xf
    v_readlane_b32 {MXS}, {v(aT)}, 63
    v_mul_f32 {v(aT)}, {MXS}, v63
    v_fma_f32 {v(aS)}, {v(aS)}, v63, -{v(aT)}
    v_exp_f32 {v(aS)}, {v(aS)}
    v_min_u32 {v(aT)}, -2, {v(aT)}
    v_cvt_pk_bf16_f32 {v(aS)}, {v(aS)}, {v(aS)}
    ds_write_b16 {v(aPW)}, {v(aS)}
    s_mov_b64 exec, {sp(LO8)}
    ds_read_b128 v[16:19], {v(aPR)}
    s_not_b64 exec, exec
    ds_read_b128 v[28:31], {v(aPR)}
    s_mov_b64 exec, 1
    ds_write_b32 {v(aMLW)}, {v(aT)} offset:64
    s_mov_b64 exec, -1
""")
cM, cO, cW = 20, 24, 44


def weights(tag, first):
    if first:
        a(f"ds_read_b128 {v(cM, 4)}, {v(aMLR)} offset:64\ns_waitcnt lgkmcnt(0)")
    a(f"""
    s_mov_b32 {SPIN}, {SPIN_MAX}
L_MXC{tag}:
    v_max_u32 {v(aS)}, {v(cM)}, {v(cM + 2)}
    v_cmp_eq_u32 vcc, -1, {v(aS)}
    v_max_f32 {v(aT)}, {v(cM)}, {v(cM + 2)}
    s_cbranch_vccnz L_MXR{tag}
L_MXD{tag}:
    s_nop 0
    v_max_f32_dpp {v(aT)}, {v(aT)}, {v(aT)} quad_perm:[1,0,3,2] {DPP}
    v_max_f32_dpp {v(aT)}, {v(aT)}, {v(aT)} quad_perm:[2,3,0,1] {DPP}
    v_sub_f32 {v(cW)}, {v(cM)}, {v(aT)}
    v_sub_f32 {v(cW + 1)}, {v(cM + 2)}, {v(aT)}
    v_exp_f32 {v(cW)}, {v(cW)}
    v_exp_f32 {v(cW + 1)}, {v(cW + 1)}
    """)


cyc(2)
a(f"s_cmp_eq_u32 {LAYER}, 0\ns_cbranch_scc1 L_VT")
a.label("L_PV")
a("s_waitcnt lgkmcnt(2)")
cyc(3)
pvm = [f"{SMF} {v(aACC + 4 * (j & 3), 4)}, {v(16 if j < 4 else 28, 4)}, {v(VREG + j * 8, 8)}, {v(IDX2)}" for j in range(8)]
oww = [f"ds_write2_b32 {v(aOWW)}, {v(aACC + 8 * jp)}, {v(aACC + 8 * jp + 4)} offset0:{OWJ * jp} offset1:{OWJ * jp + 1}"
       for jp in range(2)]
a(f"{MFMA} {v(aLA, 4)}, v[16:19], {v(aONE, 4)}, 0")
for n, j in enumerate((0, 1, 4, 5, 2, 3, 6, 7)):
    if n == 2:
        a("s_waitcnt lgkmcnt(1)")
    a(pvm[j])
    if n == OPT["mrd"]:
        a(f"ds_read_b128 v[20:23], {v(aMLR)} offset:64")
a(f"""
    s_cmp_eq_u32 {LAYER}, 0
    {oww[0]}
    s_mov_b64 exec, 0x10001
    ds_write_b32 {v(aMLW)}, {v(aLA)}
    s_mov_b64 exec, -1
    {oww[1]}
    s_cbranch_scc1 L_E1
    s_cmp_ge_u32 {W}, 4
    s_cbranch_scc1 L_YB
""")
cyc(4)
a("s_waitcnt lgkmcnt(3)")
weights("", False)
a(f"s_cmp_ge_u32 {W}, 4")
a.label("L_YB")
a("s_waitcnt lgkmcnt(0)")
cyc(5)
a("s_barrier\ns_cbranch_scc1 L_ATT_END")
cyc(6)
a(f"""
    ds_read_b128 {v(cM, 4)}, {v(aMLR)}
    ds_read_b128 {v(cO, 4)}, {v(aOWR)}
    ds_read_b128 {v(cO + 4, 4)}, {v(aOWR)} offset:{OWS}
""")
local_test()
a(f"""
    s_waitcnt lgkmcnt(2)
    v_add_f32 {v(cM)}, {v(cM)}, {v(cM + 1)}
    v_add_f32 {v(cM + 2)}, {v(cM + 2)}, {v(cM + 3)}
    v_mul_f32 {v(aS)}, {v(cW)}, {v(cM)}
    v_fmac_f32 {v(aS)}, {v(cW + 1)}, {v(cM + 2)}
    s_waitcnt lgkmcnt(0)
    v_pk_add_f32 {v(cO, 2)}, {v(cO, 2)}, {v(cO + 2, 2)}
    v_add_f32_dpp {v(aS)}, {v(aS)}, {v(aS)} quad_perm:[1,0,3,2] {DPP}
    v_pk_add_f32 {v(cO + 4, 2)}, {v(cO + 4, 2)}, {v(cO + 6, 2)}
    v_pk_mul_f32 {v(cO, 2)}, {v(cO, 2)}, {v(cW, 2)} op_sel_hi:[1,0]
    v_add_f32_dpp {v(aS)}, {v(aS)}, {v(aS)} quad_perm:[2,3,0,1] {DPP}
    v_pk_fma_f32 {v(cO, 2)}, {v(cO + 4, 2)}, {v(cW, 2)}, {v(cO, 2)} op_sel:[0,1,0] op_sel_hi:[1,1,1]
    v_rcp_f32 {v(cW + 2)}, {v(aS)}
    v_log_f32 {v(aS)}, {v(aS)}
    v_add_f32_dpp {v(cO)}, {v(cO)}, {v(cO)} quad_perm:[1,0,3,2] {DPP}
    v_add_f32_dpp {v(cO + 1)}, {v(cO + 1)}, {v(cO + 1)} quad_perm:[1,0,3,2] {DPP}
    v_add_f32 {v(cM)}, {v(aS)}, {v(aT)}
    v_add_f32_dpp {v(cO)}, {v(cO)}, {v(cO)} quad_perm:[2,3,0,1] {DPP}
    v_add_f32_dpp {v(cO + 1)}, {v(cO + 1)}, {v(cO + 1)} quad_perm:[2,3,0,1] {DPP}
    s_mov_b32 exec_lo, s{OBM + 1}
    v_pk_mul_f32 {v(cO, 2)}, {v(cO, 2)}, {v(cW + 2, 2)} op_sel_hi:[1,0]
    v_cvt_pk_bf16_f32 {v(cM)}, {v(cO)}, {v(cO + 1)}
    s_mov_b64 exec, {sp(OBM)}
    v_min_u32 {v(cO)}, -2, {v(cM)}
""")
cyc(7)
store_local(f"global_store_dword {v(aOBA)}, {v(cO)}, {sp(EX)}")
a("s_mov_b64 exec, -1")
a.label("L_ATT_END")
stamp(3)
if CUT & 1:
    a("s_branch L_FIN")
a(f"s_cmp_eq_u32 {LAYER}, 0\ns_cbranch_scc1 L_STAGE")
a.label("L_ROLE")
a(f"s_cmp_lg_u32 {OPW}, 0\ns_cbranch_scc1 L_ROLE2")

oB, oA, oACC, oL, oT, oT2 = 64, 16, 48, 4, 6, 7
rL, rR, rA, rS, rT, rSC = 48, 16, 2, 4, 5, 8


EG, EG2 = VB, KB


def pb_store(addr, data):
    a(f"global_store_dword {v(addr)}, {v(data)}, {sp(EG)} sc1")
    a(f"global_store_dword {v(addr)}, {v(data)}, {sp(EG2)} sc1")


def op_load_b(base):
    lane_expr(oT2, oT, [(4, 1, 32)])
    a(f"s_lshl_b32 {T0}, {W}, 5\nv_xor_b32 v9, {T0}, {v(oT2)}")
    b_addr(oT, oT2, 64, [(0, 2, 8)], base, R32)
    a(f"v_add_u32 {v(oT)}, {v(oT)}, v9")


a.c("waves 0..3: one head each, both column tiles; waves 0,1 then add the four partial results of their tile")
oL, oLA_, oXW, oB1 = 24, 3, 4, 5
ld = [(f"global_load_dwordx4 {v(oA + 4 * n, 4)}, {v(oBA)}, {sp(EX)} offset:{n * 1024} sc1", oA + 4 * n, 4) for n in range(2)]
ld.append((f"global_load_dwordx2 {v(oL, 2)}, {v(oLA_)}, {sp(EX)} sc1", oL, 2))
cy2(0)
s_expr(T0, [(W, 4 * R32)], L_WO)
b_addr(oT, oT2, 64, [(0, 2, 8)], T0, R32)
a(f"""
    v_and_b32 {v(oT2)}, 16, v0
    v_lshl_add_u32 {v(oB1)}, {v(oT2)}, 1, {v(oT)}
    v_xor_b32 {v(oT2)}, 16, {v(oT2)}
    v_lshl_add_u32 {v(oT)}, {v(oT2)}, 1, {v(oT)}
""")


def op_reads():
    b_reads(oB, oB1, 2, 64, R32)
    b_reads(oB + 16, oT, 2, 64, R32)


op_reads()
s_expr(T0, [(W, 8)], LSE)
lane_expr(oLA_, oT2, [(4, 2, 32)], T0)


def op_pre():
    cy2(1)
    zero(range(oACC, oACC + 8))
    lin(oXW, 2, [(LAYER, 2048), (W, 256)], L_OX)
    lin(10, 2, [(LAYER, 2048), (W, 1024)], L_OX)
    a(f"s_lshr_b32 {T1}, {TILE}, 2\ns_and_b32 {T2}, {TILE}, 3")
    lin(rA, 4, [(T1, 16384), (T2, 2048)], 0)
    s_expr(T0, [(LAYER, 2 * PBH)], PBB)
    add64(EG, pWS, T0)
    add64(EG2, EG, 8192)
    a("s_waitcnt lgkmcnt(0)")


poll(ld, oT2, OPT["p_op"], pre=op_pre, deep=OPT["d2"] & 32)
cy2(2)
if OPT["cy2"]:
    a(f"s_sub_u32 s{STAMP0 + 8}, {SPIN_MAX + 1}, {SPIN}")
sm = lambda t, u: f"{SMF} {v(oACC + 4 * t, 4)}, {v(oA + 4 * u, 4)}, {v(oB + 16 * t + 8 * u, 8)}, {v(IDX)}"
a(f"""
    {sm(0, 0)}
    v_sub_f32 v8, {v(oL + 1)}, {v(oL)}
    {sm(0, 1)}
    v_exp_f32 v8, v8
    {sm(1, 0)}
    v_add_f32 v8, 1.0, v8
    {sm(1, 1)}
    v_rcp_f32 v8, v8
    s_mov_b32 {SPIN}, {SPIN_MAX}
    s_cmp_ge_u32 {W}, 2
    v_sub_f32 v9, 1.0, v8
    v_pk_add_f32 {v(oACC, 2)}, {v(oACC, 2)}, {v(oACC + 2, 2)}
    v_mul_f32 {v(oACC)}, v8, {v(oACC)}
    v_fmac_f32 {v(oACC)}, v9, {v(oACC + 1)}
    v_pk_add_f32 {v(oACC + 4, 2)}, {v(oACC + 4, 2)}, {v(oACC + 6, 2)}
    v_min_u32 {v(oACC)}, -2, {v(oACC)}
    v_mul_f32 {v(oACC + 4)}, v8, {v(oACC + 4)}
    v_fmac_f32 {v(oACC + 4)}, v9, {v(oACC + 5)}
    v_min_u32 {v(oACC + 4)}, -2, {v(oACC + 4)}
    ds_write2st64_b32 {v(oXW)}, {v(oACC)}, {v(oACC + 4)} offset0:0 offset1:4
    s_cbranch_scc1 L_ROLE2
L_OXP:
    ds_read2st64_b32 v[56:57], v10 offset0:0 offset1:1
    ds_read2st64_b32 v[58:59], v10 offset0:2 offset1:3
    s_sub_u32 {SPIN}, {SPIN}, 1
    s_cbranch_scc1 L_OXD
    s_waitcnt lgkmcnt(0)
    v_max3_u32 {v(oT2)}, v56, v57, v58
    v_max_u32 {v(oT2)}, {v(oT2)}, v59
    v_cmp_eq_u32 vcc, -1, {v(oT2)}
    v_pk_add_f32 v[60:61], v[56:57], v[58:59]
    s_cbranch_vccnz L_OXP
L_OXD:
""")
stamp(4)
a("v_add_f32 v60, v60, v61\nv_min_u32 v60, -2, v60")
cy2(3)
pb_store(oSA, 60)
stamp(5)

def red_dst(dst):
    if dst == XA:
        a(f"s_lshr_b32 {T1}, {TILE}, 3\ns_and_b32 {T2}, {TILE}, 7\ns_lshl_b32 {T1}, {T1}, 10")
    else:
        a(f"""
        s_mul_i32 {T1}, {TILE}, 26
        s_lshr_b32 {T1}, {T1}, 8
        s_mul_i32 {T2}, {T1}, 10
        s_sub_u32 {T2}, {TILE}, {T2}
        s_mul_i32 {T1}, {T1}, 1280
        """)
    s_expr(T0, [(T1, 1)], dst)
    a(f"""
    s_and_b32 {T1}, {T2}, 1
    s_lshl_b32 {T1}, {T1}, 9
    s_and_b32 {T3}, {T2}, 2
    s_lshl_b32 {T3}, {T3}, 4
    s_add_u32 {T1}, {T1}, {T3}
    s_and_b32 {T3}, {T2}, 4
    s_lshl_b32 {T3}, {T3}, 2
    s_add_u32 {T1}, {T1}, {T3}
    s_lshl_b32 {T3}, {T2}, 7
    s_cmp_ge_u32 {T2}, 8
    s_cselect_b32 {T1}, {T3}, {T1}
    s_cselect_b32 {T2}, 4, 6
    s_add_u32 {T0}, {T0}, {T1}
    """)
    lane_expr(rS, rT, [(1, 1, 4), (2, 2, 1)])
    a(f"""
    v_lshlrev_b32 {v(rS)}, {T2}, {v(rS)}
    v_and_b32 {v(rT)}, 1, v0
    v_lshl_add_u32 {v(rS)}, {v(rT)}, 3, {v(rS)}
    v_lshrrev_b32 {v(rT)}, 5, v0
    v_lshl_add_u32 {v(rS)}, {v(rT)}, 2, {v(rS)}
    v_add_u32 {v(rS)}, {T0}, {v(rS)}
    """)


def near_probe():
    a(f"""
    s_waitcnt vmcnt(1)
    s_nop {OPT["gap"]}
    s_getreg_b32 {T0}, hwreg(HW_REG_IB_STS, 0, 4)
    s_cmp_eq_u32 {T0}, 0
    s_cselect_b32 {NEAR}, 8192, 0
    """)


def red_scale():
    a.c("1/(var+eps) of x (from wave 2) scales the FFN output after the reduce")
    s_expr(T0, [(LAYER, 64)], L_FLAG + 64)
    lane_expr(9, 10, [(0, 4, 4)], T0)
    a(f"""
    s_mov_b32 {SPIN}, {SPIN_MAX}
L_XS:
    ds_read_b32 {v(rSC)}, v9
    s_sub_u32 {SPIN}, {SPIN}, 1
    s_cbranch_scc1 L_XS_OK
    s_waitcnt lgkmcnt(0)
    v_cmp_eq_u32 vcc, -1, {v(rSC)}
    s_cbranch_vccnz L_XS
L_XS_OK:
    s_mov_b32 {SPIN}, {SPIN_MAX}
    """)


def red_collect(st, scale, mid):
    a("s_waitcnt vmcnt(2)")
    mid()
    l, l2 = a.newlabel("NR"), a.newlabel("NR")
    if scale and OPT["pol"]:
        add64(TB, EG, NEAR)
        a(f"s_sleep {OPT['early']}" if OPT["early"] else "s_waitcnt vmcnt(0)")
    else:
        if OPT["pol"]:
            a(f"s_cmp_lg_u32 {LAYER}, 0\ns_cbranch_scc1 {l}")
        near_probe()
        a(f"s_waitcnt vmcnt(0)\ns_branch {l2}")
        a.label(l)
        a(f"s_sleep {OPT['early']}" if OPT["early"] else "s_waitcnt vmcnt(0)")
        a.label(l2)
        add64(TB, EG, NEAR)
    poll([(f"global_load_dwordx4 {v(rR + 4 * i, 4)}, {v(rA)}, {sp(TB)} offset:{i * 1024} sc1", rR + 4 * i, 4)
          for i in range(2)], rT, 0, deep=OPT["d2"] & 8, pre=red_scale if scale else None)
    a(f"v_pk_add_f32 {v(rL, 2)}, {v(rR, 2)}, {v(rR + 4, 2)}\nv_pk_add_f32 {v(rL + 2, 2)}, {v(rR + 2, 2)}, {v(rR + 6, 2)}")
    stamp(st)
    a(f"""
    v_permlane32_swap_b32 {v(rL)}, {v(rL + 2)}
    v_permlane32_swap_b32 {v(rL + 1)}, {v(rL + 3)}
    v_pk_add_f32 {v(rL, 2)}, {v(rL, 2)}, {v(rL + 2, 2)}
    v_mov_b32 {v(rL + 2)}, {v(rL)}
    v_mov_b32 {v(rL + 3)}, {v(rL + 1)}
    v_permlane16_swap_b32 {v(rL)}, {v(rL + 2)}
    v_permlane16_swap_b32 {v(rL + 1)}, {v(rL + 3)}
    v_pk_add_f32 {v(rL, 2)}, {v(rL, 2)}, {v(rL + 2, 2)}
    """)
    if scale:
        a(f"v_pk_mul_f32 {v(rL, 2)}, {v(rL, 2)}, {v(rSC, 2)} op_sel_hi:[1,0]")
    a(f"""
    v_cvt_pk_bf16_f32 {v(rL)}, {v(rL)}, {v(rL + 1)}
    v_and_b32 {v(rL + 1)}, 0xffff0000, {v(rL)}
    v_lshlrev_b32 {v(rL)}, 16, {v(rL)}
    v_pk_add_f32 {v(rL, 2)}, {v(rL, 2)}, {v(rX0, 2)}
    v_cvt_pk_bf16_f32 {v(rL)}, {v(rL)}, {v(rL + 1)}
    s_mov_b32 exec_lo, 0xffff
    s_mov_b32 exec_hi, 0xffff
    """)


def red_publish():
    local_test()
    a(f"v_min_u32 {v(rL + 1)}, -2, {v(rL)}")
    store_local(f"global_store_dword {v(rS)}, {v(rL + 1)}, {sp(EX)}")
    a(f"""
    s_mov_b64 exec, -1
    v_and_b32 {v(rX1)}, 0xffff0000, {v(rL)}
    v_lshlrev_b32 {v(rX0)}, 16, {v(rL)}
    """)


red_collect(6, False, lambda: red_dst(XA))
red_publish()
s_expr(T0, [(W, 4)], L_FLAG + 16)
a(f"v_mov_b32 v3, {T0}\nds_write_b32 v3, v0")
stamp(7)
dB, dA, dACC, dHA0, dHA1, dSA, dT, dT2, dX = 64, 48, 56, 3, 4, 5, 6, 7, 96
def red_stats():
    ln_stats(range(dX, dX + 20), 9, rSC, ["x1", "x2", "s16", "s32"], 10, dT2)
    a(f"v_rcp_f32 {v(rSC)}, {v(rSC)}")


lin(dHA0, 4, [], HB)
a(f"""
    s_cmp_eq_u32 {NU}, 6
    s_cselect_b32 {T1}, 2, 0
    v_or_b32 {v(dT)}, {T1}, v0
    v_lshrrev_b32 {v(dT2)}, 1, {v(dT)}
    v_and_b32 {v(dT)}, {v(dT)}, {v(dT2)}
    v_and_b32 {v(dT)}, 1, {v(dT)}
    v_lshlrev_b32 {v(dT)}, 4, {v(dT)}
    v_sub_u32 {v(dHA1)}, {v(dHA0)}, {v(dT)}
    v_add_u32 {v(dSA)}, {PBH}, {v(oSA)}
    v_add_u32 {v(rA)}, {PBH}, {v(rA)}
""")
op_load_b(L_WD)
zero(range(dACC, dACC + 8))
def dn_pre():
    if OPT["pro"] == 3:
        stamp(6)
    a(f"""
    v_mov_b32 v10, {L_FLAG + 24}
L_DNF:
    ds_read_b32 v9, v10
    s_sub_u32 {SPIN}, {SPIN}, 1
    s_cbranch_scc1 L_DNG
    s_waitcnt lgkmcnt(0)
    v_cmp_eq_u32 vcc, -1, v9
    s_cbranch_vccnz L_DNF
L_DNG:
    """)
    if OPT["pro"] == 3:
        stamp(4)
    b_reads(dB, oT, 4, 64, R32)
    a(f"""
    s_mov_b32 {SPIN}, {SPIN_MAX}
L_DNH:
    ds_read_b32 v9, v10 offset:4
    s_sub_u32 {SPIN}, {SPIN}, 1
    s_cbranch_scc1 L_DNI
    s_waitcnt lgkmcnt(0)
    v_cmp_eq_u32 vcc, -1, v9
    s_cbranch_vccnz L_DNH
L_DNI:
    v_readfirstlane_b32 {NEAR}, v9
    s_and_b32 {NEAR}, {NEAR}, 8192
    s_mov_b32 {SPIN}, {SPIN_MAX}
    """)
    if OPT["pro"] == 3:
        stamp(5)


poll([(f"global_load_dwordx4 {v(dA, 4)}, {v(dHA0)}, {sp(EX)} sc1", dA, 4),
      (f"global_load_dwordx4 {v(dA + 4, 4)}, {v(dHA1)}, {sp(EX)} offset:1024 sc1", dA + 4, 4)], dT2, OPT["p_dn"],
     pre=dn_pre, deep=OPT["d2"] & 1, longpre=True)
for n in range(4):
    u, q = n >> 1, n & 1
    a(f"{SMF} {v(dACC + 4 * q, 4)}, {v(dA + 4 * u, 4)}, {v(dB + 8 * n, 8)}, {v(IDX)}")
a(f"""
    s_and_b32 {T0}, {TILE}, 7
    s_cmp_lg_u32 {T0}, {G}
    s_cselect_b32 {T0}, {LAYER}, 0
    s_cmp_lg_u32 {T0}, 0
    v_add_f32 {v(dACC)}, {v(dACC)}, {v(dACC + 2)}
    v_add_f32 {v(dACC + 5)}, {v(dACC + 5)}, {v(dACC + 7)}
    v_add_f32 {v(dACC)}, {v(dACC)}, {v(dACC + 5)}
    v_min_u32 {v(dACC)}, -2, {v(dACC)}
""")
pb_store(dSA, dACC)
if DIAG and OPT["stamps"] & 2:
    stamp(1)
    a(f"s_cmp_lg_u32 {T0}, 0")
a("s_cbranch_scc1 L_FIN")


def red2_mid():
    red_dst(XF)
    s_expr(T0, [(TILE, 32)])
    lane_expr(6, 7, [(2, 2, 1280), (0, 2, 8), (5, 1, 4)], T0)


red_collect(2, True, red2_mid)
a(f"""
    s_cmp_eq_u32 {LAYER}, 0
    s_cbranch_scc1 L_RED2P
    global_store_dword v6, {v(rL)}, {sp(pOUT)}
    {"s_mov_b64 exec, -1" if DIAG or OPT["padto"] else ""}
    {"s_branch L_FIN" if DIAG or OPT["padto"] else "s_endpgm"}
L_RED2P:
""")
red_publish()
if OPT["prio"] == 2:
    a("s_sleep 6")
a("s_branch L_NEXT")

for tag in ("", "V"):
    a(f"""
L_MXR{tag}:
    ds_read_b128 {v(cM, 4)}, {v(aMLR)} offset:64
    s_waitcnt lgkmcnt(0)
    s_sub_u32 {SPIN}, {SPIN}, 1
    s_cbranch_scc0 L_MXC{tag}
    s_branch L_MXD{tag}
    """)
a(f"""
L_E1:
    s_cmp_lg_u32 {ROLE}, 0
    s_cbranch_scc1 L_E2
    s_waitcnt vmcnt(0)
L_E2:
    s_cmp_ge_u32 {W}, 4
    s_branch L_YB
""")
a.label("L_VT")
v_tail()
a("s_nop 1\ns_branch L_PV")

a.label("L_STAGE")
if OPT["padfrom"] == 1:
    a("s_memrealtime s[100:101]")
a.c("stage this workgroup's role weights (L2 hits after the prefetch), then make them visible to every wave")
prostamp(0, 2)
a(f"s_cmp_lg_u32 {ROLE}, 0\ns_cbranch_scc1 L_RG_U")
s_expr(T0, [(FB0, 32 * 1280)])
add64(WOB, pWD, T0)
a(f"v_mov_b32 v41, {v(vDMA)}\ns_branch L_ROLE")
a.label("L_RG_U")
a("s_barrier")
a.c("other workgroups: one dword per 128-byte line of the W_gate / W_up columns of this group")
if OPT["nm"] + OPT["nt"] < 14:
    gu_prefetch(OPT["nm"] + OPT["nt"], 14)
if OPT["wdp"]:
    a.c("workgroups without a role also pull W_down in")
    a(f"s_cmp_lt_u32 {J}, 27\ns_cbranch_scc1 L_RG_G")
    s_expr(T1, [(J, 8), (W, 1)], -27 * 8)
    s_expr(T0, [(FB0, 32 * 1280)])
    add64(TB, pWD, T0)
    a(f"""
    s_mul_i32 {T0}, {T1}, {NU}
    s_lshl_b32 {T0}, {T0}, 3
    s_lshl_b32 {T1}, {NU}, 3
    s_sub_u32 {T1}, {T1}, 1
    v_min_u32 {v(vPF)}, {T1}, v0
    v_add_u32 {v(vPF)}, {T0}, {v(vPF)}
    v_lshlrev_b32 {v(vPF)}, 7, {v(vPF)}
    s_barrier
    global_load_dword {v(vDUM)}, {v(vPF)}, {sp(TB)}
    """)
a.label("L_RG_G")
prostamp(1, 2)
a(f"s_waitcnt vmcnt(0)\ns_cmp_lg_u32 {ROLE}, 1\ns_cbranch_scc1 L_ROLE2")
prostamp(2, 2)
for i in range(10):
    a(f"s_add_u32 m0, {T2L}, {i * 2 * R32}")
    a(f"global_load_lds_dwordx4 {v(vDMA)}, {sp(WOB)}")
    if i < 9:
        add64(WOB, WOB, 64 * 3456)
a("s_waitcnt vmcnt(0)\ns_barrier")
prostamp(5, 2)

a.label("L_ROLE2")
a("s_waitcnt vmcnt(0)")
a(f"""
    s_cmp_eq_u32 {PATH}, 2
    s_cbranch_scc1 L_HI
    s_cmp_eq_u32 {PATH}, 3
    s_cbranch_scc1 L_W2
""")
uB, uX, uACC, uS1, uONE, uXA, uSA, uCS, uT = 48, 28, 20, 16, 8, 3, 4, 5, 6
lin(uXA, 4, [], XA + 2048)


def up_setup():
    lane_expr(uSA, uCS, [(4, 1, 32), (1, 1, 16)])
    a(f"s_lshl_b32 {T0}, {W}, 4\nv_xor_b32 {v(uSA)}, {T0}, {v(uSA)}")
    b_addr(uT, uCS, 64, [(0, 1, 8), (1, 1, L_WU - L_WG)], L_WG, R32)
    a(f"v_add_u32 {v(uT)}, {v(uT)}, {v(uSA)}")
    for i in range(4):
        a(f"v_mov_b32 {v(uONE + i)}, {ONES}")
    zero(range(uS1, uS1 + 4))
    for n in range(10):
        for rho in range(4):
            off = 2 * R32 * n + (16 * (rho >> 1) + 2 * (rho & 1)) * 64
            a(f"ds_read_b64_tr_b16 {v(uB + 8 * n + 2 * rho, 2)}, {v(uT)} offset:{off}")
        if n >= 3:
            a("s_waitcnt lgkmcnt(12)")
            a(f"{SMF} {v(uS1, 4)}, {v(uONE, 4)}, {v(uB + 8 * (n - 3), 8)}, {v(IDX)}")
    a(f"""
    s_sub_u32 {T1}, {J}, 20
    s_lshr_b32 {T0}, {T1}, 2
    s_lshl_b32 {T0}, {T0}, 10
    s_and_b32 {T2}, {T1}, 2
    s_and_b32 {T1}, {T1}, 1
    """)
    s_expr(T0, [(T0, 1), (T2, 8), (T1, 32), (W, 256)], HB)
    lane_expr(uSA, uT, [(4, 2, 64), (1, 2, 4)], T0)
    zero(range(uACC, uACC + 8))
    for n in range(7, 10):
        a(f"s_waitcnt lgkmcnt({4 * (9 - n)})")
        a(f"{SMF} {v(uS1, 4)}, {v(uONE, 4)}, {v(uB + 8 * n, 8)}, {v(IDX)}")
    a(f"""
    v_add_f32 {v(uCS)}, {v(uS1)}, {v(uS1 + 2)}
    v_mul_f32 {v(uCS)}, {f32(1.0 / 640)}, {v(uCS)}
    """)
    stamp(7)


poll([(f"global_load_dwordx4 {v(uX + 4 * u, 4)}, {v(uXA)}, {sp(EX)} offset:{u * 1024 - 2048} sc1", uX + 4 * u, 4)
      for u in range(5)], uT, 0, pre=up_setup, slp=OPT["usl"], deep=OPT["d2"] & 16,
     each=lambda u: f"{MFMA} {v(uS1, 4)}, {v(uX + 4 * u, 4)}, {v(uONE, 4)}, {'0' if u == 0 else v(uS1, 4)}")
stamp(4)
for n in range(10):
    u, q = n >> 1, n & 1
    a(f"{SMF} {v(uACC + 4 * q, 4)}, {v(uX + 4 * u, 4)}, {v(uB + 8 * n, 8)}, {v(IDX)}")
    if n == 7:
        a(f"v_pk_add_f32 {v(uS1, 2)}, {v(uS1, 2)}, {v(uS1 + 2, 2)}")
    if n == 8:
        a(f"v_add_f32 {v(uS1)}, {v(uS1)}, {v(uS1 + 1)}")
a(f"s_mov_b32 s{MSK}, 0x00550055\ns_mov_b32 s{MSK + 1}, 0x00550055")
local_test()
a(f"""
    v_add_f32 {v(uACC)}, {v(uACC)}, {v(uACC + 2)}
    v_add_f32 {v(uACC + 5)}, {v(uACC + 5)}, {v(uACC + 7)}
    v_fma_f32 {v(uACC)}, -{v(uS1)}, {v(uCS)}, {v(uACC)}
    v_add_f32 {v(uACC)}, {v(uACC)}, {v(uACC + 5)}
    v_cvt_pk_bf16_f32 {v(uACC)}, {v(uACC)}, {v(uACC)}
    v_and_b32 {v(uACC)}, 0xffff0000, {v(uACC)}
    v_max_f32 {v(uACC + 1)}, 0, {v(uACC)}
    v_mul_f32_dpp {v(uACC + 1)}, {v(uACC)}, {v(uACC + 1)} row_ror:8 {DPP}
    v_mov_b32_dpp {v(uACC)}, {v(uACC + 1)} quad_perm:[1,1,3,3] {DPP}
    v_cvt_pk_bf16_f32 {v(uACC)}, {v(uACC + 1)}, {v(uACC)}
    v_min_u32 {v(uACC)}, -2, {v(uACC)}
    s_mov_b64 exec, {sp(MSK)}
""")
store_local(f"global_store_dword {v(uSA)}, {v(uACC)}, {sp(EX)}")
a("s_mov_b64 exec, -1")
stamp(5)
a.label("L_IDLE")
a(f"s_cmp_lg_u32 {LAYER}, 0\ns_cbranch_scc1 L_FIN")
a.label("L_NEXT")
a("s_waitcnt vmcnt(0)")
a(f"s_cmp_eq_u32 {W}, 3\ns_cbranch_scc1 L_HI")
att_addr(1)
att_init()
a("s_waitcnt lgkmcnt(0)")
a(f"s_mov_b32 {LAYER}, 1")
add64(EX, EX, LS)
a("s_branch L_BAR")

a.label("L_HI")
a(f"s_cmp_lg_u32 {LAYER}, 0\ns_cbranch_scc1 L_FIN")
a("s_waitcnt vmcnt(0)")
att_addr(1)
att_init()


def gate():
    a.c("stay off the L2 until the FFN activations are out")
    a(f"v_mov_b32 v62, {HB}")
    add64(TB, EX, -LS & 0xffffffff)
    a(f"s_sub_u32 s{TB + 1}, s{TB + 1}, 1")
    light(f"global_load_dword v61, v62, {sp(TB)} sc1", 61, 4)
    if OPT["gsl"]:
        a(f"s_sleep {OPT['gsl']}")


add64(EX, EX, LS)
a(f"s_cmp_eq_u32 {W}, 3\ns_cbranch_scc1 L_POLLER")
q = Q2M
qp_setup(q)
a(f"s_and_b32 {T1}, {J}, 3")
lin(q.XA0, 4, [(T1, 1280)], XF - LS)
lane_expr(q.XA1, q.T, [(2, 4, 16)], T0)
qp_saddr(q.SA, 1024)
a("s_waitcnt lgkmcnt(0)")
gate()
if OPT["prio"] == 1:
    a("s_setprio 2")
poll([(f"global_load_dwordx4 {v(q.X, 4)}, {v(q.XA0)}, {sp(EX)} sc1", q.X, 4),
      (f"global_load_dwordx4 {v(q.X + 4, 4)}, {v(q.XA1)}, {sp(EX)} offset:1024 sc1", q.X + 4, 4)], q.T, OPT["p_qp"], slp=OPT["qsl"], deep=OPT["d2"] & 2)
qp_mm(q)
stamp(4)
local_test()
qp_sum(q)
store_local(f"global_store_dword {v(q.SA)}, {v(q.A[0])}, {sp(pWS)}")
stamp(5)
a(f"s_setprio 0\ns_mov_b32 {LAYER}, 1\ns_branch L_BAR")

a.label("L_POLLER")
pX_ = 104
poller_qaddr(1024)
if OPT["warm"] & 1:
    for ins, _, _ in poller_qloads():
        a(ins)
s_expr(T0, [(BB, 64)], XF - LS)
lane_expr(96, pT, [(4, 2, 1280), (2, 2, 256), (0, 2, 16)], T0)
s_expr(T0, [(BB, 16)], XF - LS + 1024)
lane_expr(97, pT, [(4, 2, 1280), (2, 2, 64), (0, 2, 4)], T0)


def x_out_wait(tag, ra, rd):
    a(f"""
    v_mov_b32 {v(ra)}, {L_FLAG + 16}
    s_mov_b32 {SPIN}, {SPIN_MAX}
L_{tag}P:
    s_sleep 1
    ds_read_b64 {v(rd, 2)}, {v(ra)}
    s_sub_u32 {SPIN}, {SPIN}, 1
    s_cbranch_scc1 L_{tag}G
    s_waitcnt lgkmcnt(0)
    v_max_u32 {v(rd)}, {v(rd)}, {v(rd + 1)}
    v_cmp_eq_u32 vcc, -1, {v(rd)}
    s_cbranch_vccnz L_{tag}P
L_{tag}G:
    """)


a(f"s_cmp_lg_u32 {ROLE}, 0\ns_cbranch_scc1 L_W3E")
a.c("out/down workgroups: sentinel fill of the partial tiles of layer 2 (done before waves 0,1 publish again)")
a(f"s_lshr_b32 {T1}, {J}, 1\ns_and_b32 {T2}, {J}, 1")
s_expr(T0, [(T1, 16384), (T2, 4096), (G, 256)], 2 * PBH)
lane_expr(98, 99, [(5, 1, PBH), (4, 1, 2048), (0, 4, 16)], T0)
for i in range(4):
    a(f"v_mov_b32 {v(44 + i)}, -1")
x_out_wait("W3", 99, 100)
a.align(5)
a(f"global_store_dwordx4 v98, v[44:47], {sp(EG)} sc1\nglobal_store_dwordx4 v98, v[44:47], {sp(EG2)} sc1")
near_probe()
a(f"""
    v_mov_b32 v100, {NEAR}
    s_waitcnt vmcnt(0)
    ds_write_b32 v99, v100 offset:12
L_W3E:
""")
gate()
poll([(f"global_load_dwordx4 {v(pX_, 4)}, v96, {sp(EX)} sc1", pX_, 4),
      (f"global_load_dword {v(pX_ + 4)}, v97, {sp(EX)} sc1", pX_ + 4, 1)], pT, OPT["p_px"], slp=OPT["qsl"])
stamp(4)
poller_stats()
poller_bias()
stamp(5)
poll(poller_qloads(), pT, 0, deep=OPT["d2"] & 4)
stamp(6)
poller_finish()
a(f"""
    s_mov_b32 {LAYER}, 1
    v_mov_b32 v63, {CSC}
    s_mov_b32 exec_lo, 0x000f000f
    s_mov_b32 exec_hi, 0x000f000f
    s_waitcnt lgkmcnt(0)
    s_barrier
    s_branch L_BAR2
""")

a.label("L_W2")
a(f"s_cmp_lg_u32 {ROLE}, 0\ns_cbranch_scc1 L_IDLE\ns_cmp_lg_u32 {LAYER}, 0\ns_cbranch_scc1 L_W2S")
a.c("wave 2 of out/down workgroups, layer 1: W_down into LDS once both tiles of x are out")
a(f"s_lshl_b32 {T0}, {J}, 6")
add64(WOB, WOB, T0)
x_out_wait("W2", 6, 8)
a(f"s_sleep {OPT['fsl']}")
for n in range(14):
    if n == 12:
        a(f"s_cmp_eq_u32 {NU}, 6\ns_cbranch_scc1 L_W2D")
    a(f"s_mov_b32 m0, {L_WD + n * 1024 + (n >> 1) * 128}")
    if n:
        add64(WOB, WOB, 16 * 1280)
    a(f"global_load_lds_dwordx4 v41, {sp(WOB)}")
a(f"""
L_W2D:
    s_waitcnt vmcnt(0)
    ds_write_b32 v6, v6 offset:8
L_W2S:
""")
a.c("wave 2: variance of the four rows of x for the reduce waves")
lin(3, 4, [], XA + 2048)
lin(4, 2, [(LAYER, 64)], L_FLAG + 64)
a(f"v_mov_b32 v5, {XA}")
light(f"global_load_dword v6, v5, {sp(EX)} sc1", 6, 4)
poll([(f"global_load_dwordx4 {v(dX + 4 * u, 4)}, v3, {sp(EX)} offset:{u * 1024 - 2048} sc1", dX + 4 * u, 4)
      for u in range(5)], 7, 0, slp=3)
red_stats()
a(f"""
    v_min_u32 {v(rSC)}, -2, {v(rSC)}
    s_mov_b64 exec, 0xffff
    ds_write_b32 v4, {v(rSC)}
    s_mov_b64 exec, -1
    s_branch L_IDLE
""")

pX_ = 24
a.label("L_SLOW")
a.c("the group is spread over several XCDs: redo the sentinel fill and the q hand-off with write-through stores")
only_wave(2, "L_SL1")
for i in range(4):
    a(f"v_mov_b32 {v(44 + i)}, -1")
fill_local(" sc1", 44)
a("s_waitcnt vmcnt(0)")
a.label("L_SL1")
a(f"s_barrier\ns_cmp_lt_u32 {W}, 4\ns_cbranch_scc1 L_SL2")
qp_saddr(60, 0)
qp_saddr(61, 2048, 128)
a(f"""
    global_store_dword v60, v41, {sp(pWS)} sc1
    s_mov_b32 exec_hi, 0
    global_store_dword v61, v42, {sp(pWS)} sc1
    s_mov_b64 exec, -1
L_SL2:
""")
only_wave(2, "L_SL3")
lin(60, 2, [(G, 32 * MSTR), (J, MSTR)], MK)
a(f"""
    v_mov_b32 v61, 0x100
    s_mov_b64 exec, 1
    global_store_dword v60, v61, {sp(pWS)} sc1
    s_mov_b64 exec, -1
L_SL3:
""")
only_wave(3, "L_SL4")
s_expr(T0, [(G, 32 * MSTR)], MK)
a(f"""
    v_and_b32 v17, 31, v0
    v_lshl_add_u32 v17, v17, 4, {T0}
    s_mov_b32 {SPIN}, {SPIN_MAX}
    s_mov_b32 {T1}, 0x100
L_SL5:
    global_load_dword v18, v17, {sp(pWS)} sc1
    s_waitcnt vmcnt(0)
    v_cmp_ne_u32 vcc, {T1}, v18
    s_cbranch_vccz L_SL6
    s_sub_u32 {SPIN}, {SPIN}, 1
    s_cbranch_scc0 L_SL5
L_SL6:
""")
q1_loads()
a("s_waitcnt vmcnt(0)")
q1_collect("S")
a("s_waitcnt lgkmcnt(0)")
a.label("L_SL4")
a("s_barrier\ns_branch L_SLOW_RET")

a.label("L_FIN")
if OPT["padto"]:
    a(f"""
L_PAD:
    s_sleep 4
    s_memrealtime s[98:99]
    s_waitcnt lgkmcnt(0)
    s_sub_u32 s98, s98, s100
    s_cmp_lt_u32 s98, {OPT["padto"] * 100}
    s_cbranch_scc1 L_PAD
    """)
if DIAG:
    a("s_memrealtime s[98:99]\ns_memtime s[50:51]\ns_waitcnt lgkmcnt(0)\nv_mov_b32 v1, 0\ns_sub_u32 s50, s50, s100\nv_writelane_b32 v1, s50, 21")
    for i in range(16):
        a(f"v_writelane_b32 v1, s{STAMP0 + 2 * i}, {(i // 8) * 10 + i % 8}")
    a(f"""
    v_writelane_b32 v1, s100, 9
    v_writelane_b32 v1, s98, 19
    v_writelane_b32 v1, {LOCAL}, 20
    s_lshl_b32 {T0}, s2, 3
    s_add_u32 {T0}, {T0}, {W}
    s_lshl_b32 {T0}, {T0}, 8
    s_add_u32 {T0}, {T0}, {DIAG_OFF}
    v_lshl_add_u32 v2, v0, 2, {T0}
    global_store_dword v2, v1, {sp(pWS)}
    """)
a.label("L_END")
a("s_endpgm")

a.raw(f""".section .rodata,"a"
.p2align 6
.amdhsa_kernel {NAME}_kernel
  .amdhsa_next_free_vgpr 256
  .amdhsa_next_free_sgpr 102
  .amdhsa_accum_offset 256
  .amdhsa_group_segment_fixed_size 0
  .amdhsa_kernarg_size 96
  .amdhsa_user_sgpr_count 2
  .amdhsa_user_sgpr_kernarg_segment_ptr 1
  .amdhsa_system_sgpr_workgroup_id_x 1
  .amdhsa_float_denorm_mode_32 3
.end_amdhsa_kernel""")

open(sys.argv[1], "w").write(a.text())
if OPT["a8"]:
    import align8
    print("aligned / left misaligned:", align8.fix(sys.argv[1]))
print("written", sys.argv[1], "lines", len(a.out), "pad states", a.nops)
```

```python
import math
import struct
import sys

sys.path.insert(0, "gen")
from asmlib import Asm

NAME = "interleave_layers__sliding_block_cached__glu_gated_reglu__decode"

OPT = dict(diag=0, stamps=0xff, pro=0, padto=0, cut=0, force_global=0, cyc=0, cy2=0,
           thr=4, d2=39, xp=0, pol=1, early=7, k0=4, wq1=4, wq2=4, wq3=4, bq=6, hf=6, hc=15, hd=3, bp=26, xc=0, wide=0, late=0, lay=1, free=6, warm=2, fb=0, fl=0, gate=1, gsl=14, nt=7, wdp=1, pfp=31, upfree=1, fsl=2, mrd=5, prio=1, al=1, cov=2, vthr=0, a8=0, tlb=0, padfrom=0, hsl=0, rot=3, qsl=0, usl=0, near=1, gap=3, nm=0,
           slp=1, p_op=2, p_up=0, p_dn=0, p_qp=0, p_px=0)
for a_ in sys.argv[2:]:
    k_, v_ = a_.split("=")
    assert k_ in OPT, k_
    OPT[k_] = int(v_, 0)
DIAG, THR, CUT = OPT["diag"], OPT["thr"], OPT["cut"]

OB, XA, HB, LSE, LS = 0, 8192, 13312, 15360, 15488
XF = 2 * LS
GS = 36864
QR = 8 * GS
QRS = 2560
MK = QR + 256 * QRS
PBB, PBH = 966656, 163840
assert XF + 5120 <= GS and MK + 4096 <= PBB and PBB % 16384 == 0
MSTR = 16
DIAG_OFF = 16 << 20

L_WQ = 0
R32 = 2176
D32 = 1088
L_WO, L_WD = 20480, 55296
L_WG, L_WU = 20480, 64000
assert (L_WU - L_WG) % 256 == 0 and L_WU - L_WG >= 20 * R32 and L_WD >= L_WO + 16 * R32
L_OW = L_WU + 20 * R32
OWS, OWJ = 1184, 72
L_ML = L_OW + 8 * OWS
L_Q = L_ML + 256
L_P = L_Q + 256
L_OX = L_P + 1024
L_FLAG = L_OX + 4096
LDS_BYTES = L_FLAG + 256

W, G, J, LAYER, LOCAL = "s3", "s4", "s5", "s6", "s7"
pX, pK, pV, pWQ, pWO, pWG, pWU, pWD, pOUT, pDBG, pWS = 8, 10, 12, 14, 16, 20, 22, 24, 26, 28, 30
PM = 8
WOB = 0
KB, VB, TB, MSK, EX, OBM, ODD = 32, 34, 36, 44, 46, 52, 58
T0, T1, T2, T3 = "s38", "s39", "s49", "s50"
CSC, PLO, PHI, SPIN, XCC, PATH = "s40", "s41", "s42", "s43", "s48", "s51"
ONES, H, TILE, BB = "s54", "s55", "s56", "s57"
NU, FB0, ROLE, T2L = "s92", "s93", "s94", "s95"
OPW = H
NEAR = XCC
LO8 = 96
STAMP0 = 60

KREG, VREG, SREG = 128, 192, 64
IDX, vV = 1, 2
aQA, aPW, aPR, aOWW, aMLW, aOWR, aMLR, aOBA = 3, 4, 5, 6, 7, 8, 9, 10
oBA, oLA, oSA = 11, 12, 13
pCS = 12
rX0, rX1 = 14, 15
vDUM, vPF, vK, vDMA = 56, 57, 58, 59
vWQ = 16

DPP = "row_mask:0xf bank_mask:0xf"
MFMA = "v_mfma_f32_16x16x32_bf16"
SMF = "v_smfmac_f32_16x16x64_bf16"
SPIN_MAX = 1 << 18

a = Asm()


def sp(n):
    return "s[%d:%d]" % (n, n + 1)


def v(n, cnt=1):
    return "v%d" % n if cnt == 1 else "v[%d:%d]" % (n, n + cnt - 1)


def f32(x):
    return "0x%08x" % struct.unpack("<I", struct.pack("<f", x))[0]


def stamp(i):
    if not DIAG or not (OPT["stamps"] >> i) & 1:
        return
    l1, l2 = a.newlabel("ST"), a.newlabel("ST")
    a(f"""
    s_cmp_eq_u32 {LAYER}, 0
    s_cbranch_scc1 {l1}
    s_memrealtime {sp(STAMP0 + 16 + 2 * i)}
    s_branch {l2}
    {l1}:
    s_memrealtime {sp(STAMP0 + 2 * i)}
    {l2}:
    """)


def prostamp(slot, lvl=1):
    if DIAG and OPT["pro"] == lvl:
        a(f"s_memrealtime {sp(STAMP0 + 2 * slot)}")


def cyc(slot):
    if DIAG and (OPT["cyc"] >> slot) & 1:
        a(f"s_memtime {sp(STAMP0 + 2 * slot)}")


def cy2(slot, lvl=1):
    if DIAG and OPT["cy2"] == lvl:
        a(f"s_memtime {sp(STAMP0 + 2 * slot)}")


def keep_in_page(nbytes, jump=True):
    l = a.newlabel("PG")
    if jump:
        a(f"s_branch {l}")
    a.raw(f".p2align 12,,{nbytes + (320 if DIAG else 0)}")
    a.label(l)


def add64(dst, src, off):
    a(f"s_add_u32 s{dst}, s{src}, {off}\ns_addc_u32 s{dst + 1}, s{src + 1}, 0")


def lane_expr(reg, tmp, fields, base=None):
    first = True
    for pos, width, mul in fields:
        dst = reg if first else tmp
        if pos + width >= 6:
            a(f"v_lshrrev_b32 {v(dst)}, {pos}, v0" if pos else f"v_mov_b32 {v(dst)}, v0")
        elif pos == 0:
            a(f"v_and_b32 {v(dst)}, {(1 << width) - 1}, v0")
        else:
            a(f"v_bfe_u32 {v(dst)}, v0, {pos}, {width}")
        p2 = mul & (mul - 1) == 0
        if first:
            if mul != 1:
                a(f"v_lshlrev_b32 {v(reg)}, {mul.bit_length() - 1}, {v(reg)}" if p2
                  else f"v_mul_u32_u24 {v(reg)}, {mul}, {v(reg)}")
        elif p2:
            a(f"v_lshl_add_u32 {v(reg)}, {v(tmp)}, {mul.bit_length() - 1}, {v(reg)}")
        else:
            a(f"v_mul_u32_u24 {v(tmp)}, {mul}, {v(tmp)}\nv_add_u32 {v(reg)}, {v(reg)}, {v(tmp)}")
        first = False
    if base is not None:
        a(f"v_add_u32 {v(reg)}, {base}, {v(reg)}")


def s_expr(dst, terms, const=0):
    if not terms:
        a(f"s_mov_b32 {dst}, {const}")
        return
    first = True
    for s, mul in terms:
        d = dst if first else T3
        if mul == 1:
            if first:
                if s != d:
                    a(f"s_mov_b32 {d}, {s}")
            else:
                d = s
        elif mul & (mul - 1) == 0:
            a(f"s_lshl_b32 {d}, {s}, {mul.bit_length() - 1}")
        else:
            a(f"s_mul_i32 {d}, {s}, {mul}")
        if not first:
            a(f"s_add_u32 {dst}, {dst}, {d}")
        first = False
    if const:
        a(f"s_add_u32 {dst}, {dst}, {const}")


def lin(reg, shift, terms, const):
    s_expr(T0, terms, const)
    a(f"v_lshl_add_u32 {v(reg)}, v0, {shift}, {T0}")


def store_local(ins):
    lg, le = a.newlabel("SG"), a.newlabel("SE")
    a(f"""
    s_cbranch_scc1 {lg}
    {ins}
    s_branch {le}
    {lg}:
    {ins} sc1
    {le}:
    """)


def local_test():
    a(f"s_cmp_eq_u32 {LOCAL}, 0")


def check_ops(regs, tmp, dst="vcc"):
    ops, regs = [], list(regs)
    if len(regs) == 1:
        return [f"v_cmp_eq_u32 {dst}, -1, {v(regs[0])}"]
    if len(regs) == 2:
        ops.append(f"v_max_u32 {v(tmp)}, {v(regs[0])}, {v(regs[1])}")
    else:
        ops.append(f"v_max3_u32 {v(tmp)}, {v(regs[0])}, {v(regs[1])}, {v(regs[2])}")
        rest = regs[3:]
        while len(rest) >= 2:
            ops.append(f"v_max3_u32 {v(tmp)}, {v(tmp)}, {v(rest[0])}, {v(rest[1])}")
            rest = rest[2:]
        if rest:
            ops.append(f"v_max_u32 {v(tmp)}, {v(tmp)}, {v(rest[0])}")
    ops.append(f"v_cmp_eq_u32 {dst}, -1, {v(tmp)}")
    return ops


def light(ins, r0, slp):
    l1, ok = a.newlabel("PL"), a.newlabel("PK")
    a(f"s_mov_b32 {SPIN}, {SPIN_MAX}\ns_mov_b64 exec, 1")
    a.label(l1)
    a(f"{ins}\ns_waitcnt vmcnt(0)\nv_cmp_eq_u32 vcc, -1, {v(r0)}\ns_cbranch_vccz {ok}")
    if slp:
        a.c("back off between polls")
        a(f"s_sleep {slp}")
    a(f"s_sub_u32 {SPIN}, {SPIN}, 1\ns_cbranch_scc0 {l1}\n{ok}:\ns_mov_b64 exec, -1")


def poll(loads, tmp, mode=0, pre=None, slp=0, deep=False, each=None, longpre=False):
    assert not (deep and each)
    if mode == 1:
        light(loads[-1][0], loads[-1][1], OPT["slp"])
    if mode == 2:
        a("s_waitcnt vmcnt(0)")
    l2, chk, done = a.newlabel("PM"), a.newlabel("PC"), a.newlabel("PD")
    for ins, r0, n in loads:
        a(ins)
    a(f"s_mov_b32 {SPIN}, {SPIN_MAX}")
    if pre:
        pre()
    if deep:
        if not pre:
            a.c("half a round trip between the two poll rounds in flight")
            a("s_nop 15\ns_nop 7")
        for ins, r0, n in loads:
            a(ins)
        if longpre:
            a.c("half a round trip between the two poll rounds in flight")
            a("s_nop 11")
    a(f"s_branch {chk}")
    a.label(l2)
    if slp:
        a(f"s_sleep {slp}")
    for u, (ins, r0, n) in enumerate(loads):
        a(f"s_mov_b64 exec, {sp(PM + 2 * u)}")
        a(ins)
    a(f"s_mov_b64 exec, -1\ns_sub_u32 {SPIN}, {SPIN}, 1\ns_cbranch_scc1 {done}")
    a.label(chk)
    nl = len(loads)
    for u, (ins, r0, n) in enumerate(loads):
        a(f"s_waitcnt vmcnt({nl - 1 - u + (nl if deep else 0)})")
        if each:
            a(each(u))
        for o in check_ops(range(r0, r0 + n), tmp, sp(PM + 2 * u)):
            a(o)
        if u == 1:
            pend = f"s_or_b64 {sp(MSK)}, {sp(PM)}, {sp(PM + 2)}"
        elif u > 1:
            a(pend)
            pend = f"s_or_b64 {sp(MSK)}, {sp(MSK)}, {sp(PM + 2 * u)}"
    a(pend)
    a(f"s_cbranch_scc1 {l2}\n{done}:")


def quad_gather(r):
    for k in (1, 2, 3):
        a(f"v_mov_b32_dpp {v(r + k)}, {v(r)} quad_perm:[{k},{k},{k},{k}] {DPP}")
    a(f"s_mov_b32 exec_lo, 0x11111111\ns_mov_b32 exec_hi, 0x11111111")


def zero(regs):
    for r in regs:
        a(f"v_mov_b32 {v(r)}, 0")


def b_addr(reg, tmp, rowbytes, extra, base, r32=None):
    lane_expr(reg, tmp, [(3, 1, r32 or 32 * rowbytes), (4, 2, 4 * rowbytes), (2, 1, rowbytes)] + extra, base)


def b_reads(dst, addr, nblk, rowbytes, r32=None):
    r32 = r32 or 32 * rowbytes
    for blk in range(nblk):
        for rho in range(4):
            off = 2 * r32 * blk + (16 * (rho >> 1) + 2 * (rho & 1)) * rowbytes
            a(f"ds_read_b64_tr_b16 {v(dst + 8 * blk + 2 * rho, 2)}, {v(addr)} offset:{off}")


def lane_sum(regs, steps, tmps):
    for st in steps:
        if st in ("s16", "s32"):
            for r, t in zip(regs, tmps):
                a(f"v_mov_b32 {v(t)}, {v(r)}")
            for r, t in zip(regs, tmps):
                a(f"v_permlane{st[1:]}_swap_b32 {v(r)}, {v(t)}")
            for r, t in zip(regs, tmps):
                a(f"v_add_f32 {v(r)}, {v(r)}, {v(t)}")
        else:
            pat = {"x1": "quad_perm:[1,0,3,2]", "x2": "quad_perm:[2,3,0,1]", "hm": "row_half_mirror",
                   "r4": "row_ror:4", "r8": "row_ror:8"}[st]
            for r in regs:
                a(f"v_add_f32_dpp {v(r)}, {v(r)}, {v(r)} {pat} {DPP}")


def ln_stats(xregs, s1, s2, steps, t1, t2):
    for n, r in enumerate(xregs):
        a(f"v_dot2_f32_bf16 {v(s1)}, {v(r)}, {ONES}, {'0' if n == 0 else v(s1)}")
        a(f"v_dot2_f32_bf16 {v(s2)}, {v(r)}, {v(r)}, {'0' if n == 0 else v(s2)}")
    lane_sum([s1, s2], steps, [t1, t2])
    a(f"""
    v_mul_f32 {v(s1)}, {f32(1.0 / 640)}, {v(s1)}
    v_mul_f32 {v(s2)}, {f32(1.0 / 640)}, {v(s2)}
    v_fma_f32 {v(s2)}, -{v(s1)}, {v(s1)}, {v(s2)}
    v_max_f32 {v(s2)}, 0, {v(s2)}
    v_add_f32 {v(s2)}, {f32(1e-5)}, {v(s2)}
    """)


class QM:
    def __init__(self, B, X, A, XA0, XA1, SA, T):
        self.B, self.X, self.A, self.XA0, self.XA1, self.SA, self.T = B, X, A, XA0, XA1, SA, T


Q1M = QM(64, 88, [96, 100, 104], 108, 109, 110, 111)
Q2M = QM(96, 120, [36, 44, 56], 41, 42, 43, 60)


def qp_setup(q):
    s_expr(T0, [(W, 32)], L_WQ - 4 * 32)
    b_addr(q.T, q.SA, 128, [(0, 2, 8)], T0)
    b_reads(q.B, q.T, 3, 128)
    for r in q.A:
        zero(range(r, r + 4))


def qp_saddr(reg, off, wmul=256):
    lin(reg, 2, [(G, 32 * QRS), (J, QRS), (W, wmul)], QR + off - 4 * wmul)


def qp_mm(q):
    a(f"""
    {SMF} {v(q.A[0], 4)}, {v(q.X, 4)}, {v(q.B, 8)}, {v(IDX)}
    {SMF} {v(q.A[1], 4)}, {v(q.X, 4)}, {v(q.B + 8, 8)}, {v(IDX)}
    {SMF} {v(q.A[2], 4)}, {v(q.X + 4, 4)}, {v(q.B + 16, 8)}, {v(IDX)}
    """)


def qp_sum(q):
    A0, A1, A2 = q.A
    a(f"""
    v_add_f32 {v(A0)}, {v(A0)}, {v(A0 + 2)}
    v_add_f32 {v(A1 + 1)}, {v(A1 + 1)}, {v(A1 + 3)}
    v_add_f32 {v(A0)}, {v(A0)}, {v(A1 + 1)}
    v_add_f32 {v(A0)}, {v(A0)}, {v(A2)}
    v_min_u32 {v(A0)}, -2, {v(A0)}
    """)


pX_, pQ, pS1, pS2, pA, pC, pLW, pT, pT2 = 24, 112, 120, 121, 122, 123, 124, 125, 126


def poller_stats():
    ln_stats(range(pX_, pX_ + 5), pS1, pS2, ["x1", "x2", "r4", "r8", "s16", "s32"], pT, pT2)
    a(f"v_rsq_f32 {v(pS2)}, {v(pS2)}")


def poller_qaddr(off):
    a(f"s_and_b32 {T1}, {J}, 24")
    s_expr(T0, [(G, 32 * QRS), (T1, QRS), (BB, 64)], QR + off + 3840)
    lane_expr(pA, pT, [(5, 1, 4 * QRS), (3, 2, 256), (0, 3, 8)], T0)
    lane_expr(pLW, pT, [(5, 1, 128), (3, 1, 64), (0, 1, 32), (4, 1, 16), (1, 2, 4)], L_Q)


def poller_qloads():
    return [(f"global_load_dwordx2 {v(pQ + 2 * kq, 2)}, {v(pA)}, {sp(pWS)} offset:{kq * QRS - 3840} sc1", pQ + 2 * kq, 2) for kq in range(4)]


def poller_finish():
    r = pX_
    a(f"""
    v_pk_add_f32 {v(r, 2)}, {v(pQ, 2)}, {v(pQ + 2, 2)}
    v_pk_add_f32 {v(r + 2, 2)}, {v(pQ + 4, 2)}, {v(pQ + 6, 2)}
    v_pk_fma_f32 {v(r, 2)}, {v(r, 2)}, {v(pS1, 2)}, {v(r + 4, 2)} op_sel:[0,1,0] op_sel_hi:[1,1,1]
    v_pk_fma_f32 {v(r, 2)}, {v(r + 2, 2)}, {v(pS1, 2)}, {v(r, 2)} op_sel:[0,1,0] op_sel_hi:[1,1,1]
    v_cvt_pk_bf16_f32 {v(r)}, {v(r)}, {v(r + 1)}
    ds_write_b32 {v(pLW)}, {v(r)}
    """)


def poller_bias():
    a(f"""
    v_mul_f32 {v(pT)}, {v(pS1)}, {v(pS2)}
    v_mul_f32 {v(pX_ + 4)}, -{v(pT)}, {v(pCS)}
    v_mul_f32 {v(pX_ + 5)}, -{v(pT)}, {v(pCS + 1)}
    """)


aQV, aONE, aLA, IDX2, aQK, aP, aACC, aS, aT = 16, 32, 36, 40, 48, 52, 64, 60, 61


def att_addr(layer):
    t = aT
    lane_expr(aQA, t, [(4, 2, 64), (0, 2, 16)], L_Q)
    s_expr(T0, [(W, 128)], L_P)
    lane_expr(aPW, t, [(0, 1, 64), (2, 1, 32), (4, 1, 16), (1, 1, 8), (5, 1, 4), (3, 1, 2)], T0)
    lane_expr(aPR, t, [(4, 2, 32), (2, 1, 16)], T0)
    s_expr(T0, [(W, OWS)], L_OW)
    lane_expr(aOWW, t, [(0, 4, 16), (4, 1, 8), (5, 1, 8 * OWJ)], T0)
    s_expr(T0, [(W, 8)], L_ML + 128 * layer)
    lane_expr(aMLW, t, [(4, 1, 4)], T0)
    s_expr(T0, [(W, 64)], L_OW)
    lane_expr(aOWR, t, [(0, 2, 2 * OWS), (2, 2, 4 * OWJ), (4, 2, 16)], T0)
    lane_expr(aMLR, t, [(0, 2, 16)], L_ML + 128 * layer)
    a(f"s_lshr_b32 {T1}, {W}, 1\ns_and_b32 {T2}, {W}, 1")
    s_expr(T0, [(T1, 1024), (T2, 32), (BB, 64)], OB)
    a(f"s_lshr_b32 {T1}, {J}, 3\ns_and_b32 {T2}, {J}, 1")
    s_expr(T0, [(T0, 1), (T1, 2048), (T2, 16)])
    lane_expr(aOBA, t, [(4, 2, 256), (2, 2, 4)], T0)
    s_expr(T0, [(BB, 32), (T1, 8), (T2, 4)], LSE)
    a(f"v_writelane_b32 {v(aOBA)}, {T0}, 1")


def att_init(lo=16, acc=True):
    zero(list(range(lo, 32)) + list(range(aQK, aQK + 8)) + (list(range(aACC, aACC + 16)) if acc else []))
    for i in range(4):
        a(f"v_mov_b32 {v(aONE + i)}, {ONES}")
    a(f"""
    v_bfe_u32 {v(IDX2)}, v0, 2, 1
    v_mul_u32_u24 {v(IDX2)}, 0xaaaa, {v(IDX2)}
    v_add_u32 {v(IDX2)}, 0x4444, {v(IDX2)}
    """)


hdr = open("cdna_kernels/%s.s.ref" % NAME).read().split("\n")
for line in hdr:
    if line.startswith("; @launch"):
        a.raw("; @launch grid=(256,1,1) block=(512,1,1) lds=%d" % LDS_BYTES)
    elif line.startswith(";"):
        a.raw(line)
    else:
        break
a.raw('.amdgcn_target "amdgcn-amd-amdhsa--gfx950"')
a.raw(".text")
a.raw(".globl %s_kernel" % NAME)
if OPT["al"]:
    a.raw(".p2align 12")
a.raw(".p2align 8")
a.raw(".type %s_kernel,@function" % NAME)
a.raw("%s_kernel:" % NAME)
a(f"""
    s_cmp_ge_u32 s2, 256
    s_cbranch_scc1 L_END
    s_load_dwordx16 s[8:23], s[0:1], 0
    s_load_dwordx8 s[24:31], s[0:1], 64
""")
a.c("pull the kernel's own code into L2: six 128-byte lines per workgroup")
a(f"""
    s_getpc_b64 {sp(TB)}
L_PC:
    s_and_b32 {T0}, s2, 0xf8
    s_mul_i32 {T0}, {T0}, 96
    v_min_u32 v1, 5, v0
    v_lshl_add_u32 v1, v1, 7, {T0}
    v_min_u32 v1, L_END-L_PC, v1
    global_load_dword {v(vDUM)}, v1, {sp(TB)}
    s_mov_b32 {LAYER}, 0
""")
if OPT["padto"]:
    a("s_memrealtime s[100:101]")
if DIAG:
    for i in range(16):
        a(f"s_mov_b64 {sp(STAMP0 + 2 * i)}, 0")
    a("s_memrealtime s[100:101]")
a(f"""
    v_lshrrev_b32 v1, 6, v0
    v_and_b32 v0, 63, v0
    v_readfirstlane_b32 {W}, v1
    s_and_b32 {G}, s2, 7
    s_lshr_b32 {J}, s2, 3
    s_lshr_b32 {T0}, {J}, 3
    s_add_u32 {H}, {G}, {T0}
    s_and_b32 {H}, {H}, 7
    s_and_b32 {T0}, {J}, 24
    s_add_u32 {H}, {H}, {T0}
    s_bfe_u32 {BB}, {J}, 0x20001
    s_and_b32 {T1}, {J}, 1
""")
s_expr(T2, [(BB, 1 << 25), (H, 1 << 20), (T1, 1 << 17), ] + ([] if OPT["rot"] else [(W, 1 << 11)]), 0xC0000)
RO = "s18"
lane_expr(vK, 60, [(1, 3, 256), (0, 1, 64), (4, 2, 16)])
a(f"v_lshlrev_b32 {v(vV)}, 4, v0")
for i in range(4):
    a(f"v_mov_b32 {v(124 + i)}, -1")
a(f"s_lshl_b32 {T0}, {J}, 3\ns_add_u32 {T0}, {T0}, {W}\ns_waitcnt lgkmcnt(0)")
if OPT["rot"]:
    R1, R2 = {1: (2, 9), 2: (2, 0), 3: (8, 24), 4: (10, 9), 5: (24, 8), 6: (8, 0), 7: (12, 24), 8: (16, 8)}[OPT["rot"]]
    add64(pK, pK, T2)
    add64(pV, pV, T2)
    s_expr(RO, [(W, 2048), (J, R1 * 2048)] + ([(G, R2 * 2048)] if R2 else []))
else:
    add64(KB, pK, T2)
    add64(VB, pV, T2)
a(f"s_cmp_eq_u32 {T0}, {999 if CUT & 128 else 1}\ns_cbranch_scc1 L_LEAD\nL_PRO_L:")


def fill_local(fl, d):
    D = v(d, 4)
    lin(60, 4, [(G, GS), (J, 1152)], 0)
    a(f"global_store_dwordx4 v60, {D}, {sp(pWS)}{fl}")
    a(f"s_mov_b64 exec, 0xff\nglobal_store_dwordx4 v60, {D}, {sp(pWS)} offset:1024{fl}\ns_mov_b64 exec, -1")
    lin(60, 4, [(G, 32 * QRS), (J, QRS)], QR)
    a(f"global_store_dwordx4 v60, {D}, {sp(pWS)}{fl}\nglobal_store_dwordx4 v60, {D}, {sp(pWS)} offset:1024{fl}")
    a(f"s_mov_b32 exec_hi, 0\nglobal_store_dwordx4 v60, {D}, {sp(pWS)} offset:2048{fl}\ns_mov_b64 exec, -1")


def fill_pb(hop, d):
    a(f"s_lshr_b32 {T1}, {J}, 1\ns_and_b32 {T2}, {J}, 1")
    s_expr(T0, [(T1, 16384), (T2, 4096), (G, 256)], PBB + hop * PBH)
    lane_expr(60, 61, [(5, 1, 8192), (4, 1, 2048), (0, 4, 16)], T0)
    a(f"global_store_dwordx4 v60, {v(d, 4)}, {sp(pWS)} sc1")


SKIP = [False]


def stream(i, thr=True):
    if OPT["lay"]:
        B_ = KB if i < 16 else VB
        if OPT["rot"]:
            if not i & 1:
                if i:
                    a(f"s_add_u32 {RO}, {RO}, 16384")
                a(f"s_and_b32 {RO}, {RO}, 0x1ffff")
                add64(B_, pK if i < 16 else pV, RO)
        elif i & 15 and not i & 1:
            add64(B_, B_, 16384)
        if i < 16:
            a(f"global_load_dwordx4 {v(KREG + 4 * i, 4)}, {v(vK)}, {sp(KB)} offset:{(i & 1) * 128} nt")
        else:
            a(f"global_load_dwordx4 {v(SREG + (i - 16) * 4, 4)}, {v(vV)}, {sp(VB)} offset:{(i & 1) * 1024} nt")
    elif i < 16:
        if i == 8:
            add64(KB, KB, 65536)
        kq, hf = (i >> 1) & 3, i & 1
        a(f"global_load_dwordx4 {v(KREG + 4 * i, 4)}, {v(vK)}, {sp(KB)} offset:{kq * 2048 + hf * 128 - 4096} nt")
    else:
        if i == 24:
            add64(VB, VB, 65536)
        a(f"global_load_dwordx4 {v(SREG + (i - 16) * 4, 4)}, {v(vV)}, {sp(VB)} offset:{(i & 7) * 1024 - 4096} nt")
    if thr:
        l = a.newlabel("TS")
        if SKIP[0]:
            a(f"s_cbranch_vccnz {l}")
        a(f"s_waitcnt vmcnt({THR - 1})")
        a.label(l)


def only_wave(w, label, off=False):
    a(f"s_cmp_lg_u32 {W}, {9 if off else w}\ns_cbranch_scc1 {label}")


def h_first():
    a(f"s_cmp_lg_u32 {W}, 2\ns_cselect_b64 vcc, 0, -1")
    a(f"s_cmp_ge_u32 {W}, 4\ns_cbranch_scc1 L_PRO_X")
    a(f"s_lshl_b32 {TILE}, {J}, 1\ns_add_u32 {TILE}, {TILE}, {W}")
    a(f"s_cmp_eq_u32 {W}, 3\ns_cbranch_scc1 L_PRO_X3\ns_cmp_eq_u32 {W}, 2\ns_cbranch_scc1 L_PRO_X2")
    a(f"s_min_u32 {T1}, {TILE}, 39")
    s_expr(T0, [(T1, 32)])
    lane_expr(60, 61, [(2, 2, 1280), (0, 2, 8), (5, 1, 4)], T0)
    a(f"global_load_dword {v(rX0)}, v60, {sp(pX)}")
    if OPT["tlb"]:
        a.c("first touch of pages that are streamed later")
        a(f"""
        v_and_b32 v60, 1, v0
        v_lshlrev_b32 v60, 16, v60
        global_load_dword {v(vDUM)}, v60, {sp(VB)} nt
        """)
    if OPT["tlb"] & 2:
        a(f"""
        v_and_b32 v60, 3, v0
        v_lshlrev_b32 v60, 20, v60
        v_min_u32 v61, {640 * 3456 - 4}, v60
        global_load_dword {v(vDUM)}, v61, {sp(pWG)} nt
        global_load_dword {v(vDUM)}, v61, {sp(pWU)} nt
        global_load_dword {v(vDUM)}, v61, {sp(pWD)} nt
        v_and_b32 v60, 7, v0
        v_lshlrev_b32 v60, 20, v60
        v_min_u32 v61, {4096 * 1280 - 4}, v60
        global_load_dword {v(vDUM)}, v61, {sp(pWO)} nt
        """)
    a("s_branch L_PRO_A")
    a.label("L_PRO_X2")
    a.c("wave 2: sentinel fill; plain stores are enough if the group shares one L2 (checked later, redone otherwise)")
    if not CUT & 2:
        if not OPT["xc"] & 1:
            fill_local("", 124)
        a(f"s_cmp_ge_u32 {J}, {0 if OPT['xc'] & 2 else 20}\ns_cbranch_scc1 L_PRO_C")
        fill_pb(0, 124)
        if OPT["fb"] == 0:
            a(f"v_add_u32 v60, {PBH}, v60\nglobal_store_dwordx4 v60, v[124:127], {sp(pWS)} sc1")
    a.label("L_PRO_C")
    a.c("wave 2: LDS zero areas")
    zero(range(44, 48))
    a(f"""
    v_lshlrev_b32 v62, 2, v0
    v_add_u32 v62, {L_ML}, v62
    ds_write_b32 v62, v124
    v_lshlrev_b32 v62, 2, v0
    v_add_u32 v62, {L_FLAG}, v62
    ds_write_b32 v62, v124
    v_add_u32 v62, {L_OX}, {v(vV)}
    ds_write_b128 v62, v[124:127]
    ds_write_b128 v62, v[124:127] offset:1024
    ds_write_b128 v62, v[124:127] offset:2048
    ds_write_b128 v62, v[124:127] offset:3072
    v_add_u32 v62, {L_WD + 6 * R32}, {v(vV)}
    s_cmp_ge_u32 {J}, 20
    s_cbranch_scc1 L_PRO_A
    ds_write_b128 v62, v[44:47]
    ds_write_b128 v62, v[44:47] offset:1024
    ds_write_b128 v62, v[44:47] offset:{R32}
    ds_write_b128 v62, v[44:47] offset:{R32 + 1024}
    s_branch L_PRO_A
    """)
    a.label("L_LEAD")
    a.c("wave 1 of the group's first workgroup: reset the group's arrival markers, then raise the group's flag")
    lin(60, 4, [(G, 32 * MSTR)], MK)
    a(f"""
    s_lshl_b32 {T0}, {G}, 5
    v_mov_b32 v62, {T0}
    s_mov_b32 exec_hi, 0
    global_store_dwordx4 v60, v[124:127], {sp(pWS)} sc1
    s_waitcnt vmcnt(0)
    s_mov_b64 exec, 1
    global_store_dword v62, v124, {sp(pDBG)} sc1
    s_mov_b64 exec, -1
    s_branch L_PRO_L
    """)
    a.label("L_PRO_X3")
    lin(60, 2, [(BB, 1280)], 0)
    for u in range(5):
        a(f"global_load_dword {v(pX_ + u)}, v60, {sp(pX)} offset:{u * 256}")
    a("s_branch L_PRO_A")
    a.label("L_PRO_X")
    a(f"s_and_b32 {T1}, {J}, 3")
    s_expr(T0, [(T1, 320)])
    q = Q1M
    lane_expr(q.XA0, q.T, [(2, 2, 1280), (0, 1, 128), (1, 1, 64), (4, 2, 16)], T0)
    lane_expr(q.XA1, q.T, [(2, 2, 1280), (4, 2, 16)], T0)
    a(f"global_load_dwordx4 {v(q.X, 4)}, {v(q.XA0)}, {sp(pX)}")
    a(f"global_load_dwordx4 {v(q.X + 4, 4)}, {v(q.XA1)}, {sp(pX)} offset:256")
    a.label("L_PRO_A")
    lane_expr(vWQ, 61, [(3, 3, 8192), (0, 3, 16)])
    a(f"s_and_b32 {T1}, {J}, 3\ns_and_b32 {T2}, {J}, 4")
    s_expr(T0, [(T1, 160 * 8192), (W, 8 * 8192), (H, 256), (T2, 32)])
    add64(TB, pWQ, T0)
    prostamp(0)


def h_wq(n):
    l = a.newlabel("WQ")
    if n == 2:
        a(f"s_cmp_ge_u32 {W}, 4\ns_cbranch_scc1 {l}")
    a(f"s_lshl_b32 {T1}, {W}, 10\ns_add_u32 m0, {T1}, {L_WQ + n * 8192}")
    if not CUT & 4:
        a(f"global_load_lds_dwordx4 {v(vWQ)}, {sp(TB)} nt")
    if n < 2:
        add64(TB, TB, 64 * 8192)
    a.label(l)


def h_setup1():
    a(f"""
    s_mov_b32 {ONES}, 0x3f803f80
    v_bfe_u32 {v(IDX)}, v0, 1, 1
    v_mul_u32_u24 {v(IDX)}, 0xaaaa, {v(IDX)}
    v_add_u32 {v(IDX)}, 0x4444, {v(IDX)}
    s_mov_b32 {CSC}, {f32(math.log2(math.e) / math.sqrt(128.0))}
    s_mov_b32 {PLO}, 0x05040100
    s_mov_b32 {PHI}, 0x07060302
    s_mov_b32 s{ODD}, 0xaaaaaaaa
    s_mov_b32 s{ODD + 1}, 0xaaaaaaaa
    s_mov_b32 s{LO8}, 0x00ff00ff
    s_mov_b32 s{LO8 + 1}, 0x00ff00ff
    s_mov_b32 s{OBM}, 0x11111111
    s_mov_b32 s{OBM + 1}, 0x11111111
    s_cmp_eq_u32 {W}, 0
    s_cselect_b32 s{OBM}, 0x11111113, s{OBM}
    s_mul_i32 {T0}, {G}, {GS}
    s_add_u32 s{EX}, s{pWS}, {T0}
    s_addc_u32 s{EX + 1}, s{pWS + 1}, 0
    s_cmp_lt_u32 {G}, 6
    s_cselect_b32 {NU}, 7, 6
    s_mul_i32 {FB0}, {G}, 7
    s_min_u32 {FB0}, {FB0}, 48
    s_sub_u32 {T0}, {J}, 20
    s_cmp_lt_u32 {T0}, {NU}
    s_cselect_b32 {ROLE}, 1, 2
    s_cmp_lt_u32 {J}, 20
    s_cselect_b32 {ROLE}, 0, {ROLE}
    """)
    a.c("PATH: 0 out/down projection, 1 gate/up, 2 q projection or q collector, 3 nothing")
    a(f"""
    s_cmp_ge_u32 {W}, 3
    s_cselect_b32 {PATH}, 2, 3
    s_lshl_b32 {T0}, 2, {ROLE}
    s_and_b32 {T0}, {T0}, 7
    s_cmp_lt_u32 {W}, {T0}
    s_cselect_b32 {PATH}, {ROLE}, {PATH}
    s_cmp_lg_u32 {ROLE}, 0
    s_cbranch_scc1 L_PRO_RU
    """)
    a.c("role weight staging: source pointer, swizzled per-lane offset, LDS base")
    lane_expr(vDMA, 60, [(2, 4, 1280), (0, 2, 16)])
    s_expr(T0, [(W, 16 * 1280), (J, 64)])
    add64(WOB, pWO, T0)
    a(f"s_lshr_b32 {T1}, {W}, 1")
    s_expr(T2L, [(W, 1024), (T1, 128)], L_WO)
    a("s_branch L_PRO_R")
    a.label("L_PRO_RU")
    lane_expr(vDMA, 60, [(2, 4, 3456), (0, 2, 16)])
    a(f"""
    s_and_b32 {T0}, {W}, 4
    s_lshl_b32 {T0}, {T0}, 2
    v_xor_b32 {v(vDMA)}, {T0}, {v(vDMA)}
    s_add_u32 {T1}, {FB0}, {J}
    s_sub_u32 {T1}, {T1}, 20
    s_and_b32 {T2}, {W}, 3
    s_cmp_ge_u32 {W}, 4
    s_cselect_b32 s{WOB}, s{pWU}, s{pWG}
    s_cselect_b32 s{WOB + 1}, s{pWU + 1}, s{pWG + 1}
    s_mov_b32 {T2L}, {L_WG}
    s_cselect_b32 {T2L}, {L_WU}, {T2L}
    s_lshr_b32 {T0}, {T2}, 1
    """)
    s_expr(T2L, [(T2L, 1), (T2, 1024), (T0, 128)])
    s_expr(T0, [(T1, 64), (T2, 16 * 3456)])
    add64(WOB, WOB, T0)
    a.label("L_PRO_R")
    a(f"v_and_b32 v60, 16, v0\nv_lshlrev_b32 v60, 1, v60\nv_xor_b32 {v(vDMA)}, {v(vDMA)}, v60")


def h_setup3():
    att_init(32, acc=False)
    lin(oBA, 4, [(W, 2048)], OB)
    zero([12])
    a(f"s_lshr_b32 {T1}, {J}, 1\ns_and_b32 {T2}, {J}, 1")
    lin(oSA, 2, [(T1, 16384), (T2, 4096), (W, 2048), (G, 256)], 0)
    zero([41, 42, vPF, pA, pC])


def h_flag():
    a(f"""
    v_and_b32 v17, 7, v0
    v_lshlrev_b32 v17, 5, v17
    v_mov_b32 v18, 0
    v_lshlrev_b32 v19, 4, v0
    v_add_u32 v19, {MK}, v19
    """)
    only_wave(2, "L_HA0", CUT & 32)
    a(f"global_load_dword v18, v17, {sp(pDBG)} sc1")
    a.label("L_HA0")


def h_bq(nafter, nflag):
    a(f"s_waitcnt vmcnt({nafter}) lgkmcnt(0)")
    only_wave(2, "L_HA1", CUT & 32)
    a.c("wave 2: sentinel fill done and the group's markers reset -> publish this workgroup's XCD id")
    lin(62, 2, [(G, 32 * MSTR), (J, MSTR)], MK)
    a(f"""
    s_getreg_b32 {XCC}, hwreg(HW_REG_XCC_ID, 0, 4)
    v_mov_b32 v44, {XCC}
    s_mov_b32 {SPIN}, {SPIN_MAX}
    s_barrier
    s_waitcnt vmcnt({nflag})
L_ARR:
    v_readlane_b32 {T0}, v18, {G}
    s_cmp_lg_u32 {T0}, 0
    s_cbranch_scc1 L_ARR_OK
    global_load_dword v18, v17, {sp(pDBG)} sc1
    s_waitcnt vmcnt(0)
    s_sub_u32 {SPIN}, {SPIN}, 1
    s_cbranch_scc0 L_ARR
L_ARR_OK:
    s_mov_b64 exec, 1
    global_store_dwordx4 v62, v[44:47], {sp(pWS)} sc1
    s_mov_b64 exec, -1
    s_branch L_PRO_KV
L_HA1:
    """)
    prostamp(3)
    a(f"""
    s_barrier
    s_cmp_ge_u32 {W}, {9 if CUT & 16 else 4}
    s_cbranch_scc1 L_PRO_Q
    s_cmp_eq_u32 {W}, 3
    s_cbranch_scc1 L_PRO_P
    v_and_b32 {v(rX1)}, 0xffff0000, {v(rX0)}
    v_lshlrev_b32 {v(rX0)}, 16, {v(rX0)}
    s_branch L_PRO_KV
    """)
    a.label("L_PRO_Q")
    a.c("waves 4..7: partial q projection of layer 1 and partial column sums")
    qp_setup(Q1M)
    qp_saddr(Q1M.SA, 0)
    qB, qSA, qACC = Q1M.B, Q1M.SA, Q1M.A[0]
    qp_saddr(112, 2048, 128)
    zero(range(116, 124))
    for i in range(4):
        a(f"v_mov_b32 {v(124 + i)}, {ONES}")
    a("s_waitcnt lgkmcnt(0)")
    qp_mm(Q1M)
    a(f"""
    {SMF} v[116:119], v[124:127], {v(qB, 8)}, {v(IDX)}
    {SMF} v[116:119], v[124:127], {v(qB + 8, 8)}, {v(IDX)}
    {SMF} v[120:123], v[124:127], {v(qB + 16, 8)}, {v(IDX)}
    """)
    qp_sum(Q1M)
    a(f"""
    v_add_f32 v116, v116, v118
    v_add_f32 v116, v116, v120
    v_min_u32 v42, -2, v116
    v_mov_b32 v41, {v(qACC)}
    global_store_dword {v(qSA)}, v41, {sp(pWS)}
    s_mov_b32 exec_hi, 0
    global_store_dword v112, v42, {sp(pWS)}
    s_mov_b64 exec, -1
    s_mov_b64 vcc, -1
    s_branch L_PRO_KV
    """)
    a.label("L_PRO_P")
    a.c("wave 3: LayerNorm statistics of its row")
    if not CUT & 8:
        a(f"global_load_dword v18, v17, {sp(pDBG)} sc1")
    poller_qaddr(0)
    s_expr(T0, [(G, 32 * QRS), (T1, QRS)], QR + 2048 + 3840)
    lane_expr(pC, pT, [(5, 1, 4 * QRS), (3, 2, 128), (0, 3, 8)], T0)
    poller_stats()
    a.label("L_PRO_KV")
    if OPT["padfrom"] == 3:
        a("s_memrealtime s[100:101]")
    prostamp(4)


MK_LOADS = "\n".join(f"global_load_dword {v(20 + u)}, v19, {sp(pWS)} offset:{u * 64 * MSTR} sc1" for u in range(4))


def q1_loads():
    for ins, _, _ in poller_qloads():
        a(ins)
    for kq in range(4):
        a(f"global_load_dwordx2 {v(pX_ + 2 * kq, 2)}, {v(pC)}, {sp(pWS)} offset:{kq * QRS - 3840} sc1")


def h_p1(ny):
    only_wave(3, "L_H1", CUT & 8)
    a.c("wave 3: all groups have reset their markers -> read the markers")
    a(f"""
    s_mov_b32 {SPIN}, {SPIN_MAX}
    s_waitcnt vmcnt({ny})
L_FLG:
    v_cmp_eq_u32 vcc, 0, v18
    s_cbranch_vccz L_FLG_OK
    global_load_dword v18, v17, {sp(pDBG)} sc1
    s_waitcnt vmcnt(0)
    s_sub_u32 {SPIN}, {SPIN}, 1
    s_cbranch_scc0 L_FLG
L_FLG_OK:
    {MK_LOADS}
    s_mov_b64 vcc, -1
L_H1:
    """)
    prostamp(2)


def h_p2(ny):
    only_wave(3, "L_H2", CUT & 8)
    a.c("wave 3: the whole group has arrived -> fetch q partials; decide whether the group shares one L2")
    a(f"""
    s_getreg_b32 {XCC}, hwreg(HW_REG_XCC_ID, 0, 4)
    s_mov_b32 {SPIN}, {SPIN_MAX}
    s_waitcnt vmcnt({ny})
L_CNT:
    s_bitcmp1_b32 {G}, 1
    s_cselect_b64 vcc, -1, 0
    v_cndmask_b32 v17, v20, v21, vcc
    v_cndmask_b32 v18, v22, v23, vcc
    s_bitcmp1_b32 {G}, 2
    s_cselect_b64 vcc, -1, 0
    v_cndmask_b32 v17, v17, v18, vcc
    v_cmp_eq_u32 vcc, -1, v17
    s_bitcmp1_b32 {G}, 0
    s_cselect_b32 {T0}, vcc_hi, vcc_lo
    s_cmp_eq_u32 {T0}, 0
    s_cbranch_scc1 L_CNT_OK
    {MK_LOADS}
    s_waitcnt vmcnt(0)
    s_sub_u32 {SPIN}, {SPIN}, 1
    s_cbranch_scc0 L_CNT
L_CNT_OK:
    """)
    q1_loads()
    a(f"""
    {MK_LOADS}
    v_cmp_ne_u32 vcc, {XCC}, v17
    v_mov_b32 v18, {L_FLAG}
    s_bitcmp1_b32 {G}, 0
    s_cselect_b32 {T0}, vcc_hi, vcc_lo
    s_cmp_lg_u32 {T0}, 0
    s_cselect_b32 {T0}, 0, {0 if OPT['force_global'] else 1}
    s_mov_b32 {LOCAL}, {T0}
    v_mov_b32 v17, {T0}
    ds_write_b32 v18, v17
    s_mov_b64 vcc, -1
L_H2:
    """)
    prostamp(5)


def h_p4():
    a.c("wave 3: every workgroup of every group must have arrived before this workgroup publishes or polls anything else")
    a(f"""
    s_mov_b32 {SPIN}, {SPIN_MAX}
L_ALL:
    v_max3_u32 v17, v20, v21, v22
    v_max_u32 v17, v17, v23
    v_cmp_eq_u32 vcc, -1, v17
    s_cbranch_vccz L_ALL_OK
    s_sleep 4
    {MK_LOADS}
    s_waitcnt vmcnt(0)
    s_sub_u32 {SPIN}, {SPIN}, 1
    s_cbranch_scc0 L_ALL
L_ALL_OK:
    """)
    if OPT["warm"] & 2:
        a.c("keep the hand-off lines in L2 so that the first polls do not miss")
        s_expr(T0, [(J, 1152)])
        a(f"""
        v_min_u32 v17, 8, v0
        v_lshl_add_u32 v17, v17, 7, {T0}
        global_load_dword {v(vDUM)}, v17, {sp(EX)} sc1
        """)
        s_expr(T0, [(G, 32 * QRS), (J, QRS)], QR + 1024)
        a(f"""
        v_and_b32 v17, 7, v0
        v_lshl_add_u32 v17, v17, 7, {T0}
        global_load_dword {v(vDUM)}, v17, {sp(pWS)} sc1
        """)
    a.label("L_H4")


def q1_collect(tag):
    a(f"s_mov_b32 {SPIN}, {SPIN_MAX}")
    a.label("L_Q1" + tag)
    for s_ in check_ops(list(range(pX_, pX_ + 8)) + list(range(pQ, pQ + 8)), pT):
        a(s_)
    a(f"s_cbranch_vccz L_Q1_OK{tag}")
    q1_loads()
    a(f"""
    s_waitcnt vmcnt(0)
    s_sub_u32 {SPIN}, {SPIN}, 1
    s_cbranch_scc0 L_Q1{tag}
L_Q1_OK{tag}:
    v_pk_add_f32 {v(pX_, 2)}, {v(pX_, 2)}, {v(pX_ + 2, 2)}
    v_pk_add_f32 {v(pX_ + 4, 2)}, {v(pX_ + 4, 2)}, {v(pX_ + 6, 2)}
    v_pk_add_f32 {v(pCS, 2)}, {v(pX_, 2)}, {v(pX_ + 4, 2)}
    """)
    poller_bias()
    poller_finish()


def h_p3(ny):
    only_wave(3, "L_H3", CUT & 8)
    a(f"s_waitcnt vmcnt({ny})\ns_cmp_eq_u32 {LOCAL}, 0\ns_cbranch_scc1 L_H3B")
    q1_collect("")
    a.label("L_H3B")
    h_p4()
    a("s_waitcnt lgkmcnt(0)\ns_mov_b64 vcc, -1")
    a.label("L_H3")
    prostamp(6)


K0, BQ, HF, HC, HD, BP = OPT["k0"], OPT["bq"], OPT["hf"], OPT["hc"], OPT["hd"], OPT["bp"]
hooks = {}


def h_unfree():
    a(f"s_cmp_eq_u32 {W}, 3\ns_cselect_b64 vcc, vcc, 0")


for pos, fn in [(K0, h_first), (K0, lambda: h_wq(0)), (K0, lambda: h_wq(1)), (K0, lambda: h_wq(2)),
                (K0 + 1, h_setup1), (K0 + 2, h_setup3), (HF, h_flag),
                (BQ + 2, lambda: h_bq(BQ + 2 - K0, BQ + 2 - HF)), (BQ + 3, lambda: att_addr(0)),
                (BQ + 2 + OPT["free"], h_unfree),
                (HC, lambda: h_p1(HC - BQ - 2)), (HC + HD, lambda: h_p2(HD)), (HC + 2 * HD, lambda: h_p3(HD))]:
    hooks.setdefault(pos, []).append(fn)
assert K0 + 2 <= BQ + 2 <= 16 and K0 <= HF < BQ + 2 <= HC and HC + 2 * HD < BP and 24 <= BP <= 28 and HC + 2 * HD <= 28
SKIP[0] = True
for i in range(BP):
    for fn in hooks.get(i, []):
        fn()
    stream(i, thr=not (i < K0 or BQ <= i < BQ + 2 or i >= BP - OPT['cov']))
SKIP[0] = False
a("s_waitcnt vmcnt(%d)" % (BP - 16))
prostamp(1)
a(f"""
    v_mov_b32 v62, {L_FLAG}
    s_barrier
    ds_read_b32 v62, v62
    v_mov_b32 v63, {CSC}
    s_waitcnt lgkmcnt(0)
    v_readfirstlane_b32 {LOCAL}, v62
    s_cmp_eq_u32 {LOCAL}, {9 if CUT else 0}
    s_cbranch_scc1 L_SLOW
L_SLOW_RET:
""")
if OPT["padfrom"] == 2:
    a("s_memrealtime s[100:101]")
zero(range(16, 32))
a("s_mov_b32 exec_lo, 0x000f000f\ns_mov_b32 exec_hi, 0x000f000f\ns_branch L_BAR2")


def perms(t, pp):
    for j in range(8):
        s0 = SREG + t * 32 + (2 * pp) * 4 + (j >> 1)
        a(f"v_perm_b32 {v(VREG + j * 8 + t * 4 + pp)}, {v(s0 + 4)}, {v(s0)}, {PHI if j & 1 else PLO}")


def gu_prefetch(lo, hi, issue=True):
    s_expr(T1, [(J, 8), (W, 1)], -160)
    a(f"""
    s_cmp_ge_u32 {T1}, 48
    s_cselect_b32 s{TB}, s{pWU}, s{pWG}
    s_cselect_b32 s{TB + 1}, s{pWU + 1}, s{pWG + 1}
    s_cselect_b32 {T0}, 48, 0
    s_sub_u32 {T1}, {T1}, {T0}
    s_mul_i32 {T1}, {T1}, 14
    s_add_u32 {T1}, {T1}, {lo}
    s_lshr_b32 {T2}, {FB0}, 1
    s_lshl_b32 {T2}, {T2}, 7
    s_sub_u32 {T0}, {NU}, 4
    v_lshrrev_b32 {v(vPF)}, 2, v0
    v_min_u32 {v(vPF)}, {hi - lo - 1}, {v(vPF)}
    v_add_u32 {v(vPF)}, {T1}, {v(vPF)}
    v_min_u32 {v(vPF)}, 639, {v(vPF)}
    v_mul_u32_u24 {v(vPF)}, 3456, {v(vPF)}
    v_and_b32 {v(vK)}, 3, v0
    v_min_u32 {v(vK)}, {T0}, {v(vK)}
    v_lshl_add_u32 {v(vPF)}, {v(vK)}, 7, {v(vPF)}
    v_add_u32 {v(vPF)}, {T2}, {v(vPF)}
    """)
    if issue:
        a(f"global_load_dword {v(vDUM)}, {v(vPF)}, {sp(TB)}")


def wo_prefetch():
    if OPT["upfree"]:
        a.c("wo into L2, one dword per line; the gate/up workgroups are left out so that they finish K/V early")
        a(f"""
        s_sub_u32 {T0}, {J}, 20
        s_cmp_lt_u32 {T0}, 7
        s_cbranch_scc1 L_WPE
        s_cmp_ge_u32 {J}, 20
        s_cselect_b32 {T0}, 7, 0
        s_sub_u32 {T0}, {J}, {T0}
        """)
        s_expr(T0, [(T0, 8 * 26), (W, 26)])
        a(f"""
        v_min_u32 {v(vPF)}, 25, v0
        v_add_u32 {v(vPF)}, {T0}, {v(vPF)}
        v_min_u32 {v(vPF)}, 5119, {v(vPF)}
        v_mul_u32_u24 {v(vK)}, 3277, {v(vPF)}
        v_lshrrev_b32 {v(vK)}, 22, {v(vK)}
        v_add_u32 v62, {G}, {v(vK)}
        v_and_b32 v62, 7, v62
        v_mul_u32_u24 {v(vK)}, 7, {v(vK)}
        v_add_u32 v62, v62, {v(vK)}
        v_mul_u32_u24 v62, 1280, v62
        v_add_lshl_u32 {v(vPF)}, {v(vPF)}, v62, 7
        global_load_dword {v(vDUM)}, {v(vPF)}, {sp(pWO)}
    L_WPE:
        """)
        return
    a(f"s_and_b32 {T1}, {J}, 7")
    s_expr(T0, [(H, 128 * 1280), (T1, 8 * 2560), (W, 2560)])
    a(f"""
    v_min_u32 {v(vPF)}, 19, v0
    v_lshl_add_u32 {v(vPF)}, {v(vPF)}, 7, {T0}
    global_load_dword {v(vDUM)}, {v(vPF)}, {sp(pWO)}
    """)


NTAIL = 1 if OPT["pfp"] == 32 else 0


def v_tail():
    done = 0
    for i in range(BP, 32):
        if i == OPT["pfp"]:
            wo_prefetch()
        stream(i, thr=i < 31 - OPT['vthr'])
        if done < 4:
            a(f"s_waitcnt vmcnt({i - (17 + 2 * done)})")
            perms(0, done)
            done += 1
    assert done == 4
    if OPT["pfp"] == 32:
        wo_prefetch()
    prostamp(7)
    a(f"s_lshr_b32 {OPW}, {W}, 2\ns_or_b32 {OPW}, {OPW}, {ROLE}")
    zero(range(aACC, aACC + 16))
    weights("V", True)
    for pp in range(4):
        a(f"s_waitcnt vmcnt({6 - 2 * pp + NTAIL})")
        perms(1, pp)
        if pp == 2:
            a(f"s_cmp_eq_u32 {ROLE}, 0\ns_cbranch_scc1 L_NT0")
            gu_prefetch(0, OPT["nt"], issue=False)
            a.label("L_NT0")
        if pp == 1:
            for i in range(4):
                a(f"""
                s_add_u32 {T0}, {G}, {i}
                s_and_b32 {T0}, {T0}, 7
                s_add_u32 {T0}, {T0}, {8 * i}
                s_mul_i32 s{PM + i}, {T0}, {128 * 1280}
                """)
    a.c("K and V are in: first part of the W_gate / W_up prefetch")
    a(f"s_cmp_eq_u32 {ROLE}, 0\ns_cbranch_scc1 L_NT1")
    a(f"global_load_dword {v(vDUM)}, {v(vPF)}, {sp(TB)}\ns_branch L_PV")
    a.label("L_NT1")
    for i in range(4):
        a(f"s_add_u32 m0, {T2L}, {i * 4 * R32}")
        add64(TB, WOB, f"s{PM + i}")
        a(f"global_load_lds_dwordx4 {v(vDMA)}, {sp(TB)}")


MXS = "s44"
keep_in_page(0x840, jump=False)
a.label("L_BAR")
a(f"""
    v_mov_b32 v63, {CSC}
    s_mov_b32 exec_lo, 0x000f000f
    s_mov_b32 exec_hi, 0x000f000f
    s_barrier
L_BAR2:
""")
stamp(0)
cyc(0)
for o in range(4):
    a(f"ds_read_b128 {v(aQV + 4 * o, 4)}, {v(aQA)}")
    a("s_lshl_b64 exec, exec, 4" if o < 3 else "s_mov_b64 exec, -1")
for o in range(4):
    a(f"s_waitcnt lgkmcnt({3 - o})")
    for t in range(2):
        a(f"{SMF} {v(aQK + 4 * t, 4)}, {v(aQV + 4 * o, 4)}, {v(KREG + (t * 4 + o) * 8, 8)}, {v(IDX)}")
cyc(1)
a(f"""
    v_pk_add_f32 {v(aQK, 2)}, {v(aQK, 2)}, {v(aQK + 2, 2)}
    v_pk_add_f32 {v(aQK + 4, 2)}, {v(aQK + 4, 2)}, {v(aQK + 6, 2)}
    v_cndmask_b32 {v(aT)}, {v(aQK + 4)}, {v(aQK + 1)}, {sp(ODD)}
    v_cndmask_b32 {v(aS)}, {v(aQK)}, {v(aQK + 5)}, {sp(ODD)}
    v_add_f32_dpp {v(aS)}, {v(aT)}, {v(aS)} quad_perm:[1,0,3,2] {DPP}
    v_max_f32_dpp {v(aT)}, {v(aS)}, {v(aS)} quad_perm:[1,0,3,2] {DPP}
    v_max_f32_dpp {v(aT)}, {v(aT)}, {v(aT)} quad_perm:[2,3,0,1] {DPP}
    v_max_f32_dpp {v(aT)}, {v(aT)}, {v(aT)} row_ror:4 {DPP}
    v_max_f32_dpp {v(aT)}, {v(aT)}, {v(aT)} row_ror:8 {DPP}
    v_max_f32_dpp {v(aT)}, {v(aT)}, {v(aT)} row_bcast:15 row_mask:0xa bank_mask:0xf
    v_max_f32_dpp {v(aT)}, {v(aT)}, {v(aT)} row_bcast:31 row_mask:0xc bank_mask:0xf
    v_readlane_b32 {MXS}, {v(aT)}, 63
    v_mul_f32 {v(aT)}, {MXS}, v63
    v_fma_f32 {v(aS)}, {v(aS)}, v63, -{v(aT)}
    v_exp_f32 {v(aS)}, {v(aS)}
    v_min_u32 {v(aT)}, -2, {v(aT)}
    v_cvt_pk_bf16_f32 {v(aS)}, {v(aS)}, {v(aS)}
    ds_write_b16 {v(aPW)}, {v(aS)}
    s_mov_b64 exec, {sp(LO8)}
    ds_read_b128 v[16:19], {v(aPR)}
    s_not_b64 exec, exec
    ds_read_b128 v[28:31], {v(aPR)}
    s_mov_b64 exec, 1
    ds_write_b32 {v(aMLW)}, {v(aT)} offset:64
    s_mov_b64 exec, -1
""")
cM, cO, cW = 20, 24, 44


def weights(tag, first):
    if first:
        a(f"ds_read_b128 {v(cM, 4)}, {v(aMLR)} offset:64\ns_waitcnt lgkmcnt(0)")
    a(f"""
    s_mov_b32 {SPIN}, {SPIN_MAX}
L_MXC{tag}:
    v_max_u32 {v(aS)}, {v(cM)}, {v(cM + 2)}
    v_cmp_eq_u32 vcc, -1, {v(aS)}
    v_max_f32 {v(aT)}, {v(cM)}, {v(cM + 2)}
    s_cbranch_vccnz L_MXR{tag}
L_MXD{tag}:
    s_nop 0
    v_max_f32_dpp {v(aT)}, {v(aT)}, {v(aT)} quad_perm:[1,0,3,2] {DPP}
    v_max_f32_dpp {v(aT)}, {v(aT)}, {v(aT)} quad_perm:[2,3,0,1] {DPP}
    v_sub_f32 {v(cW)}, {v(cM)}, {v(aT)}
    v_sub_f32 {v(cW + 1)}, {v(cM + 2)}, {v(aT)}
    v_exp_f32 {v(cW)}, {v(cW)}
    v_exp_f32 {v(cW + 1)}, {v(cW + 1)}
    """)


cyc(2)
a(f"s_cmp_eq_u32 {LAYER}, 0\ns_cbranch_scc1 L_VT")
a.label("L_PV")
a("s_waitcnt lgkmcnt(2)")
cyc(3)
pvm = [f"{SMF} {v(aACC + 4 * (j & 3), 4)}, {v(16 if j < 4 else 28, 4)}, {v(VREG + j * 8, 8)}, {v(IDX2)}" for j in range(8)]
oww = [f"ds_write2_b32 {v(aOWW)}, {v(aACC + 8 * jp)}, {v(aACC + 8 * jp + 4)} offset0:{OWJ * jp} offset1:{OWJ * jp + 1}"
       for jp in range(2)]
a(f"{MFMA} {v(aLA, 4)}, v[16:19], {v(aONE, 4)}, 0")
for n, j in enumerate((0, 1, 4, 5, 2, 3, 6, 7)):
    if n == 2:
        a("s_waitcnt lgkmcnt(1)")
    a(pvm[j])
    if n == OPT["mrd"]:
        a(f"ds_read_b128 v[20:23], {v(aMLR)} offset:64")
a(f"""
    s_cmp_eq_u32 {LAYER}, 0
    {oww[0]}
    s_mov_b64 exec, 0x10001
    ds_write_b32 {v(aMLW)}, {v(aLA)}
    s_mov_b64 exec, -1
    {oww[1]}
    s_cbranch_scc1 L_E1
    s_cmp_ge_u32 {W}, 4
    s_cbranch_scc1 L_YB
""")
cyc(4)
a("s_waitcnt lgkmcnt(3)")
weights("", False)
a(f"s_cmp_ge_u32 {W}, 4")
a.label("L_YB")
a("s_waitcnt lgkmcnt(0)")
cyc(5)
a("s_barrier\ns_cbranch_scc1 L_ATT_END")
cyc(6)
a(f"""
    ds_read_b128 {v(cM, 4)}, {v(aMLR)}
    ds_read_b128 {v(cO, 4)}, {v(aOWR)}
    ds_read_b128 {v(cO + 4, 4)}, {v(aOWR)} offset:{OWS}
""")
local_test()
a(f"""
    s_waitcnt lgkmcnt(2)
    v_add_f32 {v(cM)}, {v(cM)}, {v(cM + 1)}
    v_add_f32 {v(cM + 2)}, {v(cM + 2)}, {v(cM + 3)}
    v_mul_f32 {v(aS)}, {v(cW)}, {v(cM)}
    v_fmac_f32 {v(aS)}, {v(cW + 1)}, {v(cM + 2)}
    s_waitcnt lgkmcnt(0)
    {f"s_memtime {sp(STAMP0 + 2)}" if OPT["pro"] == 4 else ""}
    v_pk_add_f32 {v(cO, 2)}, {v(cO, 2)}, {v(cO + 2, 2)}
    v_add_f32_dpp {v(aS)}, {v(aS)}, {v(aS)} quad_perm:[1,0,3,2] {DPP}
    v_pk_add_f32 {v(cO + 4, 2)}, {v(cO + 4, 2)}, {v(cO + 6, 2)}
    v_pk_mul_f32 {v(cO, 2)}, {v(cO, 2)}, {v(cW, 2)} op_sel_hi:[1,0]
    v_add_f32_dpp {v(aS)}, {v(aS)}, {v(aS)} quad_perm:[2,3,0,1] {DPP}
    v_pk_fma_f32 {v(cO, 2)}, {v(cO + 4, 2)}, {v(cW, 2)}, {v(cO, 2)} op_sel:[0,1,0] op_sel_hi:[1,1,1]
    v_rcp_f32 {v(cW + 2)}, {v(aS)}
    v_log_f32 {v(aS)}, {v(aS)}
    v_add_f32_dpp {v(cO)}, {v(cO)}, {v(cO)} quad_perm:[1,0,3,2] {DPP}
    v_add_f32_dpp {v(cO + 1)}, {v(cO + 1)}, {v(cO + 1)} quad_perm:[1,0,3,2] {DPP}
    v_add_f32 {v(cM)}, {v(aS)}, {v(aT)}
    v_add_f32_dpp {v(cO)}, {v(cO)}, {v(cO)} quad_perm:[2,3,0,1] {DPP}
    v_add_f32_dpp {v(cO + 1)}, {v(cO + 1)}, {v(cO + 1)} quad_perm:[2,3,0,1] {DPP}
    s_mov_b32 exec_lo, s{OBM + 1}
    v_pk_mul_f32 {v(cO, 2)}, {v(cO, 2)}, {v(cW + 2, 2)} op_sel_hi:[1,0]
    v_cvt_pk_bf16_f32 {v(cM)}, {v(cO)}, {v(cO + 1)}
    s_mov_b64 exec, {sp(OBM)}
    v_min_u32 {v(cO)}, -2, {v(cM)}
""")
cyc(7)
store_local(f"global_store_dword {v(aOBA)}, {v(cO)}, {sp(EX)}")
a("s_mov_b64 exec, -1")
a.label("L_ATT_END")
stamp(3)
if CUT & 1:
    a("s_branch L_FIN")
a(f"s_cmp_eq_u32 {LAYER}, 0\ns_cbranch_scc1 L_STAGE")
a.label("L_ROLE")
a(f"s_cmp_lg_u32 {OPW}, 0\ns_cbranch_scc1 L_ROLE2")

oB, oA, oACC, oL, oT, oT2 = 64, 16, 48, 4, 6, 7
rL, rR, rA, rS, rT, rSC = 48, 16, 2, 4, 5, 8


EG, EG2 = VB, KB


def pb_store(addr, data):
    a(f"global_store_dword {v(addr)}, {v(data)}, {sp(EG)} sc1")
    a(f"global_store_dword {v(addr)}, {v(data)}, {sp(EG2)} sc1")


def op_load_b(base):
    lane_expr(oT2, oT, [(4, 1, 32)])
    a(f"s_lshl_b32 {T0}, {W}, 5\nv_xor_b32 v9, {T0}, {v(oT2)}")
    b_addr(oT, oT2, 64, [(0, 2, 8)], base, R32)
    a(f"v_add_u32 {v(oT)}, {v(oT)}, v9")


a.c("waves 0..3: one head each, both column tiles; waves 0,1 then add the four partial results of their tile")
oL, oLA_, oXW, oB1 = 24, 3, 4, 5
ld = [(f"global_load_dwordx4 {v(oA + 4 * n, 4)}, {v(oBA)}, {sp(EX)} offset:{n * 1024} sc1", oA + 4 * n, 4) for n in range(2)]
ld.append((f"global_load_dwordx2 {v(oL, 2)}, {v(oLA_)}, {sp(EX)} sc1", oL, 2))
cy2(0)
s_expr(T0, [(W, 4 * R32)], L_WO)
b_addr(oT, oT2, 64, [(0, 2, 8)], T0, R32)
a(f"""
    v_and_b32 {v(oT2)}, 16, v0
    v_lshl_add_u32 {v(oB1)}, {v(oT2)}, 1, {v(oT)}
    v_xor_b32 {v(oT2)}, 16, {v(oT2)}
    v_lshl_add_u32 {v(oT)}, {v(oT2)}, 1, {v(oT)}
""")


def op_reads():
    b_reads(oB, oB1, 2, 64, R32)
    b_reads(oB + 16, oT, 2, 64, R32)


op_reads()
s_expr(T0, [(W, 8)], LSE)
lane_expr(oLA_, oT2, [(4, 2, 32)], T0)


def op_pre():
    cy2(1)
    zero(range(oACC, oACC + 8))
    lin(oXW, 2, [(LAYER, 2048), (W, 256)], L_OX)
    lin(10, 2, [(LAYER, 2048), (W, 1024)], L_OX)
    a(f"s_lshr_b32 {T1}, {TILE}, 2\ns_and_b32 {T2}, {TILE}, 3")
    lin(rA, 4, [(T1, 16384), (T2, 2048)], 0)
    s_expr(T0, [(LAYER, 2 * PBH)], PBB)
    add64(EG, pWS, T0)
    add64(EG2, EG, 8192)
    a("s_waitcnt lgkmcnt(0)")


poll(ld, oT2, OPT["p_op"], pre=op_pre, deep=OPT["d2"] & 32)
cy2(2)
if OPT["cy2"] == 1:
    a(f"s_sub_u32 s{STAMP0 + 8}, {SPIN_MAX + 1}, {SPIN}")
sm = lambda t, u: f"{SMF} {v(oACC + 4 * t, 4)}, {v(oA + 4 * u, 4)}, {v(oB + 16 * t + 8 * u, 8)}, {v(IDX)}"
a(f"""
    {sm(0, 0)}
    v_sub_f32 v8, {v(oL + 1)}, {v(oL)}
    {sm(0, 1)}
    v_exp_f32 v8, v8
    {sm(1, 0)}
    v_add_f32 v8, 1.0, v8
    {sm(1, 1)}
    v_rcp_f32 v8, v8
    s_mov_b32 {SPIN}, {SPIN_MAX}
    s_cmp_ge_u32 {W}, 2
    v_sub_f32 v9, 1.0, v8
    v_pk_add_f32 {v(oACC, 2)}, {v(oACC, 2)}, {v(oACC + 2, 2)}
    v_mul_f32 {v(oACC)}, v8, {v(oACC)}
    v_fmac_f32 {v(oACC)}, v9, {v(oACC + 1)}
    v_pk_add_f32 {v(oACC + 4, 2)}, {v(oACC + 4, 2)}, {v(oACC + 6, 2)}
    v_min_u32 {v(oACC)}, -2, {v(oACC)}
    v_mul_f32 {v(oACC + 4)}, v8, {v(oACC + 4)}
    v_fmac_f32 {v(oACC + 4)}, v9, {v(oACC + 5)}
    v_min_u32 {v(oACC + 4)}, -2, {v(oACC + 4)}
    ds_write2st64_b32 {v(oXW)}, {v(oACC)}, {v(oACC + 4)} offset0:0 offset1:4
    s_cbranch_scc1 L_ROLE2
L_OXP:
    ds_read2st64_b32 v[56:57], v10 offset0:0 offset1:1
    ds_read2st64_b32 v[58:59], v10 offset0:2 offset1:3
    s_sub_u32 {SPIN}, {SPIN}, 1
    s_cbranch_scc1 L_OXD
    s_waitcnt lgkmcnt(0)
    v_max3_u32 {v(oT2)}, v56, v57, v58
    v_max_u32 {v(oT2)}, {v(oT2)}, v59
    v_cmp_eq_u32 vcc, -1, {v(oT2)}
    v_pk_add_f32 v[60:61], v[56:57], v[58:59]
    s_cbranch_vccnz L_OXP
L_OXD:
""")
stamp(4)
a("v_add_f32 v60, v60, v61\nv_min_u32 v60, -2, v60")
cy2(3)
pb_store(oSA, 60)
stamp(5)

def red_dst(dst):
    if dst == XA:
        a(f"s_lshr_b32 {T1}, {TILE}, 3\ns_and_b32 {T2}, {TILE}, 7\ns_lshl_b32 {T1}, {T1}, 10")
    else:
        a(f"""
        s_mul_i32 {T1}, {TILE}, 26
        s_lshr_b32 {T1}, {T1}, 8
        s_mul_i32 {T2}, {T1}, 10
        s_sub_u32 {T2}, {TILE}, {T2}
        s_mul_i32 {T1}, {T1}, 1280
        """)
    s_expr(T0, [(T1, 1)], dst)
    a(f"""
    s_and_b32 {T1}, {T2}, 1
    s_lshl_b32 {T1}, {T1}, 9
    s_and_b32 {T3}, {T2}, 2
    s_lshl_b32 {T3}, {T3}, 4
    s_add_u32 {T1}, {T1}, {T3}
    s_and_b32 {T3}, {T2}, 4
    s_lshl_b32 {T3}, {T3}, 2
    s_add_u32 {T1}, {T1}, {T3}
    s_lshl_b32 {T3}, {T2}, 7
    s_cmp_ge_u32 {T2}, 8
    s_cselect_b32 {T1}, {T3}, {T1}
    s_cselect_b32 {T2}, 4, 6
    s_add_u32 {T0}, {T0}, {T1}
    """)
    lane_expr(rS, rT, [(1, 1, 4), (2, 2, 1)])
    a(f"""
    v_lshlrev_b32 {v(rS)}, {T2}, {v(rS)}
    v_and_b32 {v(rT)}, 1, v0
    v_lshl_add_u32 {v(rS)}, {v(rT)}, 3, {v(rS)}
    v_lshrrev_b32 {v(rT)}, 5, v0
    v_lshl_add_u32 {v(rS)}, {v(rT)}, 2, {v(rS)}
    v_add_u32 {v(rS)}, {T0}, {v(rS)}
    """)


def near_probe():
    a.c("two stores are in flight, copy 0 first: if it returns ahead of copy 1 it lies on this XCD's side (speed only)")
    a(f"""
    s_waitcnt vmcnt(1)
    s_nop {OPT["gap"]}
    s_getreg_b32 {T0}, hwreg(HW_REG_IB_STS, 0, 4)
    s_cmp_eq_u32 {T0}, 0
    s_cselect_b32 {NEAR}, 8192, 0
    """)


def red_scale():
    a.c("1/(var+eps) of x (from wave 2) scales the FFN output after the reduce")
    s_expr(T0, [(LAYER, 64)], L_FLAG + 64)
    lane_expr(9, 10, [(0, 4, 4)], T0)
    a(f"""
    s_mov_b32 {SPIN}, {SPIN_MAX}
L_XS:
    ds_read_b32 {v(rSC)}, v9
    s_sub_u32 {SPIN}, {SPIN}, 1
    s_cbranch_scc1 L_XS_OK
    s_waitcnt lgkmcnt(0)
    v_cmp_eq_u32 vcc, -1, {v(rSC)}
    s_cbranch_vccnz L_XS
L_XS_OK:
    s_mov_b32 {SPIN}, {SPIN_MAX}
    """)


def red_dbg():
    if OPT["cy2"] == 2:
        cy2(1, 2)
        a("s_waitcnt vmcnt(0)")
        cy2(2, 2)


def red_collect(st, scale, mid):
    if not scale:
        cy2(0, 2)
    a("s_waitcnt vmcnt(2)")
    mid()
    l, l2 = a.newlabel("NR"), a.newlabel("NR")
    if scale and OPT["pol"]:
        add64(TB, EG, NEAR)
        a.c("read once the other XCDs' stores can have landed: an earlier read caches the sentinel and costs a second miss")
        a(f"s_sleep {OPT['early']}" if OPT["early"] else "s_waitcnt vmcnt(0)")
    else:
        if OPT["pol"]:
            a(f"s_cmp_lg_u32 {LAYER}, 0\ns_cbranch_scc1 {l}")
        near_probe()
        a(f"s_waitcnt vmcnt(0)\ns_branch {l2}")
        a.label(l)
        a.c("read once the other XCDs' stores can have landed: an earlier read caches the sentinel and costs a second miss")
        a(f"s_sleep {OPT['early']}" if OPT["early"] else "s_waitcnt vmcnt(0)")
        a.label(l2)
        add64(TB, EG, NEAR)
    poll([(f"global_load_dwordx4 {v(rR + 4 * i, 4)}, {v(rA)}, {sp(TB)} offset:{i * 1024} sc1", rR + 4 * i, 4)
          for i in range(2)], rT, 0, deep=OPT["d2"] & 8, pre=red_scale if scale else red_dbg)
    if not scale and OPT["cy2"] == 2:
        cy2(3, 2)
        a(f"s_sub_u32 s{STAMP0 + 8}, {SPIN_MAX + 1}, {SPIN}")
    a(f"v_pk_add_f32 {v(rL, 2)}, {v(rR, 2)}, {v(rR + 4, 2)}\nv_pk_add_f32 {v(rL + 2, 2)}, {v(rR + 2, 2)}, {v(rR + 6, 2)}")
    stamp(st)
    a(f"""
    v_permlane32_swap_b32 {v(rL)}, {v(rL + 2)}
    v_permlane32_swap_b32 {v(rL + 1)}, {v(rL + 3)}
    v_pk_add_f32 {v(rL, 2)}, {v(rL, 2)}, {v(rL + 2, 2)}
    v_mov_b32 {v(rL + 2)}, {v(rL)}
    v_mov_b32 {v(rL + 3)}, {v(rL + 1)}
    v_permlane16_swap_b32 {v(rL)}, {v(rL + 2)}
    v_permlane16_swap_b32 {v(rL + 1)}, {v(rL + 3)}
    v_pk_add_f32 {v(rL, 2)}, {v(rL, 2)}, {v(rL + 2, 2)}
    """)
    if scale:
        a(f"v_pk_mul_f32 {v(rL, 2)}, {v(rL, 2)}, {v(rSC, 2)} op_sel_hi:[1,0]")
    a(f"""
    v_cvt_pk_bf16_f32 {v(rL)}, {v(rL)}, {v(rL + 1)}
    v_and_b32 {v(rL + 1)}, 0xffff0000, {v(rL)}
    v_lshlrev_b32 {v(rL)}, 16, {v(rL)}
    v_pk_add_f32 {v(rL, 2)}, {v(rL, 2)}, {v(rX0, 2)}
    v_cvt_pk_bf16_f32 {v(rL)}, {v(rL)}, {v(rL + 1)}
    s_mov_b32 exec_lo, 0xffff
    s_mov_b32 exec_hi, 0xffff
    """)


def red_publish():
    local_test()
    a(f"v_min_u32 {v(rL + 1)}, -2, {v(rL)}")
    store_local(f"global_store_dword {v(rS)}, {v(rL + 1)}, {sp(EX)}")
    a(f"""
    s_mov_b64 exec, -1
    v_and_b32 {v(rX1)}, 0xffff0000, {v(rL)}
    v_lshlrev_b32 {v(rX0)}, 16, {v(rL)}
    """)


red_collect(6, False, lambda: red_dst(XA))
red_publish()
s_expr(T0, [(W, 4)], L_FLAG + 16)
a(f"v_mov_b32 v3, {T0}\nds_write_b32 v3, v0")
stamp(7)
a("s_branch L_DN")
CUT_B0 = len(a.out)
keep_in_page(0x500, jump=False)
a.label("L_DN")
dB, dA, dACC, dHA0, dHA1, dSA, dT, dT2, dX = 64, 48, 56, 3, 4, 5, 6, 7, 96
def red_stats():
    ln_stats(range(dX, dX + 20), 9, rSC, ["x1", "x2", "s16", "s32"], 10, dT2)
    a(f"v_rcp_f32 {v(rSC)}, {v(rSC)}")


lin(dHA0, 4, [], HB)
a(f"""
    s_cmp_eq_u32 {NU}, 6
    s_cselect_b32 {T1}, 2, 0
    v_or_b32 {v(dT)}, {T1}, v0
    v_lshrrev_b32 {v(dT2)}, 1, {v(dT)}
    v_and_b32 {v(dT)}, {v(dT)}, {v(dT2)}
    v_and_b32 {v(dT)}, 1, {v(dT)}
    v_lshlrev_b32 {v(dT)}, 4, {v(dT)}
    v_sub_u32 {v(dHA1)}, {v(dHA0)}, {v(dT)}
    v_add_u32 {v(dSA)}, {PBH}, {v(oSA)}
    v_add_u32 {v(rA)}, {PBH}, {v(rA)}
""")
op_load_b(L_WD)
zero(range(dACC, dACC + 8))
def dn_pre():
    if OPT["pro"] == 3:
        stamp(6)
    a(f"""
    v_mov_b32 v10, {L_FLAG + 24}
L_DNF:
    ds_read_b32 v9, v10
    s_sub_u32 {SPIN}, {SPIN}, 1
    s_cbranch_scc1 L_DNG
    s_waitcnt lgkmcnt(0)
    v_cmp_eq_u32 vcc, -1, v9
    s_cbranch_vccnz L_DNF
L_DNG:
    """)
    if OPT["pro"] == 3:
        stamp(4)
    b_reads(dB, oT, 4, 64, R32)
    a(f"""
    s_mov_b32 {SPIN}, {SPIN_MAX}
L_DNH:
    ds_read_b32 v9, v10 offset:4
    s_sub_u32 {SPIN}, {SPIN}, 1
    s_cbranch_scc1 L_DNI
    s_waitcnt lgkmcnt(0)
    v_cmp_eq_u32 vcc, -1, v9
    s_cbranch_vccnz L_DNH
L_DNI:
    v_readfirstlane_b32 {NEAR}, v9
    s_and_b32 {NEAR}, {NEAR}, 8192
    s_mov_b32 {SPIN}, {SPIN_MAX}
    """)
    if OPT["pro"] == 3:
        stamp(5)


poll([(f"global_load_dwordx4 {v(dA, 4)}, {v(dHA0)}, {sp(EX)} sc1", dA, 4),
      (f"global_load_dwordx4 {v(dA + 4, 4)}, {v(dHA1)}, {sp(EX)} offset:1024 sc1", dA + 4, 4)], dT2, OPT["p_dn"],
     pre=dn_pre, deep=OPT["d2"] & 1, longpre=True)
for n in range(4):
    u, q = n >> 1, n & 1
    a(f"{SMF} {v(dACC + 4 * q, 4)}, {v(dA + 4 * u, 4)}, {v(dB + 8 * n, 8)}, {v(IDX)}")
a(f"""
    s_and_b32 {T0}, {TILE}, 7
    s_cmp_lg_u32 {T0}, {G}
    s_cselect_b32 {T0}, {LAYER}, 0
    s_cmp_lg_u32 {T0}, 0
    v_add_f32 {v(dACC)}, {v(dACC)}, {v(dACC + 2)}
    v_add_f32 {v(dACC + 5)}, {v(dACC + 5)}, {v(dACC + 7)}
    v_add_f32 {v(dACC)}, {v(dACC)}, {v(dACC + 5)}
    v_min_u32 {v(dACC)}, -2, {v(dACC)}
""")
pb_store(dSA, dACC)
if DIAG and OPT["stamps"] & 2:
    stamp(1)
    a(f"s_cmp_lg_u32 {T0}, 0")
a("s_cbranch_scc1 L_FIN")


def red2_mid():
    red_dst(XF)
    s_expr(T0, [(TILE, 32)])
    lane_expr(6, 7, [(2, 2, 1280), (0, 2, 8), (5, 1, 4)], T0)


red_collect(2, True, red2_mid)
a(f"""
    s_cmp_eq_u32 {LAYER}, 0
    s_cbranch_scc1 L_RED2P
    global_store_dword v6, {v(rL)}, {sp(pOUT)}
    {"s_mov_b64 exec, -1" if DIAG or OPT["padto"] else ""}
    {"s_branch L_FIN" if DIAG or OPT["padto"] else "s_endpgm"}
L_RED2P:
""")
red_publish()
if OPT["prio"] == 2:
    a("s_sleep 6")
a("s_branch L_NEXT")

SEC_B = a.out[CUT_B0:]
del a.out[CUT_B0:]
keep_in_page(0xc60, jump=False)
for tag in ("", "V"):
    a(f"""
L_MXR{tag}:
    ds_read_b128 {v(cM, 4)}, {v(aMLR)} offset:64
    s_waitcnt lgkmcnt(0)
    s_sub_u32 {SPIN}, {SPIN}, 1
    s_cbranch_scc0 L_MXC{tag}
    s_branch L_MXD{tag}
    """)
a(f"""
L_E1:
    s_cmp_lg_u32 {ROLE}, 0
    s_cbranch_scc1 L_E2
    s_waitcnt vmcnt(0)
L_E2:
    s_cmp_ge_u32 {W}, 4
    s_branch L_YB
""")
a.label("L_VT")
v_tail()
a("s_nop 1\ns_branch L_PV")

a.label("L_STAGE")
if OPT["padfrom"] == 1:
    a("s_memrealtime s[100:101]")
a.c("stage this workgroup's role weights (L2 hits after the prefetch), then make them visible to every wave")
prostamp(0, 2)
a(f"s_cmp_lg_u32 {ROLE}, 0\ns_cbranch_scc1 L_RG_U")
s_expr(T0, [(FB0, 32 * 1280)])
add64(WOB, pWD, T0)
a(f"v_mov_b32 v41, {v(vDMA)}\ns_branch L_ROLE")
a.label("L_RG_U")
a("s_barrier")
a.c("other workgroups: one dword per 128-byte line of the W_gate / W_up columns of this group")
if OPT["nm"] + OPT["nt"] < 14:
    gu_prefetch(OPT["nm"] + OPT["nt"], 14)
if OPT["wdp"]:
    a.c("workgroups without a role also pull W_down in")
    a(f"s_cmp_lt_u32 {J}, 27\ns_cbranch_scc1 L_RG_G")
    s_expr(T1, [(J, 8), (W, 1)], -27 * 8)
    s_expr(T0, [(FB0, 32 * 1280)])
    add64(TB, pWD, T0)
    a(f"""
    s_mul_i32 {T0}, {T1}, {NU}
    s_lshl_b32 {T0}, {T0}, 3
    s_lshl_b32 {T1}, {NU}, 3
    s_sub_u32 {T1}, {T1}, 1
    v_min_u32 {v(vPF)}, {T1}, v0
    v_add_u32 {v(vPF)}, {T0}, {v(vPF)}
    v_lshlrev_b32 {v(vPF)}, 7, {v(vPF)}
    s_barrier
    global_load_dword {v(vDUM)}, {v(vPF)}, {sp(TB)}
    """)
a.label("L_RG_G")
prostamp(1, 2)
a(f"s_waitcnt vmcnt(0)\ns_cmp_lg_u32 {ROLE}, 1\ns_cbranch_scc1 L_ROLE2")
prostamp(2, 2)
for i in range(10):
    a(f"s_add_u32 m0, {T2L}, {i * 2 * R32}")
    a(f"global_load_lds_dwordx4 {v(vDMA)}, {sp(WOB)}")
    if i < 9:
        add64(WOB, WOB, 64 * 3456)
a("s_waitcnt vmcnt(0)\ns_barrier")
prostamp(5, 2)

a.label("L_ROLE2")
a("s_waitcnt vmcnt(0)")
a(f"""
    s_cmp_eq_u32 {PATH}, 2
    s_cbranch_scc1 L_HI
    s_cmp_eq_u32 {PATH}, 3
    s_cbranch_scc1 L_W2
""")
uB, uX, uACC, uS1, uONE, uXA, uSA, uCS, uT = 48, 28, 20, 16, 8, 3, 4, 5, 6
lin(uXA, 4, [], XA + 2048)


def up_setup():
    lane_expr(uSA, uCS, [(4, 1, 32), (1, 1, 16)])
    a(f"s_lshl_b32 {T0}, {W}, 4\nv_xor_b32 {v(uSA)}, {T0}, {v(uSA)}")
    b_addr(uT, uCS, 64, [(0, 1, 8), (1, 1, L_WU - L_WG)], L_WG, R32)
    a(f"v_add_u32 {v(uT)}, {v(uT)}, {v(uSA)}")
    for i in range(4):
        a(f"v_mov_b32 {v(uONE + i)}, {ONES}")
    zero(range(uS1, uS1 + 4))
    for n in range(10):
        for rho in range(4):
            off = 2 * R32 * n + (16 * (rho >> 1) + 2 * (rho & 1)) * 64
            a(f"ds_read_b64_tr_b16 {v(uB + 8 * n + 2 * rho, 2)}, {v(uT)} offset:{off}")
        if n >= 3:
            a("s_waitcnt lgkmcnt(12)")
            a(f"{SMF} {v(uS1, 4)}, {v(uONE, 4)}, {v(uB + 8 * (n - 3), 8)}, {v(IDX)}")
    a(f"""
    s_sub_u32 {T1}, {J}, 20
    s_lshr_b32 {T0}, {T1}, 2
    s_lshl_b32 {T0}, {T0}, 10
    s_and_b32 {T2}, {T1}, 2
    s_and_b32 {T1}, {T1}, 1
    """)
    s_expr(T0, [(T0, 1), (T2, 8), (T1, 32), (W, 256)], HB)
    lane_expr(uSA, uT, [(4, 2, 64), (1, 2, 4)], T0)
    zero(range(uACC, uACC + 8))
    for n in range(7, 10):
        a(f"s_waitcnt lgkmcnt({4 * (9 - n)})")
        a(f"{SMF} {v(uS1, 4)}, {v(uONE, 4)}, {v(uB + 8 * n, 8)}, {v(IDX)}")
    a(f"""
    v_add_f32 {v(uCS)}, {v(uS1)}, {v(uS1 + 2)}
    v_mul_f32 {v(uCS)}, {f32(1.0 / 640)}, {v(uCS)}
    """)
    stamp(7)


poll([(f"global_load_dwordx4 {v(uX + 4 * u, 4)}, {v(uXA)}, {sp(EX)} offset:{u * 1024 - 2048} sc1", uX + 4 * u, 4)
      for u in range(5)], uT, 0, pre=up_setup, slp=OPT["usl"], deep=OPT["d2"] & 16,
     each=lambda u: f"{MFMA} {v(uS1, 4)}, {v(uX + 4 * u, 4)}, {v(uONE, 4)}, {'0' if u == 0 else v(uS1, 4)}")
stamp(4)
for n in range(10):
    u, q = n >> 1, n & 1
    a(f"{SMF} {v(uACC + 4 * q, 4)}, {v(uX + 4 * u, 4)}, {v(uB + 8 * n, 8)}, {v(IDX)}")
    if n == 7:
        a(f"v_pk_add_f32 {v(uS1, 2)}, {v(uS1, 2)}, {v(uS1 + 2, 2)}")
    if n == 8:
        a(f"v_add_f32 {v(uS1)}, {v(uS1)}, {v(uS1 + 1)}")
a(f"s_mov_b32 s{MSK}, 0x00550055\ns_mov_b32 s{MSK + 1}, 0x00550055")
local_test()
a(f"""
    v_add_f32 {v(uACC)}, {v(uACC)}, {v(uACC + 2)}
    v_add_f32 {v(uACC + 5)}, {v(uACC + 5)}, {v(uACC + 7)}
    v_fma_f32 {v(uACC)}, -{v(uS1)}, {v(uCS)}, {v(uACC)}
    v_add_f32 {v(uACC)}, {v(uACC)}, {v(uACC + 5)}
    v_cvt_pk_bf16_f32 {v(uACC)}, {v(uACC)}, {v(uACC)}
    v_and_b32 {v(uACC)}, 0xffff0000, {v(uACC)}
    v_max_f32 {v(uACC + 1)}, 0, {v(uACC)}
    v_mul_f32_dpp {v(uACC + 1)}, {v(uACC)}, {v(uACC + 1)} row_ror:8 {DPP}
    v_mov_b32_dpp {v(uACC)}, {v(uACC + 1)} quad_perm:[1,1,3,3] {DPP}
    v_cvt_pk_bf16_f32 {v(uACC)}, {v(uACC + 1)}, {v(uACC)}
    v_min_u32 {v(uACC)}, -2, {v(uACC)}
    s_mov_b64 exec, {sp(MSK)}
""")
store_local(f"global_store_dword {v(uSA)}, {v(uACC)}, {sp(EX)}")
a("s_mov_b64 exec, -1")
stamp(5)
a.label("L_IDLE")
a(f"s_cmp_lg_u32 {LAYER}, 0\ns_cbranch_scc1 L_FIN")
a.label("L_NEXT")
a("s_waitcnt vmcnt(0)")
a(f"s_cmp_eq_u32 {W}, 3\ns_cbranch_scc1 L_HI")
att_addr(1)
att_init()
a("s_waitcnt lgkmcnt(0)")
a(f"s_mov_b32 {LAYER}, 1")
add64(EX, EX, LS)
a("s_branch L_BAR")

a.out += SEC_B

a.label("L_HI")
a(f"s_cmp_lg_u32 {LAYER}, 0\ns_cbranch_scc1 L_FIN")
a("s_waitcnt vmcnt(0)")
if OPT["hsl"]:
    a.c("nothing here is needed soon: leave the issue slots to the waves that finish attention and the out projection")
    a(f"s_cmp_lt_u32 {W}, 4\ns_cbranch_scc1 L_HI2\ns_sleep {OPT['hsl']}\nL_HI2:")
att_addr(1)
att_init()


def gate():
    a.c("stay off the L2 until the FFN activations are out")
    a(f"v_mov_b32 v62, {HB}")
    add64(TB, EX, -LS & 0xffffffff)
    a(f"s_sub_u32 s{TB + 1}, s{TB + 1}, 1")
    light(f"global_load_dword v61, v62, {sp(TB)} sc1", 61, 4)
    if OPT["gsl"]:
        a.c("x is still a cross-XCD reduce away: do not load the L2 with polls while the down projection reads h")
        a(f"s_sleep {OPT['gsl']}")


add64(EX, EX, LS)
a(f"s_cmp_eq_u32 {W}, 3\ns_cbranch_scc1 L_POLLER")
q = Q2M
qp_setup(q)
a(f"s_and_b32 {T1}, {J}, 3")
lin(q.XA0, 4, [(T1, 1280)], XF - LS)
lane_expr(q.XA1, q.T, [(2, 4, 16)], T0)
qp_saddr(q.SA, 1024)
a("s_waitcnt lgkmcnt(0)")
keep_in_page(0x160)
gate()
if OPT["prio"] == 1:
    a("s_setprio 2")
poll([(f"global_load_dwordx4 {v(q.X, 4)}, {v(q.XA0)}, {sp(EX)} sc1", q.X, 4),
      (f"global_load_dwordx4 {v(q.X + 4, 4)}, {v(q.XA1)}, {sp(EX)} offset:1024 sc1", q.X + 4, 4)], q.T, OPT["p_qp"], slp=OPT["qsl"], deep=OPT["d2"] & 2)
qp_mm(q)
stamp(4)
local_test()
qp_sum(q)
store_local(f"global_store_dword {v(q.SA)}, {v(q.A[0])}, {sp(pWS)}")
stamp(5)
a(f"s_setprio 0\ns_mov_b32 {LAYER}, 1\ns_branch L_BAR")

a.label("L_POLLER")
pX_ = 104
poller_qaddr(1024)
if OPT["warm"] & 1:
    for ins, _, _ in poller_qloads():
        a(ins)
s_expr(T0, [(BB, 64)], XF - LS)
lane_expr(96, pT, [(4, 2, 1280), (2, 2, 256), (0, 2, 16)], T0)
s_expr(T0, [(BB, 16)], XF - LS + 1024)
lane_expr(97, pT, [(4, 2, 1280), (2, 2, 64), (0, 2, 4)], T0)


def x_out_wait(tag, ra, rd):
    a(f"""
    v_mov_b32 {v(ra)}, {L_FLAG + 16}
    s_mov_b32 {SPIN}, {SPIN_MAX}
L_{tag}P:
    s_sleep 1
    ds_read_b64 {v(rd, 2)}, {v(ra)}
    s_sub_u32 {SPIN}, {SPIN}, 1
    s_cbranch_scc1 L_{tag}G
    s_waitcnt lgkmcnt(0)
    v_max_u32 {v(rd)}, {v(rd)}, {v(rd + 1)}
    v_cmp_eq_u32 vcc, -1, {v(rd)}
    s_cbranch_vccnz L_{tag}P
L_{tag}G:
    """)


keep_in_page(0x400)
a(f"s_cmp_lg_u32 {ROLE}, 0\ns_cbranch_scc1 L_W3E")
a.c("out/down workgroups: sentinel fill of the partial tiles of layer 2 (done before waves 0,1 publish again)")
a(f"s_lshr_b32 {T1}, {J}, 1\ns_and_b32 {T2}, {J}, 1")
s_expr(T0, [(T1, 16384), (T2, 4096), (G, 256)], 2 * PBH)
lane_expr(98, 99, [(5, 1, PBH), (4, 1, 2048), (0, 4, 16)], T0)
for i in range(4):
    a(f"v_mov_b32 {v(44 + i)}, -1")
x_out_wait("W3", 99, 100)
a.align(5)
a(f"global_store_dwordx4 v98, v[44:47], {sp(EG)} sc1\nglobal_store_dwordx4 v98, v[44:47], {sp(EG2)} sc1")
near_probe()
a(f"""
    v_mov_b32 v100, {NEAR}
    s_waitcnt vmcnt(0)
    ds_write_b32 v99, v100 offset:12
L_W3E:
""")
gate()
poll([(f"global_load_dwordx4 {v(pX_, 4)}, v96, {sp(EX)} sc1", pX_, 4),
      (f"global_load_dword {v(pX_ + 4)}, v97, {sp(EX)} sc1", pX_ + 4, 1)], pT, OPT["p_px"], slp=OPT["qsl"])
stamp(4)
poller_stats()
poller_bias()
stamp(5)
poll(poller_qloads(), pT, 0, deep=OPT["d2"] & 4)
stamp(6)
poller_finish()
a(f"""
    s_mov_b32 {LAYER}, 1
    v_mov_b32 v63, {CSC}
    s_mov_b32 exec_lo, 0x000f000f
    s_mov_b32 exec_hi, 0x000f000f
    s_waitcnt lgkmcnt(0)
    s_barrier
    s_branch L_BAR2
""")

keep_in_page(0x560, jump=False)
a.label("L_W2")
a(f"s_cmp_lg_u32 {ROLE}, 0\ns_cbranch_scc1 L_IDLE\ns_cmp_lg_u32 {LAYER}, 0\ns_cbranch_scc1 L_W2S")
a.c("wave 2 of out/down workgroups, layer 1: W_down into LDS once both tiles of x are out")
a(f"s_lshl_b32 {T0}, {J}, 6")
add64(WOB, WOB, T0)
x_out_wait("W2", 6, 8)
a.c("let wave 3's two stores enter the memory pipeline back to back")
a(f"s_sleep {OPT['fsl']}")
for n in range(14):
    if n == 12:
        a(f"s_cmp_eq_u32 {NU}, 6\ns_cbranch_scc1 L_W2D")
    a(f"s_mov_b32 m0, {L_WD + n * 1024 + (n >> 1) * 128}")
    if n:
        add64(WOB, WOB, 16 * 1280)
    a(f"global_load_lds_dwordx4 v41, {sp(WOB)}")
a(f"""
L_W2D:
    s_waitcnt vmcnt(0)
    ds_write_b32 v6, v6 offset:8
L_W2S:
""")
a.c("wave 2: variance of the four rows of x for the reduce waves")
lin(3, 4, [], XA + 2048)
lin(4, 2, [(LAYER, 64)], L_FLAG + 64)
a(f"v_mov_b32 v5, {XA}")
light(f"global_load_dword v6, v5, {sp(EX)} sc1", 6, 4)
poll([(f"global_load_dwordx4 {v(dX + 4 * u, 4)}, v3, {sp(EX)} offset:{u * 1024 - 2048} sc1", dX + 4 * u, 4)
      for u in range(5)], 7, 0, slp=3)
red_stats()
a(f"""
    v_min_u32 {v(rSC)}, -2, {v(rSC)}
    s_mov_b64 exec, 0xffff
    ds_write_b32 v4, {v(rSC)}
    s_mov_b64 exec, -1
    s_branch L_IDLE
""")

pX_ = 24
a.label("L_SLOW")
a.c("the group is spread over several XCDs: redo the sentinel fill and the q hand-off with write-through stores")
only_wave(2, "L_SL1")
for i in range(4):
    a(f"v_mov_b32 {v(44 + i)}, -1")
fill_local(" sc1", 44)
a("s_waitcnt vmcnt(0)")
a.label("L_SL1")
a(f"s_barrier\ns_cmp_lt_u32 {W}, 4\ns_cbranch_scc1 L_SL2")
qp_saddr(60, 0)
qp_saddr(61, 2048, 128)
a(f"""
    global_store_dword v60, v41, {sp(pWS)} sc1
    s_mov_b32 exec_hi, 0
    global_store_dword v61, v42, {sp(pWS)} sc1
    s_mov_b64 exec, -1
L_SL2:
""")
only_wave(2, "L_SL3")
lin(60, 2, [(G, 32 * MSTR), (J, MSTR)], MK)
a(f"""
    v_mov_b32 v61, 0x100
    s_mov_b64 exec, 1
    global_store_dword v60, v61, {sp(pWS)} sc1
    s_mov_b64 exec, -1
L_SL3:
""")
only_wave(3, "L_SL4")
s_expr(T0, [(G, 32 * MSTR)], MK)
a(f"""
    v_and_b32 v17, 31, v0
    v_lshl_add_u32 v17, v17, 4, {T0}
    s_mov_b32 {SPIN}, {SPIN_MAX}
    s_mov_b32 {T1}, 0x100
L_SL5:
    global_load_dword v18, v17, {sp(pWS)} sc1
    s_waitcnt vmcnt(0)
    v_cmp_ne_u32 vcc, {T1}, v18
    s_cbranch_vccz L_SL6
    s_sub_u32 {SPIN}, {SPIN}, 1
    s_cbranch_scc0 L_SL5
L_SL6:
""")
q1_loads()
a("s_waitcnt vmcnt(0)")
q1_collect("S")
a("s_waitcnt lgkmcnt(0)")
a.label("L_SL4")
a("s_barrier\ns_branch L_SLOW_RET")

a.label("L_FIN")
if OPT["padto"]:
    a(f"""
L_PAD:
    s_sleep 4
    s_memrealtime s[98:99]
    s_waitcnt lgkmcnt(0)
    s_sub_u32 s98, s98, s100
    s_cmp_lt_u32 s98, {OPT["padto"] * 100}
    s_cbranch_scc1 L_PAD
    """)
if DIAG:
    a("s_memrealtime s[98:99]\ns_memtime s[50:51]\ns_waitcnt lgkmcnt(0)\nv_mov_b32 v1, 0\ns_sub_u32 s50, s50, s100\nv_writelane_b32 v1, s50, 21")
    for i in range(16):
        a(f"v_writelane_b32 v1, s{STAMP0 + 2 * i}, {(i // 8) * 10 + i % 8}")
    a(f"""
    v_writelane_b32 v1, s100, 9
    v_writelane_b32 v1, s98, 19
    v_writelane_b32 v1, {LOCAL}, 20
    s_lshl_b32 {T0}, s2, 3
    s_add_u32 {T0}, {T0}, {W}
    s_lshl_b32 {T0}, {T0}, 8
    s_add_u32 {T0}, {T0}, {DIAG_OFF}
    v_lshl_add_u32 v2, v0, 2, {T0}
    global_store_dword v2, v1, {sp(pWS)}
    """)
a.label("L_END")
a("s_endpgm")

a.raw(f""".section .rodata,"a"
.p2align 6
.amdhsa_kernel {NAME}_kernel
  .amdhsa_next_free_vgpr 256
  .amdhsa_next_free_sgpr 102
  .amdhsa_accum_offset 256
  .amdhsa_group_segment_fixed_size 0
  .amdhsa_kernarg_size 96
  .amdhsa_user_sgpr_count 2
  .amdhsa_user_sgpr_kernarg_segment_ptr 1
  .amdhsa_system_sgpr_workgroup_id_x 1
  .amdhsa_float_denorm_mode_32 3
.end_amdhsa_kernel""")

open(sys.argv[1], "w").write(a.text())
if OPT["a8"]:
    import align8
    print("aligned / left misaligned:", align8.fix(sys.argv[1]))
print("written", sys.argv[1], "lines", len(a.out), "pad states", a.nops)
```

```python
import math
import struct
import sys

sys.path.insert(0, "gen")
from asmlib import Asm

NAME = "interleave_layers__sliding_block_cached__glu_gated_reglu__decode"

OPT = dict(diag=0, stamps=0xff, pro=0, padto=0, cut=0, force_global=0, cyc=0, cy2=0,
           thr=4, d2=7, xp=0, pol=1, early=7, k0=4, wq1=4, wq2=4, wq3=4, bq=6, hf=6, hc=15, hd=3, bp=26, xc=0, wide=0, late=0, lay=1, free=6, warm=2, fb=0, fl=0, gate=1, gsl=14, nt=7, wdp=1, pfp=31, upfree=1, fsl=2, mrd=5, prio=1, al=1, cov=2, vthr=0, a8=0, tlb=0, padfrom=0, hsl=0, rot=3, qsl=0, usl=0, near=1, gap=3, nm=0,
           slp=1, p_op=2, p_up=0, p_dn=0, p_qp=0, p_px=0)
for a_ in sys.argv[2:]:
    k_, v_ = a_.split("=")
    assert k_ in OPT, k_
    OPT[k_] = int(v_, 0)
DIAG, THR, CUT = OPT["diag"], OPT["thr"], OPT["cut"]

OB, XA, HB, LSE, LS = 0, 8192, 13312, 15360, 15488
XF = 2 * LS
GS = 36864
QR = 8 * GS
QRS = 2560
MK = QR + 256 * QRS
PBB, PBH = 966656, 163840
assert XF + 5120 <= GS and MK + 4096 <= PBB and PBB % 16384 == 0
MSTR = 16
DIAG_OFF = 16 << 20

L_WQ = 0
R32 = 2176
D32 = 1088
L_WO, L_WD = 20480, 55296
L_WG, L_WU = 20480, 64000
assert (L_WU - L_WG) % 256 == 0 and L_WU - L_WG >= 20 * R32 and L_WD >= L_WO + 16 * R32
L_OW = L_WU + 20 * R32
OWS, OWJ = 1184, 72
L_ML = L_OW + 8 * OWS
L_Q = L_ML + 256
L_P = L_Q + 256
L_OX = L_P + 1024
L_FLAG = L_OX + 4096
LDS_BYTES = L_FLAG + 256

W, G, J, LAYER, LOCAL = "s3", "s4", "s5", "s6", "s7"
pX, pK, pV, pWQ, pWO, pWG, pWU, pWD, pOUT, pDBG, pWS = 8, 10, 12, 14, 16, 20, 22, 24, 26, 28, 30
PM = 8
WOB = 0
KB, VB, TB, MSK, EX, OBM, ODD = 32, 34, 36, 44, 46, 52, 58
T0, T1, T2, T3 = "s38", "s39", "s49", "s50"
CSC, PLO, PHI, SPIN, XCC, PATH = "s40", "s41", "s42", "s43", "s48", "s51"
ONES, H, TILE, BB = "s54", "s55", "s56", "s57"
NU, FB0, ROLE, T2L = "s92", "s93", "s94", "s95"
OPW = H
NEAR = XCC
LO8 = 96
STAMP0 = 60

KREG, VREG, SREG = 128, 192, 64
IDX, vV = 1, 2
aQA, aPW, aPR, aOWW, aMLW, aOWR, aMLR, aOBA = 3, 4, 5, 6, 7, 8, 9, 10
oBA, oLA, oSA = 11, 12, 13
pCS = 12
rX0, rX1 = 14, 15
vDUM, vPF, vK, vDMA = 56, 57, 58, 59
vWQ = 16

DPP = "row_mask:0xf bank_mask:0xf"
MFMA = "v_mfma_f32_16x16x32_bf16"
SMF = "v_smfmac_f32_16x16x64_bf16"
SPIN_MAX = 1 << 18

a = Asm()


def sp(n):
    return "s[%d:%d]" % (n, n + 1)


def v(n, cnt=1):
    return "v%d" % n if cnt == 1 else "v[%d:%d]" % (n, n + cnt - 1)


def f32(x):
    return "0x%08x" % struct.unpack("<I", struct.pack("<f", x))[0]


def stamp(i):
    if not DIAG or not (OPT["stamps"] >> i) & 1:
        return
    l1, l2 = a.newlabel("ST"), a.newlabel("ST")
    a(f"""
    s_cmp_eq_u32 {LAYER}, 0
    s_cbranch_scc1 {l1}
    s_memrealtime {sp(STAMP0 + 16 + 2 * i)}
    s_branch {l2}
    {l1}:
    s_memrealtime {sp(STAMP0 + 2 * i)}
    {l2}:
    """)


def prostamp(slot, lvl=1):
    if DIAG and OPT["pro"] == lvl:
        a(f"s_memrealtime {sp(STAMP0 + 2 * slot)}")


def cyc(slot):
    if DIAG and (OPT["cyc"] >> slot) & 1:
        a(f"s_memtime {sp(STAMP0 + 2 * slot)}")


def cy2(slot, lvl=1):
    if DIAG and OPT["cy2"] == lvl:
        a(f"s_memtime {sp(STAMP0 + 2 * slot)}")


def keep_in_page(nbytes, jump=True):
    l = a.newlabel("PG")
    if jump:
        a(f"s_branch {l}")
    a.raw(f".p2align 12,,{nbytes + (320 if DIAG else 0)}")
    a.label(l)


def add64(dst, src, off):
    a(f"s_add_u32 s{dst}, s{src}, {off}\ns_addc_u32 s{dst + 1}, s{src + 1}, 0")


def lane_expr(reg, tmp, fields, base=None):
    first = True
    for pos, width, mul in fields:
        dst = reg if first else tmp
        if pos + width >= 6:
            a(f"v_lshrrev_b32 {v(dst)}, {pos}, v0" if pos else f"v_mov_b32 {v(dst)}, v0")
        elif pos == 0:
            a(f"v_and_b32 {v(dst)}, {(1 << width) - 1}, v0")
        else:
            a(f"v_bfe_u32 {v(dst)}, v0, {pos}, {width}")
        p2 = mul & (mul - 1) == 0
        if first:
            if mul != 1:
                a(f"v_lshlrev_b32 {v(reg)}, {mul.bit_length() - 1}, {v(reg)}" if p2
                  else f"v_mul_u32_u24 {v(reg)}, {mul}, {v(reg)}")
        elif p2:
            a(f"v_lshl_add_u32 {v(reg)}, {v(tmp)}, {mul.bit_length() - 1}, {v(reg)}")
        else:
            a(f"v_mul_u32_u24 {v(tmp)}, {mul}, {v(tmp)}\nv_add_u32 {v(reg)}, {v(reg)}, {v(tmp)}")
        first = False
    if base is not None:
        a(f"v_add_u32 {v(reg)}, {base}, {v(reg)}")


def s_expr(dst, terms, const=0):
    if not terms:
        a(f"s_mov_b32 {dst}, {const}")
        return
    first = True
    for s, mul in terms:
        d = dst if first else T3
        if mul == 1:
            if first:
                if s != d:
                    a(f"s_mov_b32 {d}, {s}")
            else:
                d = s
        elif mul & (mul - 1) == 0:
            a(f"s_lshl_b32 {d}, {s}, {mul.bit_length() - 1}")
        else:
            a(f"s_mul_i32 {d}, {s}, {mul}")
        if not first:
            a(f"s_add_u32 {dst}, {dst}, {d}")
        first = False
    if const:
        a(f"s_add_u32 {dst}, {dst}, {const}")


def lin(reg, shift, terms, const):
    s_expr(T0, terms, const)
    a(f"v_lshl_add_u32 {v(reg)}, v0, {shift}, {T0}")


def store_local(ins):
    lg, le = a.newlabel("SG"), a.newlabel("SE")
    a(f"""
    s_cbranch_scc1 {lg}
    {ins}
    s_branch {le}
    {lg}:
    {ins} sc1
    {le}:
    """)


def local_test():
    a(f"s_cmp_eq_u32 {LOCAL}, 0")


def check_ops(regs, tmp, dst="vcc"):
    ops, regs = [], list(regs)
    if len(regs) == 1:
        return [f"v_cmp_eq_u32 {dst}, -1, {v(regs[0])}"]
    if len(regs) == 2:
        ops.append(f"v_max_u32 {v(tmp)}, {v(regs[0])}, {v(regs[1])}")
    else:
        ops.append(f"v_max3_u32 {v(tmp)}, {v(regs[0])}, {v(regs[1])}, {v(regs[2])}")
        rest = regs[3:]
        while len(rest) >= 2:
            ops.append(f"v_max3_u32 {v(tmp)}, {v(tmp)}, {v(rest[0])}, {v(rest[1])}")
            rest = rest[2:]
        if rest:
            ops.append(f"v_max_u32 {v(tmp)}, {v(tmp)}, {v(rest[0])}")
    ops.append(f"v_cmp_eq_u32 {dst}, -1, {v(tmp)}")
    return ops


def light(ins, r0, slp):
    l1, ok = a.newlabel("PL"), a.newlabel("PK")
    a(f"s_mov_b32 {SPIN}, {SPIN_MAX}\ns_mov_b64 exec, 1")
    a.label(l1)
    a(f"{ins}\ns_waitcnt vmcnt(0)\nv_cmp_eq_u32 vcc, -1, {v(r0)}\ns_cbranch_vccz {ok}")
    if slp:
        a.c("back off between polls")
        a(f"s_sleep {slp}")
    a(f"s_sub_u32 {SPIN}, {SPIN}, 1\ns_cbranch_scc0 {l1}\n{ok}:\ns_mov_b64 exec, -1")


def poll(loads, tmp, mode=0, pre=None, slp=0, deep=False, each=None, longpre=False):
    assert not (deep and each)
    if mode == 1:
        light(loads[-1][0], loads[-1][1], OPT["slp"])
    if mode == 2:
        a("s_waitcnt vmcnt(0)")
    l2, chk, done = a.newlabel("PM"), a.newlabel("PC"), a.newlabel("PD")
    for ins, r0, n in loads:
        a(ins)
    a(f"s_mov_b32 {SPIN}, {SPIN_MAX}")
    if pre:
        pre()
    if deep:
        if not pre:
            a.c("half a round trip between the two poll rounds in flight")
            a("s_nop 15\ns_nop 7")
        for ins, r0, n in loads:
            a(ins)
        if longpre:
            a.c("half a round trip between the two poll rounds in flight")
            a("s_nop 11")
    a(f"s_branch {chk}")
    a.label(l2)
    if slp:
        a(f"s_sleep {slp}")
    for u, (ins, r0, n) in enumerate(loads):
        a(f"s_mov_b64 exec, {sp(PM + 2 * u)}")
        a(ins)
    a(f"s_mov_b64 exec, -1\ns_sub_u32 {SPIN}, {SPIN}, 1\ns_cbranch_scc1 {done}")
    a.label(chk)
    nl = len(loads)
    for u, (ins, r0, n) in enumerate(loads):
        a(f"s_waitcnt vmcnt({nl - 1 - u + (nl if deep else 0)})")
        if each:
            a(each(u))
        for o in check_ops(range(r0, r0 + n), tmp, sp(PM + 2 * u)):
            a(o)
        if u == 1:
            pend = f"s_or_b64 {sp(MSK)}, {sp(PM)}, {sp(PM + 2)}"
        elif u > 1:
            a(pend)
            pend = f"s_or_b64 {sp(MSK)}, {sp(MSK)}, {sp(PM + 2 * u)}"
    a(pend)
    a(f"s_cbranch_scc1 {l2}\n{done}:")


def quad_gather(r):
    for k in (1, 2, 3):
        a(f"v_mov_b32_dpp {v(r + k)}, {v(r)} quad_perm:[{k},{k},{k},{k}] {DPP}")
    a(f"s_mov_b32 exec_lo, 0x11111111\ns_mov_b32 exec_hi, 0x11111111")


def zero(regs):
    for r in regs:
        a(f"v_mov_b32 {v(r)}, 0")


def b_addr(reg, tmp, rowbytes, extra, base, r32=None):
    lane_expr(reg, tmp, [(3, 1, r32 or 32 * rowbytes), (4, 2, 4 * rowbytes), (2, 1, rowbytes)] + extra, base)


def b_reads(dst, addr, nblk, rowbytes, r32=None):
    r32 = r32 or 32 * rowbytes
    for blk in range(nblk):
        for rho in range(4):
            off = 2 * r32 * blk + (16 * (rho >> 1) + 2 * (rho & 1)) * rowbytes
            a(f"ds_read_b64_tr_b16 {v(dst + 8 * blk + 2 * rho, 2)}, {v(addr)} offset:{off}")


def lane_sum(regs, steps, tmps):
    for st in steps:
        if st in ("s16", "s32"):
            for r, t in zip(regs, tmps):
                a(f"v_mov_b32 {v(t)}, {v(r)}")
            for r, t in zip(regs, tmps):
                a(f"v_permlane{st[1:]}_swap_b32 {v(r)}, {v(t)}")
            for r, t in zip(regs, tmps):
                a(f"v_add_f32 {v(r)}, {v(r)}, {v(t)}")
        else:
            pat = {"x1": "quad_perm:[1,0,3,2]", "x2": "quad_perm:[2,3,0,1]", "hm": "row_half_mirror",
                   "r4": "row_ror:4", "r8": "row_ror:8"}[st]
            for r in regs:
                a(f"v_add_f32_dpp {v(r)}, {v(r)}, {v(r)} {pat} {DPP}")


def ln_stats(xregs, s1, s2, steps, t1, t2):
    for n, r in enumerate(xregs):
        a(f"v_dot2_f32_bf16 {v(s1)}, {v(r)}, {ONES}, {'0' if n == 0 else v(s1)}")
        a(f"v_dot2_f32_bf16 {v(s2)}, {v(r)}, {v(r)}, {'0' if n == 0 else v(s2)}")
    lane_sum([s1, s2], steps, [t1, t2])
    a(f"""
    v_mul_f32 {v(s1)}, {f32(1.0 / 640)}, {v(s1)}
    v_mul_f32 {v(s2)}, {f32(1.0 / 640)}, {v(s2)}
    v_fma_f32 {v(s2)}, -{v(s1)}, {v(s1)}, {v(s2)}
    v_max_f32 {v(s2)}, 0, {v(s2)}
    v_add_f32 {v(s2)}, {f32(1e-5)}, {v(s2)}
    """)


class QM:
    def __init__(self, B, X, A, XA0, XA1, SA, T):
        self.B, self.X, self.A, self.XA0, self.XA1, self.SA, self.T = B, X, A, XA0, XA1, SA, T


Q1M = QM(64, 88, [96, 100, 104], 108, 109, 110, 111)
Q2M = QM(96, 120, [36, 44, 56], 41, 42, 43, 60)


def qp_setup(q):
    s_expr(T0, [(W, 32)], L_WQ - 4 * 32)
    b_addr(q.T, q.SA, 128, [(0, 2, 8)], T0)
    b_reads(q.B, q.T, 3, 128)
    for r in q.A:
        zero(range(r, r + 4))


def qp_saddr(reg, off, wmul=256):
    lin(reg, 2, [(G, 32 * QRS), (J, QRS), (W, wmul)], QR + off - 4 * wmul)


def qp_mm(q):
    a(f"""
    {SMF} {v(q.A[0], 4)}, {v(q.X, 4)}, {v(q.B, 8)}, {v(IDX)}
    {SMF} {v(q.A[1], 4)}, {v(q.X, 4)}, {v(q.B + 8, 8)}, {v(IDX)}
    {SMF} {v(q.A[2], 4)}, {v(q.X + 4, 4)}, {v(q.B + 16, 8)}, {v(IDX)}
    """)


def qp_sum(q):
    A0, A1, A2 = q.A
    a(f"""
    v_add_f32 {v(A0)}, {v(A0)}, {v(A0 + 2)}
    v_add_f32 {v(A1 + 1)}, {v(A1 + 1)}, {v(A1 + 3)}
    v_add_f32 {v(A0)}, {v(A0)}, {v(A1 + 1)}
    v_add_f32 {v(A0)}, {v(A0)}, {v(A2)}
    v_min_u32 {v(A0)}, -2, {v(A0)}
    """)


pX_, pQ, pS1, pS2, pA, pC, pLW, pT, pT2 = 24, 112, 120, 121, 122, 123, 124, 125, 126


def poller_stats():
    ln_stats(range(pX_, pX_ + 5), pS1, pS2, ["x1", "x2", "r4", "r8", "s16", "s32"], pT, pT2)
    a(f"v_rsq_f32 {v(pS2)}, {v(pS2)}")


def poller_qaddr(off):
    a(f"s_and_b32 {T1}, {J}, 24")
    s_expr(T0, [(G, 32 * QRS), (T1, QRS), (BB, 64)], QR + off + 3840)
    lane_expr(pA, pT, [(5, 1, 4 * QRS), (3, 2, 256), (0, 3, 8)], T0)
    lane_expr(pLW, pT, [(5, 1, 128), (3, 1, 64), (0, 1, 32), (4, 1, 16), (1, 2, 4)], L_Q)


def poller_qloads():
    return [(f"global_load_dwordx2 {v(pQ + 2 * kq, 2)}, {v(pA)}, {sp(pWS)} offset:{kq * QRS - 3840} sc1", pQ + 2 * kq, 2) for kq in range(4)]


def poller_finish():
    r = pX_
    a(f"""
    v_pk_add_f32 {v(r, 2)}, {v(pQ, 2)}, {v(pQ + 2, 2)}
    v_pk_add_f32 {v(r + 2, 2)}, {v(pQ + 4, 2)}, {v(pQ + 6, 2)}
    v_pk_fma_f32 {v(r, 2)}, {v(r, 2)}, {v(pS1, 2)}, {v(r + 4, 2)} op_sel:[0,1,0] op_sel_hi:[1,1,1]
    v_pk_fma_f32 {v(r, 2)}, {v(r + 2, 2)}, {v(pS1, 2)}, {v(r, 2)} op_sel:[0,1,0] op_sel_hi:[1,1,1]
    v_cvt_pk_bf16_f32 {v(r)}, {v(r)}, {v(r + 1)}
    ds_write_b32 {v(pLW)}, {v(r)}
    """)


def poller_bias():
    a(f"""
    v_mul_f32 {v(pT)}, {v(pS1)}, {v(pS2)}
    v_mul_f32 {v(pX_ + 4)}, -{v(pT)}, {v(pCS)}
    v_mul_f32 {v(pX_ + 5)}, -{v(pT)}, {v(pCS + 1)}
    """)


aQV, aONE, aLA, IDX2, aQK, aP, aACC, aS, aT = 16, 32, 36, 40, 48, 52, 64, 60, 61


def att_addr(layer):
    t = aT
    lane_expr(aQA, t, [(4, 2, 64), (0, 2, 16)], L_Q)
    s_expr(T0, [(W, 128)], L_P)
    lane_expr(aPW, t, [(0, 1, 64), (2, 1, 32), (4, 1, 16), (1, 1, 8), (5, 1, 4), (3, 1, 2)], T0)
    lane_expr(aPR, t, [(4, 2, 32), (2, 1, 16)], T0)
    s_expr(T0, [(W, OWS)], L_OW)
    lane_expr(aOWW, t, [(0, 4, 16), (4, 1, 8), (5, 1, 8 * OWJ)], T0)
    s_expr(T0, [(W, 8)], L_ML + 128 * layer)
    lane_expr(aMLW, t, [(4, 1, 4)], T0)
    s_expr(T0, [(W, 64)], L_OW)
    lane_expr(aOWR, t, [(0, 2, 2 * OWS), (2, 2, 4 * OWJ), (4, 2, 16)], T0)
    lane_expr(aMLR, t, [(0, 2, 16)], L_ML + 128 * layer)
    a(f"s_lshr_b32 {T1}, {W}, 1\ns_and_b32 {T2}, {W}, 1")
    s_expr(T0, [(T1, 1024), (T2, 32), (BB, 64)], OB)
    a(f"s_lshr_b32 {T1}, {J}, 3\ns_and_b32 {T2}, {J}, 1")
    s_expr(T0, [(T0, 1), (T1, 2048), (T2, 16)])
    lane_expr(aOBA, t, [(4, 2, 256), (2, 2, 4)], T0)
    s_expr(T0, [(BB, 32), (T1, 8), (T2, 4)], LSE)
    a(f"v_writelane_b32 {v(aOBA)}, {T0}, 1")


def att_init(lo=16, acc=True):
    zero(list(range(lo, 32)) + list(range(aQK, aQK + 8)) + (list(range(aACC, aACC + 16)) if acc else []))
    for i in range(4):
        a(f"v_mov_b32 {v(aONE + i)}, {ONES}")
    a(f"""
    v_bfe_u32 {v(IDX2)}, v0, 2, 1
    v_mul_u32_u24 {v(IDX2)}, 0xaaaa, {v(IDX2)}
    v_add_u32 {v(IDX2)}, 0x4444, {v(IDX2)}
    """)


hdr = open("cdna_kernels/%s.s.ref" % NAME).read().split("\n")
for line in hdr:
    if line.startswith("; @launch"):
        a.raw("; @launch grid=(256,1,1) block=(512,1,1) lds=%d" % LDS_BYTES)
    elif line.startswith(";"):
        a.raw(line)
    else:
        break
a.raw('.amdgcn_target "amdgcn-amd-amdhsa--gfx950"')
a.raw(".text")
a.raw(".globl %s_kernel" % NAME)
if OPT["al"]:
    a.raw(".p2align 12")
a.raw(".p2align 8")
a.raw(".type %s_kernel,@function" % NAME)
a.raw("%s_kernel:" % NAME)
a(f"""
    s_cmp_ge_u32 s2, 256
    s_cbranch_scc1 L_END
    s_load_dwordx16 s[8:23], s[0:1], 0
    s_load_dwordx8 s[24:31], s[0:1], 64
""")
a.c("pull the kernel's own code into L2: six 128-byte lines per workgroup")
a(f"""
    s_getpc_b64 {sp(TB)}
L_PC:
    s_and_b32 {T0}, s2, 0xf8
    s_mul_i32 {T0}, {T0}, 96
    v_min_u32 v1, 5, v0
    v_lshl_add_u32 v1, v1, 7, {T0}
    v_min_u32 v1, L_END-L_PC, v1
    global_load_dword {v(vDUM)}, v1, {sp(TB)}
    s_mov_b32 {LAYER}, 0
""")
if OPT["padto"]:
    a("s_memrealtime s[100:101]")
if DIAG:
    for i in range(16):
        a(f"s_mov_b64 {sp(STAMP0 + 2 * i)}, 0")
    a("s_memrealtime s[100:101]")
a(f"""
    v_lshrrev_b32 v1, 6, v0
    v_and_b32 v0, 63, v0
    v_readfirstlane_b32 {W}, v1
    s_and_b32 {G}, s2, 7
    s_lshr_b32 {J}, s2, 3
    s_lshr_b32 {T0}, {J}, 3
    s_add_u32 {H}, {G}, {T0}
    s_and_b32 {H}, {H}, 7
    s_and_b32 {T0}, {J}, 24
    s_add_u32 {H}, {H}, {T0}
    s_bfe_u32 {BB}, {J}, 0x20001
    s_and_b32 {T1}, {J}, 1
""")
s_expr(T2, [(BB, 1 << 25), (H, 1 << 20), (T1, 1 << 17), ] + ([] if OPT["rot"] else [(W, 1 << 11)]), 0xC0000)
RO = "s98"
if OPT["rot"]:
    R1, R2 = {1: (2, 9), 2: (2, 0), 3: (8, 24), 4: (10, 9), 5: (24, 8), 6: (8, 0), 7: (12, 24), 8: (16, 8)}[OPT["rot"]]
    s_expr(RO, [(W, 2048), (J, R1 * 2048)] + ([(G, R2 * 2048)] if R2 else []))
    a(f"s_and_b32 {RO}, {RO}, 0x1ffff\ns_add_u32 {T1}, {T2}, {RO}")
lane_expr(vK, 60, [(1, 3, 256), (0, 1, 64), (4, 2, 16)])
a(f"s_lshl_b32 {T0}, {J}, 3\ns_add_u32 {T0}, {T0}, {W}\ns_waitcnt lgkmcnt(0)")
if OPT["rot"]:
    add64(KB, pK, T1)
else:
    add64(KB, pK, T2)
    add64(VB, pV, T2)
a(f"s_cmp_eq_u32 {T0}, {999 if CUT & 128 else 1}\ns_cbranch_scc1 L_LEAD\nL_PRO_L:")


def fill_local(fl, d):
    D = v(d, 4)
    lin(60, 4, [(G, GS), (J, 1152)], 0)
    a(f"global_store_dwordx4 v60, {D}, {sp(pWS)}{fl}")
    a(f"s_mov_b64 exec, 0xff\nglobal_store_dwordx4 v60, {D}, {sp(pWS)} offset:1024{fl}\ns_mov_b64 exec, -1")
    lin(60, 4, [(G, 32 * QRS), (J, QRS)], QR)
    a(f"global_store_dwordx4 v60, {D}, {sp(pWS)}{fl}\nglobal_store_dwordx4 v60, {D}, {sp(pWS)} offset:1024{fl}")
    a(f"s_mov_b32 exec_hi, 0\nglobal_store_dwordx4 v60, {D}, {sp(pWS)} offset:2048{fl}\ns_mov_b64 exec, -1")


def fill_pb(hop, d):
    a(f"s_lshr_b32 {T1}, {J}, 1\ns_and_b32 {T2}, {J}, 1")
    s_expr(T0, [(T1, 16384), (T2, 4096), (G, 256)], PBB + hop * PBH)
    lane_expr(60, 61, [(5, 1, 8192), (4, 1, 2048), (0, 4, 16)], T0)
    a(f"global_store_dwordx4 v60, {v(d, 4)}, {sp(pWS)} sc1")


SKIP = [False]


def stream(i, thr=True):
    if OPT["lay"]:
        B_ = KB if i < 16 else VB
        if OPT["rot"]:
            if i == 2:
                add64(pK, pK, T2)
                add64(pV, pV, T2)
            if i and not i & 1:
                a(f"s_add_u32 {RO}, {RO}, 16384\ns_and_b32 {RO}, {RO}, 0x1ffff")
                add64(B_, pK if i < 16 else pV, RO)
        elif i & 15 and not i & 1:
            add64(B_, B_, 16384)
        if i < 16:
            a(f"global_load_dwordx4 {v(KREG + 4 * i, 4)}, {v(vK)}, {sp(KB)} offset:{(i & 1) * 128} nt")
        else:
            a(f"global_load_dwordx4 {v(SREG + (i - 16) * 4, 4)}, {v(vV)}, {sp(VB)} offset:{(i & 1) * 1024} nt")
    elif i < 16:
        if i == 8:
            add64(KB, KB, 65536)
        kq, hf = (i >> 1) & 3, i & 1
        a(f"global_load_dwordx4 {v(KREG + 4 * i, 4)}, {v(vK)}, {sp(KB)} offset:{kq * 2048 + hf * 128 - 4096} nt")
    else:
        if i == 24:
            add64(VB, VB, 65536)
        a(f"global_load_dwordx4 {v(SREG + (i - 16) * 4, 4)}, {v(vV)}, {sp(VB)} offset:{(i & 7) * 1024 - 4096} nt")
    if thr:
        l = a.newlabel("TS")
        if SKIP[0]:
            a(f"s_cbranch_vccnz {l}")
        a(f"s_waitcnt vmcnt({THR - 1})")
        a.label(l)


def only_wave(w, label, off=False):
    a(f"s_cmp_lg_u32 {W}, {9 if off else w}\ns_cbranch_scc1 {label}")


def h_first():
    a(f"v_lshlrev_b32 {v(vV)}, 4, v0")
    a(f"s_cmp_lg_u32 {W}, 2\ns_cselect_b64 vcc, 0, -1")
    a(f"s_cmp_ge_u32 {W}, 4\ns_cbranch_scc1 L_PRO_X")
    a(f"s_lshl_b32 {TILE}, {J}, 1\ns_add_u32 {TILE}, {TILE}, {W}")
    a(f"s_cmp_eq_u32 {W}, 3\ns_cbranch_scc1 L_PRO_X3\ns_cmp_eq_u32 {W}, 2\ns_cbranch_scc1 L_PRO_X2")
    a(f"s_min_u32 {T1}, {TILE}, 39")
    s_expr(T0, [(T1, 32)])
    lane_expr(60, 61, [(2, 2, 1280), (0, 2, 8), (5, 1, 4)], T0)
    a(f"global_load_dword {v(rX0)}, v60, {sp(pX)}")
    if OPT["tlb"]:
        a.c("first touch of pages that are streamed later")
        a(f"""
        v_and_b32 v60, 1, v0
        v_lshlrev_b32 v60, 16, v60
        global_load_dword {v(vDUM)}, v60, {sp(VB)} nt
        """)
    if OPT["tlb"] & 2:
        a(f"""
        v_and_b32 v60, 3, v0
        v_lshlrev_b32 v60, 20, v60
        v_min_u32 v61, {640 * 3456 - 4}, v60
        global_load_dword {v(vDUM)}, v61, {sp(pWG)} nt
        global_load_dword {v(vDUM)}, v61, {sp(pWU)} nt
        global_load_dword {v(vDUM)}, v61, {sp(pWD)} nt
        v_and_b32 v60, 7, v0
        v_lshlrev_b32 v60, 20, v60
        v_min_u32 v61, {4096 * 1280 - 4}, v60
        global_load_dword {v(vDUM)}, v61, {sp(pWO)} nt
        """)
    a("s_branch L_PRO_A")
    a.label("L_PRO_X2")
    for i in range(4):
        a(f"v_mov_b32 {v(124 + i)}, -1")
    a.c("wave 2: sentinel fill; plain stores are enough if the group shares one L2 (checked later, redone otherwise)")
    if not CUT & 2:
        if not OPT["xc"] & 1:
            fill_local("", 124)
        a(f"s_cmp_ge_u32 {J}, {0 if OPT['xc'] & 2 else 20}\ns_cbranch_scc1 L_PRO_C")
        fill_pb(0, 124)
        if OPT["fb"] == 0:
            a(f"v_add_u32 v60, {PBH}, v60\nglobal_store_dwordx4 v60, v[124:127], {sp(pWS)} sc1")
    a.label("L_PRO_C")
    a.c("wave 2: LDS zero areas")
    zero(range(44, 48))
    a(f"""
    v_lshlrev_b32 v62, 2, v0
    v_add_u32 v62, {L_ML}, v62
    ds_write_b32 v62, v124
    v_lshlrev_b32 v62, 2, v0
    v_add_u32 v62, {L_FLAG}, v62
    ds_write_b32 v62, v124
    v_add_u32 v62, {L_OX}, {v(vV)}
    ds_write_b128 v62, v[124:127]
    ds_write_b128 v62, v[124:127] offset:1024
    ds_write_b128 v62, v[124:127] offset:2048
    ds_write_b128 v62, v[124:127] offset:3072
    v_add_u32 v62, {L_WD + 6 * R32}, {v(vV)}
    s_cmp_ge_u32 {J}, 20
    s_cbranch_scc1 L_PRO_A
    ds_write_b128 v62, v[44:47]
    ds_write_b128 v62, v[44:47] offset:1024
    ds_write_b128 v62, v[44:47] offset:{R32}
    ds_write_b128 v62, v[44:47] offset:{R32 + 1024}
    s_branch L_PRO_A
    """)
    a.label("L_LEAD")
    a.c("wave 1 of the group's first workgroup: reset the group's arrival markers, then raise the group's flag")
    for i in range(4):
        a(f"v_mov_b32 {v(124 + i)}, -1")
    lin(60, 4, [(G, 32 * MSTR)], MK)
    a(f"""
    s_lshl_b32 {T0}, {G}, 5
    v_mov_b32 v62, {T0}
    s_mov_b32 exec_hi, 0
    global_store_dwordx4 v60, v[124:127], {sp(pWS)} sc1
    s_waitcnt vmcnt(0)
    s_mov_b64 exec, 1
    global_store_dword v62, v124, {sp(pDBG)} sc1
    s_mov_b64 exec, -1
    s_branch L_PRO_L
    """)
    a.label("L_PRO_X3")
    lin(60, 2, [(BB, 1280)], 0)
    for u in range(5):
        a(f"global_load_dword {v(pX_ + u)}, v60, {sp(pX)} offset:{u * 256}")
    a("s_branch L_PRO_A")
    a.label("L_PRO_X")
    a(f"s_and_b32 {T1}, {J}, 3")
    s_expr(T0, [(T1, 320)])
    q = Q1M
    lane_expr(q.XA0, q.T, [(2, 2, 1280), (0, 1, 128), (1, 1, 64), (4, 2, 16)], T0)
    lane_expr(q.XA1, q.T, [(2, 2, 1280), (4, 2, 16)], T0)
    a(f"global_load_dwordx4 {v(q.X, 4)}, {v(q.XA0)}, {sp(pX)}")
    a(f"global_load_dwordx4 {v(q.X + 4, 4)}, {v(q.XA1)}, {sp(pX)} offset:256")
    a.label("L_PRO_A")
    lane_expr(vWQ, 61, [(3, 3, 8192), (0, 3, 16)])
    a(f"s_and_b32 {T1}, {J}, 3\ns_and_b32 {T2}, {J}, 4")
    s_expr(T0, [(T1, 160 * 8192), (W, 8 * 8192), (H, 256), (T2, 32)])
    add64(TB, pWQ, T0)
    prostamp(0)


def h_wq(n):
    l = a.newlabel("WQ")
    if n == 2:
        a(f"s_cmp_ge_u32 {W}, 4\ns_cbranch_scc1 {l}")
    a(f"s_lshl_b32 {T1}, {W}, 10\ns_add_u32 m0, {T1}, {L_WQ + n * 8192}")
    if not CUT & 4:
        a(f"global_load_lds_dwordx4 {v(vWQ)}, {sp(TB)} nt")
    if n < 2:
        add64(TB, TB, 64 * 8192)
    a.label(l)


def h_setup1():
    a(f"""
    s_mov_b32 {ONES}, 0x3f803f80
    v_bfe_u32 {v(IDX)}, v0, 1, 1
    v_mul_u32_u24 {v(IDX)}, 0xaaaa, {v(IDX)}
    v_add_u32 {v(IDX)}, 0x4444, {v(IDX)}
    s_mov_b32 {CSC}, {f32(math.log2(math.e) / math.sqrt(128.0))}
    s_mov_b32 {PLO}, 0x05040100
    s_mov_b32 {PHI}, 0x07060302
    s_mov_b32 s{ODD}, 0xaaaaaaaa
    s_mov_b32 s{ODD + 1}, 0xaaaaaaaa
    s_mov_b32 s{LO8}, 0x00ff00ff
    s_mov_b32 s{LO8 + 1}, 0x00ff00ff
    s_mov_b32 s{OBM}, 0x11111111
    s_mov_b32 s{OBM + 1}, 0x11111111
    s_cmp_eq_u32 {W}, 0
    s_cselect_b32 s{OBM}, 0x11111113, s{OBM}
    s_mul_i32 {T0}, {G}, {GS}
    s_add_u32 s{EX}, s{pWS}, {T0}
    s_addc_u32 s{EX + 1}, s{pWS + 1}, 0
    s_cmp_lt_u32 {G}, 6
    s_cselect_b32 {NU}, 7, 6
    s_mul_i32 {FB0}, {G}, 7
    s_min_u32 {FB0}, {FB0}, 48
    s_sub_u32 {T0}, {J}, 20
    s_cmp_lt_u32 {T0}, {NU}
    s_cselect_b32 {ROLE}, 1, 2
    s_cmp_lt_u32 {J}, 20
    s_cselect_b32 {ROLE}, 0, {ROLE}
    """)
    a.c("PATH: 0 out/down projection, 1 gate/up, 2 q projection or q collector, 3 nothing")
    a(f"""
    s_cmp_ge_u32 {W}, 3
    s_cselect_b32 {PATH}, 2, 3
    s_lshl_b32 {T0}, 2, {ROLE}
    s_and_b32 {T0}, {T0}, 7
    s_cmp_lt_u32 {W}, {T0}
    s_cselect_b32 {PATH}, {ROLE}, {PATH}
    s_cmp_lg_u32 {ROLE}, 0
    s_cbranch_scc1 L_PRO_RU
    """)
    a.c("role weight staging: source pointer, swizzled per-lane offset, LDS base")
    lane_expr(vDMA, 60, [(2, 4, 1280), (0, 2, 16)])
    s_expr(T0, [(W, 16 * 1280), (J, 64)])
    add64(WOB, pWO, T0)
    a(f"s_lshr_b32 {T1}, {W}, 1")
    s_expr(T2L, [(W, 1024), (T1, 128)], L_WO)
    a("s_branch L_PRO_R")
    a.label("L_PRO_RU")
    lane_expr(vDMA, 60, [(2, 4, 3456), (0, 2, 16)])
    a(f"""
    s_and_b32 {T0}, {W}, 4
    s_lshl_b32 {T0}, {T0}, 2
    v_xor_b32 {v(vDMA)}, {T0}, {v(vDMA)}
    s_add_u32 {T1}, {FB0}, {J}
    s_sub_u32 {T1}, {T1}, 20
    s_and_b32 {T2}, {W}, 3
    s_cmp_ge_u32 {W}, 4
    s_cselect_b32 s{WOB}, s{pWU}, s{pWG}
    s_cselect_b32 s{WOB + 1}, s{pWU + 1}, s{pWG + 1}
    s_mov_b32 {T2L}, {L_WG}
    s_cselect_b32 {T2L}, {L_WU}, {T2L}
    s_lshr_b32 {T0}, {T2}, 1
    """)
    s_expr(T2L, [(T2L, 1), (T2, 1024), (T0, 128)])
    s_expr(T0, [(T1, 64), (T2, 16 * 3456)])
    add64(WOB, WOB, T0)
    a.label("L_PRO_R")
    a(f"v_and_b32 v60, 16, v0\nv_lshlrev_b32 v60, 1, v60\nv_xor_b32 {v(vDMA)}, {v(vDMA)}, v60")


def h_setup3():
    att_init(32, acc=False)
    lin(oBA, 4, [(W, 2048)], OB)
    zero([12])
    a(f"s_lshr_b32 {T1}, {J}, 1\ns_and_b32 {T2}, {J}, 1")
    lin(oSA, 2, [(T1, 16384), (T2, 4096), (W, 2048), (G, 256)], 0)
    zero([41, 42, vPF, pA, pC])


def h_flag():
    a(f"""
    v_and_b32 v17, 7, v0
    v_lshlrev_b32 v17, 5, v17
    v_mov_b32 v18, 0
    v_lshlrev_b32 v19, 4, v0
    v_add_u32 v19, {MK}, v19
    """)
    only_wave(2, "L_HA0", CUT & 32)
    a(f"global_load_dword v18, v17, {sp(pDBG)} sc1")
    a.label("L_HA0")


def h_bq(nafter, nflag):
    a(f"s_waitcnt vmcnt({nafter}) lgkmcnt(0)")
    only_wave(2, "L_HA1", CUT & 32)
    a.c("wave 2: sentinel fill done and the group's markers reset -> publish this workgroup's XCD id")
    lin(62, 2, [(G, 32 * MSTR), (J, MSTR)], MK)
    a(f"""
    s_getreg_b32 {XCC}, hwreg(HW_REG_XCC_ID, 0, 4)
    v_mov_b32 v44, {XCC}
    s_mov_b32 {SPIN}, {SPIN_MAX}
    s_barrier
    s_waitcnt vmcnt({nflag})
L_ARR:
    v_readlane_b32 {T0}, v18, {G}
    s_cmp_lg_u32 {T0}, 0
    s_cbranch_scc1 L_ARR_OK
    global_load_dword v18, v17, {sp(pDBG)} sc1
    s_waitcnt vmcnt(0)
    s_sub_u32 {SPIN}, {SPIN}, 1
    s_cbranch_scc0 L_ARR
L_ARR_OK:
    s_mov_b64 exec, 1
    global_store_dwordx4 v62, v[44:47], {sp(pWS)} sc1
    s_mov_b64 exec, -1
    s_branch L_PRO_KV
L_HA1:
    """)
    prostamp(3)
    a(f"""
    s_barrier
    s_cmp_ge_u32 {W}, {9 if CUT & 16 else 4}
    s_cbranch_scc1 L_PRO_Q
    s_cmp_eq_u32 {W}, 3
    s_cbranch_scc1 L_PRO_P
    v_and_b32 {v(rX1)}, 0xffff0000, {v(rX0)}
    v_lshlrev_b32 {v(rX0)}, 16, {v(rX0)}
    s_branch L_PRO_KV
    """)
    a.label("L_PRO_Q")
    a.c("waves 4..7: partial q projection of layer 1 and partial column sums")
    qp_setup(Q1M)
    qp_saddr(Q1M.SA, 0)
    qB, qSA, qACC = Q1M.B, Q1M.SA, Q1M.A[0]
    qp_saddr(112, 2048, 128)
    zero(range(116, 124))
    for i in range(4):
        a(f"v_mov_b32 {v(124 + i)}, {ONES}")
    a("s_waitcnt lgkmcnt(0)")
    qp_mm(Q1M)
    a(f"""
    {SMF} v[116:119], v[124:127], {v(qB, 8)}, {v(IDX)}
    {SMF} v[116:119], v[124:127], {v(qB + 8, 8)}, {v(IDX)}
    {SMF} v[120:123], v[124:127], {v(qB + 16, 8)}, {v(IDX)}
    """)
    qp_sum(Q1M)
    a(f"""
    v_add_f32 v116, v116, v118
    v_add_f32 v116, v116, v120
    v_min_u32 v42, -2, v116
    v_mov_b32 v41, {v(qACC)}
    global_store_dword {v(qSA)}, v41, {sp(pWS)}
    s_mov_b32 exec_hi, 0
    global_store_dword v112, v42, {sp(pWS)}
    s_mov_b64 exec, -1
    s_mov_b64 vcc, -1
    s_branch L_PRO_KV
    """)
    a.label("L_PRO_P")
    a.c("wave 3: LayerNorm statistics of its row")
    if not CUT & 8:
        a(f"global_load_dword v18, v17, {sp(pDBG)} sc1")
    poller_qaddr(0)
    s_expr(T0, [(G, 32 * QRS), (T1, QRS)], QR + 2048 + 3840)
    lane_expr(pC, pT, [(5, 1, 4 * QRS), (3, 2, 128), (0, 3, 8)], T0)
    poller_stats()
    a.label("L_PRO_KV")
    if OPT["padfrom"] == 3:
        a("s_memrealtime s[100:101]")
    prostamp(4)


MK_LOADS = "\n".join(f"global_load_dword {v(20 + u)}, v19, {sp(pWS)} offset:{u * 64 * MSTR} sc1" for u in range(4))


def q1_loads():
    for ins, _, _ in poller_qloads():
        a(ins)
    for kq in range(4):
        a(f"global_load_dwordx2 {v(pX_ + 2 * kq, 2)}, {v(pC)}, {sp(pWS)} offset:{kq * QRS - 3840} sc1")


def h_p1(ny):
    only_wave(3, "L_H1", CUT & 8)
    a.c("wave 3: all groups have reset their markers -> read the markers")
    a(f"""
    s_mov_b32 {SPIN}, {SPIN_MAX}
    s_waitcnt vmcnt({ny})
L_FLG:
    v_cmp_eq_u32 vcc, 0, v18
    s_cbranch_vccz L_FLG_OK
    global_load_dword v18, v17, {sp(pDBG)} sc1
    s_waitcnt vmcnt(0)
    s_sub_u32 {SPIN}, {SPIN}, 1
    s_cbranch_scc0 L_FLG
L_FLG_OK:
    {MK_LOADS}
    s_mov_b64 vcc, -1
L_H1:
    """)
    prostamp(2)


def h_p2(ny):
    only_wave(3, "L_H2", CUT & 8)
    a.c("wave 3: the whole group has arrived -> fetch q partials; decide whether the group shares one L2")
    a(f"""
    s_getreg_b32 {XCC}, hwreg(HW_REG_XCC_ID, 0, 4)
    s_mov_b32 {SPIN}, {SPIN_MAX}
    s_waitcnt vmcnt({ny})
L_CNT:
    s_bitcmp1_b32 {G}, 1
    s_cselect_b64 vcc, -1, 0
    v_cndmask_b32 v17, v20, v21, vcc
    v_cndmask_b32 v18, v22, v23, vcc
    s_bitcmp1_b32 {G}, 2
    s_cselect_b64 vcc, -1, 0
    v_cndmask_b32 v17, v17, v18, vcc
    v_cmp_eq_u32 vcc, -1, v17
    s_bitcmp1_b32 {G}, 0
    s_cselect_b32 {T0}, vcc_hi, vcc_lo
    s_cmp_eq_u32 {T0}, 0
    s_cbranch_scc1 L_CNT_OK
    {MK_LOADS}
    s_waitcnt vmcnt(0)
    s_sub_u32 {SPIN}, {SPIN}, 1
    s_cbranch_scc0 L_CNT
L_CNT_OK:
    """)
    q1_loads()
    a(f"""
    {MK_LOADS}
    v_cmp_ne_u32 vcc, {XCC}, v17
    v_mov_b32 v18, {L_FLAG}
    s_bitcmp1_b32 {G}, 0
    s_cselect_b32 {T0}, vcc_hi, vcc_lo
    s_cmp_lg_u32 {T0}, 0
    s_cselect_b32 {T0}, 0, {0 if OPT['force_global'] else 1}
    s_mov_b32 {LOCAL}, {T0}
    v_mov_b32 v17, {T0}
    ds_write_b32 v18, v17
    s_mov_b64 vcc, -1
L_H2:
    """)
    prostamp(5)


def h_p4():
    a.c("wave 3: every workgroup of every group must have arrived before this workgroup publishes or polls anything else")
    a(f"""
    s_mov_b32 {SPIN}, {SPIN_MAX}
L_ALL:
    v_max3_u32 v17, v20, v21, v22
    v_max_u32 v17, v17, v23
    v_cmp_eq_u32 vcc, -1, v17
    s_cbranch_vccz L_ALL_OK
    s_sleep 4
    {MK_LOADS}
    s_waitcnt vmcnt(0)
    s_sub_u32 {SPIN}, {SPIN}, 1
    s_cbranch_scc0 L_ALL
L_ALL_OK:
    """)
    if OPT["warm"] & 2:
        a.c("keep the hand-off lines in L2 so that the first polls do not miss")
        s_expr(T0, [(J, 1152)])
        a(f"""
        v_min_u32 v17, 8, v0
        v_lshl_add_u32 v17, v17, 7, {T0}
        global_load_dword {v(vDUM)}, v17, {sp(EX)} sc1
        """)
        s_expr(T0, [(G, 32 * QRS), (J, QRS)], QR + 1024)
        a(f"""
        v_and_b32 v17, 7, v0
        v_lshl_add_u32 v17, v17, 7, {T0}
        global_load_dword {v(vDUM)}, v17, {sp(pWS)} sc1
        """)
    a.label("L_H4")


def q1_collect(tag):
    a(f"s_mov_b32 {SPIN}, {SPIN_MAX}")
    a.label("L_Q1" + tag)
    for s_ in check_ops(list(range(pX_, pX_ + 8)) + list(range(pQ, pQ + 8)), pT):
        a(s_)
    a(f"s_cbranch_vccz L_Q1_OK{tag}")
    q1_loads()
    a(f"""
    s_waitcnt vmcnt(0)
    s_sub_u32 {SPIN}, {SPIN}, 1
    s_cbranch_scc0 L_Q1{tag}
L_Q1_OK{tag}:
    v_pk_add_f32 {v(pX_, 2)}, {v(pX_, 2)}, {v(pX_ + 2, 2)}
    v_pk_add_f32 {v(pX_ + 4, 2)}, {v(pX_ + 4, 2)}, {v(pX_ + 6, 2)}
    v_pk_add_f32 {v(pCS, 2)}, {v(pX_, 2)}, {v(pX_ + 4, 2)}
    """)
    poller_bias()
    poller_finish()


def h_p3(ny):
    only_wave(3, "L_H3", CUT & 8)
    a(f"s_waitcnt vmcnt({ny})\ns_cmp_eq_u32 {LOCAL}, 0\ns_cbranch_scc1 L_H3B")
    q1_collect("")
    a.label("L_H3B")
    h_p4()
    a("s_waitcnt lgkmcnt(0)\ns_mov_b64 vcc, -1")
    a.label("L_H3")
    prostamp(6)


def wo_prefetch():
    if OPT["xp"] & 2:
        return
    if OPT["upfree"]:
        a.c("wo into L2, one dword per line; the gate/up workgroups are left out so that they finish K/V early")
        a(f"""
        s_sub_u32 {T0}, {J}, 20
        s_cmp_lt_u32 {T0}, 7
        s_cbranch_scc1 L_WPE
        s_cmp_ge_u32 {J}, 20
        s_cselect_b32 {T0}, 7, 0
        s_sub_u32 {T0}, {J}, {T0}
        """)
        s_expr(T0, [(T0, 8 * 26), (W, 26)])
        a(f"""
        v_min_u32 {v(vPF)}, 25, v0
        v_add_u32 {v(vPF)}, {T0}, {v(vPF)}
        v_min_u32 {v(vPF)}, 5119, {v(vPF)}
        v_mul_u32_u24 v63, 3277, {v(vPF)}
        v_lshrrev_b32 v63, 22, v63
        v_add_u32 v62, {G}, v63
        v_and_b32 v62, 7, v62
        v_mul_u32_u24 v63, 7, v63
        v_add_u32 v62, v62, v63
        v_mul_u32_u24 v62, 1280, v62
        v_add_lshl_u32 {v(vPF)}, {v(vPF)}, v62, 7
        global_load_dword {v(vDUM)}, {v(vPF)}, {sp(pWO)}{" nt" if OPT["xp"] & 8 else ""}
    L_WPE:
        """)
        return
    a(f"s_and_b32 {T1}, {J}, 7")
    s_expr(T0, [(H, 128 * 1280), (T1, 8 * 2560), (W, 2560)])
    a(f"""
    v_min_u32 {v(vPF)}, 19, v0
    v_lshl_add_u32 {v(vPF)}, {v(vPF)}, 7, {T0}
    global_load_dword {v(vDUM)}, {v(vPF)}, {sp(pWO)}
    """)


K0, BQ, HF, HC, HD, BP = OPT["k0"], OPT["bq"], OPT["hf"], OPT["hc"], OPT["hd"], OPT["bp"]
hooks = {}


def h_unfree():
    a(f"s_cmp_eq_u32 {W}, 3\ns_cselect_b64 vcc, vcc, 0")


for pos, fn in [(K0, h_first), (K0, lambda: h_wq(0)), (K0, lambda: h_wq(1)), (K0, lambda: h_wq(2)),
                (K0 + 1, h_setup1), (K0 + 2, h_setup3), (HF, h_flag),
                (BQ + 2, lambda: h_bq(BQ + 2 - K0, BQ + 2 - HF)), (BQ + 3, lambda: att_addr(0)),
                (BQ + 2 + OPT["free"], h_unfree),
                (HC, lambda: h_p1(HC - BQ - 2)), (HC + HD, lambda: h_p2(HD)), (HC + 2 * HD, lambda: h_p3(HD))]:
    hooks.setdefault(pos, []).append(fn)
if OPT["pfp"] < BP:
    hooks.setdefault(OPT["pfp"], []).insert(0, wo_prefetch)
assert K0 + 2 <= BQ + 2 <= 16 and K0 <= HF < BQ + 2 <= HC and HC + 2 * HD < BP and 24 <= BP <= 28 and HC + 2 * HD <= 28
SKIP[0] = True
for i in range(BP):
    for fn in hooks.get(i, []):
        fn()
    stream(i, thr=not (i < K0 or BQ <= i < BQ + 2 or i >= BP - OPT['cov']))
SKIP[0] = False
a("s_waitcnt vmcnt(%d)" % (BP - 16))
prostamp(1)
a(f"""
    v_mov_b32 v62, {L_FLAG}
    s_barrier
    ds_read_b32 v62, v62
    v_mov_b32 v63, {CSC}
    s_waitcnt lgkmcnt(0)
    v_readfirstlane_b32 {LOCAL}, v62
    s_cmp_eq_u32 {LOCAL}, {9 if CUT else 0}
    s_cbranch_scc1 L_SLOW
L_SLOW_RET:
""")
if OPT["padfrom"] == 2:
    a("s_memrealtime s[100:101]")
zero(range(16, 32))
a("s_mov_b32 exec_lo, 0x000f000f\ns_mov_b32 exec_hi, 0x000f000f\ns_branch L_BAR2")


def perms(t, pp):
    for j in range(8):
        s0 = SREG + t * 32 + (2 * pp) * 4 + (j >> 1)
        a(f"v_perm_b32 {v(VREG + j * 8 + t * 4 + pp)}, {v(s0 + 4)}, {v(s0)}, {PHI if j & 1 else PLO}")


def gu_prefetch(lo, hi, issue=True):
    s_expr(T1, [(J, 8), (W, 1)], -160)
    a(f"""
    s_cmp_ge_u32 {T1}, 48
    s_cselect_b32 s{TB}, s{pWU}, s{pWG}
    s_cselect_b32 s{TB + 1}, s{pWU + 1}, s{pWG + 1}
    s_cselect_b32 {T0}, 48, 0
    s_sub_u32 {T1}, {T1}, {T0}
    s_mul_i32 {T1}, {T1}, 14
    s_add_u32 {T1}, {T1}, {lo}
    s_lshr_b32 {T2}, {FB0}, 1
    s_lshl_b32 {T2}, {T2}, 7
    s_sub_u32 {T0}, {NU}, 4
    v_lshrrev_b32 {v(vPF)}, 2, v0
    v_min_u32 {v(vPF)}, {hi - lo - 1}, {v(vPF)}
    v_add_u32 {v(vPF)}, {T1}, {v(vPF)}
    v_min_u32 {v(vPF)}, 639, {v(vPF)}
    v_mul_u32_u24 {v(vPF)}, 3456, {v(vPF)}
    v_and_b32 {v(vK)}, 3, v0
    v_min_u32 {v(vK)}, {T0}, {v(vK)}
    v_lshl_add_u32 {v(vPF)}, {v(vK)}, 7, {v(vPF)}
    v_add_u32 {v(vPF)}, {T2}, {v(vPF)}
    """)
    if issue:
        a(f"global_load_dword {v(vDUM)}, {v(vPF)}, {sp(TB)}")


NTAIL = 1 if OPT["pfp"] == 32 else 0


def v_tail():
    done = 0
    for i in range(BP, 32):
        if i == OPT["pfp"]:
            wo_prefetch()
        stream(i, thr=i < 31 - OPT['vthr'])
        if done < 4:
            a(f"s_waitcnt vmcnt({i - (17 + 2 * done)})")
            perms(0, done)
            done += 1
    assert done == 4
    if OPT["pfp"] == 32:
        wo_prefetch()
    prostamp(7)
    a(f"s_lshr_b32 {OPW}, {W}, 2\ns_or_b32 {OPW}, {OPW}, {ROLE}")
    zero(range(aACC, aACC + 16))
    weights("V", True)
    for pp in range(4):
        a(f"s_waitcnt vmcnt({6 - 2 * pp + NTAIL})")
        perms(1, pp)
        if pp == 2:
            a(f"s_cmp_eq_u32 {ROLE}, 0\ns_cbranch_scc1 L_NT0")
            gu_prefetch(0, OPT["nt"], issue=False)
            a.label("L_NT0")
        if pp == 1:
            for i in range(4):
                a(f"""
                s_add_u32 {T0}, {G}, {i}
                s_and_b32 {T0}, {T0}, 7
                s_add_u32 {T0}, {T0}, {8 * i}
                s_mul_i32 s{PM + i}, {T0}, {128 * 1280}
                """)
    a.c("K and V are in: first part of the W_gate / W_up prefetch")
    a(f"s_cmp_eq_u32 {ROLE}, 0\ns_cbranch_scc1 L_NT1")
    a(f"global_load_dword {v(vDUM)}, {v(vPF)}, {sp(TB)}\ns_branch L_PV" if not OPT["xp"] & 1 else "s_branch L_PV")
    a.label("L_NT1")
    for i in range(0 if OPT["xp"] & 4 else 4):
        a(f"s_add_u32 m0, {T2L}, {i * 4 * R32}")
        add64(TB, WOB, f"s{PM + i}")
        a(f"global_load_lds_dwordx4 {v(vDMA)}, {sp(TB)}")


MXS = "s44"
keep_in_page(0x840, jump=False)
a.label("L_BAR")
a(f"""
    v_mov_b32 v63, {CSC}
    s_mov_b32 exec_lo, 0x000f000f
    s_mov_b32 exec_hi, 0x000f000f
    s_barrier
L_BAR2:
""")
stamp(0)
cyc(0)
for o in range(4):
    a(f"ds_read_b128 {v(aQV + 4 * o, 4)}, {v(aQA)}")
    a("s_lshl_b64 exec, exec, 4" if o < 3 else "s_mov_b64 exec, -1")
for o in range(4):
    a(f"s_waitcnt lgkmcnt({3 - o})")
    for t in range(2):
        a(f"{SMF} {v(aQK + 4 * t, 4)}, {v(aQV + 4 * o, 4)}, {v(KREG + (t * 4 + o) * 8, 8)}, {v(IDX)}")
cyc(1)
a(f"""
    v_pk_add_f32 {v(aQK, 2)}, {v(aQK, 2)}, {v(aQK + 2, 2)}
    v_pk_add_f32 {v(aQK + 4, 2)}, {v(aQK + 4, 2)}, {v(aQK + 6, 2)}
    v_cndmask_b32 {v(aT)}, {v(aQK + 4)}, {v(aQK + 1)}, {sp(ODD)}
    v_cndmask_b32 {v(aS)}, {v(aQK)}, {v(aQK + 5)}, {sp(ODD)}
    v_add_f32_dpp {v(aS)}, {v(aT)}, {v(aS)} quad_perm:[1,0,3,2] {DPP}
    v_max_f32_dpp {v(aT)}, {v(aS)}, {v(aS)} quad_perm:[1,0,3,2] {DPP}
    v_max_f32_dpp {v(aT)}, {v(aT)}, {v(aT)} quad_perm:[2,3,0,1] {DPP}
    v_max_f32_dpp {v(aT)}, {v(aT)}, {v(aT)} row_ror:4 {DPP}
    v_max_f32_dpp {v(aT)}, {v(aT)}, {v(aT)} row_ror:8 {DPP}
    v_max_f32_dpp {v(aT)}, {v(aT)}, {v(aT)} row_bcast:15 row_mask:0xa bank_mask:0xf
    v_max_f32_dpp {v(aT)}, {v(aT)}, {v(aT)} row_bcast:31 row_mask:0xc bank_mask:0xf
    v_readlane_b32 {MXS}, {v(aT)}, 63
    v_mul_f32 {v(aT)}, {MXS}, v63
    v_fma_f32 {v(aS)}, {v(aS)}, v63, -{v(aT)}
    v_exp_f32 {v(aS)}, {v(aS)}
    v_min_u32 {v(aT)}, -2, {v(aT)}
    v_cvt_pk_bf16_f32 {v(aS)}, {v(aS)}, {v(aS)}
    ds_write_b16 {v(aPW)}, {v(aS)}
    s_mov_b64 exec, {sp(LO8)}
    ds_read_b128 v[16:19], {v(aPR)}
    s_not_b64 exec, exec
    ds_read_b128 v[28:31], {v(aPR)}
    s_mov_b64 exec, 1
    ds_write_b32 {v(aMLW)}, {v(aT)} offset:64
    s_mov_b64 exec, -1
""")
cM, cO, cW = 20, 24, 44


def weights(tag, first):
    if first:
        a(f"ds_read_b128 {v(cM, 4)}, {v(aMLR)} offset:64\ns_waitcnt lgkmcnt(0)")
    a(f"""
    s_mov_b32 {SPIN}, {SPIN_MAX}
L_MXC{tag}:
    v_max_u32 {v(aS)}, {v(cM)}, {v(cM + 2)}
    v_cmp_eq_u32 vcc, -1, {v(aS)}
    v_max_f32 {v(aT)}, {v(cM)}, {v(cM + 2)}
    s_cbranch_vccnz L_MXR{tag}
L_MXD{tag}:
    s_nop 0
    v_max_f32_dpp {v(aT)}, {v(aT)}, {v(aT)} quad_perm:[1,0,3,2] {DPP}
    v_max_f32_dpp {v(aT)}, {v(aT)}, {v(aT)} quad_perm:[2,3,0,1] {DPP}
    v_sub_f32 {v(cW)}, {v(cM)}, {v(aT)}
    v_sub_f32 {v(cW + 1)}, {v(cM + 2)}, {v(aT)}
    v_exp_f32 {v(cW)}, {v(cW)}
    v_exp_f32 {v(cW + 1)}, {v(cW + 1)}
    """)


cyc(2)
a(f"s_cmp_eq_u32 {LAYER}, 0\ns_cbranch_scc1 L_VT")
a.label("L_PV")
a("s_waitcnt lgkmcnt(2)")
cyc(3)
pvm = [f"{SMF} {v(aACC + 4 * (j & 3), 4)}, {v(16 if j < 4 else 28, 4)}, {v(VREG + j * 8, 8)}, {v(IDX2)}" for j in range(8)]
oww = [f"ds_write2_b32 {v(aOWW)}, {v(aACC + 8 * jp)}, {v(aACC + 8 * jp + 4)} offset0:{OWJ * jp} offset1:{OWJ * jp + 1}"
       for jp in range(2)]
a(f"{MFMA} {v(aLA, 4)}, v[16:19], {v(aONE, 4)}, 0")
for n, j in enumerate((0, 1, 4, 5, 2, 3, 6, 7)):
    if n == 2:
        a("s_waitcnt lgkmcnt(1)")
    a(pvm[j])
    if n == OPT["mrd"]:
        a(f"ds_read_b128 v[20:23], {v(aMLR)} offset:64")
a(f"""
    s_cmp_eq_u32 {LAYER}, 0
    {oww[0]}
    s_mov_b64 exec, 0x10001
    ds_write_b32 {v(aMLW)}, {v(aLA)}
    s_mov_b64 exec, -1
    {oww[1]}
    s_cbranch_scc1 L_E1
    s_cmp_ge_u32 {W}, 4
    s_cbranch_scc1 L_YB
""")
cyc(4)
a("s_waitcnt lgkmcnt(3)")
weights("", False)
a(f"s_cmp_ge_u32 {W}, 4")
a.label("L_YB")
a("s_waitcnt lgkmcnt(0)")
cyc(5)
a("s_barrier\ns_cbranch_scc1 L_ATT_END")
cyc(6)
a(f"""
    ds_read_b128 {v(cM, 4)}, {v(aMLR)}
    ds_read_b128 {v(cO, 4)}, {v(aOWR)}
    ds_read_b128 {v(cO + 4, 4)}, {v(aOWR)} offset:{OWS}
""")
local_test()
a(f"""
    s_waitcnt lgkmcnt(2)
    v_add_f32 {v(cM)}, {v(cM)}, {v(cM + 1)}
    v_add_f32 {v(cM + 2)}, {v(cM + 2)}, {v(cM + 3)}
    v_mul_f32 {v(aS)}, {v(cW)}, {v(cM)}
    v_fmac_f32 {v(aS)}, {v(cW + 1)}, {v(cM + 2)}
    s_waitcnt lgkmcnt(0)
    {f"s_memtime {sp(STAMP0 + 2)}" if OPT["pro"] == 4 else ""}
    v_pk_add_f32 {v(cO, 2)}, {v(cO, 2)}, {v(cO + 2, 2)}
    v_add_f32_dpp {v(aS)}, {v(aS)}, {v(aS)} quad_perm:[1,0,3,2] {DPP}
    v_pk_add_f32 {v(cO + 4, 2)}, {v(cO + 4, 2)}, {v(cO + 6, 2)}
    v_pk_mul_f32 {v(cO, 2)}, {v(cO, 2)}, {v(cW, 2)} op_sel_hi:[1,0]
    v_add_f32_dpp {v(aS)}, {v(aS)}, {v(aS)} quad_perm:[2,3,0,1] {DPP}
    v_pk_fma_f32 {v(cO, 2)}, {v(cO + 4, 2)}, {v(cW, 2)}, {v(cO, 2)} op_sel:[0,1,0] op_sel_hi:[1,1,1]
    v_rcp_f32 {v(cW + 2)}, {v(aS)}
    v_log_f32 {v(aS)}, {v(aS)}
    v_add_f32_dpp {v(cO)}, {v(cO)}, {v(cO)} quad_perm:[1,0,3,2] {DPP}
    v_add_f32_dpp {v(cO + 1)}, {v(cO + 1)}, {v(cO + 1)} quad_perm:[1,0,3,2] {DPP}
    v_add_f32 {v(cM)}, {v(aS)}, {v(aT)}
    v_add_f32_dpp {v(cO)}, {v(cO)}, {v(cO)} quad_perm:[2,3,0,1] {DPP}
    v_add_f32_dpp {v(cO + 1)}, {v(cO + 1)}, {v(cO + 1)} quad_perm:[2,3,0,1] {DPP}
    s_mov_b32 exec_lo, s{OBM + 1}
    v_pk_mul_f32 {v(cO, 2)}, {v(cO, 2)}, {v(cW + 2, 2)} op_sel_hi:[1,0]
    v_cvt_pk_bf16_f32 {v(cM)}, {v(cO)}, {v(cO + 1)}
    s_mov_b64 exec, {sp(OBM)}
    v_min_u32 {v(cO)}, -2, {v(cM)}
""")
cyc(7)
store_local(f"global_store_dword {v(aOBA)}, {v(cO)}, {sp(EX)}")
a("s_mov_b64 exec, -1")
a.label("L_ATT_END")
stamp(3)
if CUT & 1:
    a("s_branch L_FIN")
a(f"s_cmp_eq_u32 {LAYER}, 0\ns_cbranch_scc1 L_STAGE")
a.label("L_ROLE")
a(f"s_cmp_lg_u32 {OPW}, 0\ns_cbranch_scc1 L_ROLE2")

oB, oA, oACC, oL, oT, oT2 = 64, 16, 48, 4, 6, 7
rL, rR, rA, rS, rT, rSC = 48, 16, 2, 4, 5, 8


EG, EG2 = VB, KB


def pb_store(addr, data):
    a(f"global_store_dword {v(addr)}, {v(data)}, {sp(EG)} sc1")
    a(f"global_store_dword {v(addr)}, {v(data)}, {sp(EG2)} sc1")


def op_load_b(base):
    lane_expr(oT2, oT, [(4, 1, 32)])
    a(f"s_lshl_b32 {T0}, {W}, 5\nv_xor_b32 v9, {T0}, {v(oT2)}")
    b_addr(oT, oT2, 64, [(0, 2, 8)], base, R32)
    a(f"v_add_u32 {v(oT)}, {v(oT)}, v9")


a.c("waves 0..3: one head each, both column tiles; waves 0,1 then add the four partial results of their tile")
oL, oLA_, oXW, oB1 = 24, 3, 4, 5
ld = [(f"global_load_dwordx4 {v(oA + 4 * n, 4)}, {v(oBA)}, {sp(EX)} offset:{n * 1024} sc1", oA + 4 * n, 4) for n in range(2)]
ld.append((f"global_load_dwordx2 {v(oL, 2)}, {v(oLA_)}, {sp(EX)} sc1", oL, 2))
cy2(0)
s_expr(T0, [(W, 4 * R32)], L_WO)
b_addr(oT, oT2, 64, [(0, 2, 8)], T0, R32)
a(f"""
    v_and_b32 {v(oT2)}, 16, v0
    v_lshl_add_u32 {v(oB1)}, {v(oT2)}, 1, {v(oT)}
    v_xor_b32 {v(oT2)}, 16, {v(oT2)}
    v_lshl_add_u32 {v(oT)}, {v(oT2)}, 1, {v(oT)}
""")


def op_reads():
    b_reads(oB, oB1, 2, 64, R32)
    b_reads(oB + 16, oT, 2, 64, R32)


op_reads()
s_expr(T0, [(W, 8)], LSE)
lane_expr(oLA_, oT2, [(4, 2, 32)], T0)


def op_pre():
    cy2(1)
    zero(range(oACC, oACC + 8))
    lin(oXW, 2, [(LAYER, 2048), (W, 256)], L_OX)
    lin(10, 2, [(LAYER, 2048), (W, 1024)], L_OX)
    a(f"s_lshr_b32 {T1}, {TILE}, 2\ns_and_b32 {T2}, {TILE}, 3")
    lin(rA, 4, [(T1, 16384), (T2, 2048)], 0)
    s_expr(T0, [(LAYER, 2 * PBH)], PBB)
    add64(EG, pWS, T0)
    add64(EG2, EG, 8192)
    a("s_waitcnt lgkmcnt(0)")


poll(ld, oT2, OPT["p_op"], pre=op_pre, deep=OPT["d2"] & 32)
cy2(2)
if OPT["cy2"] == 1:
    a(f"s_sub_u32 s{STAMP0 + 8}, {SPIN_MAX + 1}, {SPIN}")
sm = lambda t, u: f"{SMF} {v(oACC + 4 * t, 4)}, {v(oA + 4 * u, 4)}, {v(oB + 16 * t + 8 * u, 8)}, {v(IDX)}"
a(f"""
    {sm(0, 0)}
    v_sub_f32 v8, {v(oL + 1)}, {v(oL)}
    {sm(0, 1)}
    v_exp_f32 v8, v8
    {sm(1, 0)}
    v_add_f32 v8, 1.0, v8
    {sm(1, 1)}
    v_rcp_f32 v8, v8
    s_mov_b32 {SPIN}, {SPIN_MAX}
    s_cmp_ge_u32 {W}, 2
    v_sub_f32 v9, 1.0, v8
    v_pk_add_f32 {v(oACC, 2)}, {v(oACC, 2)}, {v(oACC + 2, 2)}
    v_mul_f32 {v(oACC)}, v8, {v(oACC)}
    v_fmac_f32 {v(oACC)}, v9, {v(oACC + 1)}
    v_pk_add_f32 {v(oACC + 4, 2)}, {v(oACC + 4, 2)}, {v(oACC + 6, 2)}
    v_min_u32 {v(oACC)}, -2, {v(oACC)}
    v_mul_f32 {v(oACC + 4)}, v8, {v(oACC + 4)}
    v_fmac_f32 {v(oACC + 4)}, v9, {v(oACC + 5)}
    v_min_u32 {v(oACC + 4)}, -2, {v(oACC + 4)}
    ds_write2st64_b32 {v(oXW)}, {v(oACC)}, {v(oACC + 4)} offset0:0 offset1:4
    s_cbranch_scc1 L_ROLE2
L_OXP:
    ds_read2st64_b32 v[56:57], v10 offset0:0 offset1:1
    ds_read2st64_b32 v[58:59], v10 offset0:2 offset1:3
    s_sub_u32 {SPIN}, {SPIN}, 1
    s_cbranch_scc1 L_OXD
    s_waitcnt lgkmcnt(0)
    v_max3_u32 {v(oT2)}, v56, v57, v58
    v_max_u32 {v(oT2)}, {v(oT2)}, v59
    v_cmp_eq_u32 vcc, -1, {v(oT2)}
    v_pk_add_f32 v[60:61], v[56:57], v[58:59]
    s_cbranch_vccnz L_OXP
L_OXD:
""")
stamp(4)
a("v_add_f32 v60, v60, v61\nv_min_u32 v60, -2, v60")
cy2(3)
pb_store(oSA, 60)
stamp(5)

def red_dst(dst):
    if dst == XA:
        a(f"s_lshr_b32 {T1}, {TILE}, 3\ns_and_b32 {T2}, {TILE}, 7\ns_lshl_b32 {T1}, {T1}, 10")
    else:
        a(f"""
        s_mul_i32 {T1}, {TILE}, 26
        s_lshr_b32 {T1}, {T1}, 8
        s_mul_i32 {T2}, {T1}, 10
        s_sub_u32 {T2}, {TILE}, {T2}
        s_mul_i32 {T1}, {T1}, 1280
        """)
    s_expr(T0, [(T1, 1)], dst)
    a(f"""
    s_and_b32 {T1}, {T2}, 1
    s_lshl_b32 {T1}, {T1}, 9
    s_and_b32 {T3}, {T2}, 2
    s_lshl_b32 {T3}, {T3}, 4
    s_add_u32 {T1}, {T1}, {T3}
    s_and_b32 {T3}, {T2}, 4
    s_lshl_b32 {T3}, {T3}, 2
    s_add_u32 {T1}, {T1}, {T3}
    s_lshl_b32 {T3}, {T2}, 7
    s_cmp_ge_u32 {T2}, 8
    s_cselect_b32 {T1}, {T3}, {T1}
    s_cselect_b32 {T2}, 4, 6
    s_add_u32 {T0}, {T0}, {T1}
    """)
    lane_expr(rS, rT, [(1, 1, 4), (2, 2, 1)])
    a(f"""
    v_lshlrev_b32 {v(rS)}, {T2}, {v(rS)}
    v_and_b32 {v(rT)}, 1, v0
    v_lshl_add_u32 {v(rS)}, {v(rT)}, 3, {v(rS)}
    v_lshrrev_b32 {v(rT)}, 5, v0
    v_lshl_add_u32 {v(rS)}, {v(rT)}, 2, {v(rS)}
    v_add_u32 {v(rS)}, {T0}, {v(rS)}
    """)


def near_probe():
    a.c("two stores are in flight, copy 0 first: if it returns ahead of copy 1 it lies on this XCD's side (speed only)")
    a(f"""
    s_waitcnt vmcnt(1)
    s_nop {OPT["gap"]}
    s_getreg_b32 {T0}, hwreg(HW_REG_IB_STS, 0, 4)
    s_cmp_eq_u32 {T0}, 0
    s_cselect_b32 {NEAR}, 8192, 0
    """)


def red_scale():
    a.c("1/(var+eps) of x (from wave 2) scales the FFN output after the reduce")
    s_expr(T0, [(LAYER, 64)], L_FLAG + 64)
    lane_expr(9, 10, [(0, 4, 4)], T0)
    a(f"""
    s_mov_b32 {SPIN}, {SPIN_MAX}
L_XS:
    ds_read_b32 {v(rSC)}, v9
    s_sub_u32 {SPIN}, {SPIN}, 1
    s_cbranch_scc1 L_XS_OK
    s_waitcnt lgkmcnt(0)
    v_cmp_eq_u32 vcc, -1, {v(rSC)}
    s_cbranch_vccnz L_XS
L_XS_OK:
    s_mov_b32 {SPIN}, {SPIN_MAX}
    """)


def red_dbg():
    if OPT["cy2"] == 2:
        cy2(1, 2)
        a("s_waitcnt vmcnt(0)")
        cy2(2, 2)


def red_collect(st, scale, mid):
    if not scale:
        cy2(0, 2)
    a("s_waitcnt vmcnt(2)")
    mid()
    l, l2 = a.newlabel("NR"), a.newlabel("NR")
    if scale and OPT["pol"]:
        add64(TB, EG, NEAR)
        a.c("read once the other XCDs' stores can have landed: an earlier read caches the sentinel and costs a second miss")
        a(f"s_sleep {OPT['early']}" if OPT["early"] else "s_waitcnt vmcnt(0)")
    else:
        if OPT["pol"]:
            a(f"s_cmp_lg_u32 {LAYER}, 0\ns_cbranch_scc1 {l}")
        near_probe()
        a(f"s_waitcnt vmcnt(0)\ns_branch {l2}")
        a.label(l)
        a.c("read once the other XCDs' stores can have landed: an earlier read caches the sentinel and costs a second miss")
        a(f"s_sleep {OPT['early']}" if OPT["early"] else "s_waitcnt vmcnt(0)")
        a.label(l2)
        add64(TB, EG, NEAR)
    poll([(f"global_load_dwordx4 {v(rR + 4 * i, 4)}, {v(rA)}, {sp(TB)} offset:{i * 1024} sc1", rR + 4 * i, 4)
          for i in range(2)], rT, 0, deep=OPT["d2"] & 8, pre=red_scale if scale else red_dbg)
    if not scale and OPT["cy2"] == 2:
        cy2(3, 2)
        a(f"s_sub_u32 s{STAMP0 + 8}, {SPIN_MAX + 1}, {SPIN}")
    a(f"v_pk_add_f32 {v(rL, 2)}, {v(rR, 2)}, {v(rR + 4, 2)}\nv_pk_add_f32 {v(rL + 2, 2)}, {v(rR + 2, 2)}, {v(rR + 6, 2)}")
    stamp(st)
    a(f"""
    v_permlane32_swap_b32 {v(rL)}, {v(rL + 2)}
    v_permlane32_swap_b32 {v(rL + 1)}, {v(rL + 3)}
    v_pk_add_f32 {v(rL, 2)}, {v(rL, 2)}, {v(rL + 2, 2)}
    v_mov_b32 {v(rL + 2)}, {v(rL)}
    v_mov_b32 {v(rL + 3)}, {v(rL + 1)}
    v_permlane16_swap_b32 {v(rL)}, {v(rL + 2)}
    v_permlane16_swap_b32 {v(rL + 1)}, {v(rL + 3)}
    v_pk_add_f32 {v(rL, 2)}, {v(rL, 2)}, {v(rL + 2, 2)}
    """)
    if scale:
        a(f"v_pk_mul_f32 {v(rL, 2)}, {v(rL, 2)}, {v(rSC, 2)} op_sel_hi:[1,0]")
    a(f"""
    v_cvt_pk_bf16_f32 {v(rL)}, {v(rL)}, {v(rL + 1)}
    v_and_b32 {v(rL + 1)}, 0xffff0000, {v(rL)}
    v_lshlrev_b32 {v(rL)}, 16, {v(rL)}
    v_pk_add_f32 {v(rL, 2)}, {v(rL, 2)}, {v(rX0, 2)}
    v_cvt_pk_bf16_f32 {v(rL)}, {v(rL)}, {v(rL + 1)}
    s_mov_b32 exec_lo, 0xffff
    s_mov_b32 exec_hi, 0xffff
    """)


def red_publish():
    local_test()
    a(f"v_min_u32 {v(rL + 1)}, -2, {v(rL)}")
    store_local(f"global_store_dword {v(rS)}, {v(rL + 1)}, {sp(EX)}")
    a(f"""
    s_mov_b64 exec, -1
    v_and_b32 {v(rX1)}, 0xffff0000, {v(rL)}
    v_lshlrev_b32 {v(rX0)}, 16, {v(rL)}
    """)


red_collect(6, False, lambda: red_dst(XA))
red_publish()
s_expr(T0, [(W, 4)], L_FLAG + 16)
a(f"v_mov_b32 v3, {T0}\nds_write_b32 v3, v0")
stamp(7)
a("s_branch L_DN")
CUT_B0 = len(a.out)
keep_in_page(0x500, jump=False)
a.label("L_DN")
dB, dA, dACC, dHA0, dHA1, dSA, dT, dT2, dX = 64, 48, 56, 3, 4, 5, 6, 7, 96
def red_stats():
    ln_stats(range(dX, dX + 20), 9, rSC, ["x1", "x2", "s16", "s32"], 10, dT2)
    a(f"v_rcp_f32 {v(rSC)}, {v(rSC)}")


lin(dHA0, 4, [], HB)
a(f"""
    s_cmp_eq_u32 {NU}, 6
    s_cselect_b32 {T1}, 2, 0
    v_or_b32 {v(dT)}, {T1}, v0
    v_lshrrev_b32 {v(dT2)}, 1, {v(dT)}
    v_and_b32 {v(dT)}, {v(dT)}, {v(dT2)}
    v_and_b32 {v(dT)}, 1, {v(dT)}
    v_lshlrev_b32 {v(dT)}, 4, {v(dT)}
    v_sub_u32 {v(dHA1)}, {v(dHA0)}, {v(dT)}
    v_add_u32 {v(dSA)}, {PBH}, {v(oSA)}
    v_add_u32 {v(rA)}, {PBH}, {v(rA)}
""")
op_load_b(L_WD)
zero(range(dACC, dACC + 8))
def dn_pre():
    if OPT["pro"] == 3:
        stamp(6)
    a(f"""
    v_mov_b32 v10, {L_FLAG + 24}
L_DNF:
    ds_read_b32 v9, v10
    s_sub_u32 {SPIN}, {SPIN}, 1
    s_cbranch_scc1 L_DNG
    s_waitcnt lgkmcnt(0)
    v_cmp_eq_u32 vcc, -1, v9
    s_cbranch_vccnz L_DNF
L_DNG:
    """)
    if OPT["pro"] == 3:
        stamp(4)
    b_reads(dB, oT, 4, 64, R32)
    a(f"""
    s_mov_b32 {SPIN}, {SPIN_MAX}
L_DNH:
    ds_read_b32 v9, v10 offset:4
    s_sub_u32 {SPIN}, {SPIN}, 1
    s_cbranch_scc1 L_DNI
    s_waitcnt lgkmcnt(0)
    v_cmp_eq_u32 vcc, -1, v9
    s_cbranch_vccnz L_DNH
L_DNI:
    v_readfirstlane_b32 {NEAR}, v9
    s_and_b32 {NEAR}, {NEAR}, 8192
    s_mov_b32 {SPIN}, {SPIN_MAX}
    """)
    if OPT["pro"] == 3:
        stamp(5)


poll([(f"global_load_dwordx4 {v(dA, 4)}, {v(dHA0)}, {sp(EX)} sc1", dA, 4),
      (f"global_load_dwordx4 {v(dA + 4, 4)}, {v(dHA1)}, {sp(EX)} offset:1024 sc1", dA + 4, 4)], dT2, OPT["p_dn"],
     pre=dn_pre, deep=OPT["d2"] & 1, longpre=True)
for n in range(4):
    u, q = n >> 1, n & 1
    a(f"{SMF} {v(dACC + 4 * q, 4)}, {v(dA + 4 * u, 4)}, {v(dB + 8 * n, 8)}, {v(IDX)}")
a(f"""
    s_and_b32 {T0}, {TILE}, 7
    s_cmp_lg_u32 {T0}, {G}
    s_cselect_b32 {T0}, {LAYER}, 0
    s_cmp_lg_u32 {T0}, 0
    v_add_f32 {v(dACC)}, {v(dACC)}, {v(dACC + 2)}
    v_add_f32 {v(dACC + 5)}, {v(dACC + 5)}, {v(dACC + 7)}
    v_add_f32 {v(dACC)}, {v(dACC)}, {v(dACC + 5)}
    v_min_u32 {v(dACC)}, -2, {v(dACC)}
""")
pb_store(dSA, dACC)
if DIAG and OPT["stamps"] & 2:
    stamp(1)
    a(f"s_cmp_lg_u32 {T0}, 0")
a("s_cbranch_scc1 L_FIN")


def red2_mid():
    red_dst(XF)
    s_expr(T0, [(TILE, 32)])
    lane_expr(6, 7, [(2, 2, 1280), (0, 2, 8), (5, 1, 4)], T0)


red_collect(2, True, red2_mid)
a(f"""
    s_cmp_eq_u32 {LAYER}, 0
    s_cbranch_scc1 L_RED2P
    global_store_dword v6, {v(rL)}, {sp(pOUT)}
    {"s_mov_b64 exec, -1" if DIAG or OPT["padto"] else ""}
    {"s_branch L_FIN" if DIAG or OPT["padto"] else "s_endpgm"}
L_RED2P:
""")
red_publish()
if OPT["prio"] == 2:
    a("s_sleep 6")
a("s_branch L_NEXT")

SEC_B = a.out[CUT_B0:]
del a.out[CUT_B0:]
keep_in_page(0xc60, jump=False)
for tag in ("", "V"):
    a(f"""
L_MXR{tag}:
    ds_read_b128 {v(cM, 4)}, {v(aMLR)} offset:64
    s_waitcnt lgkmcnt(0)
    s_sub_u32 {SPIN}, {SPIN}, 1
    s_cbranch_scc0 L_MXC{tag}
    s_branch L_MXD{tag}
    """)
a(f"""
L_E1:
    s_cmp_lg_u32 {ROLE}, 0
    s_cbranch_scc1 L_E2
    s_waitcnt vmcnt(0)
L_E2:
    s_cmp_ge_u32 {W}, 4
    s_branch L_YB
""")
a.label("L_VT")
v_tail()
a("s_nop 1\ns_branch L_PV")

a.label("L_STAGE")
if OPT["padfrom"] == 1:
    a("s_memrealtime s[100:101]")
a.c("stage this workgroup's role weights (L2 hits after the prefetch), then make them visible to every wave")
prostamp(0, 2)
a(f"s_cmp_lg_u32 {ROLE}, 0\ns_cbranch_scc1 L_RG_U")
s_expr(T0, [(FB0, 32 * 1280)])
add64(WOB, pWD, T0)
a(f"v_mov_b32 v41, {v(vDMA)}\ns_branch L_ROLE")
a.label("L_RG_U")
a("s_barrier")
a.c("other workgroups: one dword per 128-byte line of the W_gate / W_up columns of this group")
if OPT["nm"] + OPT["nt"] < 14:
    gu_prefetch(OPT["nm"] + OPT["nt"], 14)
if OPT["wdp"]:
    a.c("workgroups without a role also pull W_down in")
    a(f"s_cmp_lt_u32 {J}, 27\ns_cbranch_scc1 L_RG_G")
    s_expr(T1, [(J, 8), (W, 1)], -27 * 8)
    s_expr(T0, [(FB0, 32 * 1280)])
    add64(TB, pWD, T0)
    a(f"""
    s_mul_i32 {T0}, {T1}, {NU}
    s_lshl_b32 {T0}, {T0}, 3
    s_lshl_b32 {T1}, {NU}, 3
    s_sub_u32 {T1}, {T1}, 1
    v_min_u32 {v(vPF)}, {T1}, v0
    v_add_u32 {v(vPF)}, {T0}, {v(vPF)}
    v_lshlrev_b32 {v(vPF)}, 7, {v(vPF)}
    s_barrier
    global_load_dword {v(vDUM)}, {v(vPF)}, {sp(TB)}
    """)
a.label("L_RG_G")
prostamp(1, 2)
a(f"s_waitcnt vmcnt(0)\ns_cmp_lg_u32 {ROLE}, 1\ns_cbranch_scc1 L_ROLE2")
prostamp(2, 2)
for i in range(10):
    a(f"s_add_u32 m0, {T2L}, {i * 2 * R32}")
    a(f"global_load_lds_dwordx4 {v(vDMA)}, {sp(WOB)}")
    if i < 9:
        add64(WOB, WOB, 64 * 3456)
a("s_waitcnt vmcnt(0)\ns_barrier")
prostamp(5, 2)

a.label("L_ROLE2")
a("s_waitcnt vmcnt(0)")
a(f"""
    s_cmp_eq_u32 {PATH}, 2
    s_cbranch_scc1 L_HI
    s_cmp_eq_u32 {PATH}, 3
    s_cbranch_scc1 L_W2
""")
uB, uX, uACC, uS1, uONE, uXA, uSA, uCS, uT = 48, 28, 20, 16, 8, 3, 4, 5, 6
lin(uXA, 4, [], XA + 2048)


def up_setup():
    lane_expr(uSA, uCS, [(4, 1, 32), (1, 1, 16)])
    a(f"s_lshl_b32 {T0}, {W}, 4\nv_xor_b32 {v(uSA)}, {T0}, {v(uSA)}")
    b_addr(uT, uCS, 64, [(0, 1, 8), (1, 1, L_WU - L_WG)], L_WG, R32)
    a(f"v_add_u32 {v(uT)}, {v(uT)}, {v(uSA)}")
    for i in range(4):
        a(f"v_mov_b32 {v(uONE + i)}, {ONES}")
    zero(range(uS1, uS1 + 4))
    for n in range(10):
        for rho in range(4):
            off = 2 * R32 * n + (16 * (rho >> 1) + 2 * (rho & 1)) * 64
            a(f"ds_read_b64_tr_b16 {v(uB + 8 * n + 2 * rho, 2)}, {v(uT)} offset:{off}")
        if n >= 3:
            a("s_waitcnt lgkmcnt(12)")
            a(f"{SMF} {v(uS1, 4)}, {v(uONE, 4)}, {v(uB + 8 * (n - 3), 8)}, {v(IDX)}")
    a(f"""
    s_sub_u32 {T1}, {J}, 20
    s_lshr_b32 {T0}, {T1}, 2
    s_lshl_b32 {T0}, {T0}, 10
    s_and_b32 {T2}, {T1}, 2
    s_and_b32 {T1}, {T1}, 1
    """)
    s_expr(T0, [(T0, 1), (T2, 8), (T1, 32), (W, 256)], HB)
    lane_expr(uSA, uT, [(4, 2, 64), (1, 2, 4)], T0)
    zero(range(uACC, uACC + 8))
    for n in range(7, 10):
        a(f"s_waitcnt lgkmcnt({4 * (9 - n)})")
        a(f"{SMF} {v(uS1, 4)}, {v(uONE, 4)}, {v(uB + 8 * n, 8)}, {v(IDX)}")
    a(f"""
    v_add_f32 {v(uCS)}, {v(uS1)}, {v(uS1 + 2)}
    v_mul_f32 {v(uCS)}, {f32(1.0 / 640)}, {v(uCS)}
    """)
    stamp(7)


poll([(f"global_load_dwordx4 {v(uX + 4 * u, 4)}, {v(uXA)}, {sp(EX)} offset:{u * 1024 - 2048} sc1", uX + 4 * u, 4)
      for u in range(5)], uT, 0, pre=up_setup, slp=OPT["usl"], deep=OPT["d2"] & 16,
     each=lambda u: f"{MFMA} {v(uS1, 4)}, {v(uX + 4 * u, 4)}, {v(uONE, 4)}, {'0' if u == 0 else v(uS1, 4)}")
stamp(4)
for n in range(10):
    u, q = n >> 1, n & 1
    a(f"{SMF} {v(uACC + 4 * q, 4)}, {v(uX + 4 * u, 4)}, {v(uB + 8 * n, 8)}, {v(IDX)}")
    if n == 7:
        a(f"v_pk_add_f32 {v(uS1, 2)}, {v(uS1, 2)}, {v(uS1 + 2, 2)}")
    if n == 8:
        a(f"v_add_f32 {v(uS1)}, {v(uS1)}, {v(uS1 + 1)}")
a(f"s_mov_b32 s{MSK}, 0x00550055\ns_mov_b32 s{MSK + 1}, 0x00550055")
local_test()
a(f"""
    v_add_f32 {v(uACC)}, {v(uACC)}, {v(uACC + 2)}
    v_add_f32 {v(uACC + 5)}, {v(uACC + 5)}, {v(uACC + 7)}
    v_fma_f32 {v(uACC)}, -{v(uS1)}, {v(uCS)}, {v(uACC)}
    v_add_f32 {v(uACC)}, {v(uACC)}, {v(uACC + 5)}
    v_cvt_pk_bf16_f32 {v(uACC)}, {v(uACC)}, {v(uACC)}
    v_and_b32 {v(uACC)}, 0xffff0000, {v(uACC)}
    v_max_f32 {v(uACC + 1)}, 0, {v(uACC)}
    v_mul_f32_dpp {v(uACC + 1)}, {v(uACC)}, {v(uACC + 1)} row_ror:8 {DPP}
    v_mov_b32_dpp {v(uACC)}, {v(uACC + 1)} quad_perm:[1,1,3,3] {DPP}
    v_cvt_pk_bf16_f32 {v(uACC)}, {v(uACC + 1)}, {v(uACC)}
    v_min_u32 {v(uACC)}, -2, {v(uACC)}
    s_mov_b64 exec, {sp(MSK)}
""")
store_local(f"global_store_dword {v(uSA)}, {v(uACC)}, {sp(EX)}")
a("s_mov_b64 exec, -1")
stamp(5)
a.label("L_IDLE")
a(f"s_cmp_lg_u32 {LAYER}, 0\ns_cbranch_scc1 L_FIN")
a.label("L_NEXT")
a("s_waitcnt vmcnt(0)")
a(f"s_cmp_eq_u32 {W}, 3\ns_cbranch_scc1 L_HI")
att_addr(1)
att_init()
a("s_waitcnt lgkmcnt(0)")
a(f"s_mov_b32 {LAYER}, 1")
add64(EX, EX, LS)
a("s_branch L_BAR")

a.out += SEC_B

a.label("L_HI")
a(f"s_cmp_lg_u32 {LAYER}, 0\ns_cbranch_scc1 L_FIN")
a("s_waitcnt vmcnt(0)")
if OPT["hsl"]:
    a.c("nothing here is needed soon: leave the issue slots to the waves that finish attention and the out projection")
    a(f"s_cmp_lt_u32 {W}, 4\ns_cbranch_scc1 L_HI2\ns_sleep {OPT['hsl']}\nL_HI2:")
att_addr(1)
att_init()


def gate():
    a.c("stay off the L2 until the FFN activations are out")
    a(f"v_mov_b32 v62, {HB}")
    add64(TB, EX, -LS & 0xffffffff)
    a(f"s_sub_u32 s{TB + 1}, s{TB + 1}, 1")
    light(f"global_load_dword v61, v62, {sp(TB)} sc1", 61, 4)
    if OPT["gsl"]:
        a.c("x is still a cross-XCD reduce away: do not load the L2 with polls while the down projection reads h")
        a(f"s_sleep {OPT['gsl']}")


add64(EX, EX, LS)
a(f"s_cmp_eq_u32 {W}, 3\ns_cbranch_scc1 L_POLLER")
q = Q2M
qp_setup(q)
a(f"s_and_b32 {T1}, {J}, 3")
lin(q.XA0, 4, [(T1, 1280)], XF - LS)
lane_expr(q.XA1, q.T, [(2, 4, 16)], T0)
qp_saddr(q.SA, 1024)
a("s_waitcnt lgkmcnt(0)")
keep_in_page(0x160)
gate()
if OPT["prio"] == 1:
    a("s_setprio 2")
poll([(f"global_load_dwordx4 {v(q.X, 4)}, {v(q.XA0)}, {sp(EX)} sc1", q.X, 4),
      (f"global_load_dwordx4 {v(q.X + 4, 4)}, {v(q.XA1)}, {sp(EX)} offset:1024 sc1", q.X + 4, 4)], q.T, OPT["p_qp"], slp=OPT["qsl"], deep=OPT["d2"] & 2)
qp_mm(q)
stamp(4)
local_test()
qp_sum(q)
store_local(f"global_store_dword {v(q.SA)}, {v(q.A[0])}, {sp(pWS)}")
stamp(5)
a(f"s_setprio 0\ns_mov_b32 {LAYER}, 1\ns_branch L_BAR")

a.label("L_POLLER")
pX_ = 104
poller_qaddr(1024)
if OPT["warm"] & 1:
    for ins, _, _ in poller_qloads():
        a(ins)
s_expr(T0, [(BB, 64)], XF - LS)
lane_expr(96, pT, [(4, 2, 1280), (2, 2, 256), (0, 2, 16)], T0)
s_expr(T0, [(BB, 16)], XF - LS + 1024)
lane_expr(97, pT, [(4, 2, 1280), (2, 2, 64), (0, 2, 4)], T0)


def x_out_wait(tag, ra, rd):
    a(f"""
    v_mov_b32 {v(ra)}, {L_FLAG + 16}
    s_mov_b32 {SPIN}, {SPIN_MAX}
L_{tag}P:
    s_sleep 1
    ds_read_b64 {v(rd, 2)}, {v(ra)}
    s_sub_u32 {SPIN}, {SPIN}, 1
    s_cbranch_scc1 L_{tag}G
    s_waitcnt lgkmcnt(0)
    v_max_u32 {v(rd)}, {v(rd)}, {v(rd + 1)}
    v_cmp_eq_u32 vcc, -1, {v(rd)}
    s_cbranch_vccnz L_{tag}P
L_{tag}G:
    """)


keep_in_page(0x400)
a(f"s_cmp_lg_u32 {ROLE}, 0\ns_cbranch_scc1 L_W3E")
a.c("out/down workgroups: sentinel fill of the partial tiles of layer 2 (done before waves 0,1 publish again)")
a(f"s_lshr_b32 {T1}, {J}, 1\ns_and_b32 {T2}, {J}, 1")
s_expr(T0, [(T1, 16384), (T2, 4096), (G, 256)], 2 * PBH)
lane_expr(98, 99, [(5, 1, PBH), (4, 1, 2048), (0, 4, 16)], T0)
for i in range(4):
    a(f"v_mov_b32 {v(44 + i)}, -1")
x_out_wait("W3", 99, 100)
a.align(5)
a(f"global_store_dwordx4 v98, v[44:47], {sp(EG)} sc1\nglobal_store_dwordx4 v98, v[44:47], {sp(EG2)} sc1")
near_probe()
a(f"""
    v_mov_b32 v100, {NEAR}
    s_waitcnt vmcnt(0)
    ds_write_b32 v99, v100 offset:12
L_W3E:
""")
gate()
poll([(f"global_load_dwordx4 {v(pX_, 4)}, v96, {sp(EX)} sc1", pX_, 4),
      (f"global_load_dword {v(pX_ + 4)}, v97, {sp(EX)} sc1", pX_ + 4, 1)], pT, OPT["p_px"], slp=OPT["qsl"])
stamp(4)
poller_stats()
poller_bias()
stamp(5)
poll(poller_qloads(), pT, 0, deep=OPT["d2"] & 4)
stamp(6)
poller_finish()
a(f"""
    s_mov_b32 {LAYER}, 1
    v_mov_b32 v63, {CSC}
    s_mov_b32 exec_lo, 0x000f000f
    s_mov_b32 exec_hi, 0x000f000f
    s_waitcnt lgkmcnt(0)
    s_barrier
    s_branch L_BAR2
""")

keep_in_page(0x560, jump=False)
a.label("L_W2")
a(f"s_cmp_lg_u32 {ROLE}, 0\ns_cbranch_scc1 L_IDLE\ns_cmp_lg_u32 {LAYER}, 0\ns_cbranch_scc1 L_W2S")
a.c("wave 2 of out/down workgroups, layer 1: W_down into LDS once both tiles of x are out")
a(f"s_lshl_b32 {T0}, {J}, 6")
add64(WOB, WOB, T0)
x_out_wait("W2", 6, 8)
a.c("let wave 3's two stores enter the memory pipeline back to back")
a(f"s_sleep {OPT['fsl']}")
for n in range(14):
    if n == 12:
        a(f"s_cmp_eq_u32 {NU}, 6\ns_cbranch_scc1 L_W2D")
    a(f"s_mov_b32 m0, {L_WD + n * 1024 + (n >> 1) * 128}")
    if n:
        add64(WOB, WOB, 16 * 1280)
    a(f"global_load_lds_dwordx4 v41, {sp(WOB)}")
a(f"""
L_W2D:
    s_waitcnt vmcnt(0)
    ds_write_b32 v6, v6 offset:8
L_W2S:
""")
a.c("wave 2: variance of the four rows of x for the reduce waves")
lin(3, 4, [], XA + 2048)
lin(4, 2, [(LAYER, 64)], L_FLAG + 64)
a(f"v_mov_b32 v5, {XA}")
light(f"global_load_dword v6, v5, {sp(EX)} sc1", 6, 4)
poll([(f"global_load_dwordx4 {v(dX + 4 * u, 4)}, v3, {sp(EX)} offset:{u * 1024 - 2048} sc1", dX + 4 * u, 4)
      for u in range(5)], 7, 0, slp=3)
red_stats()
a(f"""
    v_min_u32 {v(rSC)}, -2, {v(rSC)}
    s_mov_b64 exec, 0xffff
    ds_write_b32 v4, {v(rSC)}
    s_mov_b64 exec, -1
    s_branch L_IDLE
""")

pX_ = 24
a.label("L_SLOW")
a.c("the group is spread over several XCDs: redo the sentinel fill and the q hand-off with write-through stores")
only_wave(2, "L_SL1")
for i in range(4):
    a(f"v_mov_b32 {v(44 + i)}, -1")
fill_local(" sc1", 44)
a("s_waitcnt vmcnt(0)")
a.label("L_SL1")
a(f"s_barrier\ns_cmp_lt_u32 {W}, 4\ns_cbranch_scc1 L_SL2")
qp_saddr(60, 0)
qp_saddr(61, 2048, 128)
a(f"""
    global_store_dword v60, v41, {sp(pWS)} sc1
    s_mov_b32 exec_hi, 0
    global_store_dword v61, v42, {sp(pWS)} sc1
    s_mov_b64 exec, -1
L_SL2:
""")
only_wave(2, "L_SL3")
lin(60, 2, [(G, 32 * MSTR), (J, MSTR)], MK)
a(f"""
    v_mov_b32 v61, 0x100
    s_mov_b64 exec, 1
    global_store_dword v60, v61, {sp(pWS)} sc1
    s_mov_b64 exec, -1
L_SL3:
""")
only_wave(3, "L_SL4")
s_expr(T0, [(G, 32 * MSTR)], MK)
a(f"""
    v_and_b32 v17, 31, v0
    v_lshl_add_u32 v17, v17, 4, {T0}
    s_mov_b32 {SPIN}, {SPIN_MAX}
    s_mov_b32 {T1}, 0x100
L_SL5:
    global_load_dword v18, v17, {sp(pWS)} sc1
    s_waitcnt vmcnt(0)
    v_cmp_ne_u32 vcc, {T1}, v18
    s_cbranch_vccz L_SL6
    s_sub_u32 {SPIN}, {SPIN}, 1
    s_cbranch_scc0 L_SL5
L_SL6:
""")
q1_loads()
a("s_waitcnt vmcnt(0)")
q1_collect("S")
a("s_waitcnt lgkmcnt(0)")
a.label("L_SL4")
a("s_barrier\ns_branch L_SLOW_RET")

a.label("L_FIN")
if OPT["padto"]:
    a(f"""
L_PAD:
    s_sleep 4
    s_memrealtime s[98:99]
    s_waitcnt lgkmcnt(0)
    s_sub_u32 s98, s98, s100
    s_cmp_lt_u32 s98, {OPT["padto"] * 100}
    s_cbranch_scc1 L_PAD
    """)
if DIAG:
    a("s_memrealtime s[98:99]\ns_memtime s[50:51]\ns_waitcnt lgkmcnt(0)\nv_mov_b32 v1, 0\ns_sub_u32 s50, s50, s100\nv_writelane_b32 v1, s50, 21")
    for i in range(16):
        a(f"v_writelane_b32 v1, s{STAMP0 + 2 * i}, {(i // 8) * 10 + i % 8}")
    a(f"""
    v_writelane_b32 v1, s100, 9
    v_writelane_b32 v1, s98, 19
    v_writelane_b32 v1, {LOCAL}, 20
    s_lshl_b32 {T0}, s2, 3
    s_add_u32 {T0}, {T0}, {W}
    s_lshl_b32 {T0}, {T0}, 8
    s_add_u32 {T0}, {T0}, {DIAG_OFF}
    v_lshl_add_u32 v2, v0, 2, {T0}
    global_store_dword v2, v1, {sp(pWS)}
    """)
a.label("L_END")
a("s_endpgm")

a.raw(f""".section .rodata,"a"
.p2align 6
.amdhsa_kernel {NAME}_kernel
  .amdhsa_next_free_vgpr 256
  .amdhsa_next_free_sgpr 102
  .amdhsa_accum_offset 256
  .amdhsa_group_segment_fixed_size 0
  .amdhsa_kernarg_size 96
  .amdhsa_user_sgpr_count 2
  .amdhsa_user_sgpr_kernarg_segment_ptr 1
  .amdhsa_system_sgpr_workgroup_id_x 1
  .amdhsa_float_denorm_mode_32 3
.end_amdhsa_kernel""")

open(sys.argv[1], "w").write(a.text())
if OPT["a8"]:
    import align8
    print("aligned / left misaligned:", align8.fix(sys.argv[1]))
print("written", sys.argv[1], "lines", len(a.out), "pad states", a.nops)
```
